```python
import torch

def _softmax(x, axis=-1):
    return torch.softmax(x, dim=axis)

def _gelu(x):
    return torch.nn.functional.gelu(x, approximate='tanh')

def _silu(x):
    return torch.nn.functional.silu(x)

def _sigmoid(x):
    return torch.sigmoid(x)

def _layernorm(x, axis=-1, eps=1e-05):
    m = x.mean(dim=axis, keepdim=True)
    v = x.var(dim=axis, keepdim=True, unbiased=False)
    return (x - m) / torch.sqrt(v + eps)

def _scatter_add(tgt, idx, src, axis=0):
    return tgt.clone().index_add_(axis, idx, src)

def _segment_sum(src, seg, n):
    out = torch.zeros((n,) + src.shape[1:], dtype=src.dtype)
    return out.index_add_(0, seg, src)

def _pad(x, pw):
    flat = tuple((v for pair in reversed(pw) for v in pair))
    return torch.nn.functional.pad(x, flat)
kernel_name = 'adaLN_cond__sliding_block__glu_gated_reglu__prompt'

def setup_inputs():

    _w = lambda a: (lambda t: t.to(torch.bfloat16) if t.is_floating_point() else t)(torch.as_tensor(a))

    def _A_setup():
        B, S, D = (1, 2048, 448)
        return {'x': _w((lambda *s: torch.randn(*s, dtype=torch.bfloat16) * 0.05)(B, S, D)), 'wqkv': _w((lambda *s: torch.randn(*s, dtype=torch.bfloat16) * 0.05)(D, 3 * D)), 'wo': _w((lambda *s: torch.randn(*s, dtype=torch.bfloat16) * 0.05)(D, D))}
    _A_in = _A_setup()

    def _B_setup():
        B, S, D, F = (1, 2048, 448, 1792)
        return {'x': _w((lambda *s: torch.randn(*s, dtype=torch.bfloat16) * 0.05)(B, S, D)), 'W_gate': _w((lambda *s: torch.randn(*s, dtype=torch.bfloat16) * 0.8)(D, F) * (2.0 / D) ** 0.5), 'W_up': _w((lambda *s: torch.randn(*s, dtype=torch.bfloat16) * 0.8)(D, F) * (2.0 / D) ** 0.5), 'W_down': _w((lambda *s: torch.randn(*s, dtype=torch.bfloat16) * 0.8)(F, D) * (1.0 / F) ** 0.5)}
    _B_in = _B_setup()
    return {'A_x': _A_in['x'], 'A_wqkv': _A_in['wqkv'], 'A_wo': _A_in['wo'], 'B_x': _B_in['x'], 'B_W_gate': _B_in['W_gate'], 'B_W_up': _B_in['W_up'], 'B_W_down': _B_in['W_down'], 'c': _w((lambda *s: torch.randn(*s, dtype=torch.bfloat16) * 0.1)(1, 448) * 8.0), 'w_mod': _w((lambda *s: torch.randn(*s, dtype=torch.bfloat16) * 0.1)(448, 6 * 448) * 448 ** (-0.5) * 8.0)}

def reference(A_x, A_wqkv, A_wo, B_x, B_W_gate, B_W_up, B_W_down, c, w_mod):

    def _A_ref(x, wqkv, wo):
        B, S, D = x.shape
        H = 16
        Dh = D // H
        W = 256
        qkv = (lambda x, *d: x.permute(*d))((x @ wqkv).reshape(B, S, 3, H, Dh), 2, 0, 3, 1, 4)
        q, k, v = (qkv[0], qkv[1], qkv[2])
        scores = torch.einsum('bhqd,bhkd->bhqk', q, k) * Dh ** (-0.5)
        idx = torch.arange(S)
        mask = (idx[:, None] - idx[None, :] >= 0) & (idx[:, None] - idx[None, :] < W)
        scores = torch.where(mask[None, None], scores, -1000000000.0)
        p = _softmax(scores, axis=-1)
        o = torch.einsum('bhqk,bhkd->bhqd', p, v)
        return (lambda x, *d: x.permute(*d))(o, 0, 2, 1, 3).reshape(B, S, D) @ wo

    def _B_ref(x, W_gate, W_up, W_down):
        gate = torch.einsum('bsd,df->bsf', x, W_gate)
        up = torch.einsum('bsd,df->bsf', x, W_up)
        gate = gate * (lambda x, dt: x.to(dt))(gate > 0, gate.dtype)
        h = gate * up
        return torch.einsum('bsf,fd->bsd', h, W_down)
    x = A_x
    mod = (_silu(c) @ w_mod).reshape(c.shape[0], 6, 1, -1)
    sa, ca, ga, sb, cb, gb = (mod[:, 0].clone(), mod[:, 1].clone(), mod[:, 2].clone(), mod[:, 3].clone(), mod[:, 4].clone(), mod[:, 5].clone())
    h = _layernorm(x, axis=-1) * (1 + ca) + sa
    x = x + ga * _A_ref(h, A_wqkv, A_wo)
    h = _layernorm(x, axis=-1) * (1 + cb) + sb
    x = x + gb * _B_ref(h, B_W_gate, B_W_up, B_W_down)
    return x
```

```python
import re

_REG = re.compile(r"^-?\|?([vas])(\d+)\|?$")
_RNG = re.compile(r"^-?([vas])\[(\d+):(\d+)\]$")


def regs_of(tok):
    tok = tok.strip()
    m = _REG.match(tok)
    if m:
        return [(m.group(1), int(m.group(2)))]
    m = _RNG.match(tok)
    if m:
        return [(m.group(1), i) for i in range(int(m.group(2)), int(m.group(3)) + 1)]
    if tok == "vcc":
        return [("s", "vcc_lo"), ("s", "vcc_hi")]
    if tok in ("vcc_lo", "vcc_hi", "m0", "exec_lo", "exec_hi"):
        return [("s", tok)]
    if tok == "exec":
        return [("s", "exec_lo"), ("s", "exec_hi")]
    return []


TRANS = ("v_exp_f32", "v_log_f32", "v_rcp_f32", "v_rsq_f32", "v_sqrt_f32", "v_sin_f32", "v_cos_f32")
NO_DST_SALU = ("s_cmp", "s_waitcnt", "s_barrier", "s_branch", "s_cbranch", "s_nop", "s_endpgm", "s_setprio",
               "s_sleep", "s_bitcmp")


class Ins:
    __slots__ = ("text", "op", "kind", "w", "r", "a", "b", "c", "passes", "wide_store", "states", "dpp")

    def __init__(self, text):
        self.text = text
        t = text.split(";")[0].strip()
        self.w, self.r, self.a, self.b, self.c = set(), set(), set(), set(), set()
        self.passes = 0
        self.wide_store = set()
        self.states = 1
        self.dpp = False
        if not t or t.endswith(":") or t.startswith("."):
            self.op, self.kind, self.states = t, "label" if t.endswith(":") else "dir", 0
            return
        bracket_mods = " ".join(re.findall(r"\b[a-z_0-9]+:\[[^\]]*\]", t))
        t = re.sub(r"\b[a-z_0-9]+:\[[^\]]*\]", "", t)
        t = re.sub(r"hwreg\([^)]*\)", "hwreg", t)
        parts = t.split(None, 1)
        op = self.op = parts[0]
        ops, mods = [], bracket_mods
        if len(parts) > 1:
            ops = [x.strip() for x in parts[1].split(",")]
            last = ops[-1].split()
            ops[-1] = last[0] if last else ""
            mods += " " + " ".join(last[1:])
        R = lambda i: set(regs_of(ops[i])) if i < len(ops) else set()
        if op.startswith("v_mfma"):
            self.kind = "mfma"
            self.w, self.a, self.b, self.c = R(0), R(1), R(2), R(3)
            self.r = self.a | self.b | self.c
            self.passes = 8 if "32x32x16" in op else 4
        elif op.startswith("v_"):
            self.kind = "trans" if op.replace("_e32", "").replace("_e64", "") in TRANS else "valu"
            self.w = R(0)
            for i in range(1, len(ops)):
                self.r |= R(i)
            if op.startswith("v_permlane"):
                self.w |= R(1)
                self.r |= R(0)
            if op.startswith(("v_fmac", "v_dot2c", "v_writelane")) or "dpp" in op:
                self.r |= R(0)
            if op.startswith(("v_add_co", "v_addc_co", "v_sub_co")):
                self.w |= R(1)
            if "dpp" in op or "quad_perm" in mods or "row_" in mods:
                self.dpp = True
        elif op.startswith("ds_"):
            self.kind = "ds"
            if op.startswith("ds_read") or op.startswith("ds_bpermute") or op.startswith("ds_swizzle"):
                self.w = R(0)
                for i in range(1, len(ops)):
                    self.r |= R(i)
            else:
                for i in range(len(ops)):
                    self.r |= R(i)
        elif op.startswith(("buffer_", "global_")):
            self.kind = "vmem"
            if op in ("buffer_wbl2", "buffer_inv"):
                pass
            elif "load" in op and (" lds" in " " + mods or "_lds_" in op):
                for i in range(len(ops)):
                    self.r |= R(i)
                self.r.add(("s", "m0"))
            elif "load" in op:
                self.w = R(0)
                for i in range(1, len(ops)):
                    self.r |= R(i)
            else:
                for i in range(len(ops)):
                    self.r |= R(i)
                if op.endswith(("x3", "x4")):
                    self.wide_store = R(0) if op.startswith("buffer_") else R(1)
        elif op.startswith("s_"):
            self.kind = "salu"
            if op == "s_nop":
                self.states = int(ops[0]) + 1
            elif op.startswith(NO_DST_SALU):
                for i in range(len(ops)):
                    self.r |= R(i)
            else:
                self.w = R(0)
                for i in range(1, len(ops)):
                    self.r |= R(i)
                if "saveexec" in op:
                    self.w |= {("s", "exec_lo"), ("s", "exec_hi")}
        else:
            raise ValueError("unknown instruction: " + text)


def need_states(p, c):
    n = 0
    isv = lambda s: {x for x in s if x[0] in "va"}
    iss = lambda s: {x for x in s if x[0] == "s"}
    valu_p = p.kind in ("valu", "trans")
    valu_c = c.kind in ("valu", "trans")
    if p.kind == "mfma":
        big = p.passes == 8
        if c.kind == "mfma":
            if p.w & (c.a | c.b):
                n = max(n, 12 if big else 8)
            if p.w & c.c and not (p.w == c.c and p.passes == c.passes):
                n = max(n, 10 if big else 6)
            if p.w & c.w and not (p.w == c.c and p.passes == c.passes):
                n = max(n, 10 if big else 6)
        elif valu_c or c.kind in ("ds", "vmem"):
            if p.w & (c.r | c.w):
                n = max(n, 12 if big else 8)
            if valu_c and p.c & c.w:
                n = max(n, 7 if big else 3)
    if valu_p:
        wv, ws = isv(p.w), iss(p.w)
        if c.kind == "mfma" and wv & c.r:
            n = max(n, 2)
        if valu_c:
            if c.op.startswith(("v_readlane", "v_readfirstlane")) and wv & c.r:
                n = max(n, 1)
            if c.op.startswith("v_permlane") and wv & c.r:
                n = max(n, 2)
            if c.dpp and wv & c.r:
                n = max(n, 2)
            if p.kind == "trans" and wv & c.r:
                n = max(n, 1)
            if ws & c.r:
                n = max(n, 4 if c.op.startswith(("v_readlane", "v_writelane")) else 2)
            if p.op.startswith("v_dot") and wv & (c.r | c.w) and p.op != c.op:
                n = max(n, 3)
            if "sdwa" in p.op and wv & (c.r | c.w):
                n = max(n, 1)
        if c.kind == "vmem" and ws & c.r:
            n = max(n, 5)
        if c.kind == "salu" and ws & c.r:
            n = max(n, 1)
    if p.kind == "salu" and ("s", "m0") in p.w and c.kind == "vmem" and ("s", "m0") in c.r:
        n = max(n, 1)
    if p.wide_store and p.wide_store & c.w:
        n = max(n, 2 if valu_c else 1)
    return n


class Asm:
    def __init__(self):
        self.ins = []
        self.vm_n = 0
        self.vm_done = 0
        self.lg_n = 0
        self.lg_done = 0
        self.uid = 0

    def __call__(self, text):
        for line in text.split("\n"):
            line = line.strip()
            if not line:
                continue
            i = Ins(line)
            self.ins.append(i)
            if i.kind == "vmem":
                self.vm_n += 1
            elif i.kind == "ds":
                self.lg_n += 1
        return self

    def label(self, base):
        self.uid += 1
        return f"L_{base}_{self.uid}"

    def vm(self, text):
        self(text)
        return self.vm_n

    def lg(self, text):
        self(text)
        return self.lg_n

    def wait(self, vm=None, lg=None):
        parts = []
        if vm is not None and vm > self.vm_done:
            n = min(self.vm_n - vm, 63)
            parts.append(f"vmcnt({n})")
            self.vm_done = self.vm_n - n
        if lg is not None and lg > self.lg_done:
            n = min(self.lg_n - lg, 15)
            parts.append(f"lgkmcnt({n})")
            self.lg_done = self.lg_n - n
        if parts:
            self("s_waitcnt " + " ".join(parts))

    def wait_all(self, vm=True, lg=True):
        parts = []
        if vm:
            parts.append("vmcnt(0)")
            self.vm_done = self.vm_n
        if lg:
            parts.append("lgkmcnt(0)")
            self.lg_done = self.lg_n
        self("s_waitcnt " + " ".join(parts))

    def text(self):
        out = []
        hist = []
        nops = 0
        for c in self.ins:
            if c.kind in ("label", "dir"):
                out.append(c.text)
                continue
            need, dist = 0, 0
            for p in reversed(hist):
                if dist >= 20:
                    break
                k = need_states(p, c)
                if k - dist > need:
                    need = k - dist
                dist += p.states
            if need > 0:
                nop = Ins(f"s_nop {need - 1}")
                out.append("    " + nop.text)
                hist.append(nop)
                nops += 1
            out.append("    " + c.text)
            hist.append(c)
            if len(hist) > 40:
                del hist[:10]
        self.nops = nops
        return "\n".join(out)


def v(i, n=1):
    return f"v{i}" if n == 1 else f"v[{i}:{i + n - 1}]"


def a_(i, n=1):
    return f"a{i}" if n == 1 else f"a[{i}:{i + n - 1}]"


def s(i, n=1):
    return f"s{i}" if n == 1 else f"s[{i}:{i + n - 1}]"
```

```python
import sys
from asmlib import Asm, v, a_, s

NAME = "adaLN_cond__sliding_block__glu_gated_reglu__prompt"
KNAME = NAME + "_kernel"

TILE_B = 28672
HT_B = 114688
QO, KO, VO, OO, YO, HO, STO, LFO = 0, 0x38000, 0x70000, 0xA8000, 0xE0000, 0x118000, 0x1F8000, 0x1FF000
XCCO, MODO, RFO, PROF = 0x400, 0x1000, 0x8000, 0x100000
WS_BYTES = 0x1400000
OOB = 0x7F000000
SPIN_MAX = 1 << 18

LA, LB, LC, LD = 0, 57344, 114688, 159744
LDS_BYTES = 163840
L_KV = LC
L_XB = LC
L_AUG = LC + 40960
L_T2 = LD
L_F = LC

SX, SWQKV, SWO, SWG, SWU, SWD, SOUT, SWS, SWMOD, SC = 4, 8, 12, 16, 20, 24, 28, 32, 36, 40
sG, sM, sW, sTAG, sGB, sRQ, sCB, sXCC, sSPIN = 44, 45, 46, 47, 48, 49, 50, 51, 52
sT0, sT1, sT2, sT3, sT4, sT5, sT6, sT7 = 53, 54, 55, 56, 57, 58, 59, 60
sRT, sCH, sTILE = 61, 62, 63
sMASK = 64
sST = 96
sP0, sP1 = 98, 100

vL16, vSTAMP = 1, 7
vZ = 32
vX2, vGBP = 240, 248

QSCALE = 28 ** -0.5 * 1.4426950408889634


def f2u(x):
    import struct
    return struct.unpack("<I", struct.pack("<f", x))[0]


def srd(i):
    return s(i, 4)


class Gen:
    def __init__(self, prof=False, stop=None, opts=None):
        self.a = Asm()
        self.prof = prof
        self.stop = stop
        self.o = opts or {}
        self.tail = []
        self.slow = False

    def stamp(self, i):
        if not self.prof:
            return
        a = self.a
        a(f"s_memrealtime {s(sST, 2)}")
        a.wait_all(vm=False)
        a(f"v_writelane_b32 {v(vSTAMP)}, {s(sST)}, {i}")

    def dma(self, vaddr, sr, lds_base, lds_off, src_base, src_off, sc1=False, imm=0):
        a = self.a
        lo = lds_off - imm
        if lds_base is None:
            a(f"s_mov_b32 m0, {lo}")
        else:
            a(f"s_add_u32 m0, {s(lds_base)}, {lo}" if lo >= 0 else f"s_sub_u32 m0, {s(lds_base)}, {-lo}")
        if src_off:
            a(f"s_add_u32 {s(sT7)}, {s(src_base)}, {src_off}")
            so = sT7
        else:
            so = src_base
        return a.vm(f"buffer_load_dwordx4 {v(vaddr)}, {srd(sr)}, {s(so)} offen"
                    + (f" offset:{imm}" if imm else "") + (" sc1" if sc1 else "") + " lds")

    def st(self):
        return " sc1" if self.slow else ""

    def poll(self, loads, tagregs, exec_lo=None, exec_hi=None):
        a = self.a
        L = a.label("poll")
        if exec_lo is not None:
            a(f"s_mov_b32 exec_lo, {exec_lo:#x}")
        if exec_hi is not None:
            a(f"s_mov_b32 exec_hi, {exec_hi:#x}")
        a(f"s_mov_b32 {s(sSPIN)}, 0")
        a(f"{L}:")
        for t in loads:
            a(t)
        a(f"s_add_u32 {s(sSPIN)}, {s(sSPIN)}, 1")
        a(f"s_cmp_gt_u32 {s(sSPIN)}, {SPIN_MAX}")
        a("s_cbranch_scc1 L_abort")
        a.wait_all(lg=False)
        a(f"v_cmp_ne_u32 vcc, {s(sTAG)}, {v(tagregs[0])}")
        for r in tagregs[1:]:
            a(f"v_cmp_ne_u32 {s(sP0, 2)}, {s(sTAG)}, {v(r)}")
            a(f"s_or_b64 vcc, vcc, {s(sP0, 2)}")
        a(f"s_cbranch_vccnz {L}")
        if exec_lo is not None or exec_hi is not None:
            a("s_mov_b64 exec, -1")

    def local_flag(self, phase, vt):
        a = self.a
        a(f"s_lshl_b32 {s(sT0)}, {s(sM)}, 4")
        a(f"s_lshl_b32 {s(sT1)}, {s(sW)}, 2")
        a(f"s_add_u32 {s(sT0)}, {s(sT0)}, {s(sT1)}")
        a(f"s_add_u32 {s(sT0)}, {s(sT0)}, {LFO + phase * 512}")
        a(f"v_mov_b32 {v(vt)}, {s(sT0)}")
        a(f"v_mov_b32 {v(vt + 1)}, {s(sTAG)}")
        a.wait_all(lg=False)
        a("s_mov_b64 exec, 1")
        a(f"buffer_store_dword {v(vt + 1)}, {v(vt)}, {srd(SWS)}, {s(sGB)} offen{self.st()}")
        a("s_mov_b64 exec, -1")

    def poll_local(self, phase, nprod, vt):
        a = self.a
        a(f"v_lshrrev_b32 {v(vt)}, 1, {v(vL16)}")
        a(f"s_add_u32 {s(sT0)}, {s(sGB)}, {LFO + phase * 512}")
        self.poll([f"buffer_load_dwordx2 {v(vt + 2, 2)}, {v(vt)}, {srd(SWS)}, {s(sT0)} offen sc1"], [vt + 2, vt + 3],
                  exec_hi=None if nprod == 32 else 0x00FFFFFF)

    def tr_pattern(self, vd, vt, perm, ct_sgpr=None, ct_imm=0):
        a = self.a
        a(f"v_lshrrev_b32 {v(vt)}, 4, {v(vL16)}")
        a(f"v_bfe_u32 {v(vt + 1)}, {v(vt)}, 2, 2")
        a(f"v_lshrrev_b32 {v(vt + 2)}, 5, {v(vt)}")
        a(f"v_lshl_add_u32 {v(vt + 2)}, {v(vt + 2)}, 3, {v(vt + 1)}")
        a(f"v_lshlrev_b32 {v(vd)}, 7, {v(vt + 2)}")
        a(f"v_lshrrev_b32 {v(vt + 1)}, 1, {v(vt + 1)}")
        a(f"v_lshlrev_b32 {v(vt + 1)}, 6, {v(vt + 1)}")
        if perm:
            a(f"v_and_b32 {v(vt + 2)}, 1, {v(vt)}")
            a(f"v_lshlrev_b32 {v(vt + 2)}, 4, {v(vt + 2)}")
            a(f"v_xor_b32 {v(vt + 1)}, {v(vt + 1)}, {v(vt + 2)}")
            a(f"v_and_b32 {v(vt + 2)}, 2, {v(vt)}")
            a(f"v_lshlrev_b32 {v(vt + 2)}, 2, {v(vt + 2)}")
        else:
            a(f"v_and_b32 {v(vt + 2)}, 3, {v(vt)}")
            a(f"v_lshlrev_b32 {v(vt + 2)}, 3, {v(vt + 2)}")
        a(f"v_xor_b32 {v(vt + 1)}, {v(vt + 1)}, {v(vt + 2)}")
        a(f"v_and_b32 {v(vt + 2)}, 16, {v(vt)}")
        a(f"v_lshlrev_b32 {v(vt + 2)}, 1, {v(vt + 2)}")
        a(f"v_xor_b32 {v(vt + 1)}, {v(vt + 1)}, {v(vt + 2)}")
        if ct_sgpr is not None:
            a(f"s_lshl_b32 {s(sT0)}, {s(ct_sgpr)}, 6")
            a(f"v_xor_b32 {v(vt + 1)}, {s(sT0)}, {v(vt + 1)}")
        elif ct_imm:
            a(f"v_xor_b32 {v(vt + 1)}, {ct_imm * 64}, {v(vt + 1)}")
        a(f"v_add_u32 {v(vd)}, {v(vd)}, {v(vt + 1)}")

    def w_dma_pattern(self, vd, vt, stride, up=False):
        a = self.a
        a(f"v_lshrrev_b32 {v(vt)}, 7, {v(vL16)}")
        a(f"v_mul_u32_u24 {v(vd)}, {stride}, {v(vt)}")
        a(f"v_and_b32 {v(vt)}, 2, {v(vt)}")
        a(f"v_lshlrev_b32 {v(vt)}, 5, {v(vt)}")
        a(f"v_and_b32 {v(vt + 1)}, 0x70, {v(vL16)}")
        a(f"v_xor_b32 {v(vt)}, {v(vt)}, {v(vt + 1)}")
        if up:
            a(f"v_xor_b32 {v(vt)}, 32, {v(vt)}")
        a(f"v_add_u32 {v(vd)}, {v(vd)}, {v(vt)}")

    def tr2(self, dst, vaddr, off):
        f = v if dst[0] == "v" else a_
        self.a.lg(f"ds_read_b64_tr_b16 {f(dst[1], 2)}, {v(vaddr)} offset:{off}")
        return self.a.lg(f"ds_read_b64_tr_b16 {f(dst[1] + 2, 2)}, {v(vaddr)} offset:{off + 512}")

    def both_halves(self, vx, vt, op):
        a = self.a
        a(f"v_mov_b32 {v(vt)}, {v(vx)}")
        a(f"v_permlane32_swap_b32 {v(vt)}, {v(vx)}")
        a(f"{op} {v(vx)}, {v(vx)}, {v(vt)}")

    def finish(self):
        self.a("s_branch L_end")

    def entry(self):
        a = self.a
        a("s_cmp_ge_u32 s2, 256")
        a("s_cbranch_scc1 L_exit")
        a(f"s_load_dwordx2 {s(SWS, 2)}, s[0:1], 88")
        a(f"s_load_dwordx2 {s(SX, 2)}, s[0:1], 0")
        a(f"s_load_dwordx2 {s(SWQKV, 2)}, s[0:1], 8")
        a(f"s_load_dwordx2 {s(SWMOD, 2)}, s[0:1], 64")
        a(f"s_load_dwordx2 {s(SC, 2)}, s[0:1], 56")
        a(f"s_load_dwordx2 {s(SWO, 2)}, s[0:1], 16")
        a(f"s_load_dwordx2 {s(SWG, 2)}, s[0:1], 32")
        a(f"s_load_dwordx2 {s(SWU, 2)}, s[0:1], 40")
        a(f"s_load_dwordx2 {s(SWD, 2)}, s[0:1], 48")
        a(f"s_load_dwordx2 {s(SOUT, 2)}, s[0:1], 72")
        if self.prof:
            a(f"v_mov_b32 {v(vSTAMP)}, 0")
            a(f"s_memrealtime {s(sST, 2)}")
        a(f"v_lshrrev_b32 v2, 6, v0")
        a(f"v_and_b32 v3, 63, v0")
        a(f"v_readfirstlane_b32 {s(sW)}, v2")
        a(f"v_lshlrev_b32 {v(vL16)}, 4, v3")
        a(f"s_and_b32 {s(sG)}, s2, 7")
        a(f"s_lshr_b32 {s(sM)}, s2, 3")
        a(f"s_getpc_b64 {s(sP0, 2)}")
        a("L_pc:")
        a(f"s_lshl_b32 {s(sT0)}, {s(sM)}, 2")
        a(f"s_add_u32 {s(sT0)}, {s(sT0)}, {s(sW)}")
        a(f"s_lshl_b32 {s(sT0)}, {s(sT0)}, 9")
        a(f"v_lshl_add_u32 v4, v3, 7, {s(sT0)}")
        a("v_min_u32 v4, L_fast_end-L_pc-4, v4")
        a("s_mov_b64 exec, 15")
        a.vm(f"global_load_dword v5, v4, {s(sP0, 2)}")
        a("s_mov_b64 exec, -1")
        for r, n in ((SX, 2048 * 896), (SWQKV, 448 * 2688), (SWO, 448 * 896), (SWG, 448 * 3584), (SWU, 448 * 3584),
                     (SWD, 1792 * 896), (SOUT, 2048 * 896), (SWS, WS_BYTES), (SWMOD, 448 * 5376), (SC, 896)):
            a(f"s_mov_b32 {s(r + 2)}, {n:#x}")
            a(f"s_mov_b32 {s(r + 3)}, 0x20000")
        a(f"s_getreg_b32 {s(sXCC)}, hwreg(HW_REG_XCC_ID, 0, 4)")
        a(f"s_add_u32 {s(sGB)}, {s(sG)}, 1")
        a(f"s_lshl_b32 {s(sGB)}, {s(sGB)}, 21")
        a(f"s_mul_i32 {s(sRQ)}, {s(sM)}, 37")
        a(f"s_lshr_b32 {s(sRQ)}, {s(sRQ)}, 8")
        a(f"s_mul_i32 {s(sT0)}, {s(sRQ)}, 7")
        a(f"s_sub_u32 {s(sCB)}, {s(sM)}, {s(sT0)}")
        a(f"s_lshr_b32 {s(sRT)}, {s(sW)}, 1")
        a(f"s_and_b32 {s(sCH)}, {s(sW)}, 1")
        a(f"s_lshl_b32 {s(sTILE)}, {s(sRQ)}, 1")
        a(f"s_add_u32 {s(sTILE)}, {s(sTILE)}, {s(sRT)}")
        a("s_waitcnt lgkmcnt(0)")
        if self.prof:
            a(f"v_writelane_b32 {v(vSTAMP)}, {s(sST)}, 0")
        a(f"s_load_dword {s(sTAG)}, {s(SWS, 2)}, 0")
        a(f"s_cmp_ge_u32 {s(sM)}, 28")
        a("s_cbranch_scc1 L_helper")

    def make_tag_and_publish_xcc(self, vt):
        a = self.a
        a.wait_all(vm=False)
        a(f"s_mul_i32 {s(sTAG)}, {s(sTAG)}, 1664525")
        a(f"s_add_u32 {s(sTAG)}, {s(sTAG)}, 1013904223")
        a(f"s_lshl_b32 {s(sT0)}, {s(sG)}, 8")
        a(f"s_lshl_b32 {s(sT1)}, {s(sM)}, 3")
        a(f"s_add_u32 {s(sT0)}, {s(sT0)}, {s(sT1)}")
        a(f"v_mov_b32 {v(vt)}, {s(sXCC)}")
        a(f"v_mov_b32 {v(vt + 1)}, {s(sTAG)}")
        a(f"v_mov_b32 {v(vt + 2)}, {XCCO}")
        a(f"s_cmp_eq_u32 {s(sW)}, 0")
        a("s_cselect_b64 exec, 1, 0")
        a.vm(f"buffer_store_dwordx2 {v(vt, 2)}, {v(vt + 2)}, {srd(SWS)}, {s(sT0)} offen sc1")
        a("s_mov_b64 exec, -1")

    def xcc_load(self, vaddr, vd):
        a = self.a
        a(f"v_and_b32 {v(vaddr)}, 0x1f0, {v(vL16)}")
        a(f"v_lshrrev_b32 {v(vaddr)}, 1, {v(vaddr)}")
        a(f"s_lshl_b32 {s(sT6)}, {s(sG)}, 8")
        return f"buffer_load_dwordx2 {v(vd, 2)}, {v(vaddr)}, {srd(SWS)}, {s(sT6)} offen offset:{XCCO} sc1"

    def choose_mode(self, vd, slow_label):
        a = self.a
        a(f"v_cmp_ne_u32 vcc, {s(sXCC)}, {v(vd)}")
        if self.o.get("force_slow"):
            a(f"s_branch {slow_label}")
        else:
            a(f"s_cbranch_vccnz {slow_label}")

    def p1_front(self):
        a = self.a
        vPE, vPO, vPW = 2, 3, 6
        a(f"v_lshrrev_b32 v8, 7, {v(vL16)}")
        a(f"v_mul_u32_u24 {v(vPE)}, 896, v8")
        a("v_lshrrev_b32 v8, 1, v8")
        a("v_lshlrev_b32 v8, 4, v8")
        a(f"v_and_b32 v9, 0x70, {v(vL16)}")
        a("v_xor_b32 v8, v8, v9")
        a(f"v_add_u32 {v(vPE)}, {v(vPE)}, v8")
        a(f"v_xor_b32 {v(vPO)}, 64, {v(vPE)}")
        a(f"s_lshl_b32 {s(sT0)}, {s(sG)}, 3")
        a(f"s_add_u32 {s(sT0)}, {s(sT0)}, {s(sTILE)}")
        a(f"s_lshl_b32 {s(sT0)}, {s(sT0)}, 1")
        a(f"s_add_u32 {s(sT0)}, {s(sT0)}, {s(sCH)}")
        a(f"s_mul_i32 {s(sT0)}, {s(sT0)}, {16 * 896}")
        a(f"s_add_u32 {s(sT1)}, {s(sT0)}, {8 * 896}")
        a(f"s_mul_i32 {s(sT2)}, {s(sRT)}, {TILE_B}")
        a(f"s_lshl_b32 {s(sT3)}, {s(sCH)}, 11")
        a(f"s_add_u32 {s(sT2)}, {s(sT2)}, {s(sT3)}")
        a(f"s_add_u32 {s(sT3)}, {s(sT2)}, {7 * 4096}")
        a("L_xdma:")
        a(f"s_mov_b32 m0, {s(sT2)}")
        a(f"s_add_u32 {s(sT2)}, {s(sT2)}, 4096")
        a(f"buffer_load_dwordx4 {v(vPE)}, {srd(SX)}, {s(sT0)} offen lds")
        a("s_add_u32 m0, m0, 1024")
        a(f"s_add_u32 {s(sT0)}, {s(sT0)}, 128")
        a(f"buffer_load_dwordx4 {v(vPO)}, {srd(SX)}, {s(sT1)} offen lds")
        a(f"s_add_u32 {s(sT1)}, {s(sT1)}, 128")
        a(f"s_cmp_lg_u32 {s(sT2)}, {s(sT3)}")
        a("s_cbranch_scc1 L_xdma")
        t_x0 = a.vm_n - 2
        a.vm_n += 12
        t_xa, t_xb = t_x0 + 8, t_x0 + 14
        self.w_dma_pattern(vPW, 8, 2688)
        a(f"s_mul_i32 {s(sT0)}, {s(sW)}, {8 * 2688}")
        a(f"s_lshl_b32 {s(sT1)}, {s(sCB)}, 7")
        a(f"s_add_u32 {s(sT4)}, {s(sT0)}, {s(sT1)}")
        a(f"s_lshl_b32 {s(sT5)}, {s(sW)}, 10")
        a(f"s_add_u32 {s(sT0)}, {s(sT4)}, 896")
        a(f"s_add_u32 {s(sT1)}, {s(sT4)}, 1792")
        a(f"s_add_u32 {s(sT2)}, {s(sT5)}, {LB}")
        a(f"s_add_u32 {s(sT3)}, {s(sT2)}, {11 * 4096}")
        a("L_wdma:")
        a(f"s_mov_b32 m0, {s(sT2)}")
        a(f"s_add_u32 {s(sT2)}, {s(sT2)}, 4096")
        a(f"buffer_load_dwordx4 {v(vPW)}, {srd(SWQKV)}, {s(sT0)} offen lds")
        a(f"s_add_u32 m0, m0, {LC - LB}")
        a(f"s_add_u32 {s(sT0)}, {s(sT0)}, {32 * 2688}")
        a(f"buffer_load_dwordx4 {v(vPW)}, {srd(SWQKV)}, {s(sT1)} offen lds")
        a(f"s_add_u32 {s(sT1)}, {s(sT1)}, {32 * 2688}")
        a(f"s_cmp_lg_u32 {s(sT2)}, {s(sT3)}")
        a("s_cbranch_scc1 L_wdma")
        a.vm_n += 20
        for i in range(3):
            self.dma(vPW, SWQKV, sT2, i * 4096, sT0, i * 32 * 2688)
        self.make_tag_and_publish_xcc(8)
        a(f"v_bfe_u32 v12, {v(vL16)}, 4, 5")
        a("v_lshlrev_b32 v13, 7, v12")
        a("v_bfe_u32 v12, v12, 1, 3")
        a(f"v_lshrrev_b32 v14, 9, {v(vL16)}")
        a("v_xor_b32 v12, v12, v14")
        a("v_lshl_add_u32 v13, v12, 4, v13")
        a(f"s_mul_i32 {s(sT0)}, {s(sRT)}, {TILE_B}")
        a(f"v_add_u32 v8, {s(sT0)}, v13")
        for q in range(1, 4):
            a(f"v_xor_b32 {v(8 + q)}, {q * 32}, v8")
        for r in range(12, 20):
            a(f"v_mov_b32 {v(r)}, 0")
        a(f"s_mov_b32 {s(sT0)}, 0xffff0000")

        def rd(k):
            return a.lg(f"ds_read_b128 {v(vZ + 8 * k + 4, 4)}, {v(8 + (k & 3))} offset:{(k >> 2) * 4096}")

        def unpack(k):
            z = vZ + 8 * k
            for j in range(4):
                a(f"v_lshlrev_b32 {v(z + 2 * j)}, 16, {v(z + 4 + j)}")
                a(f"v_and_b32 {v(z + 2 * j + 1)}, {s(sT0)}, {v(z + 4 + j)}")
            for j in range(4):
                sa, qa = 12 + 2 * (j & 1), 16 + 2 * (j & 1)
                a(f"v_pk_add_f32 {v(sa, 2)}, {v(sa, 2)}, {v(z + 2 * j, 2)}")
                a(f"v_pk_fma_f32 {v(qa, 2)}, {v(z + 2 * j, 2)}, {v(z + 2 * j, 2)}, {v(qa, 2)}")

        a.wait(vm=t_xa)
        a("s_barrier")
        self.stamp(1)
        tk = {}
        for k in range(12):
            tk[k] = rd(k)
        for k in range(16):
            if k + 12 < 16:
                tk[k + 12] = rd(k + 12)
            if k == 10:
                a.wait(vm=t_xb)
                a("s_barrier")
                for kk in range(16, 22):
                    tk[kk] = rd(kk)
            if k > 10 and k + 11 < 28:
                tk[k + 11] = rd(k + 11)
            a.wait(lg=tk[k])
            unpack(k)
        tk[27] = rd(27)
        for k in range(16, 28):
            a.wait(lg=tk[k])
            unpack(k)
        a("v_pk_add_f32 v[12:13], v[12:13], v[14:15]")
        a("v_pk_add_f32 v[16:17], v[16:17], v[18:19]")
        a("v_add_f32 v12, v12, v13")
        a("v_add_f32 v16, v16, v17")
        self.both_halves(12, 13, "v_add_f32")
        self.both_halves(16, 17, "v_add_f32")
        a(f"v_mul_f32 v12, {f2u(1 / 448):#x}, v12")
        a(f"v_mul_f32 v16, {f2u(1 / 448):#x}, v16")
        a("v_fma_f32 v16, -v12, v12, v16")
        a("v_max_f32 v16, 0, v16")
        a(f"v_add_f32 v16, {f2u(1e-5):#x}, v16")
        a("v_rsq_f32 v14, v16")
        a("v_mul_f32 v12, v12, v14")
        a("v_sub_f32 v12, 0, v12")
        for r in range(vZ, vZ + 224, 2):
            a(f"v_pk_fma_f32 {v(r, 2)}, {v(r, 2)}, v[14:15], v[12:13] op_sel_hi:[1,0,0]")
        self.stamp(2)
        self.tr_pattern(2, 8, True, ct_sgpr=sCH)
        self.tr_pattern(4, 8, False, ct_sgpr=sCH)
        a(f"v_add_u32 v3, {LC}, v4")
        a(f"v_add_u32 v2, {LB}, v2")
        a(f"v_lshrrev_b32 v5, 9, {v(vL16)}")
        a("v_lshlrev_b32 v5, 6, v5")
        a(f"v_add_u32 v5, {LD}, v5")
        a("v_min_u32 v8, 223, v0")
        a("v_lshlrev_b32 v9, 3, v8")
        xl = self.xcc_load(10, 16)
        a(f"s_mov_b32 {s(sT0)}, {MODO}")
        self.poll([f"buffer_load_dwordx2 v[12:13], v9, {srd(SWS)}, {s(sT0)} offen sc1",
                   f"buffer_load_dwordx2 v[14:15], v9, {srd(SWS)}, {s(sT0)} offen offset:1792 sc1", xl],
                  [13, 15, 17])
        self.stamp(3)
        a("v_lshlrev_b32 v18, 16, v14")
        a("v_and_b32 v19, 0xffff0000, v14")
        a("v_add_f32 v18, 1.0, v18")
        a("v_add_f32 v19, 1.0, v19")
        a("v_cvt_pk_bf16_f32 v14, v18, v19")
        a("v_lshlrev_b32 v20, 16, v12")
        a("v_and_b32 v21, 0xffff0000, v12")
        a("v_lshlrev_b32 v18, 16, v14")
        a("v_and_b32 v19, 0xffff0000, v14")
        a("v_lshrrev_b32 v9, 2, v8")
        a("v_lshlrev_b32 v9, 6, v9")
        a("v_and_b32 v8, 3, v8")
        a("v_lshl_add_u32 v9, v8, 3, v9")
        a(f"v_add_u32 v9, {LD}, v9")
        a("ds_write_b64 v9, v[18:19]")
        a("ds_write_b64 v9, v[20:21] offset:32")
        a.wait_all()
        a("s_barrier")
        self.choose_mode(16, "L_p1_slow")

    def p1_gemm(self):
        a = self.a
        vTK, vTV, vTV2, vGBA, vPW = 2, 3, 4, 5, 6
        aK, aV, aQ, aW = 0, 16, 32, 48
        free = [8, 12, 16, 20, 24, 28]
        halves = [(k, h) for k in range(28) for h in range(2)]
        gb = {}
        nxt = [0]

        def issue_gb():
            while len(free) >= 2 and nxt[0] < 56:
                k, h = halves[nxt[0]]
                qg, qb = free.pop(0), free.pop(0)
                a.lg(f"ds_read_b128 {v(qg, 4)}, {v(vGBA)} offset:{k * 128 + h * 16}")
                t = a.lg(f"ds_read_b128 {v(qb, 4)}, {v(vGBA)} offset:{k * 128 + h * 16 + 32}")
                gb[(k, h)] = (qg, qb, t)
                nxt[0] += 1
                break

        def modulate(k, h):
            z = vZ + 8 * k
            qg, qb, t = gb[(k, h)]
            a.wait(lg=t)
            for j in range(4):
                r = z + 4 * h + j
                a(f"v_fma_f32 {v(r)}, {v(r)}, {v(qg + j)}, {v(qb + j)}")
            a(f"v_cvt_pk_bf16_f32 {v(z + 2 * h)}, {v(z + 4 * h)}, {v(z + 4 * h + 1)}")
            a(f"v_cvt_pk_bf16_f32 {v(z + 2 * h + 1)}, {v(z + 4 * h + 2)}, {v(z + 4 * h + 3)}")
            free.extend([qg, qb])
            if h == 1 and k < 4:
                free.append(z + 4)

        wt = {}

        def rdW(kind, k):
            slot = aW + 4 * ((2 * k + (kind == "v")) % 8)
            if kind == "k":
                t = self.tr2(("a", slot), vTK, k * 2048)
            elif k < 22:
                t = self.tr2(("a", slot), vTV, k * 2048)
            else:
                t = self.tr2(("a", slot), vTV2, (k - 22) * 2048)
            wt[(kind, k)] = (slot, t)

        late = [(LA + i * 4096, 1792 + (11 + i) * 32 * 2688) for i in range(3)]
        late += [(LA + 12288 + i * 4096, i * 32 * 2688) for i in range(11)]
        t_vtail = None
        for _ in range(3):
            issue_gb()
        rdW("k", 0); rdW("v", 0)
        modulate(0, 0); issue_gb()
        rdW("k", 1)
        modulate(0, 1); issue_gb()
        rdW("v", 1)
        for k in range(28):
            z = vZ + 8 * k
            slot, t = wt[("k", k)]
            a.wait(lg=t)
            a(f"v_mfma_f32_32x32x16_bf16 {a_(aK, 16)}, {a_(slot, 4)}, {v(z, 4)}, {a_(aK, 16) if k else 0}")
            if k + 1 < 28:
                modulate(k + 1, 0); issue_gb(); issue_gb()
            if k == 19:
                a.wait(vm=t_vtail)
                a("s_barrier")
            if k + 2 < 28:
                rdW("k", k + 2)
            slot, t = wt[("v", k)]
            a.wait(lg=t)
            a(f"v_mfma_f32_32x32x16_bf16 {a_(aV, 16)}, {v(z, 4)}, {a_(slot, 4)}, {a_(aV, 16) if k else 0}")
            if k + 1 < 28:
                modulate(k + 1, 1); issue_gb(); issue_gb()
            if k + 2 < 28:
                rdW("v", k + 2)
            if k < 14:
                t = self.dma(vPW, SWQKV, sT5, late[k][0], sT4, late[k][1])
                if k == 2:
                    t_vtail = t
        t_qhead = a.vm_n
        a.wait(vm=t_qhead)
        a("s_barrier")
        self.stamp(4)
        for i in range(3):
            t_qtail = self.dma(vPW, SWQKV, sT5, LB + i * 4096, sT4, (11 + i) * 32 * 2688)
        vTQ = 3
        a(f"v_subrev_u32 {v(vTQ)}, {LB - LA - 12288}, {v(vTK)}")

        def rdQ(k):
            slot = aW + 4 * (k % 8)
            t = self.tr2(("a", slot), vTQ, k * 2048) if k < 22 else self.tr2(("a", slot), vTK, (k - 22) * 2048)
            wt[("q", k)] = (slot, t)

        for k in range(4):
            rdQ(k)
        a(f"s_mul_i32 {s(sT0)}, {s(sTILE)}, {TILE_B}")
        a(f"s_add_u32 {s(sT0)}, {s(sT0)}, {s(sGB)}")
        a(f"s_lshl_b32 {s(sT1)}, {s(sCB)}, 1")
        a(f"s_add_u32 {s(sT1)}, {s(sT1)}, {s(sCH)}")
        a(f"s_lshl_b32 {s(sT2)}, {s(sT1)}, 11")
        a(f"s_add_u32 {s(sT2)}, {s(sT2)}, {s(sT0)}")
        a(f"s_add_u32 {s(sT3)}, {s(sT2)}, {KO}")
        a(f"s_lshl_b32 {s(sT1)}, {s(sT1)}, 9")
        a(f"s_add_u32 {s(sT1)}, {s(sT1)}, {s(sT0)}")
        a(f"s_add_u32 {s(sT0)}, {s(sT1)}, {VO}")
        a(f"s_add_u32 {s(sT1)}, {s(sT1)}, {VO + 14336}")
        a(f"v_lshrrev_b32 v4, 9, {v(vL16)}")
        a("v_mul_u32_u24 v4, 7168, v4")
        a(f"v_and_b32 v5, 0x1f0, {v(vL16)}")
        a("v_add_u32 v4, v4, v5")

        def pack_acc(acc, b, tmp, out, scale=None):
            for j in range(8):
                a(f"v_accvgpr_read_b32 {v(tmp + j)}, {a_(acc + 8 * b + j)}")
            if scale is not None:
                for j in range(8):
                    a(f"v_mul_f32 {v(tmp + j)}, {s(scale)}, {v(tmp + j)}")
            for j in range(4):
                a(f"v_cvt_pk_bf16_f32 {v(out + j)}, {v(tmp + 2 * j)}, {v(tmp + 2 * j + 1)}")

        outq = [vZ + 8 * i + 4 for i in range(8, 16)]
        for b in range(2):
            pack_acc(aK, b, 8 + 8 * b, outq[b])
            a.vm(f"buffer_store_dwordx4 {v(outq[b], 4)}, {v(vL16)}, {srd(SWS)}, {s(sT3)} offen offset:{b * 1024} sc1")
        for b in range(2):
            pack_acc(aV, b, 8 + 8 * b, outq[2 + b])
            t_kv = a.vm(f"buffer_store_dwordx4 {v(outq[2 + b], 4)}, v4, {srd(SWS)}, {s(sT0 + b)} offen sc1")
        self.w_dma_pattern(5, 8, 896)
        a(f"s_mul_i32 {s(sT0)}, {s(sW)}, {8 * 896}")
        a(f"s_lshl_b32 {s(sT1)}, {s(sCB)}, 7")
        a(f"s_add_u32 {s(sT4)}, {s(sT0)}, {s(sT1)}")
        wo = [(LC + i * 4096, i * 32 * 896) for i in range(11)] + [(LB + 12288 + i * 4096, (11 + i) * 32 * 896) for i in range(3)]
        for k in range(28):
            if k == 17:
                a.wait(vm=t_qtail)
                a("s_barrier")
            if k + 4 < 28:
                rdQ(k + 4)
            slot, t = wt[("q", k)]
            a.wait(lg=t)
            a(f"v_mfma_f32_32x32x16_bf16 {a_(aQ, 16)}, {a_(slot, 4)}, {v(vZ + 8 * k, 4)}, {a_(aQ, 16) if k else 0}")
            if k < 14:
                t_wo = self.dma(5, SWO, sT5, wo[k][0], sT4, wo[k][1])
        a(f"s_lshl_b32 {s(sT0)}, {s(sG)}, 5")
        a(f"s_add_u32 {s(sT0)}, {s(sT0)}, {s(sM)}")
        a(f"s_lshl_b32 {s(sT0)}, {s(sT0)}, 7")
        a(f"v_mov_b32 v8, {RFO}")
        a(f"v_mov_b32 v9, {s(sTAG)}")
        a.wait(vm=t_kv)
        a("s_barrier")
        a(f"s_cmp_eq_u32 {s(sW)}, 0")
        a("s_cselect_b64 exec, 1, 0")
        a.vm(f"buffer_store_dword v9, v8, {srd(SWS)}, {s(sT0)} offen sc1")
        a("s_mov_b64 exec, -1")
        self.stamp(5)
        a(f"s_mov_b32 {s(sT0)}, {f2u(QSCALE):#x}")
        for b in range(2):
            pack_acc(aQ, b, 16 + 8 * b, outq[4 + b], scale=sT0)
            a.vm(f"buffer_store_dwordx4 {v(outq[4 + b], 4)}, {v(vL16)}, {srd(SWS)}, {s(sT2)} offen offset:{b * 1024}{self.st()}")
        self.local_flag(0, 8)
        a("s_barrier")
        self.tr_pattern(2, 8, True)
        a(f"v_xor_b32 v3, 64, v2")
        a(f"s_mul_i32 {s(sT0)}, {s(sCH)}, {14 * 2048}")
        a(f"s_add_u32 {s(sT1)}, {s(sT0)}, {LC}")
        a(f"v_add_u32 v4, {s(sT1)}, v2")
        a(f"v_add_u32 v5, {s(sT1)}, v3")
        a(f"s_mov_b32 {s(sT1)}, {LB + 12288}")
        a(f"s_cmp_eq_u32 {s(sCH)}, 0")
        a(f"s_cselect_b32 {s(sT1)}, {LC + 8 * 2048}, {s(sT1)}")
        a(f"v_add_u32 v2, {s(sT1)}, v2")
        a(f"v_add_u32 v3, {s(sT1)}, v3")
        for k in range(14):
            for ct in range(2):
                if k < 8:
                    self.tr2(("a", 128 + 8 * k + 4 * ct), 4 + ct, k * 2048)
                else:
                    self.tr2(("a", 128 + 8 * k + 4 * ct), 2 + ct, (k - 8) * 2048)
        a.wait_all(vm=False)
        a("s_barrier")

    def helper(self):
        a = self.a
        a("L_helper:")
        a.vm_done = a.vm_n
        a.lg_done = a.lg_n
        sJ = sT4
        a(f"s_sub_u32 {s(sJ)}, {s(sM)}, 28")
        a(f"s_lshl_b32 {s(sJ)}, {s(sJ)}, 3")
        a(f"s_add_u32 {s(sJ)}, {s(sJ)}, {s(sG)}")
        a("v_min_u32 v8, 223, v0")
        a("v_lshlrev_b32 v8, 2, v8")
        a(f"buffer_load_dword v9, v8, {srd(SC)}, 0 offen")
        self.w_dma_pattern(6, 10, 5376)
        a(f"s_lshl_b32 {s(sT5)}, {s(sW)}, 10")
        a(f"s_mov_b32 {s(sT6)}, 0")
        a("L_job:")
        a(f"s_mul_i32 {s(sT0)}, {s(sW)}, {8 * 5376}")
        a(f"s_lshl_b32 {s(sT1)}, {s(sJ)}, 7")
        a(f"s_add_u32 {s(sT0)}, {s(sT0)}, {s(sT1)}")
        a(f"s_mov_b32 {s(sT2)}, {s(sT5)}")
        a(f"s_add_u32 {s(sT3)}, {s(sT2)}, {14 * 4096}")
        a("L_mdma:")
        a(f"s_mov_b32 m0, {s(sT2)}")
        a(f"s_add_u32 {s(sT2)}, {s(sT2)}, 4096")
        a(f"buffer_load_dwordx4 v6, {srd(SWMOD)}, {s(sT0)} offen lds")
        a(f"s_add_u32 {s(sT0)}, {s(sT0)}, {32 * 5376}")
        a(f"s_cmp_lg_u32 {s(sT2)}, {s(sT3)}")
        a("s_cbranch_scc1 L_mdma")
        a(f"s_cmp_lg_u32 {s(sT6)}, 0")
        a("s_cbranch_scc1 L_job_go")
        self.make_tag_and_publish_xcc(20)
        a("s_waitcnt vmcnt(15)")
        a("v_lshlrev_b32 v10, 16, v9")
        a("v_and_b32 v11, 0xffff0000, v9")
        for r in (10, 11):
            a(f"v_mul_f32 {v(r + 2)}, {f2u(-1.4426950408889634):#x}, {v(r)}")
        for r in (12, 13):
            a(f"v_exp_f32 {v(r)}, {v(r)}")
        for r in (12, 13):
            a(f"v_add_f32 {v(r)}, 1.0, {v(r)}")
        for r in (12, 13):
            a(f"v_rcp_f32 {v(r)}, {v(r)}")
        for r in (10, 11):
            a(f"v_mul_f32 {v(r)}, {v(r)}, {v(r + 2)}")
        a("v_cvt_pk_bf16_f32 v10, v10, v11")
        a(f"v_add_u32 v8, {LD}, v8")
        a("ds_write_b32 v8, v10")
        a(f"v_lshrrev_b32 v10, 4, {v(vL16)}")
        a("v_bfe_u32 v11, v10, 2, 2")
        a("v_lshrrev_b32 v12, 4, v10")
        a("v_lshl_add_u32 v13, v12, 3, v11")
        a("v_lshlrev_b32 v2, 7, v13")
        a("v_lshrrev_b32 v11, 1, v11")
        a("v_lshlrev_b32 v11, 6, v11")
        a("v_and_b32 v13, 3, v10")
        a("v_lshlrev_b32 v13, 3, v13")
        a("v_xor_b32 v11, v11, v13")
        a(f"s_lshl_b32 {s(sT0)}, {s(sW)}, 5")
        a(f"v_xor_b32 v11, {s(sT0)}, v11")
        a("v_add_u32 v2, v2, v11")
        a("v_lshlrev_b32 v3, 4, v12")
        a(f"v_add_u32 v3, {LD}, v3")
        a("v_lshlrev_b32 v4, 2, v10")
        a("L_job_go:")
        a.wait_all()
        a("s_barrier")
        self.stamp(1)
        tk = []
        for k in range(14):
            a.lg(f"ds_read_b128 {v(32 + 8 * k, 4)}, v3 offset:{k * 64}")
            tk.append(self.tr2(("v", 36 + 8 * k), 2, k * 4096))
            if k >= 3:
                a.wait(lg=tk[k - 3])
                kk = k - 3
                a(f"v_mfma_f32_16x16x32_bf16 v[16:19], {v(32 + 8 * kk, 4)}, {v(36 + 8 * kk, 4)}, {'v[16:19]' if kk else 0}")
        for kk in range(11, 14):
            a.wait(lg=tk[kk])
            a(f"v_mfma_f32_16x16x32_bf16 v[16:19], {v(32 + 8 * kk, 4)}, {v(36 + 8 * kk, 4)}, v[16:19]")
        a(f"s_lshl_b32 {s(sT0)}, {s(sJ)}, 8")
        a(f"s_lshl_b32 {s(sT1)}, {s(sW)}, 6")
        a(f"s_add_u32 {s(sT0)}, {s(sT0)}, {s(sT1)}")
        a(f"s_add_u32 {s(sT0)}, {s(sT0)}, {MODO}")
        a("v_mov_b32_dpp v17, v16 quad_perm:[1,0,3,2] row_mask:0xf bank_mask:0xf")
        a("v_cvt_pk_bf16_f32 v20, v16, v17")
        a(f"v_mov_b32 v21, {s(sTAG)}")
        a("s_mov_b64 exec, 0x5555")
        a(f"buffer_store_dwordx2 v[20:21], v4, {srd(SWS)}, {s(sT0)} offen sc1")
        a("s_mov_b64 exec, -1")
        self.stamp(2)
        a(f"s_cmp_lg_u32 {s(sT6)}, 0")
        a("s_cbranch_scc1 L_jobs_done")
        a(f"s_cmp_lt_u32 {s(sJ)}, 22")
        a("s_cbranch_scc1 L_jobs_done")
        a(f"s_mov_b32 {s(sT6)}, 1")
        a(f"s_add_u32 {s(sJ)}, {s(sJ)}, 10")
        a("s_barrier")
        a("s_branch L_job")
        a("L_jobs_done:")
        a(f"s_cmp_lg_u32 {s(sJ)}, 14")
        a("s_cbranch_scc1 L_no_epoch")
        a("v_lshlrev_b32 v8, 3, v0")
        a(f"s_mov_b32 {s(sT0)}, {XCCO}")
        self.poll([f"buffer_load_dwordx2 v[10:11], v8, {srd(SWS)}, {s(sT0)} offen sc1"], [11])
        a("s_barrier")
        a("v_mov_b32 v8, 0")
        a(f"s_cmp_eq_u32 {s(sW)}, 0")
        a("s_cselect_b64 exec, 1, 0")
        a(f"buffer_store_dword v11, v8, {srd(SWS)}, 0 offen sc1")
        a("s_mov_b64 exec, -1")
        a("L_no_epoch:")
        xl = self.xcc_load(10, 16)
        self.poll([xl], [17])
        a.wait_all()
        a("s_barrier")
        self.choose_mode(16, "L_p2_slow")
        a("s_branch L_p2_fast")

    def p2(self):
        a = self.a
        sHD, sB, sWS0, sMISS = sRT, sCH, sT6, sT3
        a("L_p2_slow:" if self.slow else "L_p2_fast:")
        a.vm_done, a.lg_done = a.vm_n, a.lg_n
        vQ, vMK, vKV, vM, vNM = 24, 16, 2, 8, 10
        vS, vP2, vO = 32, 176, 192
        a(f"s_and_b32 {s(sHD)}, {s(sM)}, 15")
        a(f"s_lshr_b32 {s(sB)}, {s(sM)}, 4")
        a(f"s_mul_i32 {s(sWS0)}, {s(sHD)}, 7")
        a(f"s_lshr_b32 {s(sWS0)}, {s(sWS0)}, 1")
        a(f"s_bitcmp1_b32 {s(sHD)}, 0")
        a(f"s_cselect_b32 {s(sP1)}, 15, 0xf0000000")
        a(f"s_mov_b32 {s(sP1 + 1)}, {s(sP1)}")
        a(f"s_lshl_b32 {s(sT5)}, {s(sW)}, 12")
        a(f"s_add_u32 {s(sT5)}, {s(sT5)}, {L_KV}")
        a(f"v_add_u32 {v(vKV)}, {s(sT5)}, {v(vL16)}")
        for j in range(4):
            a(f"v_mov_b32 {v(8 + j)}, 0x3f803f80")
        a(f"s_mov_b64 exec, {s(sP1, 2)}")
        for i in range(3):
            for t in range(2):
                a(f"ds_write_b128 {v(vKV)}, v[8:11] offset:{i * 16384 + 2048 + t * 1024}")
        a("s_mov_b64 exec, -1")
        a(f"v_bfe_u32 v3, {v(vL16)}, 4, 5")
        a(f"v_lshrrev_b32 v4, 9, {v(vL16)}")
        a("v_lshlrev_b32 v5, 2, v4")
        a("v_sub_u32 v5, v3, v5")
        for r in range(16):
            a(f"v_cmp_le_i32 {s(sMASK + 2 * r, 2)}, {8 * (r >> 2) + (r & 3)}, v5")
        a("v_mov_b32 v12, 0")
        a("v_mov_b32 v13, 0xffff")
        a("v_mov_b32 v14, 0xffff0000")
        for i in range(8):
            a(f"v_cndmask_b32 {v(vMK + i)}, v12, v13, {s(sMASK + 4 * i, 2)}")
            a(f"v_cndmask_b32 v15, v12, v14, {s(sMASK + 4 * i + 2, 2)}")
            a(f"v_or_b32 {v(vMK + i)}, {v(vMK + i)}, v15")
        a("v_and_b32 v5, 0x13, v3")
        a("v_and_b32 v6, 4, v3")
        a("v_lshl_or_b32 v5, v6, 1, v5")
        a("v_and_b32 v6, 8, v3")
        a("v_lshrrev_b32 v6, 1, v6")
        a("v_or_b32 v5, v5, v6")
        a("v_lshlrev_b32 v5, 4, v5")
        a("v_mul_u32_u24 v4, 7168, v4")
        a("v_add_u32 v4, v4, v5")
        a(f"s_lshl_b32 {s(sT0)}, {s(sB)}, 2")
        a(f"s_add_u32 {s(sT0)}, {s(sT0)}, {s(sW)}")
        a(f"s_sub_u32 {s(sMISS)}, 8, {s(sT0)}")
        a(f"s_cmp_eq_u32 {s(sG)}, 0")
        a(f"s_cselect_b32 {s(sMISS)}, {s(sMISS)}, 0")
        a(f"s_mul_i32 {s(sT4)}, {s(sT0)}, {TILE_B}")
        a(f"s_add_u32 {s(sT4)}, {s(sT4)}, {s(sGB)}")
        self.w_dma_pattern(208, 12, 3584)
        a("v_xor_b32 v209, 32, v208")
        a(f"v_lshrrev_b32 v12, 9, {v(vL16)}")
        a(f"s_cmp_eq_u32 {s(sG)}, 0")
        a(f"s_cselect_b32 {s(sT0)}, 0, 4096")
        a(f"v_mul_u32_u24 v12, {s(sT0)}, v12")
        a("v_lshlrev_b32 v13, 7, v3")
        a("v_sub_u32 v12, v13, v12")
        a(f"s_lshl_b32 {s(sT0)}, {s(sG)}, 12")
        a(f"s_add_u32 {s(sT0)}, {s(sT0)}, {RFO}")
        a(f"v_add_u32 v12, {s(sT0)}, v12")
        a.wait_all(vm=False)
        self.poll_local(0, 28, 8)
        a(f"s_lshl_b32 {s(sT1)}, {s(sWS0)}, 9")
        a(f"s_add_u32 {s(sT2)}, {s(sT4)}, {s(sT1)}")
        for t in range(2):
            a.vm(f"buffer_load_dwordx4 {v(vQ + 4 * t, 4)}, {v(vL16)}, {srd(SWS)}, {s(sT2)} offen offset:{t * 1024} sc1")
        self.stamp(6)
        self.poll([f"buffer_load_dword v13, v12, {srd(SWS)}, 0 offen sc1"], [13], exec_lo=0x0FFFFFFF, exec_hi=0x0FFFFFFF)
        self.stamp(7)
        for i in range(3):
            a(f"s_sub_u32 {s(sT0)}, {s(sT4)}, {(2 - i) * 4 * TILE_B}")
            if i < 2:
                a(f"s_sub_u32 {s(sT1)}, {s(sT0)}, {0x200000 - 8 * TILE_B}")
                a(f"s_cmp_eq_u32 {s(sG)}, 0")
                a(f"s_cselect_b32 {s(sT1)}, {OOB}, {s(sT1)}")
                a(f"s_cmp_lt_u32 {s(sT0)}, {s(sGB)}")
                a(f"s_cselect_b32 {s(sT0)}, {s(sT1)}, {s(sT0)}")
            a(f"s_lshl_b32 {s(sT1)}, {s(sWS0)}, 9")
            a(f"s_add_u32 {s(sT1)}, {s(sT1)}, {s(sT0)}")
            for t in range(2):
                self.dma(vL16, SWS, sT5, i * 16384 + t * 1024, sT1, KO, sc1=True, imm=t * 1024)
            a(f"s_lshl_b32 {s(sT1)}, {s(sWS0)}, 7")
            a(f"s_add_u32 {s(sT1)}, {s(sT1)}, {s(sT0)}")
            a(f"s_andn2_b64 exec, -1, {s(sP1, 2)}")
            for t in range(2):
                t_kv = self.dma(4, SWS, sT5, i * 16384 + 2048 + t * 1024, sT1, VO + t * 14336, sc1=True)
            a("s_mov_b64 exec, -1")
        a(f"s_min_u32 {s(sT0)}, {s(sM)}, 27")
        a(f"s_lshl_b32 {s(sT0)}, {s(sT0)}, 7")
        a(f"s_mul_i32 {s(sT1)}, {s(sW)}, {8 * 3584}")
        a(f"s_add_u32 {s(sT2)}, {s(sT0)}, {s(sT1)}")
        a(f"s_lshl_b32 {s(sT5)}, {s(sW)}, 10")
        pre = []
        for i in range(14):
            pre.append((208, SWG, LA + i * 4096, i * 32 * 3584))
            pre.append((209, SWU, LB + i * 4096, i * 32 * 3584))

        def prefetch(n):
            for _ in range(n):
                if pre:
                    vr, sr, lo, so = pre.pop(0)
                    self.dma(vr, sr, sT5, lo, sT2, so)

        prefetch(4)
        a(f"s_bitcmp1_b32 {s(sHD)}, 0")
        a(f"s_cselect_b32 {s(sP0)}, -1, 0")
        a(f"s_mov_b32 {s(sP0 + 1)}, 0")
        a.wait(vm=t_kv)
        a(f"s_mov_b64 exec, {s(sP0, 2)}")
        a(f"v_mov_b32 {v(vQ)}, 0")
        a(f"v_mov_b32 {v(vQ + 1)}, 0")
        a(f"s_not_b32 exec_hi, {s(sP0)}")
        a("s_mov_b32 exec_lo, 0")
        a(f"v_mov_b32 {v(vQ + 6)}, 0")
        a(f"v_mov_b32 {v(vQ + 7)}, 0")
        a("s_mov_b64 exec, -1")
        a("s_barrier")
        self.stamp(8)
        order = [0, 8, 1, 2, 3, 4, 5, 6, 7]
        kt = {}

        def rdK(n):
            i = order[n]
            a.lg(f"ds_read_b128 {a_(8 * n, 4)}, {v(vKV)} offset:{i * 4096}")
            kt[n] = a.lg(f"ds_read_b128 {a_(8 * n + 4, 4)}, {v(vKV)} offset:{i * 4096 + 1024}")

        vorder = [1, 2, 3, 4, 5, 6, 7, 8, 0]
        vt = {}

        def rdV(n):
            i = vorder[n]
            base = 72 + 8 * n if n < 7 else 8 * (n - 7)
            a.lg(f"ds_read_b128 {a_(base, 4)}, {v(vKV)} offset:{i * 4096 + 2048}")
            vt[i] = (base, a.lg(f"ds_read_b128 {a_(base + 4, 4)}, {v(vKV)} offset:{i * 4096 + 3072}"))

        def patch(i):
            L = a.label("miss")
            a(f"s_cmp_gt_i32 {s(sMISS)}, {i}")
            a(f"s_cbranch_scc1 {L}")
            a(f"{L}_back:")
            blk = [f"{L}:", "s_nop 15"]
            blk += [f"v_mov_b32 {v(vS + 16 * i + r)}, 0xf149f2ca" for r in range(16)]
            blk += [f"s_branch {L}_back"]
            self.tail.append(blk)

        valu = []
        first = [True]

        def q_max(i):
            b = vS + 16 * i
            ops = []
            if first[0]:
                ops.append(f"v_max3_f32 {v(vM)}, {v(b)}, {v(b + 1)}, {v(b + 2)}")
                ops.append(f"v_max3_f32 {v(vM + 1)}, {v(b + 3)}, {v(b + 4)}, {v(b + 5)}")
                rest = list(range(6, 16, 2))
                first[0] = False
            else:
                rest = list(range(0, 16, 2))
            for n, r in enumerate(rest):
                m = vM + (n & 1)
                ops.append(f"v_max3_f32 {v(m)}, {v(m)}, {v(b + r)}, {v(b + r + 1)}")
            return ops

        for n in range(4):
            rdK(n)
        for n in range(9):
            i = order[n]
            if n + 4 < 9:
                rdK(n + 4)
            else:
                rdV(n - 5)
            a.wait(lg=kt[n])
            d = v(vS + 16 * i, 16)
            a(f"v_mfma_f32_32x32x16_bf16 {d}, {a_(8 * n, 4)}, {v(vQ, 4)}, 0")
            for _ in range(5):
                if valu:
                    a(valu.pop(0))
            a(f"v_mfma_f32_32x32x16_bf16 {d}, {a_(8 * n + 4, 4)}, {v(vQ + 4, 4)}, {d}")
            for _ in range(5):
                if valu:
                    a(valu.pop(0))
            if n == 2:
                patch(0)
                valu += [f"v_cndmask_b32 {v(vS + 128 + r)}, {v(vS + r)}, {v(vS + 128 + r)}, {s(sMASK + 2 * r, 2)}" for r in range(16)]
                valu += q_max(8)
            elif n >= 3:
                patch(order[n - 1])
                valu += q_max(order[n - 1])
            prefetch(1)
        for op in valu:
            a(op)
        patch(7)
        for op in q_max(7):
            a(op)
        a(f"v_max_f32 {v(vM)}, {v(vM)}, {v(vM + 1)}")
        self.both_halves(vM, vM + 1, "v_max_f32")
        a(f"v_sub_f32 {v(vNM)}, 0, {v(vM)}")
        self.stamp(9)
        firstpv = [True]

        def pv(i, t, p):
            base, tk = vt[i]
            a.wait(lg=tk)
            c = 0 if firstpv[0] else v(vO, 16)
            firstpv[0] = False
            a(f"v_mfma_f32_32x32x16_bf16 {v(vO, 16)}, {a_(base + 4 * t, 4)}, {v(p + 4 * t, 4)}, {c}")

        pend = []
        for n, i in enumerate([1, 2, 3, 4, 5, 6, 7, 8]):
            b = vS + 16 * i
            p = vS + 8 * (n & 1)
            if n + 4 < 9:
                rdV(n + 4)
            for r in range(0, 16, 2):
                a(f"v_pk_add_f32 {v(b + r, 2)}, {v(b + r, 2)}, {v(vNM, 2)} op_sel_hi:[1,0]")
            for t in range(2):
                if pend:
                    pv(*pend.pop(0))
                for r in range(8 * t, 8 * t + 8):
                    a(f"v_exp_f32 {v(b + r)}, {v(b + r)}")
                    if r >= 8 * t + 3 and (r & 1):
                        j = (r - 3) >> 1
                        a(f"v_cvt_pk_bf16_f32 {v(p + j)}, {v(b + 2 * j)}, {v(b + 2 * j + 1)}")
                j = 4 * t + 3
                prefetch(1)
                a(f"v_cvt_pk_bf16_f32 {v(p + j)}, {v(b + 2 * j)}, {v(b + 2 * j + 1)}")
            if i != 8:
                pend = [(i, 0, p), (i, 1, p)]
            else:
                for j in range(8):
                    a(f"v_and_b32 {v(vP2 + j)}, {v(p + j)}, {v(vMK + j)}")
                    a(f"v_xor_b32 {v(vP2 + 8 + j)}, {v(p + j)}, {v(vP2 + j)}")
                    if j == 3:
                        pv(8, 0, vP2)
                pv(0, 0, vP2 + 8)
                pv(8, 1, vP2)
                pv(0, 1, vP2 + 8)
        prefetch(28)
        a(f"s_lshl_b32 {s(sT1)}, {s(sWS0)}, 9")
        a(f"s_add_u32 {s(sT1)}, {s(sT1)}, {s(sT4)}")
        a(f"s_add_u32 {s(sT1)}, {s(sT1)}, {OO}")
        a(f"s_bitcmp1_b32 {s(sHD)}, 0")
        a(f"s_cselect_b64 {s(sP0, 2)}, -1, 0")
        a(f"v_cndmask_b32 v8, {v(vO + 12)}, {v(vO)}, {s(sP0, 2)}")
        a("v_mov_b32 v9, v8")
        a("v_permlane32_swap_b32 v9, v8")
        a(f"v_cndmask_b32 v8, v8, v9, {s(sP0, 2)}")
        a("v_rcp_f32 v8, v8")
        for r in range(16):
            a(f"v_mul_f32 {v(vO + r)}, v8, {v(vO + r)}")
        for j in range(8):
            a(f"v_cvt_pk_bf16_f32 {v(vP2 + j)}, {v(vO + 2 * j)}, {v(vO + 2 * j + 1)}")
        Lodd, Ldone = a.label("odd"), a.label("ost")
        base = f"{v(vL16)}, {srd(SWS)}, {s(sT1)} offen"
        a(f"s_cbranch_scc1 {Lodd}")
        a(f"buffer_store_dwordx4 {v(vP2, 4)}, {base}{self.st()}")
        a("s_mov_b32 exec_hi, 0")
        a(f"buffer_store_dwordx4 {v(vP2 + 4, 4)}, {base} offset:1024{self.st()}")
        a("s_not_b64 exec, exec")
        a(f"buffer_store_dwordx2 {v(vP2 + 4, 2)}, {base} offset:1024{self.st()}")
        a(f"s_branch {Ldone}")
        a(f"{Lodd}:")
        a(f"buffer_store_dwordx4 {v(vP2 + 4, 4)}, {base} offset:1024{self.st()}")
        a("s_mov_b32 exec_lo, 0")
        a(f"buffer_store_dwordx4 {v(vP2, 4)}, {base}{self.st()}")
        a("s_not_b64 exec, exec")
        a(f"buffer_store_dwordx2 {v(vP2 + 2, 2)}, {base} offset:8{self.st()}")
        a(f"{Ldone}:")
        a("s_mov_b64 exec, -1")
        self.stamp(10)
        self.local_flag(1, 8)
        a(f"s_cmp_ge_u32 {s(sM)}, 28")
        a("s_cbranch_scc1 " + ("L_end" if self.slow else "L_helper_tail"))

    def exchange(self, acc):
        a = self.a
        a(f"s_lshl_b32 {s(sT0)}, {s(sW)}, 12")
        a(f"s_add_u32 {s(sT0)}, {s(sT0)}, {L_XB}")
        a(f"v_add_u32 v8, {s(sT0)}, {v(vL16)}")
        a(f"v_xor_b32 v9, 4096, v8")
        Lk, Ld = a.label("xk"), a.label("xd")
        a(f"s_cmp_eq_u32 {s(sCH)}, 0")
        a("s_nop 7")
        a(f"s_cbranch_scc1 {Lk}")
        for q in range(4):
            a(f"ds_write_b128 v8, {v(acc + 4 * q, 4)} offset:{q * 1024}")
        for r in range(16):
            a(f"v_mov_b32 {v(acc + r)}, {v(acc + 16 + r)}")
        a(f"s_branch {Ld}")
        a(f"{Lk}:")
        for q in range(4):
            a(f"ds_write_b128 v8, {v(acc + 16 + 4 * q, 4)} offset:{q * 1024}")
        a(f"{Ld}:")
        a.wait_all(vm=False)
        a("s_barrier")
        tk = [a.lg(f"ds_read_b128 {v(acc + 16 + 4 * q, 4)}, v9 offset:{q * 1024}") for q in range(4)]
        for q in range(4):
            a.wait(lg=tk[q])
            for r in range(4 * q, 4 * q + 4, 2):
                a(f"v_pk_add_f32 {v(acc + r, 2)}, {v(acc + r, 2)}, {v(acc + 16 + r, 2)}")

    def unpack16(self, dst, src):
        a = self.a
        for j in range(8):
            a(f"v_lshlrev_b32 {v(dst + 2 * j)}, 16, {v(src + j)}")
            a(f"v_and_b32 {v(dst + 2 * j + 1)}, 0xffff0000, {v(src + j)}")

    def p3(self):
        a = self.a
        acc, vGA, vG2, vXR, vXF = 32, 64, 80, 96, 104
        a(f"s_lshr_b32 {s(sRT)}, {s(sW)}, 1")
        a(f"s_and_b32 {s(sCH)}, {s(sW)}, 1")
        a(f"v_bfe_u32 v3, {v(vL16)}, 4, 5")
        a("v_mul_u32_u24 v3, 896, v3")
        a(f"v_lshrrev_b32 v4, 9, {v(vL16)}")
        a("v_lshl_add_u32 v3, v4, 4, v3")
        a(f"s_lshl_b32 {s(sT0)}, {s(sG)}, 3")
        a(f"s_add_u32 {s(sT0)}, {s(sT0)}, {s(sTILE)}")
        a(f"s_mul_i32 {s(sT0)}, {s(sT0)}, {TILE_B}")
        a(f"s_lshl_b32 {s(sT1)}, {s(sCB)}, 1")
        a(f"s_add_u32 {s(sT1)}, {s(sT1)}, {s(sCH)}")
        a(f"s_lshl_b32 {s(sT1)}, {s(sT1)}, 6")
        a(f"s_add_u32 {s(sXCC)}, {s(sT0)}, {s(sT1)}")
        for b in range(2):
            a(f"buffer_load_dwordx4 {v(vXR + 4 * b, 4)}, v3, {srd(SX)}, {s(sXCC)} offen offset:{32 * b}")
        a("v_min_u32 v8, 223, v0")
        a("v_lshlrev_b32 v9, 3, v8")
        a(f"s_mov_b32 {s(sT0)}, {MODO + 448 * 8}")
        a(f"s_mov_b32 {s(sT2)}, {MODO + 448 * 8 + 3584}")
        a("s_barrier")
        self.poll([f"buffer_load_dwordx2 v[10:11], v9, {srd(SWS)}, {s(sT0)} offen sc1",
                   f"buffer_load_dwordx2 v[12:13], v9, {srd(SWS)}, {s(sT0)} offen offset:1792 sc1",
                   f"buffer_load_dwordx2 v[14:15], v9, {srd(SWS)}, {s(sT2)} offen sc1",
                   f"buffer_load_dwordx2 v[16:17], v9, {srd(SWS)}, {s(sT2)} offen offset:1792 sc1"],
                  [11, 13, 15, 17])
        a("v_lshlrev_b32 v18, 16, v14")
        a("v_and_b32 v19, 0xffff0000, v14")
        a("v_add_f32 v18, 1.0, v18")
        a("v_add_f32 v19, 1.0, v19")
        a("v_cvt_pk_bf16_f32 v14, v18, v19")
        a("v_lshlrev_b32 v8, 2, v8")
        a(f"v_add_u32 v8, {L_T2}, v8")
        for i in range(4):
            a(f"ds_write_b32 v8, {v(10 + 2 * i)} offset:{896 * i}")
        a.wait_all()
        a("s_barrier")
        a(f"v_lshl_add_u32 v8, v4, 4, {s(sT1)}")
        a(f"v_add_u32 v8, {L_T2}, v8")
        for b in range(2):
            a(f"ds_read_b128 {v(12 + 4 * b, 4)}, v8 offset:{32 * b}")
            a(f"ds_read_b128 {v(20 + 4 * b, 4)}, v8 offset:{2 * 896 + 32 * b}")
            a(f"ds_read_b128 {v(vGBP + 4 * b, 4)}, v8 offset:{3 * 896 + 32 * b}")
        a(f"s_mul_i32 {s(sT2)}, {s(sTILE)}, {TILE_B}")
        a(f"s_add_u32 {s(sT2)}, {s(sT2)}, {s(sGB)}")
        a(f"s_mul_i32 {s(sT3)}, {s(sCH)}, {14 * 1024}")
        a(f"s_add_u32 {s(sT3)}, {s(sT3)}, {s(sT2)}")
        a(f"s_add_u32 {s(sT3)}, {s(sT3)}, {OO}")
        self.unpack16(vXF, vXR)
        a.wait_all(vm=False)
        self.unpack16(vGA, 12)
        self.unpack16(vG2, 20)
        self.stamp(11)
        self.poll_local(1, 32, 8)
        self.stamp(12)
        tk = []
        for k in range(14):
            if k and k % 4 == 0:
                a(f"s_add_u32 {s(sT3)}, {s(sT3)}, 4096")
            tk.append(a.vm(f"buffer_load_dwordx4 {a_(4 * k, 4)}, {v(vL16)}, {srd(SWS)}, {s(sT3)} offen offset:{(k % 4) * 1024} sc1"))
        for k in range(14):
            a.wait(vm=tk[k])
            for ct in range(2):
                d = v(acc + 16 * ct, 16)
                a(f"v_mfma_f32_32x32x16_bf16 {d}, {a_(128 + 8 * k + 4 * ct, 4)}, {a_(4 * k, 4)}, {d if k else 0}")
        self.exchange(acc)
        for r in range(16):
            a(f"v_fma_f32 {v(acc + r)}, {v(acc + r)}, {v(vGA + r)}, {v(vXF + r)}")
        for j in range(8):
            a(f"v_cvt_pk_bf16_f32 {v(vX2 + j)}, {v(acc + 2 * j)}, {v(acc + 2 * j + 1)}")
        self.unpack16(acc, vX2)
        for r in range(0, 16, 2):
            a(f"v_pk_mul_f32 {v(acc + 16 + r, 2)}, {v(acc + r, 2)}, {v(vG2 + r, 2)}")
        for j in range(8):
            a(f"v_cvt_pk_bf16_f32 {v(12 + j)}, {v(acc + 16 + 2 * j)}, {v(acc + 16 + 2 * j + 1)}")
        a(f"s_lshl_b32 {s(sT0)}, {s(sT1)}, 5")
        a(f"s_add_u32 {s(sT0)}, {s(sT0)}, {s(sT2)}")
        a(f"s_add_u32 {s(sT0)}, {s(sT0)}, {YO}")
        for b in range(2):
            a(f"buffer_store_dwordx4 {v(12 + 4 * b, 4)}, {v(vL16)}, {srd(SWS)}, {s(sT0)} offen offset:{1024 * b}{self.st()}")
        a(f"v_pk_mul_f32 v[22:23], {v(acc, 2)}, {v(acc, 2)}")
        a(f"v_pk_add_f32 v[20:21], {v(acc, 2)}, {v(acc + 2, 2)}")
        a(f"v_pk_fma_f32 v[22:23], {v(acc + 2, 2)}, {v(acc + 2, 2)}, v[22:23]")
        for r in range(4, 16, 2):
            a(f"v_pk_add_f32 v[20:21], v[20:21], {v(acc + r, 2)}")
            a(f"v_pk_fma_f32 v[22:23], {v(acc + r, 2)}, {v(acc + r, 2)}, v[22:23]")
        a("v_add_f32 v20, v20, v21")
        a("v_add_f32 v21, v22, v23")
        self.both_halves(20, 24, "v_add_f32")
        self.both_halves(21, 25, "v_add_f32")
        a(f"s_lshl_b32 {s(sT0)}, {s(sT1)}, 5")
        a(f"s_lshl_b32 {s(sT3)}, {s(sTILE)}, 8")
        a(f"s_add_u32 {s(sT0)}, {s(sT0)}, {s(sT3)}")
        a(f"s_add_u32 {s(sT0)}, {s(sT0)}, {s(sGB)}")
        a(f"s_add_u32 {s(sT0)}, {s(sT0)}, {STO}")
        a(f"v_lshrrev_b32 v24, 1, {v(vL16)}")
        a("s_mov_b32 exec_hi, 0")
        a(f"buffer_store_dwordx2 v[20:21], v24, {srd(SWS)}, {s(sT0)} offen{self.st()}")
        a("s_mov_b64 exec, -1")
        self.local_flag(2, 8)
        self.stamp(13)

    def p4(self):
        a = self.a
        acc, vW, vTQ, vAUG, vR2, vH = 32, 160, 12, 16, 24, 224
        self.tr_pattern(vTQ, 8, True)
        a(f"v_bfe_u32 v8, {v(vL16)}, 8, 1")
        a(f"v_mul_u32_u24 v8, {LB - LA}, v8")
        a(f"v_add_u32 {v(vTQ)}, {v(vTQ)}, v8")
        for q in range(1, 4):
            a(f"v_xor_b32 {v(vTQ + q)}, {32 * q}, {v(vTQ)}")
        a(f"s_lshl_b32 {s(sT0)}, {s(sW)}, 5")
        a(f"v_xor_b32 v10, {s(sT0)}, {v(vTQ)}")
        a(f"v_bfe_u32 v8, {v(vL16)}, 4, 5")
        a("v_cmp_eq_u32 vcc, 1, v8")
        a(f"v_mov_b32 v8, {L_T2 + 2 * 896}")
        a(f"v_mov_b32 v9, {L_T2 + 896}")
        a("v_cndmask_b32 v8, v8, v9, vcc")
        a("v_lshl_add_u32 v11, v4, 4, v8")
        ut = {}

        def rdU(k):
            slot = vW + 8 * (k % 8)
            a.lg(f"ds_read_b128 {v(slot, 4)}, v11 offset:{32 * k}")
            ut[k] = self.tr2(("v", slot + 4), 10, k * 2048)

        for k in range(4):
            rdU(k)
        for k in range(28):
            if k + 4 < 28:
                rdU(k + 4)
            a.wait(lg=ut[k])
            slot = vW + 8 * (k % 8)
            a(f"v_mfma_f32_32x32x16_bf16 {v(acc, 16)}, {v(slot, 4)}, {v(slot + 4, 4)}, {v(acc, 16) if k else 0}")
        a(f"v_cvt_pk_bf16_f32 v16, {v(acc)}, {v(acc + 1)}")
        a("v_lshlrev_b32 v17, 16, v16")
        a("v_and_b32 v18, 0xffff0000, v16")
        a(f"v_sub_f32 v17, {v(acc)}, v17")
        a(f"v_sub_f32 v18, {v(acc + 1)}, v18")
        a("v_cvt_pk_bf16_f32 v17, v17, v18")
        a(f"s_mov_b32 {s(sT0)}, 0x05040100")
        a(f"s_mov_b32 {s(sT1)}, 0x07060302")
        a(f"v_perm_b32 v20, v17, v16, {s(sT0)}")
        a("v_mov_b32 v21, v16")
        a(f"v_perm_b32 v22, v16, v17, {s(sT1)}")
        a("v_mov_b32 v23, 0")
        a("s_mov_b32 exec_lo, 0")
        for r in range(20, 23):
            a(f"v_mov_b32 {v(r)}, 0")
        a("s_mov_b64 exec, -1")
        a(f"s_lshl_b32 {s(sT5)}, {s(sW)}, 10")
        a(f"s_add_u32 {s(sT0)}, {s(sT5)}, {L_AUG}")
        a(f"v_add_u32 v8, {s(sT0)}, {v(vL16)}")
        a("ds_write_b128 v8, v[20:23]")
        a(f"v_add_u32 v5, {L_AUG}, {v(vL16)}")
        a.wait_all(vm=False)
        a("s_barrier")
        self.stamp(14)
        self.w_dma_pattern(6, 8, 896)
        a(f"s_lshl_b32 {s(sT0)}, {s(sCB)}, 7")
        a(f"s_mul_i32 {s(sT1)}, {s(sRT)}, {896 * 896}")
        a(f"s_add_u32 {s(sT0)}, {s(sT0)}, {s(sT1)}")
        a(f"s_mul_i32 {s(sT1)}, {s(sCH)}, {8 * 896}")
        a(f"s_add_u32 {s(sT4)}, {s(sT0)}, {s(sT1)}")
        a(f"s_lshl_b32 {s(sT1)}, {s(sCH)}, 10")
        a(f"s_mul_i32 {s(sT5)}, {s(sRT)}, 20480")
        a(f"s_add_u32 {s(sT5)}, {s(sT5)}, {s(sT1)}")
        a(f"s_mul_i32 {s(sT6)}, {s(sRT)}, {LB - LA}")
        a(f"s_add_u32 {s(sT6)}, {s(sT6)}, {s(sT1)}")
        self.poll_local(2, 28, 8)
        self.stamp(15)
        a(f"s_mul_i32 {s(sT0)}, {s(sW)}, {2 * TILE_B}")
        a(f"s_add_u32 {s(sT0)}, {s(sT0)}, {s(sGB)}")
        a(f"s_add_u32 {s(sT0)}, {s(sT0)}, {YO}")
        yt = {}

        def ldY(n):
            if n and n % 4 == 0:
                a(f"s_add_u32 {s(sT0)}, {s(sT0)}, 4096")
            yt[n] = a.vm(f"buffer_load_dwordx4 {a_(4 * n, 4)}, {v(vL16)}, {srd(SWS)}, {s(sT0)} offen offset:{(n % 4) * 1024} sc1")

        for n in range(8):
            ldY(n)
        a(f"v_and_b32 v8, 0x1f0, {v(vL16)}")
        a("v_lshrrev_b32 v8, 1, v8")
        a("v_mul_u32_u24 v9, 14336, v4")
        a("v_add_u32 v8, v8, v9")
        a(f"s_lshl_b32 {s(sT1)}, {s(sW)}, 9")
        a(f"s_add_u32 {s(sT1)}, {s(sT1)}, {s(sGB)}")
        a(f"s_add_u32 {s(sT1)}, {s(sT1)}, {STO}")
        vST = 96
        for p in range(7):
            for rt in range(2):
                t_st = a.vm(f"buffer_load_dwordx2 {v(vST + 14 * rt + 2 * p, 2)}, v8, {srd(SWS)}, {s(sT1)} offen offset:{256 * rt + (p & 1) * 2048} sc1")
            if p & 1:
                a(f"s_add_u32 {s(sT1)}, {s(sT1)}, 4096")
        for n in range(8, 28):
            ldY(n)

        def stats():
            ops = []
            for rt in range(2):
                b = vST + 14 * rt
                for p in range(1, 7):
                    ops += [f"v_add_f32 {v(b)}, {v(b)}, {v(b + 2 * p)}", f"v_add_f32 {v(b + 1)}, {v(b + 1)}, {v(b + 2 * p + 1)}"]
                ops += [f"v_mov_b32 {v(b + 2)}, {v(b)}", f"v_mov_b32 {v(b + 3)}, {v(b + 1)}", "s_nop 0",
                        f"v_permlane32_swap_b32 {v(b + 2)}, {v(b)}", f"v_permlane32_swap_b32 {v(b + 3)}, {v(b + 1)}",
                        f"v_add_f32 {v(b)}, {v(b)}, {v(b + 2)}", f"v_add_f32 {v(b + 1)}, {v(b + 1)}, {v(b + 3)}",
                        f"v_mul_f32 {v(b)}, {f2u(-1 / 448):#x}, {v(b)}",
                        f"v_mul_f32 {v(b + 1)}, {f2u(1 / 448):#x}, {v(b + 1)}",
                        f"v_fma_f32 {v(b + 1)}, -{v(b)}, {v(b)}, {v(b + 1)}",
                        f"v_max_f32 {v(b + 1)}, 0, {v(b + 1)}",
                        f"v_add_f32 {v(b + 1)}, {f2u(1e-5):#x}, {v(b + 1)}",
                        f"v_rcp_f32 {v(vR2 + rt)}, {v(b + 1)}",
                        f"v_sqrt_f32 {v(b + 1)}, {v(b + 1)}", "s_nop 0",
                        f"v_cvt_pk_bf16_f32 {v(b + 2)}, {v(b)}, {v(b + 1)}",
                        f"v_lshlrev_b32 {v(b + 3)}, 16, {v(b + 2)}",
                        f"v_and_b32 {v(b + 4)}, 0xffff0000, {v(b + 2)}",
                        f"v_sub_f32 {v(b + 3)}, {v(b)}, {v(b + 3)}",
                        f"v_sub_f32 {v(b + 4)}, {v(b + 1)}, {v(b + 4)}",
                        f"v_cvt_pk_bf16_f32 {v(b + 3)}, {v(b + 3)}, {v(b + 4)}",
                        f"v_perm_b32 {v(vAUG + 4 * rt)}, {v(b + 2)}, {v(b + 2)}, {s(sP1)}",
                        f"v_bfi_b32 {v(vAUG + 4 * rt + 1)}, {s(sT2)}, {v(b + 3)}, {v(b + 2)}",
                        f"v_perm_b32 {v(vAUG + 4 * rt + 2)}, {v(b + 3)}, {v(b + 2)}, {s(sP1 + 1)}",
                        f"v_mov_b32 {v(vAUG + 4 * rt + 3)}, 0"]
            return ops

        a(f"s_mov_b32 {s(sP1)}, 0x01000100")
        a(f"s_mov_b32 {s(sP1 + 1)}, 0x07060302")
        a(f"s_mov_b32 {s(sT2)}, 0xffff")
        a(f"s_mul_i32 {s(sT3)}, {s(sW)}, {2 * HT_B}")
        a(f"s_add_u32 {s(sT3)}, {s(sT3)}, {s(sGB)}")
        a(f"s_lshl_b32 {s(sT1)}, {s(sM)}, 12")
        a(f"s_add_u32 {s(sT3)}, {s(sT3)}, {s(sT1)}")
        a(f"s_add_u32 {s(sT3)}, {s(sT3)}, {HO}")

        def epilogue(rt):
            ops = []
            for q in range(4):
                b = acc + 64 * rt + 16 * q
                o = vH + 4 * q
                for r in range(8):
                    ops.append(f"v_max_f32 {v(b + r)}, 0, {v(b + r)}")
                    ops.append(f"v_mul_f32 {v(b + 8 + r)}, {v(vR2 + rt)}, {v(b + 8 + r)}")
                for r in range(8):
                    ops.append(f"v_mul_f32 {v(b + r)}, {v(b + r)}, {v(b + 8 + r)}")
                for j in range(4):
                    ops.append(f"v_cvt_pk_bf16_f32 {v(o + j)}, {v(b + 2 * j)}, {v(b + 2 * j + 1)}")
                ops.append(f"buffer_store_dwordx4 {v(o, 4)}, {v(vL16)}, {srd(SWS)}, {s(sT3)} offen offset:{1024 * q}{self.st()}")
            return ops

        self.wd_slots = {}
        for st in range(10):
            self.wd_slots[st] = ("F", st)
        for st in range(10, 38):
            self.wd_slots[st] = ("G", st - 10)
        for st in range(38, 48):
            self.wd_slots[st] = ("F", st - 38)
        for st in range(48, 56):
            self.wd_slots[st] = ("G", st - 48)
        self.wd_t = {}

        steps = [(rt, k, q) for rt in range(2) for k in range(29) for q in range(4)]
        wt = {}
        NS, LOOK = 16, 6

        def rdW(n):
            rt, k, q = steps[n]
            slot = vW + 4 * (n % NS)
            if k < 28:
                wt[n] = self.tr2(("v", slot), vTQ + q, k * 2048)
            else:
                wt[n] = a.lg(f"ds_read_b128 {v(slot, 4)}, v5 offset:{q * 1024}")

        wdq = list(range(10))
        filler = []
        for n in range(LOOK):
            rdW(n)
        for n, (rt, k, q) in enumerate(steps):
            if rt == 1 and q == 0 and k in (9, 17, 25):
                a("s_barrier")
                wdq += list(range(10 + k - 9, 10 + k - 1))
            if n + LOOK < len(steps):
                rdW(n + LOOK)
            if rt == 0 and k == 6 and q == 0:
                a.wait(vm=t_st)
                filler += stats()
            if rt == 1 and k == 1 and q == 0:
                filler += epilogue(0)
            d = v(acc + 64 * rt + 16 * q, 16)
            slot = vW + 4 * (n % NS)
            if k < 28:
                a.wait(vm=yt[28 * rt + k], lg=wt[n])
                bop = a_(4 * (28 * rt + k), 4)
            else:
                a.wait(lg=wt[n])
                bop = v(vAUG + 4 * rt, 4)
            a(f"v_mfma_f32_32x32x16_bf16 {d}, {v(slot, 4)}, {bop}, {d if k else 0}")
            for _ in range(2):
                if filler:
                    a(filler.pop(0))
            if rt == 0 and q == 1 and k < 28:
                ldY(28 + k)
            if q == 3 and wdq and (rt == 1 or k >= 8):
                self.wd_dma(wdq.pop(0))
        assert not filler
        a(f"s_add_u32 {s(sT3)}, {s(sT3)}, {HT_B}")
        for op in epilogue(1):
            a(op)
        self.stamp(16)
        self.local_flag(3, 8)
        a("s_barrier")
        for st in wdq + list(range(34, 38)):
            self.wd_dma(st)

    def wd_dma(self, st):
        area, i = self.wd_slots[st]
        base, off = (sT5, L_F + i * 2048) if area == "F" else (sT6, LA + i * 2048)
        self.wd_t[st] = self.dma(6, SWD, base, off, sT4, st * 16 * 896)

    def p5(self):
        a = self.a
        acc, vW = 32, 160
        self.tr_pattern(12, 8, True)
        a("v_xor_b32 v13, 64, v12")
        a(f"s_mul_i32 {s(sT0)}, {s(sCH)}, 20480")
        a(f"s_add_u32 {s(sT0)}, {s(sT0)}, {L_F}")
        a(f"v_add_u32 v14, {s(sT0)}, v12")
        a(f"v_add_u32 v15, {s(sT0)}, v13")
        a(f"s_mul_i32 {s(sT0)}, {s(sCH)}, {LB - LA}")
        a(f"v_add_u32 v12, {s(sT0)}, v12")
        a(f"v_add_u32 v13, {s(sT0)}, v13")
        a(f"s_mul_i32 {s(sT2)}, {s(sTILE)}, {HT_B}")
        a(f"s_add_u32 {s(sT2)}, {s(sT2)}, {s(sGB)}")
        a(f"s_mul_i32 {s(sT1)}, {s(sCH)}, {56 * 1024}")
        a(f"s_add_u32 {s(sT2)}, {s(sT2)}, {s(sT1)}")
        a(f"s_add_u32 {s(sT2)}, {s(sT2)}, {HO}")
        self.poll_local(3, 28, 8)
        a("s_barrier")
        self.stamp(17)
        ht = {}

        def ldH(n):
            if n and n % 4 == 0:
                a(f"s_add_u32 {s(sT2)}, {s(sT2)}, 4096")
            ht[n] = a.vm(f"buffer_load_dwordx4 {a_(4 * n, 4)}, {v(vL16)}, {srd(SWS)}, {s(sT2)} offen offset:{(n % 4) * 1024} sc1")

        AHEAD = 24
        for n in range(AHEAD):
            ldH(n)
        steps = [(k, ct) for k in range(56) for ct in range(2)]
        wt = {}
        NS, LOOK = 16, 6

        def rdW(n):
            k, ct = steps[n]
            area, i = self.wd_slots[k]
            wt[n] = self.tr2(("v", vW + 4 * (n % NS)), (14 if area == "F" else 12) + ct, i * 2048)

        for n in range(LOOK):
            rdW(n)
        wdq = []
        for n, (k, ct) in enumerate(steps):
            if ct == 0 and k in (10, 18):
                a("s_barrier")
                wdq += list(range(38, 48)) if k == 10 else list(range(48, 56))
            if ct == 0 and k in (34, 44):
                a.wait(vm=self.wd_t[47 if k == 34 else 55])
                a("s_barrier")
            if n + LOOK < len(steps):
                rdW(n + LOOK)
            d = v(acc + 16 * ct, 16)
            a.wait(vm=ht[k], lg=wt[n])
            a(f"v_mfma_f32_32x32x16_bf16 {d}, {v(vW + 4 * (n % NS), 4)}, {a_(4 * k, 4)}, {d if k else 0}")
            if ct == 0 and wdq:
                self.wd_dma(wdq.pop(0))
            if ct == 1 and k + AHEAD < 56:
                ldH(k + AHEAD)
        self.stamp(18)
        a("s_barrier")
        self.exchange(acc)
        self.unpack16(64, vGBP)
        self.unpack16(80, vX2)
        for r in range(16):
            a(f"v_fma_f32 {v(acc + r)}, {v(acc + r)}, {v(64 + r)}, {v(80 + r)}")
        for j in range(8):
            a(f"v_cvt_pk_bf16_f32 {v(12 + j)}, {v(acc + 2 * j)}, {v(acc + 2 * j + 1)}")
        for b in range(2):
            a(f"buffer_store_dwordx4 {v(12 + 4 * b, 4)}, v3, {srd(SOUT)}, {s(sXCC)} offen offset:{32 * b}")
        self.stamp(19)

    def helper_tail(self):
        a = self.a
        a("L_helper_tail:")
        a.vm_done, a.lg_done = a.vm_n, a.lg_n
        if self.o.get("wb", 1) and self.stop is None:
            a(f"s_cmp_lg_u32 {s(sM)}, 28")
            a("s_cbranch_scc1 L_end")
            a(f"s_cmp_lg_u32 {s(sW)}, 0")
            a("s_cbranch_scc1 L_end")
            self.poll_local(3, 28, 8)
            a("buffer_wbl2 sc1")
            a.wait_all()
        self.finish()

    def body(self, slow):
        self.slow = slow
        a = self.a
        if slow:
            a("L_p1_slow:")
        a.vm_done, a.lg_done = a.vm_n, a.lg_n
        self.p1_gemm()
        self.p2()
        if self.stop == 2:
            return self.finish()
        self.p3()
        if self.stop == 3:
            return self.finish()
        self.p4()
        if self.stop == 4:
            return self.finish()
        self.p5()
        self.finish()

    def flush_tail(self):
        for blk in self.tail:
            for t in blk:
                self.a(t)
        self.tail = []

    def build(self):
        a = self.a
        self.entry()
        self.p1_front()
        self.body(False)
        self.helper()
        self.helper_tail()
        self.flush_tail()
        a("L_abort:")
        a("s_mov_b64 exec, -1")
        a("L_end:")
        if self.prof:
            a(f"s_lshl_b32 {s(sT0)}, s2, 2")
            a(f"s_add_u32 {s(sT0)}, {s(sT0)}, {s(sW)}")
            a(f"s_lshl_b32 {s(sT0)}, {s(sT0)}, 8")
            a(f"s_add_u32 {s(sT0)}, {s(sT0)}, {PROF}")
            a("s_waitcnt vmcnt(0)")
            self.stamp(20)
            a(f"v_lshrrev_b32 v8, 2, {v(vL16)}")
            a(f"buffer_store_dword {v(vSTAMP)}, v8, {srd(SWS)}, {s(sT0)} offen")
        a("L_exit:")
        a("s_endpgm")
        a("L_fast_end:")
        self.body(True)
        self.flush_tail()
        a("s_endpgm")
        return a.text()


HEADER = """; Fused adaLN block: x + ga*Attn(LN(x)*(1+ca)+sa), then + gb*ReGLU-FFN(LN(.)*(1+cb)+sb); one persistent launch.
; @launch grid=(256,1,1) block=(256,1,1) lds={lds}
.amdgcn_target "amdgcn-amd-amdhsa--gfx950"
.text
.globl {k}
.p2align 8
.type {k},@function
{k}:
"""
FOOTER = """
.section .rodata,"a"
.p2align 6
.amdhsa_kernel {k}
  .amdhsa_next_free_vgpr 512
  .amdhsa_next_free_sgpr 102
  .amdhsa_accum_offset 256
  .amdhsa_group_segment_fixed_size 0
  .amdhsa_kernarg_size 96
  .amdhsa_user_sgpr_count 2
  .amdhsa_user_sgpr_kernarg_segment_ptr 1
  .amdhsa_system_sgpr_workgroup_id_x 1
  .amdhsa_float_denorm_mode_32 3
.end_amdhsa_kernel
"""


def generate(prof=False, stop=None, opts=None):
    g = Gen(prof, stop, opts)
    body = g.build()
    return HEADER.format(k=KNAME, lds=LDS_BYTES) + body + FOOTER.format(k=KNAME), g


if __name__ == "__main__":
    out = sys.argv[1] if len(sys.argv) > 1 else f"cdna_kernels/{NAME}.s"
    opts = dict(kv.split("=") for kv in sys.argv[2:])
    opts = {k: int(x) for k, x in opts.items()}
    text, g = generate(prof=bool(opts.pop("prof", 0)), stop=opts.pop("stop", None), opts=opts)
    open(out, "w").write(text)
    print("wrote", out, len(text), "bytes;", len(g.a.ins), "lines;", g.a.nops, "hazard nops")
```

```python
import sys
from asmlib import Asm, v, a_, s

NAME = "adaLN_cond__sliding_block__glu_gated_reglu__prompt"
KNAME = NAME + "_kernel"

TILE_B = 28672
HT_B = 114688
QO, KO, VO, OO, YO, HO, STO, LFO = 0, 0x38000, 0x70000, 0xA8000, 0xE0000, 0x118000, 0x1F8000, 0x1FF000
XCCO, MODO, RFO, PROF = 0x400, 0x1000, 0x8000, 0x100000
WS_BYTES = 0x1400000
OOB = 0x7F000000
SPIN_MAX = 1 << 18

LA, LB, LC, LD = 0, 57344, 114688, 159744
LDS_BYTES = 163840
L_KV = LC
L_XB = LC
L_AUG = LC + 40960
L_T2 = LD
L_F = LC

SX, SWQKV, SWO, SWG, SWU, SWD, SOUT, SWS, SWMOD, SC = 4, 8, 12, 16, 20, 24, 28, 32, 36, 40
sG, sM, sW, sTAG, sGB, sRQ, sCB, sXCC, sSPIN = 44, 45, 46, 47, 48, 49, 50, 51, 52
sT0, sT1, sT2, sT3, sT4, sT5, sT6, sT7 = 53, 54, 55, 56, 57, 58, 59, 60
sRT, sCH, sTILE = 61, 62, 63
sMASK = 64
sST = 96
sP0, sP1 = 98, 100

vL16, vSTAMP = 1, 7
vZ = 32
vX2, vGBP = 240, 248

QSCALE = 28 ** -0.5 * 1.4426950408889634


def f2u(x):
    import struct
    return struct.unpack("<I", struct.pack("<f", x))[0]


def srd(i):
    return s(i, 4)


class Gen:
    def __init__(self, prof=False, stop=None, opts=None):
        self.a = Asm()
        self.prof = prof
        self.stop = stop
        self.o = opts or {}
        self.tail = []
        self.slow = False

    def stamp(self, i):
        if not self.prof:
            return
        a = self.a
        a(f"s_memrealtime {s(sST, 2)}")
        a.wait_all(vm=False)
        a(f"v_writelane_b32 {v(vSTAMP)}, {s(sST)}, {i}")

    def dma(self, vaddr, sr, lds_base, lds_off, src_base, src_off, sc1=False, imm=0):
        a = self.a
        lo = lds_off - imm
        if lds_base is None:
            a(f"s_mov_b32 m0, {lo}")
        else:
            a(f"s_add_u32 m0, {s(lds_base)}, {lo}" if lo >= 0 else f"s_sub_u32 m0, {s(lds_base)}, {-lo}")
        if src_off:
            a(f"s_add_u32 {s(sT7)}, {s(src_base)}, {src_off}")
            so = sT7
        else:
            so = src_base
        return a.vm(f"buffer_load_dwordx4 {v(vaddr)}, {srd(sr)}, {s(so)} offen"
                    + (f" offset:{imm}" if imm else "") + (" sc1" if sc1 else "") + " lds")

    def st(self):
        return " sc1" if self.slow else ""

    def poll(self, loads, tagregs, exec_lo=None, exec_hi=None):
        a = self.a
        L = a.label("poll")
        if exec_lo is not None:
            a(f"s_mov_b32 exec_lo, {exec_lo:#x}")
        if exec_hi is not None:
            a(f"s_mov_b32 exec_hi, {exec_hi:#x}")
        a(f"s_mov_b32 {s(sSPIN)}, 0")
        a(f"{L}:")
        for t in loads:
            a(t)
        a(f"s_add_u32 {s(sSPIN)}, {s(sSPIN)}, 1")
        a(f"s_cmp_gt_u32 {s(sSPIN)}, {SPIN_MAX}")
        a("s_cbranch_scc1 L_abort")
        a.wait_all(lg=False)
        a(f"v_cmp_ne_u32 vcc, {s(sTAG)}, {v(tagregs[0])}")
        for r in tagregs[1:]:
            a(f"v_cmp_ne_u32 {s(sP0, 2)}, {s(sTAG)}, {v(r)}")
            a(f"s_or_b64 vcc, vcc, {s(sP0, 2)}")
        a(f"s_cbranch_vccnz {L}")
        if exec_lo is not None or exec_hi is not None:
            a("s_mov_b64 exec, -1")

    def local_flag(self, phase, vt):
        a = self.a
        a(f"s_lshl_b32 {s(sT0)}, {s(sM)}, 4")
        a(f"s_lshl_b32 {s(sT1)}, {s(sW)}, 2")
        a(f"s_add_u32 {s(sT0)}, {s(sT0)}, {s(sT1)}")
        a(f"s_add_u32 {s(sT0)}, {s(sT0)}, {LFO + phase * 512}")
        a(f"v_mov_b32 {v(vt)}, {s(sT0)}")
        a(f"v_mov_b32 {v(vt + 1)}, {s(sTAG)}")
        a.wait_all(lg=False)
        a("s_mov_b64 exec, 1")
        a(f"buffer_store_dword {v(vt + 1)}, {v(vt)}, {srd(SWS)}, {s(sGB)} offen{self.st()}")
        a("s_mov_b64 exec, -1")

    def poll_local(self, phase, nprod, vt):
        a = self.a
        a(f"v_lshrrev_b32 {v(vt)}, 1, {v(vL16)}")
        a(f"s_add_u32 {s(sT0)}, {s(sGB)}, {LFO + phase * 512}")
        self.poll([f"buffer_load_dwordx2 {v(vt + 2, 2)}, {v(vt)}, {srd(SWS)}, {s(sT0)} offen sc1"], [vt + 2, vt + 3],
                  exec_hi=None if nprod == 32 else 0x00FFFFFF)

    def tr_pattern(self, vd, vt, perm, ct_sgpr=None, ct_imm=0):
        a = self.a
        a(f"v_lshrrev_b32 {v(vt)}, 4, {v(vL16)}")
        a(f"v_bfe_u32 {v(vt + 1)}, {v(vt)}, 2, 2")
        a(f"v_lshrrev_b32 {v(vt + 2)}, 5, {v(vt)}")
        a(f"v_lshl_add_u32 {v(vt + 2)}, {v(vt + 2)}, 3, {v(vt + 1)}")
        a(f"v_lshlrev_b32 {v(vd)}, 7, {v(vt + 2)}")
        a(f"v_lshrrev_b32 {v(vt + 1)}, 1, {v(vt + 1)}")
        a(f"v_lshlrev_b32 {v(vt + 1)}, 6, {v(vt + 1)}")
        if perm:
            a(f"v_and_b32 {v(vt + 2)}, 1, {v(vt)}")
            a(f"v_lshlrev_b32 {v(vt + 2)}, 4, {v(vt + 2)}")
            a(f"v_xor_b32 {v(vt + 1)}, {v(vt + 1)}, {v(vt + 2)}")
            a(f"v_and_b32 {v(vt + 2)}, 2, {v(vt)}")
            a(f"v_lshlrev_b32 {v(vt + 2)}, 2, {v(vt + 2)}")
        else:
            a(f"v_and_b32 {v(vt + 2)}, 3, {v(vt)}")
            a(f"v_lshlrev_b32 {v(vt + 2)}, 3, {v(vt + 2)}")
        a(f"v_xor_b32 {v(vt + 1)}, {v(vt + 1)}, {v(vt + 2)}")
        a(f"v_and_b32 {v(vt + 2)}, 16, {v(vt)}")
        a(f"v_lshlrev_b32 {v(vt + 2)}, 1, {v(vt + 2)}")
        a(f"v_xor_b32 {v(vt + 1)}, {v(vt + 1)}, {v(vt + 2)}")
        if ct_sgpr is not None:
            a(f"s_lshl_b32 {s(sT0)}, {s(ct_sgpr)}, 6")
            a(f"v_xor_b32 {v(vt + 1)}, {s(sT0)}, {v(vt + 1)}")
        elif ct_imm:
            a(f"v_xor_b32 {v(vt + 1)}, {ct_imm * 64}, {v(vt + 1)}")
        a(f"v_add_u32 {v(vd)}, {v(vd)}, {v(vt + 1)}")

    def w_dma_pattern(self, vd, vt, stride, up=False):
        a = self.a
        a(f"v_lshrrev_b32 {v(vt)}, 7, {v(vL16)}")
        a(f"v_mul_u32_u24 {v(vd)}, {stride}, {v(vt)}")
        a(f"v_and_b32 {v(vt)}, 2, {v(vt)}")
        a(f"v_lshlrev_b32 {v(vt)}, 5, {v(vt)}")
        a(f"v_and_b32 {v(vt + 1)}, 0x70, {v(vL16)}")
        a(f"v_xor_b32 {v(vt)}, {v(vt)}, {v(vt + 1)}")
        if up:
            a(f"v_xor_b32 {v(vt)}, 32, {v(vt)}")
        a(f"v_add_u32 {v(vd)}, {v(vd)}, {v(vt)}")

    def tr2(self, dst, vaddr, off):
        f = v if dst[0] == "v" else a_
        self.a.lg(f"ds_read_b64_tr_b16 {f(dst[1], 2)}, {v(vaddr)} offset:{off}")
        return self.a.lg(f"ds_read_b64_tr_b16 {f(dst[1] + 2, 2)}, {v(vaddr)} offset:{off + 512}")

    def both_halves(self, vx, vt, op):
        a = self.a
        a(f"v_mov_b32 {v(vt)}, {v(vx)}")
        a(f"v_permlane32_swap_b32 {v(vt)}, {v(vx)}")
        a(f"{op} {v(vx)}, {v(vx)}, {v(vt)}")

    def finish(self):
        self.a("s_branch L_end")

    def entry(self):
        a = self.a
        a("s_cmp_ge_u32 s2, 256")
        a("s_cbranch_scc1 L_exit")
        a(f"s_load_dwordx2 {s(SWS, 2)}, s[0:1], 88")
        a(f"s_load_dwordx2 {s(SX, 2)}, s[0:1], 0")
        a(f"s_load_dwordx2 {s(SWQKV, 2)}, s[0:1], 8")
        a(f"s_load_dwordx2 {s(SWMOD, 2)}, s[0:1], 64")
        a(f"s_load_dwordx2 {s(SC, 2)}, s[0:1], 56")
        a(f"s_load_dwordx2 {s(SWO, 2)}, s[0:1], 16")
        a(f"s_load_dwordx2 {s(SWG, 2)}, s[0:1], 32")
        a(f"s_load_dwordx2 {s(SWU, 2)}, s[0:1], 40")
        a(f"s_load_dwordx2 {s(SWD, 2)}, s[0:1], 48")
        a(f"s_load_dwordx2 {s(SOUT, 2)}, s[0:1], 72")
        if self.prof or self.o.get("diag_wall"):
            a(f"v_mov_b32 {v(vSTAMP)}, 0")
            a(f"s_memrealtime {s(sST, 2)}")
        a(f"v_lshrrev_b32 v2, 6, v0")
        a(f"v_and_b32 v3, 63, v0")
        a(f"v_readfirstlane_b32 {s(sW)}, v2")
        a(f"v_lshlrev_b32 {v(vL16)}, 4, v3")
        a(f"s_and_b32 {s(sG)}, s2, 7")
        a(f"s_lshr_b32 {s(sM)}, s2, 3")
        a(f"s_getpc_b64 {s(sP0, 2)}")
        a("L_pc:")
        a(f"s_lshl_b32 {s(sT0)}, {s(sM)}, 2")
        a(f"s_add_u32 {s(sT0)}, {s(sT0)}, {s(sW)}")
        a(f"s_lshl_b32 {s(sT0)}, {s(sT0)}, 9")
        a(f"v_lshl_add_u32 v4, v3, 7, {s(sT0)}")
        a("v_min_u32 v4, L_fast_end-L_pc-4, v4")
        a("s_mov_b64 exec, 15")
        a.vm(f"global_load_dword v5, v4, {s(sP0, 2)}")
        a("s_mov_b64 exec, -1")
        for r, n in ((SX, 2048 * 896), (SWQKV, 448 * 2688), (SWO, 448 * 896), (SWG, 448 * 3584), (SWU, 448 * 3584),
                     (SWD, 1792 * 896), (SOUT, 2048 * 896), (SWS, WS_BYTES), (SWMOD, 448 * 5376), (SC, 896)):
            a(f"s_mov_b32 {s(r + 2)}, {n:#x}")
            a(f"s_mov_b32 {s(r + 3)}, 0x20000")
        a(f"s_getreg_b32 {s(sXCC)}, hwreg(HW_REG_XCC_ID, 0, 4)")
        a(f"s_add_u32 {s(sGB)}, {s(sG)}, 1")
        a(f"s_lshl_b32 {s(sGB)}, {s(sGB)}, 21")
        a(f"s_mul_i32 {s(sRQ)}, {s(sM)}, 37")
        a(f"s_lshr_b32 {s(sRQ)}, {s(sRQ)}, 8")
        a(f"s_mul_i32 {s(sT0)}, {s(sRQ)}, 7")
        a(f"s_sub_u32 {s(sCB)}, {s(sM)}, {s(sT0)}")
        a(f"s_lshr_b32 {s(sRT)}, {s(sW)}, 1")
        a(f"s_and_b32 {s(sCH)}, {s(sW)}, 1")
        a(f"s_lshl_b32 {s(sTILE)}, {s(sRQ)}, 1")
        a(f"s_add_u32 {s(sTILE)}, {s(sTILE)}, {s(sRT)}")
        a("s_waitcnt lgkmcnt(0)")
        if self.prof:
            a(f"v_writelane_b32 {v(vSTAMP)}, {s(sST)}, 0")
        if self.o.get("diag_wall"):
            a(f"s_mov_b32 s3, {s(sST)}")
        a(f"s_load_dword {s(sTAG)}, {s(SWS, 2)}, 0")
        a(f"s_cmp_ge_u32 {s(sM)}, 28")
        a("s_cbranch_scc1 L_helper")

    def make_tag_and_publish_xcc(self, vt):
        a = self.a
        a.wait_all(vm=False)
        a(f"s_mul_i32 {s(sTAG)}, {s(sTAG)}, 1664525")
        a(f"s_add_u32 {s(sTAG)}, {s(sTAG)}, 1013904223")
        a(f"s_lshl_b32 {s(sT0)}, {s(sG)}, 8")
        a(f"s_lshl_b32 {s(sT1)}, {s(sM)}, 3")
        a(f"s_add_u32 {s(sT0)}, {s(sT0)}, {s(sT1)}")
        a(f"v_mov_b32 {v(vt)}, {s(sXCC)}")
        a(f"v_mov_b32 {v(vt + 1)}, {s(sTAG)}")
        a(f"v_mov_b32 {v(vt + 2)}, {XCCO}")
        a(f"s_cmp_eq_u32 {s(sW)}, 0")
        a("s_cselect_b64 exec, 1, 0")
        a.vm(f"buffer_store_dwordx2 {v(vt, 2)}, {v(vt + 2)}, {srd(SWS)}, {s(sT0)} offen sc1")
        a("s_mov_b64 exec, -1")

    def xcc_load(self, vaddr, vd):
        a = self.a
        a(f"v_and_b32 {v(vaddr)}, 0x1f0, {v(vL16)}")
        a(f"v_lshrrev_b32 {v(vaddr)}, 1, {v(vaddr)}")
        a(f"s_lshl_b32 {s(sT6)}, {s(sG)}, 8")
        return f"buffer_load_dwordx2 {v(vd, 2)}, {v(vaddr)}, {srd(SWS)}, {s(sT6)} offen offset:{XCCO} sc1"

    def choose_mode(self, vd, slow_label):
        a = self.a
        a(f"v_cmp_ne_u32 vcc, {s(sXCC)}, {v(vd)}")
        if self.o.get("force_slow"):
            a(f"s_branch {slow_label}")
        else:
            a(f"s_cbranch_vccnz {slow_label}")

    def p1_front(self):
        a = self.a
        vPE, vPO, vPW = 2, 3, 6
        a(f"v_lshrrev_b32 v8, 7, {v(vL16)}")
        a(f"v_mul_u32_u24 {v(vPE)}, 896, v8")
        a("v_lshrrev_b32 v8, 1, v8")
        a("v_lshlrev_b32 v8, 4, v8")
        a(f"v_and_b32 v9, 0x70, {v(vL16)}")
        a("v_xor_b32 v8, v8, v9")
        a(f"v_add_u32 {v(vPE)}, {v(vPE)}, v8")
        a(f"v_xor_b32 {v(vPO)}, 64, {v(vPE)}")
        a(f"s_lshl_b32 {s(sT0)}, {s(sG)}, 3")
        a(f"s_add_u32 {s(sT0)}, {s(sT0)}, {s(sTILE)}")
        a(f"s_lshl_b32 {s(sT0)}, {s(sT0)}, 1")
        a(f"s_add_u32 {s(sT0)}, {s(sT0)}, {s(sCH)}")
        a(f"s_mul_i32 {s(sT0)}, {s(sT0)}, {16 * 896}")
        a(f"s_add_u32 {s(sT1)}, {s(sT0)}, {8 * 896}")
        a(f"s_mul_i32 {s(sT2)}, {s(sRT)}, {TILE_B}")
        a(f"s_lshl_b32 {s(sT3)}, {s(sCH)}, 11")
        a(f"s_add_u32 {s(sT2)}, {s(sT2)}, {s(sT3)}")
        a(f"s_add_u32 {s(sT3)}, {s(sT2)}, {7 * 4096}")
        a("L_xdma:")
        a(f"s_mov_b32 m0, {s(sT2)}")
        a(f"s_add_u32 {s(sT2)}, {s(sT2)}, 4096")
        a(f"buffer_load_dwordx4 {v(vPE)}, {srd(SX)}, {s(sT0)} offen lds")
        a("s_add_u32 m0, m0, 1024")
        a(f"s_add_u32 {s(sT0)}, {s(sT0)}, 128")
        a(f"buffer_load_dwordx4 {v(vPO)}, {srd(SX)}, {s(sT1)} offen lds")
        a(f"s_add_u32 {s(sT1)}, {s(sT1)}, 128")
        a(f"s_cmp_lg_u32 {s(sT2)}, {s(sT3)}")
        a("s_cbranch_scc1 L_xdma")
        t_x0 = a.vm_n - 2
        a.vm_n += 12
        t_xa, t_xb = t_x0 + 8, t_x0 + 14
        self.w_dma_pattern(vPW, 8, 2688)
        a(f"s_mul_i32 {s(sT0)}, {s(sW)}, {8 * 2688}")
        a(f"s_lshl_b32 {s(sT1)}, {s(sCB)}, 7")
        a(f"s_add_u32 {s(sT4)}, {s(sT0)}, {s(sT1)}")
        a(f"s_lshl_b32 {s(sT5)}, {s(sW)}, 10")
        a(f"s_add_u32 {s(sT0)}, {s(sT4)}, 896")
        a(f"s_add_u32 {s(sT1)}, {s(sT4)}, 1792")
        a(f"s_add_u32 {s(sT2)}, {s(sT5)}, {LB}")
        a(f"s_add_u32 {s(sT3)}, {s(sT2)}, {11 * 4096}")
        a("L_wdma:")
        a(f"s_mov_b32 m0, {s(sT2)}")
        a(f"s_add_u32 {s(sT2)}, {s(sT2)}, 4096")
        a(f"buffer_load_dwordx4 {v(vPW)}, {srd(SWQKV)}, {s(sT0)} offen lds")
        a(f"s_add_u32 m0, m0, {LC - LB}")
        a(f"s_add_u32 {s(sT0)}, {s(sT0)}, {32 * 2688}")
        a(f"buffer_load_dwordx4 {v(vPW)}, {srd(SWQKV)}, {s(sT1)} offen lds")
        a(f"s_add_u32 {s(sT1)}, {s(sT1)}, {32 * 2688}")
        a(f"s_cmp_lg_u32 {s(sT2)}, {s(sT3)}")
        a("s_cbranch_scc1 L_wdma")
        a.vm_n += 20
        for i in range(3):
            self.dma(vPW, SWQKV, sT2, i * 4096, sT0, i * 32 * 2688)
        self.make_tag_and_publish_xcc(8)
        a(f"v_bfe_u32 v12, {v(vL16)}, 4, 5")
        a("v_lshlrev_b32 v13, 7, v12")
        a("v_bfe_u32 v12, v12, 1, 3")
        a(f"v_lshrrev_b32 v14, 9, {v(vL16)}")
        a("v_xor_b32 v12, v12, v14")
        a("v_lshl_add_u32 v13, v12, 4, v13")
        a(f"s_mul_i32 {s(sT0)}, {s(sRT)}, {TILE_B}")
        a(f"v_add_u32 v8, {s(sT0)}, v13")
        for q in range(1, 4):
            a(f"v_xor_b32 {v(8 + q)}, {q * 32}, v8")
        for r in range(12, 20):
            a(f"v_mov_b32 {v(r)}, 0")
        a(f"s_mov_b32 {s(sT0)}, 0xffff0000")

        def rd(k):
            return a.lg(f"ds_read_b128 {v(vZ + 8 * k + 4, 4)}, {v(8 + (k & 3))} offset:{(k >> 2) * 4096}")

        def unpack(k):
            z = vZ + 8 * k
            for j in range(4):
                a(f"v_lshlrev_b32 {v(z + 2 * j)}, 16, {v(z + 4 + j)}")
                a(f"v_and_b32 {v(z + 2 * j + 1)}, {s(sT0)}, {v(z + 4 + j)}")
            for j in range(4):
                sa, qa = 12 + 2 * (j & 1), 16 + 2 * (j & 1)
                a(f"v_pk_add_f32 {v(sa, 2)}, {v(sa, 2)}, {v(z + 2 * j, 2)}")
                a(f"v_pk_fma_f32 {v(qa, 2)}, {v(z + 2 * j, 2)}, {v(z + 2 * j, 2)}, {v(qa, 2)}")

        a.wait(vm=t_xa)
        a("s_barrier")
        self.stamp(1)
        tk = {}
        for k in range(12):
            tk[k] = rd(k)
        for k in range(16):
            if k + 12 < 16:
                tk[k + 12] = rd(k + 12)
            if k == 10:
                a.wait(vm=t_xb)
                a("s_barrier")
                for kk in range(16, 22):
                    tk[kk] = rd(kk)
            if k > 10 and k + 11 < 28:
                tk[k + 11] = rd(k + 11)
            a.wait(lg=tk[k])
            unpack(k)
        tk[27] = rd(27)
        for k in range(16, 28):
            a.wait(lg=tk[k])
            unpack(k)
        a("v_pk_add_f32 v[12:13], v[12:13], v[14:15]")
        a("v_pk_add_f32 v[16:17], v[16:17], v[18:19]")
        a("v_add_f32 v12, v12, v13")
        a("v_add_f32 v16, v16, v17")
        self.both_halves(12, 13, "v_add_f32")
        self.both_halves(16, 17, "v_add_f32")
        a(f"v_mul_f32 v12, {f2u(1 / 448):#x}, v12")
        a(f"v_mul_f32 v16, {f2u(1 / 448):#x}, v16")
        a("v_fma_f32 v16, -v12, v12, v16")
        a("v_max_f32 v16, 0, v16")
        a(f"v_add_f32 v16, {f2u(1e-5):#x}, v16")
        a("v_rsq_f32 v14, v16")
        a("v_mul_f32 v12, v12, v14")
        a("v_sub_f32 v12, 0, v12")
        for r in range(vZ, vZ + 224, 2):
            a(f"v_pk_fma_f32 {v(r, 2)}, {v(r, 2)}, v[14:15], v[12:13] op_sel_hi:[1,0,0]")
        self.stamp(2)
        self.tr_pattern(2, 8, True, ct_sgpr=sCH)
        self.tr_pattern(4, 8, False, ct_sgpr=sCH)
        a(f"v_add_u32 v3, {LC}, v4")
        a(f"v_add_u32 v2, {LB}, v2")
        a(f"v_lshrrev_b32 v5, 9, {v(vL16)}")
        a("v_lshlrev_b32 v5, 6, v5")
        a(f"v_add_u32 v5, {LD}, v5")
        a("v_min_u32 v8, 223, v0")
        a("v_lshlrev_b32 v9, 3, v8")
        xl = self.xcc_load(10, 16)
        a(f"s_mov_b32 {s(sT0)}, {MODO}")
        self.poll([f"buffer_load_dwordx2 v[12:13], v9, {srd(SWS)}, {s(sT0)} offen sc1",
                   f"buffer_load_dwordx2 v[14:15], v9, {srd(SWS)}, {s(sT0)} offen offset:1792 sc1", xl],
                  [13, 15, 17])
        self.stamp(3)
        a("v_lshlrev_b32 v18, 16, v14")
        a("v_and_b32 v19, 0xffff0000, v14")
        a("v_add_f32 v18, 1.0, v18")
        a("v_add_f32 v19, 1.0, v19")
        a("v_cvt_pk_bf16_f32 v14, v18, v19")
        a("v_lshlrev_b32 v20, 16, v12")
        a("v_and_b32 v21, 0xffff0000, v12")
        a("v_lshlrev_b32 v18, 16, v14")
        a("v_and_b32 v19, 0xffff0000, v14")
        a("v_lshrrev_b32 v9, 2, v8")
        a("v_lshlrev_b32 v9, 6, v9")
        a("v_and_b32 v8, 3, v8")
        a("v_lshl_add_u32 v9, v8, 3, v9")
        a(f"v_add_u32 v9, {LD}, v9")
        a("ds_write_b64 v9, v[18:19]")
        a("ds_write_b64 v9, v[20:21] offset:32")
        a.wait_all()
        a("s_barrier")
        self.choose_mode(16, "L_p1_slow")

    def p1_gemm(self):
        a = self.a
        vTK, vTV, vTV2, vGBA, vPW = 2, 3, 4, 5, 6
        aK, aV, aQ, aW = 0, 16, 32, 48
        free = [8, 12, 16, 20, 24, 28]
        halves = [(k, h) for k in range(28) for h in range(2)]
        gb = {}
        nxt = [0]

        def issue_gb():
            while len(free) >= 2 and nxt[0] < 56:
                k, h = halves[nxt[0]]
                qg, qb = free.pop(0), free.pop(0)
                a.lg(f"ds_read_b128 {v(qg, 4)}, {v(vGBA)} offset:{k * 128 + h * 16}")
                t = a.lg(f"ds_read_b128 {v(qb, 4)}, {v(vGBA)} offset:{k * 128 + h * 16 + 32}")
                gb[(k, h)] = (qg, qb, t)
                nxt[0] += 1
                break

        def modulate(k, h):
            z = vZ + 8 * k
            qg, qb, t = gb[(k, h)]
            a.wait(lg=t)
            for j in range(4):
                r = z + 4 * h + j
                a(f"v_fma_f32 {v(r)}, {v(r)}, {v(qg + j)}, {v(qb + j)}")
            a(f"v_cvt_pk_bf16_f32 {v(z + 2 * h)}, {v(z + 4 * h)}, {v(z + 4 * h + 1)}")
            a(f"v_cvt_pk_bf16_f32 {v(z + 2 * h + 1)}, {v(z + 4 * h + 2)}, {v(z + 4 * h + 3)}")
            free.extend([qg, qb])
            if h == 1 and k < 4:
                free.append(z + 4)

        wt = {}

        def rdW(kind, k):
            slot = aW + 4 * ((2 * k + (kind == "v")) % 8)
            if kind == "k":
                t = self.tr2(("a", slot), vTK, k * 2048)
            elif k < 22:
                t = self.tr2(("a", slot), vTV, k * 2048)
            else:
                t = self.tr2(("a", slot), vTV2, (k - 22) * 2048)
            wt[(kind, k)] = (slot, t)

        late = [(LA + i * 4096, 1792 + (11 + i) * 32 * 2688) for i in range(3)]
        late += [(LA + 12288 + i * 4096, i * 32 * 2688) for i in range(11)]
        t_vtail = None
        for _ in range(3):
            issue_gb()
        rdW("k", 0); rdW("v", 0)
        modulate(0, 0); issue_gb()
        rdW("k", 1)
        modulate(0, 1); issue_gb()
        rdW("v", 1)
        for k in range(28):
            z = vZ + 8 * k
            slot, t = wt[("k", k)]
            a.wait(lg=t)
            a(f"v_mfma_f32_32x32x16_bf16 {a_(aK, 16)}, {a_(slot, 4)}, {v(z, 4)}, {a_(aK, 16) if k else 0}")
            if k + 1 < 28:
                modulate(k + 1, 0); issue_gb(); issue_gb()
            if k == 19:
                a.wait(vm=t_vtail)
                a("s_barrier")
            if k + 2 < 28:
                rdW("k", k + 2)
            slot, t = wt[("v", k)]
            a.wait(lg=t)
            a(f"v_mfma_f32_32x32x16_bf16 {a_(aV, 16)}, {v(z, 4)}, {a_(slot, 4)}, {a_(aV, 16) if k else 0}")
            if k + 1 < 28:
                modulate(k + 1, 1); issue_gb(); issue_gb()
            if k + 2 < 28:
                rdW("v", k + 2)
            if k < 14:
                t = self.dma(vPW, SWQKV, sT5, late[k][0], sT4, late[k][1])
                if k == 2:
                    t_vtail = t
        t_qhead = a.vm_n
        a.wait(vm=t_qhead)
        a("s_barrier")
        self.stamp(4)
        for i in range(3):
            t_qtail = self.dma(vPW, SWQKV, sT5, LB + i * 4096, sT4, (11 + i) * 32 * 2688)
        vTQ = 3
        a(f"v_subrev_u32 {v(vTQ)}, {LB - LA - 12288}, {v(vTK)}")

        def rdQ(k):
            slot = aW + 4 * (k % 8)
            t = self.tr2(("a", slot), vTQ, k * 2048) if k < 22 else self.tr2(("a", slot), vTK, (k - 22) * 2048)
            wt[("q", k)] = (slot, t)

        for k in range(4):
            rdQ(k)
        a(f"s_mul_i32 {s(sT0)}, {s(sTILE)}, {TILE_B}")
        a(f"s_add_u32 {s(sT0)}, {s(sT0)}, {s(sGB)}")
        a(f"s_lshl_b32 {s(sT1)}, {s(sCB)}, 1")
        a(f"s_add_u32 {s(sT1)}, {s(sT1)}, {s(sCH)}")
        a(f"s_lshl_b32 {s(sT2)}, {s(sT1)}, 11")
        a(f"s_add_u32 {s(sT2)}, {s(sT2)}, {s(sT0)}")
        a(f"s_add_u32 {s(sT3)}, {s(sT2)}, {KO}")
        a(f"s_lshl_b32 {s(sT1)}, {s(sT1)}, 9")
        a(f"s_add_u32 {s(sT1)}, {s(sT1)}, {s(sT0)}")
        a(f"s_add_u32 {s(sT0)}, {s(sT1)}, {VO}")
        a(f"s_add_u32 {s(sT1)}, {s(sT1)}, {VO + 14336}")
        a(f"v_lshrrev_b32 v4, 9, {v(vL16)}")
        a("v_mul_u32_u24 v4, 7168, v4")
        a(f"v_and_b32 v5, 0x1f0, {v(vL16)}")
        a("v_add_u32 v4, v4, v5")

        def pack_acc(acc, b, tmp, out, scale=None):
            for j in range(8):
                a(f"v_accvgpr_read_b32 {v(tmp + j)}, {a_(acc + 8 * b + j)}")
            if scale is not None:
                for j in range(8):
                    a(f"v_mul_f32 {v(tmp + j)}, {s(scale)}, {v(tmp + j)}")
            for j in range(4):
                a(f"v_cvt_pk_bf16_f32 {v(out + j)}, {v(tmp + 2 * j)}, {v(tmp + 2 * j + 1)}")

        outq = [vZ + 8 * i + 4 for i in range(8, 16)]
        for b in range(2):
            pack_acc(aK, b, 8 + 8 * b, outq[b])
            a.vm(f"buffer_store_dwordx4 {v(outq[b], 4)}, {v(vL16)}, {srd(SWS)}, {s(sT3)} offen offset:{b * 1024} sc1")
        for b in range(2):
            pack_acc(aV, b, 8 + 8 * b, outq[2 + b])
            t_kv = a.vm(f"buffer_store_dwordx4 {v(outq[2 + b], 4)}, v4, {srd(SWS)}, {s(sT0 + b)} offen sc1")
        self.w_dma_pattern(5, 8, 896)
        a(f"s_mul_i32 {s(sT0)}, {s(sW)}, {8 * 896}")
        a(f"s_lshl_b32 {s(sT1)}, {s(sCB)}, 7")
        a(f"s_add_u32 {s(sT4)}, {s(sT0)}, {s(sT1)}")
        wo = [(LC + i * 4096, i * 32 * 896) for i in range(11)] + [(LB + 12288 + i * 4096, (11 + i) * 32 * 896) for i in range(3)]
        for k in range(28):
            if k == 17:
                a.wait(vm=t_qtail)
                a("s_barrier")
            if k + 4 < 28:
                rdQ(k + 4)
            slot, t = wt[("q", k)]
            a.wait(lg=t)
            a(f"v_mfma_f32_32x32x16_bf16 {a_(aQ, 16)}, {a_(slot, 4)}, {v(vZ + 8 * k, 4)}, {a_(aQ, 16) if k else 0}")
            if k < 14:
                t_wo = self.dma(5, SWO, sT5, wo[k][0], sT4, wo[k][1])
        a(f"s_lshl_b32 {s(sT0)}, {s(sG)}, 5")
        a(f"s_add_u32 {s(sT0)}, {s(sT0)}, {s(sM)}")
        a(f"s_lshl_b32 {s(sT0)}, {s(sT0)}, 7")
        a(f"v_mov_b32 v8, {RFO}")
        a(f"v_mov_b32 v9, {s(sTAG)}")
        a.wait(vm=t_kv)
        a("s_barrier")
        a(f"s_cmp_eq_u32 {s(sW)}, 0")
        a("s_cselect_b64 exec, 1, 0")
        a.vm(f"buffer_store_dword v9, v8, {srd(SWS)}, {s(sT0)} offen sc1")
        a("s_mov_b64 exec, -1")
        self.stamp(5)
        a(f"s_mov_b32 {s(sT0)}, {f2u(QSCALE):#x}")
        for b in range(2):
            pack_acc(aQ, b, 16 + 8 * b, outq[4 + b], scale=sT0)
            a.vm(f"buffer_store_dwordx4 {v(outq[4 + b], 4)}, {v(vL16)}, {srd(SWS)}, {s(sT2)} offen offset:{b * 1024}{self.st()}")
        self.local_flag(0, 8)
        a("s_barrier")
        self.tr_pattern(2, 8, True)
        a(f"v_xor_b32 v3, 64, v2")
        a(f"s_mul_i32 {s(sT0)}, {s(sCH)}, {14 * 2048}")
        a(f"s_add_u32 {s(sT1)}, {s(sT0)}, {LC}")
        a(f"v_add_u32 v4, {s(sT1)}, v2")
        a(f"v_add_u32 v5, {s(sT1)}, v3")
        a(f"s_mov_b32 {s(sT1)}, {LB + 12288}")
        a(f"s_cmp_eq_u32 {s(sCH)}, 0")
        a(f"s_cselect_b32 {s(sT1)}, {LC + 8 * 2048}, {s(sT1)}")
        a(f"v_add_u32 v2, {s(sT1)}, v2")
        a(f"v_add_u32 v3, {s(sT1)}, v3")
        for k in range(14):
            for ct in range(2):
                if k < 8:
                    self.tr2(("a", 128 + 8 * k + 4 * ct), 4 + ct, k * 2048)
                else:
                    self.tr2(("a", 128 + 8 * k + 4 * ct), 2 + ct, (k - 8) * 2048)
        a.wait_all(vm=False)
        a("s_barrier")

    def helper(self):
        a = self.a
        a("L_helper:")
        a.vm_done = a.vm_n
        a.lg_done = a.lg_n
        sJ = sT4
        a(f"s_sub_u32 {s(sJ)}, {s(sM)}, 28")
        a(f"s_lshl_b32 {s(sJ)}, {s(sJ)}, 3")
        a(f"s_add_u32 {s(sJ)}, {s(sJ)}, {s(sG)}")
        a("v_min_u32 v8, 223, v0")
        a("v_lshlrev_b32 v8, 2, v8")
        a(f"buffer_load_dword v9, v8, {srd(SC)}, 0 offen")
        self.w_dma_pattern(6, 10, 5376)
        a(f"s_lshl_b32 {s(sT5)}, {s(sW)}, 10")
        a(f"s_mov_b32 {s(sT6)}, 0")
        a("L_job:")
        a(f"s_mul_i32 {s(sT0)}, {s(sW)}, {8 * 5376}")
        a(f"s_lshl_b32 {s(sT1)}, {s(sJ)}, 7")
        a(f"s_add_u32 {s(sT0)}, {s(sT0)}, {s(sT1)}")
        a(f"s_mov_b32 {s(sT2)}, {s(sT5)}")
        a(f"s_add_u32 {s(sT3)}, {s(sT2)}, {14 * 4096}")
        a("L_mdma:")
        a(f"s_mov_b32 m0, {s(sT2)}")
        a(f"s_add_u32 {s(sT2)}, {s(sT2)}, 4096")
        a(f"buffer_load_dwordx4 v6, {srd(SWMOD)}, {s(sT0)} offen lds")
        a(f"s_add_u32 {s(sT0)}, {s(sT0)}, {32 * 5376}")
        a(f"s_cmp_lg_u32 {s(sT2)}, {s(sT3)}")
        a("s_cbranch_scc1 L_mdma")
        a(f"s_cmp_lg_u32 {s(sT6)}, 0")
        a("s_cbranch_scc1 L_job_go")
        self.make_tag_and_publish_xcc(20)
        a("s_waitcnt vmcnt(15)")
        a("v_lshlrev_b32 v10, 16, v9")
        a("v_and_b32 v11, 0xffff0000, v9")
        for r in (10, 11):
            a(f"v_mul_f32 {v(r + 2)}, {f2u(-1.4426950408889634):#x}, {v(r)}")
        for r in (12, 13):
            a(f"v_exp_f32 {v(r)}, {v(r)}")
        for r in (12, 13):
            a(f"v_add_f32 {v(r)}, 1.0, {v(r)}")
        for r in (12, 13):
            a(f"v_rcp_f32 {v(r)}, {v(r)}")
        for r in (10, 11):
            a(f"v_mul_f32 {v(r)}, {v(r)}, {v(r + 2)}")
        a("v_cvt_pk_bf16_f32 v10, v10, v11")
        a(f"v_add_u32 v8, {LD}, v8")
        a("ds_write_b32 v8, v10")
        a(f"v_lshrrev_b32 v10, 4, {v(vL16)}")
        a("v_bfe_u32 v11, v10, 2, 2")
        a("v_lshrrev_b32 v12, 4, v10")
        a("v_lshl_add_u32 v13, v12, 3, v11")
        a("v_lshlrev_b32 v2, 7, v13")
        a("v_lshrrev_b32 v11, 1, v11")
        a("v_lshlrev_b32 v11, 6, v11")
        a("v_and_b32 v13, 3, v10")
        a("v_lshlrev_b32 v13, 3, v13")
        a("v_xor_b32 v11, v11, v13")
        a(f"s_lshl_b32 {s(sT0)}, {s(sW)}, 5")
        a(f"v_xor_b32 v11, {s(sT0)}, v11")
        a("v_add_u32 v2, v2, v11")
        a("v_lshlrev_b32 v3, 4, v12")
        a(f"v_add_u32 v3, {LD}, v3")
        a("v_lshlrev_b32 v4, 2, v10")
        a("L_job_go:")
        a.wait_all()
        a("s_barrier")
        self.stamp(1)
        tk = []
        for k in range(14):
            a.lg(f"ds_read_b128 {v(32 + 8 * k, 4)}, v3 offset:{k * 64}")
            tk.append(self.tr2(("v", 36 + 8 * k), 2, k * 4096))
            if k >= 3:
                a.wait(lg=tk[k - 3])
                kk = k - 3
                a(f"v_mfma_f32_16x16x32_bf16 v[16:19], {v(32 + 8 * kk, 4)}, {v(36 + 8 * kk, 4)}, {'v[16:19]' if kk else 0}")
        for kk in range(11, 14):
            a.wait(lg=tk[kk])
            a(f"v_mfma_f32_16x16x32_bf16 v[16:19], {v(32 + 8 * kk, 4)}, {v(36 + 8 * kk, 4)}, v[16:19]")
        a(f"s_lshl_b32 {s(sT0)}, {s(sJ)}, 8")
        a(f"s_lshl_b32 {s(sT1)}, {s(sW)}, 6")
        a(f"s_add_u32 {s(sT0)}, {s(sT0)}, {s(sT1)}")
        a(f"s_add_u32 {s(sT0)}, {s(sT0)}, {MODO}")
        a("v_mov_b32_dpp v17, v16 quad_perm:[1,0,3,2] row_mask:0xf bank_mask:0xf")
        a("v_cvt_pk_bf16_f32 v20, v16, v17")
        a(f"v_mov_b32 v21, {s(sTAG)}")
        a("s_mov_b64 exec, 0x5555")
        a(f"buffer_store_dwordx2 v[20:21], v4, {srd(SWS)}, {s(sT0)} offen sc1")
        a("s_mov_b64 exec, -1")
        self.stamp(2)
        a(f"s_cmp_lg_u32 {s(sT6)}, 0")
        a("s_cbranch_scc1 L_jobs_done")
        a(f"s_cmp_lt_u32 {s(sJ)}, 22")
        a("s_cbranch_scc1 L_jobs_done")
        a(f"s_mov_b32 {s(sT6)}, 1")
        a(f"s_add_u32 {s(sJ)}, {s(sJ)}, 10")
        a("s_barrier")
        a("s_branch L_job")
        a("L_jobs_done:")
        a(f"s_cmp_lg_u32 {s(sJ)}, 14")
        a("s_cbranch_scc1 L_no_epoch")
        a("v_lshlrev_b32 v8, 3, v0")
        a(f"s_mov_b32 {s(sT0)}, {XCCO}")
        self.poll([f"buffer_load_dwordx2 v[10:11], v8, {srd(SWS)}, {s(sT0)} offen sc1"], [11])
        a("s_barrier")
        a("v_mov_b32 v8, 0")
        a(f"s_cmp_eq_u32 {s(sW)}, 0")
        a("s_cselect_b64 exec, 1, 0")
        a(f"buffer_store_dword v11, v8, {srd(SWS)}, 0 offen sc1")
        a("s_mov_b64 exec, -1")
        a("L_no_epoch:")
        xl = self.xcc_load(10, 16)
        self.poll([xl], [17])
        a.wait_all()
        a("s_barrier")
        self.choose_mode(16, "L_p2_slow")
        a("s_branch L_p2_fast")

    def p2(self):
        a = self.a
        sHD, sB, sWS0, sMISS = sRT, sCH, sT6, sT3
        a("L_p2_slow:" if self.slow else "L_p2_fast:")
        a.vm_done, a.lg_done = a.vm_n, a.lg_n
        vQ, vMK, vKV, vM, vNM = 24, 16, 2, 8, 10
        vS, vP2, vO = 32, 176, 192
        a(f"s_and_b32 {s(sHD)}, {s(sM)}, 15")
        a(f"s_lshr_b32 {s(sB)}, {s(sM)}, 4")
        a(f"s_mul_i32 {s(sWS0)}, {s(sHD)}, 7")
        a(f"s_lshr_b32 {s(sWS0)}, {s(sWS0)}, 1")
        a(f"s_bitcmp1_b32 {s(sHD)}, 0")
        a(f"s_cselect_b32 {s(sP1)}, 15, 0xf0000000")
        a(f"s_mov_b32 {s(sP1 + 1)}, {s(sP1)}")
        a(f"s_lshl_b32 {s(sT5)}, {s(sW)}, 12")
        a(f"s_add_u32 {s(sT5)}, {s(sT5)}, {L_KV}")
        a(f"v_add_u32 {v(vKV)}, {s(sT5)}, {v(vL16)}")
        for j in range(4):
            a(f"v_mov_b32 {v(8 + j)}, 0x3f803f80")
        a(f"s_mov_b64 exec, {s(sP1, 2)}")
        for i in range(3):
            for t in range(2):
                a(f"ds_write_b128 {v(vKV)}, v[8:11] offset:{i * 16384 + 2048 + t * 1024}")
        a("s_mov_b64 exec, -1")
        a(f"v_bfe_u32 v3, {v(vL16)}, 4, 5")
        a(f"v_lshrrev_b32 v4, 9, {v(vL16)}")
        a("v_lshlrev_b32 v5, 2, v4")
        a("v_sub_u32 v5, v3, v5")
        for r in range(16):
            a(f"v_cmp_le_i32 {s(sMASK + 2 * r, 2)}, {8 * (r >> 2) + (r & 3)}, v5")
        a("v_mov_b32 v12, 0")
        a("v_mov_b32 v13, 0xffff")
        a("v_mov_b32 v14, 0xffff0000")
        for i in range(8):
            a(f"v_cndmask_b32 {v(vMK + i)}, v12, v13, {s(sMASK + 4 * i, 2)}")
            a(f"v_cndmask_b32 v15, v12, v14, {s(sMASK + 4 * i + 2, 2)}")
            a(f"v_or_b32 {v(vMK + i)}, {v(vMK + i)}, v15")
        a("v_and_b32 v5, 0x13, v3")
        a("v_and_b32 v6, 4, v3")
        a("v_lshl_or_b32 v5, v6, 1, v5")
        a("v_and_b32 v6, 8, v3")
        a("v_lshrrev_b32 v6, 1, v6")
        a("v_or_b32 v5, v5, v6")
        a("v_lshlrev_b32 v5, 4, v5")
        a("v_mul_u32_u24 v4, 7168, v4")
        a("v_add_u32 v4, v4, v5")
        a(f"s_lshl_b32 {s(sT0)}, {s(sB)}, 2")
        a(f"s_add_u32 {s(sT0)}, {s(sT0)}, {s(sW)}")
        a(f"s_sub_u32 {s(sMISS)}, 8, {s(sT0)}")
        a(f"s_cmp_eq_u32 {s(sG)}, 0")
        a(f"s_cselect_b32 {s(sMISS)}, {s(sMISS)}, 0")
        a(f"s_mul_i32 {s(sT4)}, {s(sT0)}, {TILE_B}")
        a(f"s_add_u32 {s(sT4)}, {s(sT4)}, {s(sGB)}")
        self.w_dma_pattern(208, 12, 3584)
        a("v_xor_b32 v209, 32, v208")
        a(f"v_lshrrev_b32 v12, 9, {v(vL16)}")
        a(f"s_cmp_eq_u32 {s(sG)}, 0")
        a(f"s_cselect_b32 {s(sT0)}, 0, 4096")
        a(f"v_mul_u32_u24 v12, {s(sT0)}, v12")
        a("v_lshlrev_b32 v13, 7, v3")
        a("v_sub_u32 v12, v13, v12")
        a(f"s_lshl_b32 {s(sT0)}, {s(sG)}, 12")
        a(f"s_add_u32 {s(sT0)}, {s(sT0)}, {RFO}")
        a(f"v_add_u32 v12, {s(sT0)}, v12")
        a.wait_all(vm=False)
        self.poll_local(0, 28, 8)
        a(f"s_lshl_b32 {s(sT1)}, {s(sWS0)}, 9")
        a(f"s_add_u32 {s(sT2)}, {s(sT4)}, {s(sT1)}")
        for t in range(2):
            a.vm(f"buffer_load_dwordx4 {v(vQ + 4 * t, 4)}, {v(vL16)}, {srd(SWS)}, {s(sT2)} offen offset:{t * 1024} sc1")
        self.stamp(6)
        self.poll([f"buffer_load_dword v13, v12, {srd(SWS)}, 0 offen sc1"], [13], exec_lo=0x0FFFFFFF, exec_hi=0x0FFFFFFF)
        self.stamp(7)
        for i in range(3):
            a(f"s_sub_u32 {s(sT0)}, {s(sT4)}, {(2 - i) * 4 * TILE_B}")
            if i < 2:
                a(f"s_sub_u32 {s(sT1)}, {s(sT0)}, {0x200000 - 8 * TILE_B}")
                a(f"s_cmp_eq_u32 {s(sG)}, 0")
                a(f"s_cselect_b32 {s(sT1)}, {OOB}, {s(sT1)}")
                a(f"s_cmp_lt_u32 {s(sT0)}, {s(sGB)}")
                a(f"s_cselect_b32 {s(sT0)}, {s(sT1)}, {s(sT0)}")
            a(f"s_lshl_b32 {s(sT1)}, {s(sWS0)}, 9")
            a(f"s_add_u32 {s(sT1)}, {s(sT1)}, {s(sT0)}")
            for t in range(2):
                self.dma(vL16, SWS, sT5, i * 16384 + t * 1024, sT1, KO, sc1=True, imm=t * 1024)
            a(f"s_lshl_b32 {s(sT1)}, {s(sWS0)}, 7")
            a(f"s_add_u32 {s(sT1)}, {s(sT1)}, {s(sT0)}")
            a(f"s_andn2_b64 exec, -1, {s(sP1, 2)}")
            for t in range(2):
                t_kv = self.dma(4, SWS, sT5, i * 16384 + 2048 + t * 1024, sT1, VO + t * 14336, sc1=True)
            a("s_mov_b64 exec, -1")
        a(f"s_min_u32 {s(sT0)}, {s(sM)}, 27")
        a(f"s_lshl_b32 {s(sT0)}, {s(sT0)}, 7")
        a(f"s_mul_i32 {s(sT1)}, {s(sW)}, {8 * 3584}")
        a(f"s_add_u32 {s(sT2)}, {s(sT0)}, {s(sT1)}")
        a(f"s_lshl_b32 {s(sT5)}, {s(sW)}, 10")
        pre = []
        for i in range(14):
            pre.append((208, SWG, LA + i * 4096, i * 32 * 3584))
            pre.append((209, SWU, LB + i * 4096, i * 32 * 3584))

        def prefetch(n):
            for _ in range(n):
                if pre:
                    vr, sr, lo, so = pre.pop(0)
                    self.dma(vr, sr, sT5, lo, sT2, so)

        prefetch(4)
        a(f"s_bitcmp1_b32 {s(sHD)}, 0")
        a(f"s_cselect_b32 {s(sP0)}, -1, 0")
        a(f"s_mov_b32 {s(sP0 + 1)}, 0")
        a.wait(vm=t_kv)
        a(f"s_mov_b64 exec, {s(sP0, 2)}")
        a(f"v_mov_b32 {v(vQ)}, 0")
        a(f"v_mov_b32 {v(vQ + 1)}, 0")
        a(f"s_not_b32 exec_hi, {s(sP0)}")
        a("s_mov_b32 exec_lo, 0")
        a(f"v_mov_b32 {v(vQ + 6)}, 0")
        a(f"v_mov_b32 {v(vQ + 7)}, 0")
        a("s_mov_b64 exec, -1")
        a("s_barrier")
        self.stamp(8)
        order = [0, 8, 1, 2, 3, 4, 5, 6, 7]
        kt = {}

        def rdK(n):
            i = order[n]
            a.lg(f"ds_read_b128 {a_(8 * n, 4)}, {v(vKV)} offset:{i * 4096}")
            kt[n] = a.lg(f"ds_read_b128 {a_(8 * n + 4, 4)}, {v(vKV)} offset:{i * 4096 + 1024}")

        vorder = [1, 2, 3, 4, 5, 6, 7, 8, 0]
        vt = {}

        def rdV(n):
            i = vorder[n]
            base = 72 + 8 * n if n < 7 else 8 * (n - 7)
            a.lg(f"ds_read_b128 {a_(base, 4)}, {v(vKV)} offset:{i * 4096 + 2048}")
            vt[i] = (base, a.lg(f"ds_read_b128 {a_(base + 4, 4)}, {v(vKV)} offset:{i * 4096 + 3072}"))

        def patch(i):
            L = a.label("miss")
            a(f"s_cmp_gt_i32 {s(sMISS)}, {i}")
            a(f"s_cbranch_scc1 {L}")
            a(f"{L}_back:")
            blk = [f"{L}:", "s_nop 15"]
            blk += [f"v_mov_b32 {v(vS + 16 * i + r)}, 0xf149f2ca" for r in range(16)]
            blk += [f"s_branch {L}_back"]
            self.tail.append(blk)

        valu = []
        first = [True]

        def q_max(i):
            b = vS + 16 * i
            ops = []
            if first[0]:
                ops.append(f"v_max3_f32 {v(vM)}, {v(b)}, {v(b + 1)}, {v(b + 2)}")
                ops.append(f"v_max3_f32 {v(vM + 1)}, {v(b + 3)}, {v(b + 4)}, {v(b + 5)}")
                rest = list(range(6, 16, 2))
                first[0] = False
            else:
                rest = list(range(0, 16, 2))
            for n, r in enumerate(rest):
                m = vM + (n & 1)
                ops.append(f"v_max3_f32 {v(m)}, {v(m)}, {v(b + r)}, {v(b + r + 1)}")
            return ops

        for n in range(4):
            rdK(n)
        for n in range(9):
            i = order[n]
            if n + 4 < 9:
                rdK(n + 4)
            else:
                rdV(n - 5)
            a.wait(lg=kt[n])
            d = v(vS + 16 * i, 16)
            a(f"v_mfma_f32_32x32x16_bf16 {d}, {a_(8 * n, 4)}, {v(vQ, 4)}, 0")
            for _ in range(5):
                if valu:
                    a(valu.pop(0))
            a(f"v_mfma_f32_32x32x16_bf16 {d}, {a_(8 * n + 4, 4)}, {v(vQ + 4, 4)}, {d}")
            for _ in range(5):
                if valu:
                    a(valu.pop(0))
            if n == 2:
                patch(0)
                valu += [f"v_cndmask_b32 {v(vS + 128 + r)}, {v(vS + r)}, {v(vS + 128 + r)}, {s(sMASK + 2 * r, 2)}" for r in range(16)]
                valu += q_max(8)
            elif n >= 3:
                patch(order[n - 1])
                valu += q_max(order[n - 1])
            prefetch(1)
        for op in valu:
            a(op)
        patch(7)
        for op in q_max(7):
            a(op)
        a(f"v_max_f32 {v(vM)}, {v(vM)}, {v(vM + 1)}")
        self.both_halves(vM, vM + 1, "v_max_f32")
        a(f"v_sub_f32 {v(vNM)}, 0, {v(vM)}")
        self.stamp(9)
        firstpv = [True]

        def pv(i, t, p):
            base, tk = vt[i]
            a.wait(lg=tk)
            c = 0 if firstpv[0] else v(vO, 16)
            firstpv[0] = False
            a(f"v_mfma_f32_32x32x16_bf16 {v(vO, 16)}, {a_(base + 4 * t, 4)}, {v(p + 4 * t, 4)}, {c}")

        pend = []
        for n, i in enumerate([1, 2, 3, 4, 5, 6, 7, 8]):
            b = vS + 16 * i
            p = vS + 8 * (n & 1)
            if n + 4 < 9:
                rdV(n + 4)
            for r in range(0, 16, 2):
                a(f"v_pk_add_f32 {v(b + r, 2)}, {v(b + r, 2)}, {v(vNM, 2)} op_sel_hi:[1,0]")
            for t in range(2):
                if pend:
                    pv(*pend.pop(0))
                for r in range(8 * t, 8 * t + 8):
                    a(f"v_exp_f32 {v(b + r)}, {v(b + r)}")
                    if r >= 8 * t + 3 and (r & 1):
                        j = (r - 3) >> 1
                        a(f"v_cvt_pk_bf16_f32 {v(p + j)}, {v(b + 2 * j)}, {v(b + 2 * j + 1)}")
                j = 4 * t + 3
                prefetch(1)
                a(f"v_cvt_pk_bf16_f32 {v(p + j)}, {v(b + 2 * j)}, {v(b + 2 * j + 1)}")
            if i != 8:
                pend = [(i, 0, p), (i, 1, p)]
            else:
                for j in range(8):
                    a(f"v_and_b32 {v(vP2 + j)}, {v(p + j)}, {v(vMK + j)}")
                    a(f"v_xor_b32 {v(vP2 + 8 + j)}, {v(p + j)}, {v(vP2 + j)}")
                    if j == 3:
                        pv(8, 0, vP2)
                pv(0, 0, vP2 + 8)
                pv(8, 1, vP2)
                pv(0, 1, vP2 + 8)
        prefetch(28)
        a(f"s_lshl_b32 {s(sT1)}, {s(sWS0)}, 9")
        a(f"s_add_u32 {s(sT1)}, {s(sT1)}, {s(sT4)}")
        a(f"s_add_u32 {s(sT1)}, {s(sT1)}, {OO}")
        a(f"s_bitcmp1_b32 {s(sHD)}, 0")
        a(f"s_cselect_b64 {s(sP0, 2)}, -1, 0")
        a(f"v_cndmask_b32 v8, {v(vO + 12)}, {v(vO)}, {s(sP0, 2)}")
        a("v_mov_b32 v9, v8")
        a("v_permlane32_swap_b32 v9, v8")
        a(f"v_cndmask_b32 v8, v8, v9, {s(sP0, 2)}")
        a("v_rcp_f32 v8, v8")
        for r in range(16):
            a(f"v_mul_f32 {v(vO + r)}, v8, {v(vO + r)}")
        for j in range(8):
            a(f"v_cvt_pk_bf16_f32 {v(vP2 + j)}, {v(vO + 2 * j)}, {v(vO + 2 * j + 1)}")
        Lodd, Ldone = a.label("odd"), a.label("ost")
        base = f"{v(vL16)}, {srd(SWS)}, {s(sT1)} offen"
        a(f"s_cbranch_scc1 {Lodd}")
        a(f"buffer_store_dwordx4 {v(vP2, 4)}, {base}{self.st()}")
        a("s_mov_b32 exec_hi, 0")
        a(f"buffer_store_dwordx4 {v(vP2 + 4, 4)}, {base} offset:1024{self.st()}")
        a("s_not_b64 exec, exec")
        a(f"buffer_store_dwordx2 {v(vP2 + 4, 2)}, {base} offset:1024{self.st()}")
        a(f"s_branch {Ldone}")
        a(f"{Lodd}:")
        a(f"buffer_store_dwordx4 {v(vP2 + 4, 4)}, {base} offset:1024{self.st()}")
        a("s_mov_b32 exec_lo, 0")
        a(f"buffer_store_dwordx4 {v(vP2, 4)}, {base}{self.st()}")
        a("s_not_b64 exec, exec")
        a(f"buffer_store_dwordx2 {v(vP2 + 2, 2)}, {base} offset:8{self.st()}")
        a(f"{Ldone}:")
        a("s_mov_b64 exec, -1")
        self.stamp(10)
        self.local_flag(1, 8)
        a(f"s_cmp_ge_u32 {s(sM)}, 28")
        a("s_cbranch_scc1 " + ("L_end" if self.slow else "L_helper_tail"))

    def exchange(self, acc):
        a = self.a
        a(f"s_lshl_b32 {s(sT0)}, {s(sW)}, 12")
        a(f"s_add_u32 {s(sT0)}, {s(sT0)}, {L_XB}")
        a(f"v_add_u32 v8, {s(sT0)}, {v(vL16)}")
        a(f"v_xor_b32 v9, 4096, v8")
        Lk, Ld = a.label("xk"), a.label("xd")
        a(f"s_cmp_eq_u32 {s(sCH)}, 0")
        a("s_nop 7")
        a(f"s_cbranch_scc1 {Lk}")
        for q in range(4):
            a(f"ds_write_b128 v8, {v(acc + 4 * q, 4)} offset:{q * 1024}")
        for r in range(16):
            a(f"v_mov_b32 {v(acc + r)}, {v(acc + 16 + r)}")
        a(f"s_branch {Ld}")
        a(f"{Lk}:")
        for q in range(4):
            a(f"ds_write_b128 v8, {v(acc + 16 + 4 * q, 4)} offset:{q * 1024}")
        a(f"{Ld}:")
        a.wait_all(vm=False)
        a("s_barrier")
        tk = [a.lg(f"ds_read_b128 {v(acc + 16 + 4 * q, 4)}, v9 offset:{q * 1024}") for q in range(4)]
        for q in range(4):
            a.wait(lg=tk[q])
            for r in range(4 * q, 4 * q + 4, 2):
                a(f"v_pk_add_f32 {v(acc + r, 2)}, {v(acc + r, 2)}, {v(acc + 16 + r, 2)}")

    def unpack16(self, dst, src):
        a = self.a
        for j in range(8):
            a(f"v_lshlrev_b32 {v(dst + 2 * j)}, 16, {v(src + j)}")
            a(f"v_and_b32 {v(dst + 2 * j + 1)}, 0xffff0000, {v(src + j)}")

    def p3(self):
        a = self.a
        acc, vGA, vG2, vXR, vXF = 32, 64, 80, 96, 104
        a(f"s_lshr_b32 {s(sRT)}, {s(sW)}, 1")
        a(f"s_and_b32 {s(sCH)}, {s(sW)}, 1")
        a(f"v_bfe_u32 v3, {v(vL16)}, 4, 5")
        a("v_mul_u32_u24 v3, 896, v3")
        a(f"v_lshrrev_b32 v4, 9, {v(vL16)}")
        a("v_lshl_add_u32 v3, v4, 4, v3")
        a(f"s_lshl_b32 {s(sT0)}, {s(sG)}, 3")
        a(f"s_add_u32 {s(sT0)}, {s(sT0)}, {s(sTILE)}")
        a(f"s_mul_i32 {s(sT0)}, {s(sT0)}, {TILE_B}")
        a(f"s_lshl_b32 {s(sT1)}, {s(sCB)}, 1")
        a(f"s_add_u32 {s(sT1)}, {s(sT1)}, {s(sCH)}")
        a(f"s_lshl_b32 {s(sT1)}, {s(sT1)}, 6")
        a(f"s_add_u32 {s(sXCC)}, {s(sT0)}, {s(sT1)}")
        for b in range(2):
            a(f"buffer_load_dwordx4 {v(vXR + 4 * b, 4)}, v3, {srd(SX)}, {s(sXCC)} offen offset:{32 * b}")
        a("v_min_u32 v8, 223, v0")
        a("v_lshlrev_b32 v9, 3, v8")
        a(f"s_mov_b32 {s(sT0)}, {MODO + 448 * 8}")
        a(f"s_mov_b32 {s(sT2)}, {MODO + 448 * 8 + 3584}")
        a("s_barrier")
        self.poll([f"buffer_load_dwordx2 v[10:11], v9, {srd(SWS)}, {s(sT0)} offen sc1",
                   f"buffer_load_dwordx2 v[12:13], v9, {srd(SWS)}, {s(sT0)} offen offset:1792 sc1",
                   f"buffer_load_dwordx2 v[14:15], v9, {srd(SWS)}, {s(sT2)} offen sc1",
                   f"buffer_load_dwordx2 v[16:17], v9, {srd(SWS)}, {s(sT2)} offen offset:1792 sc1"],
                  [11, 13, 15, 17])
        a("v_lshlrev_b32 v18, 16, v14")
        a("v_and_b32 v19, 0xffff0000, v14")
        a("v_add_f32 v18, 1.0, v18")
        a("v_add_f32 v19, 1.0, v19")
        a("v_cvt_pk_bf16_f32 v14, v18, v19")
        a("v_lshlrev_b32 v8, 2, v8")
        a(f"v_add_u32 v8, {L_T2}, v8")
        for i in range(4):
            a(f"ds_write_b32 v8, {v(10 + 2 * i)} offset:{896 * i}")
        a.wait_all()
        a("s_barrier")
        a(f"v_lshl_add_u32 v8, v4, 4, {s(sT1)}")
        a(f"v_add_u32 v8, {L_T2}, v8")
        for b in range(2):
            a(f"ds_read_b128 {v(12 + 4 * b, 4)}, v8 offset:{32 * b}")
            a(f"ds_read_b128 {v(20 + 4 * b, 4)}, v8 offset:{2 * 896 + 32 * b}")
            a(f"ds_read_b128 {v(vGBP + 4 * b, 4)}, v8 offset:{3 * 896 + 32 * b}")
        a(f"s_mul_i32 {s(sT2)}, {s(sTILE)}, {TILE_B}")
        a(f"s_add_u32 {s(sT2)}, {s(sT2)}, {s(sGB)}")
        a(f"s_mul_i32 {s(sT3)}, {s(sCH)}, {14 * 1024}")
        a(f"s_add_u32 {s(sT3)}, {s(sT3)}, {s(sT2)}")
        a(f"s_add_u32 {s(sT3)}, {s(sT3)}, {OO}")
        self.unpack16(vXF, vXR)
        a.wait_all(vm=False)
        self.unpack16(vGA, 12)
        self.unpack16(vG2, 20)
        self.stamp(11)
        self.poll_local(1, 32, 8)
        self.stamp(12)
        tk = []
        for k in range(14):
            if k and k % 4 == 0:
                a(f"s_add_u32 {s(sT3)}, {s(sT3)}, 4096")
            tk.append(a.vm(f"buffer_load_dwordx4 {a_(4 * k, 4)}, {v(vL16)}, {srd(SWS)}, {s(sT3)} offen offset:{(k % 4) * 1024} sc1"))
        for k in range(14):
            a.wait(vm=tk[k])
            for ct in range(2):
                d = v(acc + 16 * ct, 16)
                a(f"v_mfma_f32_32x32x16_bf16 {d}, {a_(128 + 8 * k + 4 * ct, 4)}, {a_(4 * k, 4)}, {d if k else 0}")
        self.exchange(acc)
        for r in range(16):
            a(f"v_fma_f32 {v(acc + r)}, {v(acc + r)}, {v(vGA + r)}, {v(vXF + r)}")
        for j in range(8):
            a(f"v_cvt_pk_bf16_f32 {v(vX2 + j)}, {v(acc + 2 * j)}, {v(acc + 2 * j + 1)}")
        self.unpack16(acc, vX2)
        for r in range(0, 16, 2):
            a(f"v_pk_mul_f32 {v(acc + 16 + r, 2)}, {v(acc + r, 2)}, {v(vG2 + r, 2)}")
        for j in range(8):
            a(f"v_cvt_pk_bf16_f32 {v(12 + j)}, {v(acc + 16 + 2 * j)}, {v(acc + 16 + 2 * j + 1)}")
        a(f"s_lshl_b32 {s(sT0)}, {s(sT1)}, 5")
        a(f"s_add_u32 {s(sT0)}, {s(sT0)}, {s(sT2)}")
        a(f"s_add_u32 {s(sT0)}, {s(sT0)}, {YO}")
        for b in range(2):
            a(f"buffer_store_dwordx4 {v(12 + 4 * b, 4)}, {v(vL16)}, {srd(SWS)}, {s(sT0)} offen offset:{1024 * b}{self.st()}")
        a(f"v_pk_mul_f32 v[22:23], {v(acc, 2)}, {v(acc, 2)}")
        a(f"v_pk_add_f32 v[20:21], {v(acc, 2)}, {v(acc + 2, 2)}")
        a(f"v_pk_fma_f32 v[22:23], {v(acc + 2, 2)}, {v(acc + 2, 2)}, v[22:23]")
        for r in range(4, 16, 2):
            a(f"v_pk_add_f32 v[20:21], v[20:21], {v(acc + r, 2)}")
            a(f"v_pk_fma_f32 v[22:23], {v(acc + r, 2)}, {v(acc + r, 2)}, v[22:23]")
        a("v_add_f32 v20, v20, v21")
        a("v_add_f32 v21, v22, v23")
        self.both_halves(20, 24, "v_add_f32")
        self.both_halves(21, 25, "v_add_f32")
        a(f"s_lshl_b32 {s(sT0)}, {s(sT1)}, 5")
        a(f"s_lshl_b32 {s(sT3)}, {s(sTILE)}, 8")
        a(f"s_add_u32 {s(sT0)}, {s(sT0)}, {s(sT3)}")
        a(f"s_add_u32 {s(sT0)}, {s(sT0)}, {s(sGB)}")
        a(f"s_add_u32 {s(sT0)}, {s(sT0)}, {STO}")
        a(f"v_lshrrev_b32 v24, 1, {v(vL16)}")
        a("s_mov_b32 exec_hi, 0")
        a(f"buffer_store_dwordx2 v[20:21], v24, {srd(SWS)}, {s(sT0)} offen{self.st()}")
        a("s_mov_b64 exec, -1")
        self.local_flag(2, 8)
        self.stamp(13)

    def p4(self):
        a = self.a
        acc, vW, vTQ, vAUG, vR2, vH = 32, 160, 12, 16, 24, 224
        self.tr_pattern(vTQ, 8, True)
        a(f"v_bfe_u32 v8, {v(vL16)}, 8, 1")
        a(f"v_mul_u32_u24 v8, {LB - LA}, v8")
        a(f"v_add_u32 {v(vTQ)}, {v(vTQ)}, v8")
        for q in range(1, 4):
            a(f"v_xor_b32 {v(vTQ + q)}, {32 * q}, {v(vTQ)}")
        a(f"s_lshl_b32 {s(sT0)}, {s(sW)}, 5")
        a(f"v_xor_b32 v10, {s(sT0)}, {v(vTQ)}")
        a(f"v_bfe_u32 v8, {v(vL16)}, 4, 5")
        a("v_cmp_eq_u32 vcc, 1, v8")
        a(f"v_mov_b32 v8, {L_T2 + 2 * 896}")
        a(f"v_mov_b32 v9, {L_T2 + 896}")
        a("v_cndmask_b32 v8, v8, v9, vcc")
        a("v_lshl_add_u32 v11, v4, 4, v8")
        ut = {}

        def rdU(k):
            slot = vW + 8 * (k % 8)
            a.lg(f"ds_read_b128 {v(slot, 4)}, v11 offset:{32 * k}")
            ut[k] = self.tr2(("v", slot + 4), 10, k * 2048)

        for k in range(4):
            rdU(k)
        for k in range(28):
            if k + 4 < 28:
                rdU(k + 4)
            a.wait(lg=ut[k])
            slot = vW + 8 * (k % 8)
            a(f"v_mfma_f32_32x32x16_bf16 {v(acc, 16)}, {v(slot, 4)}, {v(slot + 4, 4)}, {v(acc, 16) if k else 0}")
        a(f"v_cvt_pk_bf16_f32 v16, {v(acc)}, {v(acc + 1)}")
        a("v_lshlrev_b32 v17, 16, v16")
        a("v_and_b32 v18, 0xffff0000, v16")
        a(f"v_sub_f32 v17, {v(acc)}, v17")
        a(f"v_sub_f32 v18, {v(acc + 1)}, v18")
        a("v_cvt_pk_bf16_f32 v17, v17, v18")
        a(f"s_mov_b32 {s(sT0)}, 0x05040100")
        a(f"s_mov_b32 {s(sT1)}, 0x07060302")
        a(f"v_perm_b32 v20, v17, v16, {s(sT0)}")
        a("v_mov_b32 v21, v16")
        a(f"v_perm_b32 v22, v16, v17, {s(sT1)}")
        a("v_mov_b32 v23, 0")
        a("s_mov_b32 exec_lo, 0")
        for r in range(20, 23):
            a(f"v_mov_b32 {v(r)}, 0")
        a("s_mov_b64 exec, -1")
        a(f"s_lshl_b32 {s(sT5)}, {s(sW)}, 10")
        a(f"s_add_u32 {s(sT0)}, {s(sT5)}, {L_AUG}")
        a(f"v_add_u32 v8, {s(sT0)}, {v(vL16)}")
        a("ds_write_b128 v8, v[20:23]")
        a(f"v_add_u32 v5, {L_AUG}, {v(vL16)}")
        a.wait_all(vm=False)
        a("s_barrier")
        self.stamp(14)
        self.w_dma_pattern(6, 8, 896)
        a(f"s_lshl_b32 {s(sT0)}, {s(sCB)}, 7")
        a(f"s_mul_i32 {s(sT1)}, {s(sRT)}, {896 * 896}")
        a(f"s_add_u32 {s(sT0)}, {s(sT0)}, {s(sT1)}")
        a(f"s_mul_i32 {s(sT1)}, {s(sCH)}, {8 * 896}")
        a(f"s_add_u32 {s(sT4)}, {s(sT0)}, {s(sT1)}")
        a(f"s_lshl_b32 {s(sT1)}, {s(sCH)}, 10")
        a(f"s_mul_i32 {s(sT5)}, {s(sRT)}, 20480")
        a(f"s_add_u32 {s(sT5)}, {s(sT5)}, {s(sT1)}")
        a(f"s_mul_i32 {s(sT6)}, {s(sRT)}, {LB - LA}")
        a(f"s_add_u32 {s(sT6)}, {s(sT6)}, {s(sT1)}")
        self.poll_local(2, 28, 8)
        self.stamp(15)
        a(f"s_mul_i32 {s(sT0)}, {s(sW)}, {2 * TILE_B}")
        a(f"s_add_u32 {s(sT0)}, {s(sT0)}, {s(sGB)}")
        a(f"s_add_u32 {s(sT0)}, {s(sT0)}, {YO}")
        yt = {}

        def ldY(n):
            if n and n % 4 == 0:
                a(f"s_add_u32 {s(sT0)}, {s(sT0)}, 4096")
            yt[n] = a.vm(f"buffer_load_dwordx4 {a_(4 * n, 4)}, {v(vL16)}, {srd(SWS)}, {s(sT0)} offen offset:{(n % 4) * 1024} sc1")

        for n in range(8):
            ldY(n)
        a(f"v_and_b32 v8, 0x1f0, {v(vL16)}")
        a("v_lshrrev_b32 v8, 1, v8")
        a("v_mul_u32_u24 v9, 14336, v4")
        a("v_add_u32 v8, v8, v9")
        a(f"s_lshl_b32 {s(sT1)}, {s(sW)}, 9")
        a(f"s_add_u32 {s(sT1)}, {s(sT1)}, {s(sGB)}")
        a(f"s_add_u32 {s(sT1)}, {s(sT1)}, {STO}")
        vST = 96
        for p in range(7):
            for rt in range(2):
                t_st = a.vm(f"buffer_load_dwordx2 {v(vST + 14 * rt + 2 * p, 2)}, v8, {srd(SWS)}, {s(sT1)} offen offset:{256 * rt + (p & 1) * 2048} sc1")
            if p & 1:
                a(f"s_add_u32 {s(sT1)}, {s(sT1)}, 4096")
        for n in range(8, 28):
            ldY(n)

        def stats():
            ops = []
            for rt in range(2):
                b = vST + 14 * rt
                for p in range(1, 7):
                    ops += [f"v_add_f32 {v(b)}, {v(b)}, {v(b + 2 * p)}", f"v_add_f32 {v(b + 1)}, {v(b + 1)}, {v(b + 2 * p + 1)}"]
                ops += [f"v_mov_b32 {v(b + 2)}, {v(b)}", f"v_mov_b32 {v(b + 3)}, {v(b + 1)}", "s_nop 0",
                        f"v_permlane32_swap_b32 {v(b + 2)}, {v(b)}", f"v_permlane32_swap_b32 {v(b + 3)}, {v(b + 1)}",
                        f"v_add_f32 {v(b)}, {v(b)}, {v(b + 2)}", f"v_add_f32 {v(b + 1)}, {v(b + 1)}, {v(b + 3)}",
                        f"v_mul_f32 {v(b)}, {f2u(-1 / 448):#x}, {v(b)}",
                        f"v_mul_f32 {v(b + 1)}, {f2u(1 / 448):#x}, {v(b + 1)}",
                        f"v_fma_f32 {v(b + 1)}, -{v(b)}, {v(b)}, {v(b + 1)}",
                        f"v_max_f32 {v(b + 1)}, 0, {v(b + 1)}",
                        f"v_add_f32 {v(b + 1)}, {f2u(1e-5):#x}, {v(b + 1)}",
                        f"v_rcp_f32 {v(vR2 + rt)}, {v(b + 1)}",
                        f"v_sqrt_f32 {v(b + 1)}, {v(b + 1)}", "s_nop 0",
                        f"v_cvt_pk_bf16_f32 {v(b + 2)}, {v(b)}, {v(b + 1)}",
                        f"v_lshlrev_b32 {v(b + 3)}, 16, {v(b + 2)}",
                        f"v_and_b32 {v(b + 4)}, 0xffff0000, {v(b + 2)}",
                        f"v_sub_f32 {v(b + 3)}, {v(b)}, {v(b + 3)}",
                        f"v_sub_f32 {v(b + 4)}, {v(b + 1)}, {v(b + 4)}",
                        f"v_cvt_pk_bf16_f32 {v(b + 3)}, {v(b + 3)}, {v(b + 4)}",
                        f"v_perm_b32 {v(vAUG + 4 * rt)}, {v(b + 2)}, {v(b + 2)}, {s(sP1)}",
                        f"v_bfi_b32 {v(vAUG + 4 * rt + 1)}, {s(sT2)}, {v(b + 3)}, {v(b + 2)}",
                        f"v_perm_b32 {v(vAUG + 4 * rt + 2)}, {v(b + 3)}, {v(b + 2)}, {s(sP1 + 1)}",
                        f"v_mov_b32 {v(vAUG + 4 * rt + 3)}, 0"]
            return ops

        a(f"s_mov_b32 {s(sP1)}, 0x01000100")
        a(f"s_mov_b32 {s(sP1 + 1)}, 0x07060302")
        a(f"s_mov_b32 {s(sT2)}, 0xffff")
        a(f"s_mul_i32 {s(sT3)}, {s(sW)}, {2 * HT_B}")
        a(f"s_add_u32 {s(sT3)}, {s(sT3)}, {s(sGB)}")
        a(f"s_lshl_b32 {s(sT1)}, {s(sM)}, 12")
        a(f"s_add_u32 {s(sT3)}, {s(sT3)}, {s(sT1)}")
        a(f"s_add_u32 {s(sT3)}, {s(sT3)}, {HO}")

        def epilogue(rt):
            ops = []
            for q in range(4):
                b = acc + 64 * rt + 16 * q
                o = vH + 4 * q
                for r in range(8):
                    ops.append(f"v_max_f32 {v(b + r)}, 0, {v(b + r)}")
                    ops.append(f"v_mul_f32 {v(b + 8 + r)}, {v(vR2 + rt)}, {v(b + 8 + r)}")
                for r in range(8):
                    ops.append(f"v_mul_f32 {v(b + r)}, {v(b + r)}, {v(b + 8 + r)}")
                for j in range(4):
                    ops.append(f"v_cvt_pk_bf16_f32 {v(o + j)}, {v(b + 2 * j)}, {v(b + 2 * j + 1)}")
                ops.append(f"buffer_store_dwordx4 {v(o, 4)}, {v(vL16)}, {srd(SWS)}, {s(sT3)} offen offset:{1024 * q}{self.st()}")
            return ops

        self.wd_slots = {}
        for st in range(10):
            self.wd_slots[st] = ("F", st)
        for st in range(10, 38):
            self.wd_slots[st] = ("G", st - 10)
        for st in range(38, 48):
            self.wd_slots[st] = ("F", st - 38)
        for st in range(48, 56):
            self.wd_slots[st] = ("G", st - 48)
        self.wd_t = {}

        steps = [(rt, k, q) for rt in range(2) for k in range(29) for q in range(4)]
        wt = {}
        NS, LOOK = 16, 6

        def rdW(n):
            rt, k, q = steps[n]
            slot = vW + 4 * (n % NS)
            if k < 28:
                wt[n] = self.tr2(("v", slot), vTQ + q, k * 2048)
            else:
                wt[n] = a.lg(f"ds_read_b128 {v(slot, 4)}, v5 offset:{q * 1024}")

        wdq = list(range(10))
        filler = []
        for n in range(LOOK):
            rdW(n)
        for n, (rt, k, q) in enumerate(steps):
            if rt == 1 and q == 0 and k in (9, 17, 25):
                a("s_barrier")
                wdq += list(range(10 + k - 9, 10 + k - 1))
            if n + LOOK < len(steps):
                rdW(n + LOOK)
            if rt == 0 and k == 6 and q == 0:
                a.wait(vm=t_st)
                filler += stats()
            if rt == 1 and k == 1 and q == 0:
                filler += epilogue(0)
            d = v(acc + 64 * rt + 16 * q, 16)
            slot = vW + 4 * (n % NS)
            if k < 28:
                a.wait(vm=yt[28 * rt + k], lg=wt[n])
                bop = a_(4 * (28 * rt + k), 4)
            else:
                a.wait(lg=wt[n])
                bop = v(vAUG + 4 * rt, 4)
            a(f"v_mfma_f32_32x32x16_bf16 {d}, {v(slot, 4)}, {bop}, {d if k else 0}")
            for _ in range(2):
                if filler:
                    a(filler.pop(0))
            if rt == 0 and q == 1 and k < 28:
                ldY(28 + k)
            if q == 3 and wdq and (rt == 1 or k >= 8):
                self.wd_dma(wdq.pop(0))
        assert not filler
        a(f"s_add_u32 {s(sT3)}, {s(sT3)}, {HT_B}")
        for op in epilogue(1):
            a(op)
        self.stamp(16)
        self.local_flag(3, 8)
        a("s_barrier")
        for st in wdq + list(range(34, 38)):
            self.wd_dma(st)

    def wd_dma(self, st):
        area, i = self.wd_slots[st]
        base, off = (sT5, L_F + i * 2048) if area == "F" else (sT6, LA + i * 2048)
        self.wd_t[st] = self.dma(6, SWD, base, off, sT4, st * 16 * 896)

    def p5(self):
        a = self.a
        acc, vW = 32, 160
        self.tr_pattern(12, 8, True)
        a("v_xor_b32 v13, 64, v12")
        a(f"s_mul_i32 {s(sT0)}, {s(sCH)}, 20480")
        a(f"s_add_u32 {s(sT0)}, {s(sT0)}, {L_F}")
        a(f"v_add_u32 v14, {s(sT0)}, v12")
        a(f"v_add_u32 v15, {s(sT0)}, v13")
        a(f"s_mul_i32 {s(sT0)}, {s(sCH)}, {LB - LA}")
        a(f"v_add_u32 v12, {s(sT0)}, v12")
        a(f"v_add_u32 v13, {s(sT0)}, v13")
        a(f"s_mul_i32 {s(sT2)}, {s(sTILE)}, {HT_B}")
        a(f"s_add_u32 {s(sT2)}, {s(sT2)}, {s(sGB)}")
        a(f"s_mul_i32 {s(sT1)}, {s(sCH)}, {56 * 1024}")
        a(f"s_add_u32 {s(sT2)}, {s(sT2)}, {s(sT1)}")
        a(f"s_add_u32 {s(sT2)}, {s(sT2)}, {HO}")
        self.poll_local(3, 28, 8)
        a("s_barrier")
        self.stamp(17)
        ht = {}

        def ldH(n):
            if n and n % 4 == 0:
                a(f"s_add_u32 {s(sT2)}, {s(sT2)}, 4096")
            ht[n] = a.vm(f"buffer_load_dwordx4 {a_(4 * n, 4)}, {v(vL16)}, {srd(SWS)}, {s(sT2)} offen offset:{(n % 4) * 1024} sc1")

        AHEAD = 24
        for n in range(AHEAD):
            ldH(n)
        steps = [(k, ct) for k in range(56) for ct in range(2)]
        wt = {}
        NS, LOOK = 16, 6

        def rdW(n):
            k, ct = steps[n]
            area, i = self.wd_slots[k]
            wt[n] = self.tr2(("v", vW + 4 * (n % NS)), (14 if area == "F" else 12) + ct, i * 2048)

        for n in range(LOOK):
            rdW(n)
        wdq = []
        for n, (k, ct) in enumerate(steps):
            if ct == 0 and k in (10, 18):
                a("s_barrier")
                wdq += list(range(38, 48)) if k == 10 else list(range(48, 56))
            if ct == 0 and k in (34, 44):
                a.wait(vm=self.wd_t[47 if k == 34 else 55])
                a("s_barrier")
            if n + LOOK < len(steps):
                rdW(n + LOOK)
            d = v(acc + 16 * ct, 16)
            a.wait(vm=ht[k], lg=wt[n])
            a(f"v_mfma_f32_32x32x16_bf16 {d}, {v(vW + 4 * (n % NS), 4)}, {a_(4 * k, 4)}, {d if k else 0}")
            if ct == 0 and wdq:
                self.wd_dma(wdq.pop(0))
            if ct == 1 and k + AHEAD < 56:
                ldH(k + AHEAD)
        self.stamp(18)
        a("s_barrier")
        self.exchange(acc)
        self.unpack16(64, vGBP)
        self.unpack16(80, vX2)
        for r in range(16):
            a(f"v_fma_f32 {v(acc + r)}, {v(acc + r)}, {v(64 + r)}, {v(80 + r)}")
        for j in range(8):
            a(f"v_cvt_pk_bf16_f32 {v(12 + j)}, {v(acc + 2 * j)}, {v(acc + 2 * j + 1)}")
        for b in range(2):
            a(f"buffer_store_dwordx4 {v(12 + 4 * b, 4)}, v3, {srd(SOUT)}, {s(sXCC)} offen offset:{32 * b}")
        self.stamp(19)

    def helper_tail(self):
        a = self.a
        a("L_helper_tail:")
        a.vm_done, a.lg_done = a.vm_n, a.lg_n
        if self.o.get("wb", 1) and self.stop is None:
            a(f"s_cmp_lg_u32 {s(sM)}, 28")
            a("s_cbranch_scc1 L_end")
            a(f"s_cmp_lg_u32 {s(sW)}, 0")
            a("s_cbranch_scc1 L_end")
            self.poll_local(3, 28, 8)
            a("buffer_wbl2 sc1")
            a.wait_all()
        self.finish()

    def body(self, slow):
        self.slow = slow
        a = self.a
        if slow:
            a("L_p1_slow:")
        a.vm_done, a.lg_done = a.vm_n, a.lg_n
        self.p1_gemm()
        self.p2()
        if self.stop == 2:
            return self.finish()
        self.p3()
        if self.stop == 3:
            return self.finish()
        self.p4()
        if self.stop == 4:
            return self.finish()
        self.p5()
        self.finish()

    def flush_tail(self):
        for blk in self.tail:
            for t in blk:
                self.a(t)
        self.tail = []

    def build(self):
        a = self.a
        self.entry()
        self.p1_front()
        self.body(False)
        self.helper()
        self.helper_tail()
        self.flush_tail()
        a("L_abort:")
        a("s_mov_b64 exec, -1")
        a("L_end:")
        if self.prof:
            a(f"s_lshl_b32 {s(sT0)}, s2, 2")
            a(f"s_add_u32 {s(sT0)}, {s(sT0)}, {s(sW)}")
            a(f"s_lshl_b32 {s(sT0)}, {s(sT0)}, 8")
            a(f"s_add_u32 {s(sT0)}, {s(sT0)}, {PROF}")
            a("s_waitcnt vmcnt(0)")
            self.stamp(20)
            a(f"v_lshrrev_b32 v8, 2, {v(vL16)}")
            a(f"buffer_store_dword {v(vSTAMP)}, v8, {srd(SWS)}, {s(sT0)} offen")
        if self.o.get("diag_cycles"):
            a(f"s_mov_b32 {s(sT0)}, {self.o['diag_cycles'] // 1024}")
            a("L_diag:")
            for i in range(256):
                a(f"v_fma_f32 v{8 + i % 16}, v8, v9, v10")
            a(f"s_sub_u32 {s(sT0)}, {s(sT0)}, 1")
            a(f"s_cmp_lg_u32 {s(sT0)}, 0")
            a("s_cbranch_scc1 L_diag")
        if self.o.get("diag_wall"):
            a("L_diag:")
            a(f"s_memrealtime {s(sST, 2)}")
            a("s_waitcnt lgkmcnt(0)")
            a(f"s_sub_u32 {s(sT0)}, {s(sST)}, s3")
            a(f"s_cmp_lt_u32 {s(sT0)}, {self.o['diag_wall']}")
            a("s_cbranch_scc1 L_diag")
        a("L_exit:")
        a("s_endpgm")
        a("L_fast_end:")
        self.body(True)
        self.flush_tail()
        a("s_endpgm")
        return a.text()


HEADER = """; Fused adaLN block: x + ga*Attn(LN(x)*(1+ca)+sa), then + gb*ReGLU-FFN(LN(.)*(1+cb)+sb); one persistent launch.
; @launch grid=(256,1,1) block=(256,1,1) lds={lds}
.amdgcn_target "amdgcn-amd-amdhsa--gfx950"
.text
.globl {k}
.p2align 8
.type {k},@function
{k}:
"""
FOOTER = """
.section .rodata,"a"
.p2align 6
.amdhsa_kernel {k}
  .amdhsa_next_free_vgpr 512
  .amdhsa_next_free_sgpr 102
  .amdhsa_accum_offset 256
  .amdhsa_group_segment_fixed_size 0
  .amdhsa_kernarg_size 96
  .amdhsa_user_sgpr_count 2
  .amdhsa_user_sgpr_kernarg_segment_ptr 1
  .amdhsa_system_sgpr_workgroup_id_x 1
  .amdhsa_float_denorm_mode_32 3
.end_amdhsa_kernel
"""


def generate(prof=False, stop=None, opts=None):
    g = Gen(prof, stop, opts)
    body = g.build()
    return HEADER.format(k=KNAME, lds=LDS_BYTES) + body + FOOTER.format(k=KNAME), g


if __name__ == "__main__":
    out = sys.argv[1] if len(sys.argv) > 1 else f"cdna_kernels/{NAME}.s"
    opts = dict(kv.split("=") for kv in sys.argv[2:])
    opts = {k: int(x) for k, x in opts.items()}
    text, g = generate(prof=bool(opts.pop("prof", 0)), stop=opts.pop("stop", None), opts=opts)
    open(out, "w").write(text)
    print("wrote", out, len(text), "bytes;", len(g.a.ins), "lines;", g.a.nops, "hazard nops")
```

```python
import sys
from asmlib import Asm, v, a_, s

NAME = "adaLN_cond__sliding_block__glu_gated_reglu__prompt"
KNAME = NAME + "_kernel"

TILE_B = 28672
HT_B = 114688
QO, KO, VO, OO, YO, HO, STO, LFO = 0, 0x38000, 0x70000, 0, 0xE0000, 0, 0x118000, 0x11F000
XCCO, MODO, RFO, PROF = 0x400, 0x1000, 0x8000, 0x100000
RBO = 0x1200000
WS_BYTES = 0x1600000
OOB = 0x7F000000
SPIN_MAX = 1 << 18

LA, LB, LC, LD = 0, 57344, 114688, 159744
LDS_BYTES = 163840
L_KV = LC
L_XB = LC
L_X2 = LC + 16384
L_AUG = LC + 40960
L_T2 = LD
L_F = LC

SX, SWQKV, SWO, SWG, SWU, SWD, SOUT, SWS, SWMOD, SC = 4, 8, 12, 16, 20, 24, 28, 32, 36, 40
sG, sM, sW, sTAG, sGB, sRQ, sCB, sXCC, sSPIN = 44, 45, 46, 47, 48, 49, 50, 51, 52
sT0, sT1, sT2, sT3, sT4, sT5, sT6, sT7 = 53, 54, 55, 56, 57, 58, 59, 60
sRT, sCH, sTILE = 61, 62, 63
sHD, sB, sWS0, sMISS, sTQ, sKVL, sWSRC = 36, 37, 38, 39, 40, 41, 42
sMASK = 64
sST = 96
sP0, sP1 = 98, 100

vL16, vSTAMP = 1, 7
vZ = 32
vX2, vGBP = 240, 248

QSCALE = 28 ** -0.5 * 1.4426950408889634


def f2u(x):
    import struct
    return struct.unpack("<I", struct.pack("<f", x))[0]


def srd(i):
    return s(i, 4)


class Gen:
    def __init__(self, prof=False, stop=None, opts=None):
        self.a = Asm()
        self.prof = prof
        self.stop = stop
        self.o = opts or {}
        self.tail = []
        self.slow = False

    def stamp(self, i):
        if not self.prof:
            return
        only = self.o.get("stamps")
        if only is not None and i != 20 and not (only >> i) & 1:
            return
        a = self.a
        if i == 20:
            a(f"s_memrealtime {s(sST, 2)}")
            a.wait_all(vm=False)
            a(f"v_writelane_b32 {v(vSTAMP)}, {s(sST)}, {i}")
        a(f"s_memtime {s(sST, 2)}")
        a.wait_all(vm=False)
        a(f"v_writelane_b32 {v(vSTAMP)}, {s(sST)}, {32 + i}")

    def dma(self, vaddr, sr, lds_base, lds_off, src_base, src_off, sc1=False, imm=0):
        a = self.a
        lo = lds_off - imm
        if lds_base is None:
            a(f"s_mov_b32 m0, {lo}")
        else:
            a(f"s_add_u32 m0, {s(lds_base)}, {lo}" if lo >= 0 else f"s_sub_u32 m0, {s(lds_base)}, {-lo}")
        if src_off:
            a(f"s_add_u32 {s(sT7)}, {s(src_base)}, {src_off}")
            so = sT7
        else:
            so = src_base
        return a.vm(f"buffer_load_dwordx4 {v(vaddr)}, {srd(sr)}, {s(so)} offen"
                    + (f" offset:{imm}" if imm else "") + (" sc1" if sc1 else "") + " lds")

    def st(self, what=None):
        return " sc1" if self.slow or self.o.get("sc_" + str(what)) else ""

    def poll(self, loads, tagregs, exec_lo=None, exec_hi=None):
        a = self.a
        L = a.label("poll")
        if exec_lo is not None:
            a(f"s_mov_b32 exec_lo, {exec_lo:#x}")
        if exec_hi is not None:
            a(f"s_mov_b32 exec_hi, {exec_hi:#x}")
        a(f"s_mov_b32 {s(sSPIN)}, 0")
        a(f"{L}:")
        for t in loads:
            a(t)
        a(f"s_add_u32 {s(sSPIN)}, {s(sSPIN)}, 1")
        a(f"s_cmp_gt_u32 {s(sSPIN)}, {SPIN_MAX}")
        a("s_cbranch_scc1 L_abort")
        a.wait_all(lg=False)
        a(f"v_cmp_ne_u32 vcc, {s(sTAG)}, {v(tagregs[0])}")
        for r in tagregs[1:]:
            a(f"v_cmp_ne_u32 {s(sP0, 2)}, {s(sTAG)}, {v(r)}")
            a(f"s_or_b64 vcc, vcc, {s(sP0, 2)}")
        a(f"s_cbranch_vccnz {L}")
        if exec_lo is not None or exec_hi is not None:
            a("s_mov_b64 exec, -1")

    def local_flag(self, phase, vt):
        a = self.a
        a(f"s_lshl_b32 {s(sT0)}, {s(sM)}, 4")
        a(f"s_lshl_b32 {s(sT1)}, {s(sW)}, 2")
        a(f"s_add_u32 {s(sT0)}, {s(sT0)}, {s(sT1)}")
        a(f"s_add_u32 {s(sT0)}, {s(sT0)}, {LFO + phase * 512}")
        a(f"v_mov_b32 {v(vt)}, {s(sT0)}")
        a(f"v_mov_b32 {v(vt + 1)}, {s(sTAG)}")
        a.wait_all(lg=False)
        a("s_mov_b64 exec, 1")
        a(f"buffer_store_dword {v(vt + 1)}, {v(vt)}, {srd(SWS)}, {s(sGB)} offen{self.st('f')}")
        a("s_mov_b64 exec, -1")

    def poll_local(self, phase, nprod, vt):
        a = self.a
        a(f"v_lshrrev_b32 {v(vt)}, 1, {v(vL16)}")
        a(f"s_add_u32 {s(sT0)}, {s(sGB)}, {LFO + phase * 512}")
        self.poll([f"buffer_load_dwordx2 {v(vt + 2, 2)}, {v(vt)}, {srd(SWS)}, {s(sT0)} offen sc1"], [vt + 2, vt + 3],
                  exec_hi=None if nprod == 32 else 0x00FFFFFF)

    def tr_pattern(self, vd, vt, perm, ct_sgpr=None, ct_imm=0):
        a = self.a
        a(f"v_lshrrev_b32 {v(vt)}, 4, {v(vL16)}")
        a(f"v_bfe_u32 {v(vt + 1)}, {v(vt)}, 2, 2")
        a(f"v_lshrrev_b32 {v(vt + 2)}, 5, {v(vt)}")
        a(f"v_lshl_add_u32 {v(vt + 2)}, {v(vt + 2)}, 3, {v(vt + 1)}")
        a(f"v_lshlrev_b32 {v(vd)}, 7, {v(vt + 2)}")
        a(f"v_lshrrev_b32 {v(vt + 1)}, 1, {v(vt + 1)}")
        a(f"v_lshlrev_b32 {v(vt + 1)}, 6, {v(vt + 1)}")
        if perm:
            a(f"v_and_b32 {v(vt + 2)}, 1, {v(vt)}")
            a(f"v_lshlrev_b32 {v(vt + 2)}, 4, {v(vt + 2)}")
            a(f"v_xor_b32 {v(vt + 1)}, {v(vt + 1)}, {v(vt + 2)}")
            a(f"v_and_b32 {v(vt + 2)}, 2, {v(vt)}")
            a(f"v_lshlrev_b32 {v(vt + 2)}, 2, {v(vt + 2)}")
        else:
            a(f"v_and_b32 {v(vt + 2)}, 3, {v(vt)}")
            a(f"v_lshlrev_b32 {v(vt + 2)}, 3, {v(vt + 2)}")
        a(f"v_xor_b32 {v(vt + 1)}, {v(vt + 1)}, {v(vt + 2)}")
        a(f"v_and_b32 {v(vt + 2)}, 16, {v(vt)}")
        a(f"v_lshlrev_b32 {v(vt + 2)}, 1, {v(vt + 2)}")
        a(f"v_xor_b32 {v(vt + 1)}, {v(vt + 1)}, {v(vt + 2)}")
        if ct_sgpr is not None:
            a(f"s_lshl_b32 {s(sT0)}, {s(ct_sgpr)}, 6")
            a(f"v_xor_b32 {v(vt + 1)}, {s(sT0)}, {v(vt + 1)}")
        elif ct_imm:
            a(f"v_xor_b32 {v(vt + 1)}, {ct_imm * 64}, {v(vt + 1)}")
        a(f"v_add_u32 {v(vd)}, {v(vd)}, {v(vt + 1)}")

    def w_dma_pattern(self, vd, vt, stride, up=False):
        a = self.a
        a(f"v_lshrrev_b32 {v(vt)}, 7, {v(vL16)}")
        a(f"v_mul_u32_u24 {v(vd)}, {stride}, {v(vt)}")
        a(f"v_and_b32 {v(vt)}, 2, {v(vt)}")
        a(f"v_lshlrev_b32 {v(vt)}, 5, {v(vt)}")
        a(f"v_and_b32 {v(vt + 1)}, 0x70, {v(vL16)}")
        a(f"v_xor_b32 {v(vt)}, {v(vt)}, {v(vt + 1)}")
        if up:
            a(f"v_xor_b32 {v(vt)}, 32, {v(vt)}")
        a(f"v_add_u32 {v(vd)}, {v(vd)}, {v(vt)}")

    def tr2(self, dst, vaddr, off):
        f = v if dst[0] == "v" else a_
        self.a.lg(f"ds_read_b64_tr_b16 {f(dst[1], 2)}, {v(vaddr)} offset:{off}")
        return self.a.lg(f"ds_read_b64_tr_b16 {f(dst[1] + 2, 2)}, {v(vaddr)} offset:{off + 512}")

    def both_halves(self, vx, vt, op):
        a = self.a
        a(f"v_mov_b32 {v(vt)}, {v(vx)}")
        a(f"v_permlane32_swap_b32 {v(vt)}, {v(vx)}")
        a(f"{op} {v(vx)}, {v(vx)}, {v(vt)}")

    def finish(self):
        self.a("s_branch L_end")

    def entry(self):
        a = self.a
        a("s_cmp_ge_u32 s2, 256")
        a("s_cbranch_scc1 L_exit")
        a(f"s_load_dwordx2 {s(SWS, 2)}, s[0:1], 88")
        a(f"s_load_dwordx2 {s(SX, 2)}, s[0:1], 0")
        a(f"s_load_dwordx2 {s(SWQKV, 2)}, s[0:1], 8")
        a(f"s_load_dwordx2 {s(SWMOD, 2)}, s[0:1], 64")
        a(f"s_load_dwordx2 {s(SC, 2)}, s[0:1], 56")
        a(f"s_load_dwordx2 {s(SWO, 2)}, s[0:1], 16")
        a(f"s_load_dwordx2 {s(SWG, 2)}, s[0:1], 32")
        a(f"s_load_dwordx2 {s(SWU, 2)}, s[0:1], 40")
        a(f"s_load_dwordx2 {s(SWD, 2)}, s[0:1], 48")
        a(f"s_load_dwordx2 {s(SOUT, 2)}, s[0:1], 72")
        if self.prof or self.o.get("diag_wall"):
            a(f"v_mov_b32 {v(vSTAMP)}, 0")
            a(f"s_memrealtime {s(sST, 2)}")
        a(f"v_lshrrev_b32 v2, 6, v0")
        a(f"v_and_b32 v3, 63, v0")
        a(f"v_readfirstlane_b32 {s(sW)}, v2")
        a(f"v_lshlrev_b32 {v(vL16)}, 4, v3")
        a(f"s_and_b32 {s(sG)}, s2, 7")
        a(f"s_lshr_b32 {s(sM)}, s2, 3")
        a(f"s_getpc_b64 {s(sP0, 2)}")
        a("L_pc:")
        a(f"s_lshl_b32 {s(sT0)}, {s(sM)}, 2")
        a(f"s_add_u32 {s(sT0)}, {s(sT0)}, {s(sW)}")
        a(f"s_lshl_b32 {s(sT0)}, {s(sT0)}, 9")
        a(f"v_lshl_add_u32 v4, v3, 7, {s(sT0)}")
        a("v_min_u32 v4, L_fast_end-L_pc-4, v4")
        a("s_mov_b64 exec, 15")
        a.vm(f"global_load_dword v5, v4, {s(sP0, 2)}")
        a("s_mov_b64 exec, -1")
        for r, n in ((SX, 2048 * 896), (SWQKV, 448 * 2688), (SWO, 448 * 896), (SWG, 448 * 3584), (SWU, 448 * 3584),
                     (SWD, 1792 * 896), (SOUT, 2048 * 896), (SWS, WS_BYTES), (SWMOD, 448 * 5376), (SC, 896)):
            a(f"s_mov_b32 {s(r + 2)}, {n:#x}")
            a(f"s_mov_b32 {s(r + 3)}, 0x20000")
        a(f"s_getreg_b32 {s(sXCC)}, hwreg(HW_REG_XCC_ID, 0, 4)")
        a(f"s_add_u32 {s(sGB)}, {s(sG)}, 1")
        a(f"s_lshl_b32 {s(sGB)}, {s(sGB)}, 21")
        a(f"s_mul_i32 {s(sRQ)}, {s(sM)}, 37")
        a(f"s_lshr_b32 {s(sRQ)}, {s(sRQ)}, 8")
        a(f"s_mul_i32 {s(sT0)}, {s(sRQ)}, 7")
        a(f"s_sub_u32 {s(sCB)}, {s(sM)}, {s(sT0)}")
        a(f"s_lshr_b32 {s(sRT)}, {s(sW)}, 1")
        a(f"s_and_b32 {s(sCH)}, {s(sW)}, 1")
        a(f"s_lshl_b32 {s(sTILE)}, {s(sRQ)}, 1")
        a(f"s_add_u32 {s(sTILE)}, {s(sTILE)}, {s(sRT)}")
        a("s_waitcnt lgkmcnt(0)")
        if self.prof:
            a(f"v_writelane_b32 {v(vSTAMP)}, {s(sST)}, 0")
            a(f"s_memtime {s(sST, 2)}")
            a("s_waitcnt lgkmcnt(0)")
            a(f"v_writelane_b32 {v(vSTAMP)}, {s(sST)}, 32")
        if self.o.get("diag_wall"):
            a(f"s_mov_b32 s43, {s(sST)}")
        a(f"s_load_dword {s(sTAG)}, {s(SWS, 2)}, 0")
        if self.o.get("warm0", 1):
            a("s_lshl_b32 s3, s2, 2")
            a(f"s_add_u32 s3, s3, {s(sW)}")
            a("v_lshlrev_b32 v4, 7, v3")
            a(f"s_lshr_b32 {s(sT0)}, s3, 1")
            a(f"s_mul_i32 {s(sT0)}, {s(sT0)}, 5376")
            a(f"s_and_b32 {s(sT1)}, s3, 1")
            a(f"s_mul_i32 {s(sT1)}, {s(sT1)}, 896")
            a(f"s_add_u32 {s(sT0)}, {s(sT0)}, {s(sT1)}")
            a(f"s_mul_i32 {s(sT1)}, s3, 1280")
            a(f"s_and_b32 {s(sT2)}, s3, 511")
            a(f"s_lshl_b32 {s(sT2)}, {s(sT2)}, 7")
            a("s_mov_b64 exec, 0x7f")
            a(f"buffer_load_dword {a_(255)}, v4, {srd(SWMOD)}, {s(sT0)} offen")
            a("s_mov_b64 exec, 0x3ff")
            a(f"buffer_load_dword {a_(255)}, v4, {srd(SWQKV)}, {s(sT1)} offen")
            a("s_mov_b64 exec, 1")
            a(f"buffer_load_dword {a_(255)}, v4, {srd(SWS)}, {s(sT2)} offen")
            a("s_mov_b64 exec, -1")
        a(f"s_cmp_ge_u32 {s(sM)}, 28")
        a("s_cbranch_scc0 L_compute")
        self.helper_first_loads()
        a("L_compute:")

    def touch(self, vaddr, sr, soff, lanes=64):
        a = self.a
        if lanes < 64:
            a(f"s_mov_b64 exec, {(1 << lanes) - 1:#x}")
        t = a.vm(f"buffer_load_dword {a_(255)}, {v(vaddr)}, {srd(sr)}, {s(soff)} offen")
        if lanes < 64:
            a("s_mov_b64 exec, -1")
        return t

    def make_tag_and_publish_xcc(self, vt):
        a = self.a
        a.wait_all(vm=False)
        a(f"s_mul_i32 {s(sTAG)}, {s(sTAG)}, 1664525")
        a(f"s_add_u32 {s(sTAG)}, {s(sTAG)}, 1013904223")
        a(f"s_lshl_b32 {s(sT0)}, {s(sG)}, 8")
        a(f"s_lshl_b32 {s(sT1)}, {s(sM)}, 3")
        a(f"s_add_u32 {s(sT0)}, {s(sT0)}, {s(sT1)}")
        a(f"v_mov_b32 {v(vt)}, {s(sXCC)}")
        a(f"v_mov_b32 {v(vt + 1)}, {s(sTAG)}")
        a(f"v_mov_b32 {v(vt + 2)}, {XCCO}")
        a(f"s_cmp_eq_u32 {s(sW)}, 0")
        a("s_cselect_b64 exec, 1, 0")
        a.vm(f"buffer_store_dwordx2 {v(vt, 2)}, {v(vt + 2)}, {srd(SWS)}, {s(sT0)} offen sc1")
        a("s_mov_b64 exec, -1")

    def xcc_load(self, vaddr, vd):
        a = self.a
        a(f"v_and_b32 {v(vaddr)}, 0x1f0, {v(vL16)}")
        a(f"v_lshrrev_b32 {v(vaddr)}, 1, {v(vaddr)}")
        a(f"s_lshl_b32 {s(sT6)}, {s(sG)}, 8")
        return f"buffer_load_dwordx2 {v(vd, 2)}, {v(vaddr)}, {srd(SWS)}, {s(sT6)} offen offset:{XCCO} sc1"

    def choose_mode(self, vd, slow_label):
        a = self.a
        a(f"v_cmp_ne_u32 vcc, {s(sXCC)}, {v(vd)}")
        if self.o.get("force_slow"):
            a(f"s_branch {slow_label}")
        else:
            a(f"s_cbranch_vccnz {slow_label}")

    def p1_front(self):
        a = self.a
        vPW, vRAW, vS, vQ2 = 6, 160, 224, 240
        a(f"v_mov_b32 v2, {OOB}")
        a(f"v_cmp_gt_u32 vcc, 896, {v(vL16)}")
        a(f"s_lshl_b32 {s(sT0)}, {s(sG)}, 2")
        a(f"s_add_u32 {s(sT0)}, {s(sT0)}, {s(sRQ)}")
        a(f"s_lshl_b32 {s(sT0)}, {s(sT0)}, 2")
        a(f"s_add_u32 {s(sT0)}, {s(sT0)}, {s(sW)}")
        a(f"s_mul_i32 {s(sT0)}, {s(sT0)}, {16 * 896}")
        a(f"v_cndmask_b32 v2, v2, {v(vL16)}, vcc")
        tx = []
        for r in range(16):
            if r and r % 4 == 0:
                a(f"s_add_u32 {s(sT0)}, {s(sT0)}, {4 * 896}")
            tx.append(a.vm(f"buffer_load_dwordx4 {v(vRAW + 4 * r, 4)}, v2, {srd(SX)}, {s(sT0)} offen offset:{(r % 4) * 896}"))
        self.stamp(28)
        self.w_dma_pattern(vPW, 8, 2688)
        a(f"s_mul_i32 {s(sT0)}, {s(sW)}, {8 * 2688}")
        a(f"s_lshl_b32 {s(sT1)}, {s(sCB)}, 7")
        a(f"s_add_u32 {s(sT4)}, {s(sT0)}, {s(sT1)}")
        a(f"s_lshl_b32 {s(sT5)}, {s(sW)}, 10")
        wq = [("fix", LA + i * 4096, 1792 + (12 + i) * 32 * 2688) for i in range(2)]
        wq += [("rot", 0), ("rot", 1)] * 12
        wq += [("fix", LB + i * 4096, 896 + i * 32 * 2688) for i in (12, 13)]
        rot = 3 if self.o.get("rot", 1) else 0
        a(f"s_mul_i32 {s(sT2)}, {s(sRQ)}, {rot * 4096}")
        a(f"s_add_u32 {s(sT2)}, {s(sT2)}, {s(sT5)}")
        a(f"s_mul_i32 {s(sT3)}, {s(sRQ)}, {rot * 32 * 2688}")
        a(f"s_add_u32 {s(sT3)}, {s(sT3)}, {s(sT4)}")
        wt = []

        def wdma(n=1):
            for _ in range(n):
                if not wq:
                    return
                e = wq.pop(0)
                if e[0] == "fix":
                    wt.append(self.dma(vPW, SWQKV, sT5, e[1], sT4, e[2]))
                elif e[1] == 0:
                    wt.append(self.dma(vPW, SWQKV, sT2, LB, sT3, 896))
                else:
                    wt.append(self.dma(vPW, SWQKV, sT2, LC, sT3, 1792))
                    a(f"s_add_u32 {s(sT2)}, {s(sT2)}, 4096")
                    a(f"s_add_u32 {s(sT3)}, {s(sT3)}, {32 * 2688}")
                    a(f"s_cmp_ge_u32 {s(sT2)}, {12 * 4096}")
                    a(f"s_cselect_b32 {s(sT2)}, {s(sT5)}, {s(sT2)}")
                    a(f"s_cselect_b32 {s(sT3)}, {s(sT4)}, {s(sT3)}")

        wdma(self.o.get("w_first", 4))
        self.make_tag_and_publish_xcc(8)
        self.stamp(29)
        a(f"s_mov_b32 {s(sT0)}, 0xffff0000")
        a(f"s_mov_b32 {s(sT1)}, 0x3f803f80")
        for r in range(16):
            a.wait(vm=tx[r])
            if r == 0:
                self.stamp(1)
            raw, z = vRAW + 4 * r, vZ + 8 * r
            for j in range(4):
                a(f"v_dot2_f32_bf16 {v(vS + r)}, {v(raw + j)}, {s(sT1)}, {v(vS + r) if j else 0}")
                a(f"v_dot2_f32_bf16 {v(vQ2 + r)}, {v(raw + j)}, {v(raw + j)}, {v(vQ2 + r) if j else 0}")
                a(f"v_lshlrev_b32 {v(z + 2 * j)}, 16, {v(raw + j)}")
                a(f"v_and_b32 {v(z + 2 * j + 1)}, {s(sT0)}, {v(raw + j)}")
            wdma(1)
        self.stamp(30)
        for i in range(16):
            a(f"v_permlane32_swap_b32 {v(vS + i)}, {v(vQ2 + i)}")
        for i in range(16):
            a(f"v_add_f32 {v(vS + i)}, {v(vS + i)}, {v(vQ2 + i)}")
        wdma(1)
        for i in range(8):
            a(f"v_permlane16_swap_b32 {v(vS + i)}, {v(vS + 8 + i)}")
        for i in range(8):
            a(f"v_add_f32 {v(vS + i)}, {v(vS + i)}, {v(vS + 8 + i)}")
        wdma(1)
        for sh in (8, 4, 2, 1):
            for i in range(8):
                a(f"v_add_f32_dpp {v(vS + i)}, {v(vS + i)}, {v(vS + i)} row_ror:{sh} row_mask:0xf bank_mask:0xf")
        wdma(1)
        a(f"s_mov_b32 {s(sP0)}, 0x02020202")
        a(f"s_mov_b32 {s(sP0 + 1)}, {s(sP0)}")
        for j in range(1, 8):
            a(f"v_cndmask_b32 {v(vS)}, {v(vS)}, {v(vS + j)}, {s(sP0, 2)}")
            a(f"s_lshl_b64 {s(sP0, 2)}, {s(sP0, 2)}, 1")
        a(f"v_mov_b32 v12, {v(vS)}")
        a(f"v_permlane32_swap_b32 v12, {v(vS)}")
        a(f"v_mul_f32 v12, {f2u(1 / 448):#x}, v12")
        a(f"v_mul_f32 v13, {f2u(1 / 448):#x}, {v(vS)}")
        a("v_fma_f32 v13, -v12, v12, v13")
        a("v_max_f32 v13, 0, v13")
        a(f"v_add_f32 v13, {f2u(1e-5):#x}, v13")
        a("v_rsq_f32 v13, v13")
        a("v_mul_f32 v12, v12, v13")
        a("v_sub_f32 v12, 0, v12")
        wdma(1)
        for r in range(16):
            ln = 16 * (r >> 3) + (r & 7)
            a(f"v_readlane_b32 {s(sMASK + 2 * r)}, v13, {ln}")
            a(f"v_readlane_b32 {s(sMASK + 2 * r + 1)}, v12, {ln}")
        for r in range(16):
            p = s(sMASK + 2 * r, 2)
            for j in range(4):
                z = v(vZ + 8 * r + 2 * j, 2)
                a(f"v_pk_fma_f32 {z}, {z}, {p}, {p} op_sel:[0,0,1] op_sel_hi:[1,0,1]")
            if r % 4 == 0:
                wdma(1)
        wdma(28)
        self.stamp(2)
        self.tr_pattern(2, 8, True, ct_sgpr=sCH)
        self.tr_pattern(4, 8, False, ct_sgpr=sCH)
        a(f"v_add_u32 v3, {LC}, v4")
        a(f"v_add_u32 v2, {LB}, v2")
        a.wait(vm=wt[1])
        a("s_barrier")
        for k in range(4):
            self.tr2(("a", 4 * k), 4, k * 2048)
        a(f"s_mul_i32 {s(sT0)}, {s(sRT)}, {TILE_B}")
        a(f"s_lshl_b32 {s(sT1)}, {s(sCH)}, 8")
        a(f"s_add_u32 {s(sT1)}, {s(sT1)}, {s(sT0)}")
        a(f"v_lshlrev_b32 v16, 5, {v(vL16)}")
        a(f"v_and_b32 v12, 0x70, {v(vL16)}")
        a(f"v_add3_u32 v16, v16, v12, {s(sT1)}")
        for r in range(1, 8):
            a(f"v_xor_b32 {v(16 + r)}, {16 * r}, v16")
        a(f"v_lshrrev_b32 v12, 9, {v(vL16)}")
        a(f"v_lshlrev_b32 v12, 4, v12")
        a(f"v_xor_b32 v12, v12, {v(vL16)}")
        a(f"v_add_u32 v8, {s(sT0)}, v12")
        for q in range(1, 4):
            a(f"v_xor_b32 {v(8 + q)}, {32 * q}, v8")
        a(f"v_min_u32 v12, 880, {v(vL16)}")
        a("v_lshlrev_b32 v12, 1, v12")
        xl = self.xcc_load(13, 14)
        a(f"s_mov_b32 {s(sT0)}, {MODO}")
        a.wait_all(vm=False)
        a("s_barrier")
        g0 = vRAW
        self.poll([f"buffer_load_dwordx4 {v(g0 + 4 * i, 4)}, v12, {srd(SWS)}, {s(sT0)} offen offset:{(i >> 1) * 1792 + (i & 1) * 16} sc1"
                   for i in range(4)] + [xl], [g0 + 2 * i + 1 for i in range(8)] + [15])
        self.stamp(3)
        self.l2_prefetch_w1()
        vG, vB = g0 + 16, g0 + 24
        for j in range(4):
            a(f"v_lshlrev_b32 {v(vG + 2 * j)}, 16, {v(g0 + 8 + 2 * j)}")
            a(f"v_and_b32 {v(vG + 2 * j + 1)}, 0xffff0000, {v(g0 + 8 + 2 * j)}")
            a(f"v_lshlrev_b32 {v(vB + 2 * j)}, 16, {v(g0 + 2 * j)}")
            a(f"v_and_b32 {v(vB + 2 * j + 1)}, 0xffff0000, {v(g0 + 2 * j)}")
        for j in range(8):
            a(f"v_add_f32 {v(vG + j)}, 1.0, {v(vG + j)}")
        for j in range(4):
            a(f"v_cvt_pk_bf16_f32 {v(g0 + j)}, {v(vG + 2 * j)}, {v(vG + 2 * j + 1)}")
        for j in range(4):
            a(f"v_lshlrev_b32 {v(vG + 2 * j)}, 16, {v(g0 + j)}")
            a(f"v_and_b32 {v(vG + 2 * j + 1)}, 0xffff0000, {v(g0 + j)}")
        a("s_mov_b32 exec_hi, 0x00ffffff")
        for r in range(16):
            z = vZ + 8 * r
            for j in range(4):
                a(f"v_pk_fma_f32 {v(z + 2 * j, 2)}, {v(z + 2 * j, 2)}, {v(vG + 2 * j, 2)}, {v(vB + 2 * j, 2)}")
            for j in range(4):
                a(f"v_cvt_pk_bf16_f32 {v(z + j)}, {v(z + 2 * j)}, {v(z + 2 * j + 1)}")
            a(f"ds_write_b128 {v(16 + (r & 7))}, {v(z, 4)} offset:{(r >> 3) * 128}")
        a("s_mov_b64 exec, -1")
        a.wait_all(vm=False)
        a("s_barrier")
        self.stamp(26)
        self.choose_mode(14, "L_p1_slow")

    def l2_prefetch_w1(self):
        a = self.a
        a(f"v_lshrrev_b32 v24, 4, {v(vL16)}")
        if self.o.get("pf_qo", 1):
            a(f"s_lshl_b32 {s(sT0)}, {s(sRQ)}, 2")
            a(f"s_add_u32 {s(sT0)}, {s(sT0)}, {s(sW)}")
            a(f"s_mul_i32 {s(sT0)}, {s(sT0)}, 28")
            a(f"v_add_u32 v25, {s(sT0)}, v24")
            a("v_mul_u32_u24 v26, 2688, v25")
            a("v_mul_u32_u24 v25, 896, v25")
            a(f"s_lshl_b32 {s(sT0)}, {s(sCB)}, 7")
            self.touch(26, SWQKV, sT0, 28)
            self.touch(25, SWO, sT0, 28)
        if self.o.get("touch_q", 1):
            a(f"s_mul_i32 {s(sT0)}, {s(sTILE)}, {TILE_B}")
            a(f"s_add_u32 {s(sT0)}, {s(sT0)}, {s(sGB)}")
            a(f"s_lshl_b32 {s(sT1)}, {s(sCB)}, 1")
            a(f"s_add_u32 {s(sT1)}, {s(sT1)}, {s(sCH)}")
            a(f"s_lshl_b32 {s(sT1)}, {s(sT1)}, 11")
            a(f"s_add_u32 {s(sT0)}, {s(sT0)}, {s(sT1)}")
            a("v_lshlrev_b32 v25, 7, v24")
            self.touch(25, SWS, sT0, 16)
            a(f"s_add_u32 {s(sT0)}, {s(sT0)}, {KO}")
            self.touch(25, SWS, sT0, 16)
            a(f"s_add_u32 {s(sT0)}, {s(sT0)}, {VO - KO}")
            self.touch(25, SWS, sT0, 16)
        n = self.o.get("pf_w1", 0)
        if n:
            a("v_mul_u32_u24 v25, 3584, v24")
            a(f"s_lshl_b32 {s(sT0)}, {s(sM)}, 7")
            a(f"s_mul_i32 {s(sT1)}, {s(sW)}, {16 * 3584}")
            a(f"s_add_u32 {s(sT0)}, {s(sT0)}, {s(sT1)}")
            for i in range(n):
                self.touch(25, SWG, sT0, 16)
                self.touch(25, SWU, sT0, 16)
                a(f"s_add_u32 {s(sT0)}, {s(sT0)}, {64 * 3584}")

    def p1_gemm(self):
        a = self.a
        vTK, vTV, vPW = 2, 3, 6
        vH1, cK, cV, cQ, vW = 32, 144, 160, 176, 192
        ht, wt = {}, {}

        def rdH(k):
            ht[k] = a.lg(f"ds_read_b128 {v(vH1 + 4 * k, 4)}, {v(8 + (k & 3))} offset:{k * 1024}")

        def rdW(kind, k):
            if kind == "v" and k >= 24:
                wt[(kind, k)] = (a_(4 * (k - 24), 4), 0)
                return
            slot = vW + 4 * ((2 * k + (kind == "v")) % 16)
            wt[(kind, k)] = (v(slot, 4), self.tr2(("v", slot), vTK if kind == "k" else vTV, k * 2048))

        fill = self.capture(self.p2_setup)
        LOOK = 2
        hn = [0]

        def moreH(n):
            for _ in range(n):
                if hn[0] < 28:
                    rdH(hn[0])
                    hn[0] += 1

        for k in range(LOOK):
            moreH(1); rdW("k", k); rdW("v", k)
        for k in range(28):
            h = v(vH1 + 4 * k, 4)
            if k == 14:
                a.wait(lg=ht[27])
                a("s_barrier")
            moreH(1)
            if k + LOOK < 28:
                rdW("k", k + LOOK)
            reg, t = wt[("k", k)]
            a.wait(lg=max(t, ht[k]))
            a(f"v_mfma_f32_32x32x16_bf16 {v(cK, 16)}, {reg}, {h}, {v(cK, 16) if k else 0}")
            moreH(1)
            if k + LOOK < 28:
                rdW("v", k + LOOK)
            for _ in range(2):
                if fill:
                    a(fill.pop(0))
            reg, t = wt[("v", k)]
            a.wait(lg=t)
            a(f"v_mfma_f32_32x32x16_bf16 {v(cV, 16)}, {h}, {reg}, {v(cV, 16) if k else 0}")
            for _ in range(3):
                if fill:
                    a(fill.pop(0))
            if k >= 14:
                i = k - 14
                a(f"s_add_u32 m0, {s(sT5)}, {LA + i * 4096}")
                a(f"s_add_u32 {s(sT7)}, {s(sT4)}, {i * 32 * 2688}")
                t_wq = a.vm(f"buffer_load_dwordx4 {v(vPW)}, {srd(SWQKV)}, {s(sT7)} offen lds")
        assert not fill
        a(f"s_mul_i32 {s(sT0)}, {s(sTILE)}, {TILE_B}")
        a(f"s_lshl_b32 {s(sT1)}, {s(sCB)}, 1")
        a(f"s_add_u32 {s(sT1)}, {s(sT1)}, {s(sCH)}")
        a(f"s_lshl_b32 {s(sT2)}, {s(sT1)}, 11")
        a(f"s_add_u32 {s(sT2)}, {s(sT2)}, {s(sT0)}")
        a(f"s_lshl_b32 {s(sT1)}, {s(sT1)}, 9")
        a(f"s_add_u32 {s(sT1)}, {s(sT1)}, {s(sT0)}")
        a(f"s_lshl_b32 {s(sT0)}, {s(sG)}, 19")
        a(f"s_add_u32 {s(sT0)}, {s(sT0)}, {RBO}")
        a(f"s_add_u32 {s(sT3)}, {s(sT0)}, {s(sT2)}")
        a(f"s_add_u32 {s(sT0)}, {s(sT0)}, {s(sT1)}")
        a(f"s_add_u32 {s(sT0)}, {s(sT0)}, 0x38000")
        a(f"s_add_u32 {s(sT2)}, {s(sT2)}, {s(sGB)}")
        a(f"s_add_u32 {s(sT1)}, {s(sT1)}, {s(sGB)}")
        a(f"s_add_u32 {s(sT1)}, {s(sT1)}, {VO}")
        a(f"s_add_u32 {s(sT6)}, {s(sT2)}, {KO}")
        a(f"v_lshrrev_b32 v4, 9, {v(vL16)}")
        a("v_mul_u32_u24 v4, 7168, v4")
        a(f"v_and_b32 v5, 0x1f0, {v(vL16)}")
        a("v_add_u32 v4, v4, v5")
        a("v_add_u32 v5, 14336, v4")

        def pack(acc, b):
            for j in range(4):
                a(f"v_cvt_pk_bf16_f32 {v(acc + 8 * b + j)}, {v(acc + 8 * b + 2 * j)}, {v(acc + 8 * b + 2 * j + 1)}")
            return v(acc + 8 * b, 4)

        for b in range(2):
            a.vm(f"buffer_store_dwordx4 {pack(cK, b)}, {v(vL16)}, {srd(SWS)}, {s(sT3)} offen offset:{b * 1024} sc1")
        for b in range(2):
            a.vm(f"buffer_store_dwordx4 {pack(cV, b)}, {v(4 + b)}, {srd(SWS)}, {s(sT0)} offen sc1")
        for b in range(2):
            a.vm(f"buffer_store_dwordx4 {v(cK + 8 * b, 4)}, {v(vL16)}, {srd(SWS)}, {s(sT6)} offen offset:{b * 1024}{self.st('q')}")
            a.vm(f"buffer_store_dwordx4 {v(cV + 8 * b, 4)}, {v(4 + b)}, {srd(SWS)}, {s(sT1)} offen{self.st('q')}")
        a(f"v_subrev_u32 v3, {LB - LA}, {v(vTK)}")
        self.w_dma_pattern(6, 8, 896)
        a(f"s_mul_i32 {s(sT0)}, {s(sW)}, {8 * 896}")
        a(f"s_lshl_b32 {s(sT1)}, {s(sCB)}, 7")
        a(f"s_add_u32 {s(sT4)}, {s(sT0)}, {s(sT1)}")
        a.wait(vm=t_wq)
        a("s_barrier")
        self.stamp(4)

        def rdQ(k):
            slot = vW + 4 * (k % 16)
            wt[("q", k)] = (v(slot, 4), self.tr2(("v", slot), 3, k * 2048))

        for k in range(4):
            rdQ(k)
        self.ones_prefill()
        for k in range(28):
            if k + 4 < 28:
                rdQ(k + 4)
            reg, t = wt[("q", k)]
            a.wait(lg=t)
            a(f"v_mfma_f32_32x32x16_bf16 {v(cQ, 16)}, {reg}, {v(vH1 + 4 * k, 4)}, {v(cQ, 16) if k else 0}")
            if k < 14:
                self.dma(6, SWO, sT5, LB + k * 4096, sT4, k * 32 * 896)
        self.tr_pattern(2, 8, True)
        a(f"s_mul_i32 {s(sT0)}, {s(sCH)}, {14 * 2048}")
        a(f"s_add_u32 {s(sT0)}, {s(sT0)}, {LB}")
        a(f"v_add_u32 v2, {s(sT0)}, v2")
        a("v_xor_b32 v3, 64, v2")
        a(f"s_mov_b32 {s(sT0)}, {f2u(QSCALE):#x}")
        for r in range(16):
            a(f"v_mul_f32 {v(cQ + r)}, {s(sT0)}, {v(cQ + r)}")
        for b in range(2):
            a.vm(f"buffer_store_dwordx4 {pack(cQ, b)}, {v(vL16)}, {srd(SWS)}, {s(sT2)} offen offset:{b * 1024}{self.st('q')}")
        a(f"s_lshl_b32 {s(sT2)}, {s(sG)}, 5")
        a(f"s_add_u32 {s(sT2)}, {s(sT2)}, {s(sM)}")
        a(f"s_lshl_b32 {s(sT2)}, {s(sT2)}, 7")
        a(f"v_mov_b32 v10, {RFO}")
        self.stamp(5)
        self.local_flag(0, 8)
        a("s_barrier")
        a(f"s_cmp_eq_u32 {s(sW)}, 0")
        a("s_cselect_b64 exec, 1, 0")
        a.vm(f"buffer_store_dword v9, v10, {srd(SWS)}, {s(sT2)} offen sc1")
        a("s_mov_b64 exec, -1")
        self.stamp(27)
        for k in range(14):
            for ct in range(2):
                self.tr2(("a", 128 + 8 * k + 4 * ct), 2 + ct, k * 2048)

    def capture(self, fn):
        n = len(self.a.ins)
        fn()
        lines = []
        for i in self.a.ins[n:]:
            assert i.kind in ("valu", "salu", "trans")
            if i.op.startswith("s_cselect"):
                lines[-1] += "\n" + i.text
            else:
                lines.append(i.text)
        del self.a.ins[n:]
        return lines

    def helper_first_loads(self):
        a = self.a
        n0 = a.vm_n
        sJ = sT4
        a(f"s_sub_u32 {s(sJ)}, {s(sM)}, 28")
        a(f"s_lshl_b32 {s(sJ)}, {s(sJ)}, 3")
        a(f"s_add_u32 {s(sJ)}, {s(sJ)}, {s(sG)}")
        a("v_min_u32 v8, 223, v0")
        a("v_lshlrev_b32 v8, 2, v8")
        a(f"buffer_load_dword v9, v8, {srd(SC)}, 0 offen")
        self.w_dma_pattern(6, 10, 5376)
        a(f"s_lshl_b32 {s(sT5)}, {s(sW)}, 10")
        a(f"s_mov_b32 {s(sT6)}, 0")
        a("L_job:")
        a(f"s_mul_i32 {s(sT0)}, {s(sW)}, {8 * 5376}")
        a(f"s_lshl_b32 {s(sT1)}, {s(sJ)}, 7")
        a(f"s_add_u32 {s(sT0)}, {s(sT0)}, {s(sT1)}")
        a(f"s_mov_b32 {s(sT2)}, {s(sT5)}")
        a(f"s_add_u32 {s(sT3)}, {s(sT2)}, {14 * 4096}")
        a("L_mdma:")
        a(f"s_mov_b32 m0, {s(sT2)}")
        a(f"s_add_u32 {s(sT2)}, {s(sT2)}, 4096")
        a(f"buffer_load_dwordx4 v6, {srd(SWMOD)}, {s(sT0)} offen lds")
        a(f"s_add_u32 {s(sT0)}, {s(sT0)}, {32 * 5376}")
        a(f"s_cmp_lg_u32 {s(sT2)}, {s(sT3)}")
        a("s_cbranch_scc1 L_mdma")
        a("s_branch L_helper")
        a.vm_n = n0

    def helper(self):
        a = self.a
        a("L_helper:")
        a.vm_done = a.vm_n
        a.lg_done = a.lg_n
        sJ = sT4
        a(f"s_cmp_lg_u32 {s(sT6)}, 0")
        a("s_cbranch_scc1 L_job_go")
        self.make_tag_and_publish_xcc(20)
        a("s_waitcnt vmcnt(15)")
        a("v_lshlrev_b32 v10, 16, v9")
        a("v_and_b32 v11, 0xffff0000, v9")
        for r in (10, 11):
            a(f"v_mul_f32 {v(r + 2)}, {f2u(-1.4426950408889634):#x}, {v(r)}")
        for r in (12, 13):
            a(f"v_exp_f32 {v(r)}, {v(r)}")
        for r in (12, 13):
            a(f"v_add_f32 {v(r)}, 1.0, {v(r)}")
        for r in (12, 13):
            a(f"v_rcp_f32 {v(r)}, {v(r)}")
        for r in (10, 11):
            a(f"v_mul_f32 {v(r)}, {v(r)}, {v(r + 2)}")
        a("v_cvt_pk_bf16_f32 v10, v10, v11")
        a(f"v_add_u32 v8, {LD}, v8")
        a("ds_write_b32 v8, v10")
        a(f"v_lshrrev_b32 v10, 4, {v(vL16)}")
        a("v_bfe_u32 v11, v10, 2, 2")
        a("v_lshrrev_b32 v12, 4, v10")
        a("v_lshl_add_u32 v13, v12, 3, v11")
        a("v_lshlrev_b32 v2, 7, v13")
        a("v_lshrrev_b32 v11, 1, v11")
        a("v_lshlrev_b32 v11, 6, v11")
        a("v_and_b32 v13, 3, v10")
        a("v_lshlrev_b32 v13, 3, v13")
        a("v_xor_b32 v11, v11, v13")
        a(f"s_lshl_b32 {s(sT0)}, {s(sW)}, 5")
        a(f"v_xor_b32 v11, {s(sT0)}, v11")
        a("v_add_u32 v2, v2, v11")
        a("v_lshlrev_b32 v3, 4, v12")
        a(f"v_add_u32 v3, {LD}, v3")
        a("v_lshlrev_b32 v4, 2, v10")
        a("L_job_go:")
        a.wait_all()
        a("s_barrier")
        self.stamp(1)
        tk = []
        for k in range(14):
            a.lg(f"ds_read_b128 {v(32 + 8 * k, 4)}, v3 offset:{k * 64}")
            tk.append(self.tr2(("v", 36 + 8 * k), 2, k * 4096))
            if k >= 3:
                a.wait(lg=tk[k - 3])
                kk = k - 3
                a(f"v_mfma_f32_16x16x32_bf16 v[16:19], {v(32 + 8 * kk, 4)}, {v(36 + 8 * kk, 4)}, {'v[16:19]' if kk else 0}")
        for kk in range(11, 14):
            a.wait(lg=tk[kk])
            a(f"v_mfma_f32_16x16x32_bf16 v[16:19], {v(32 + 8 * kk, 4)}, {v(36 + 8 * kk, 4)}, v[16:19]")
        a(f"s_lshl_b32 {s(sT0)}, {s(sJ)}, 8")
        a(f"s_lshl_b32 {s(sT1)}, {s(sW)}, 6")
        a(f"s_add_u32 {s(sT0)}, {s(sT0)}, {s(sT1)}")
        a(f"s_add_u32 {s(sT0)}, {s(sT0)}, {MODO}")
        a("v_mov_b32_dpp v17, v16 quad_perm:[1,0,3,2] row_mask:0xf bank_mask:0xf")
        a("v_cvt_pk_bf16_f32 v20, v16, v17")
        a(f"v_mov_b32 v21, {s(sTAG)}")
        a("s_mov_b64 exec, 0x5555")
        a(f"buffer_store_dwordx2 v[20:21], v4, {srd(SWS)}, {s(sT0)} offen sc1")
        a("s_mov_b64 exec, -1")
        self.stamp(2)
        a(f"s_cmp_lg_u32 {s(sT6)}, 0")
        a("s_cbranch_scc1 L_jobs_done")
        a(f"s_cmp_lt_u32 {s(sJ)}, 22")
        a("s_cbranch_scc1 L_jobs_done")
        a(f"s_mov_b32 {s(sT6)}, 1")
        a(f"s_add_u32 {s(sJ)}, {s(sJ)}, 10")
        a("s_barrier")
        a("s_branch L_job")
        a("L_jobs_done:")
        a(f"s_cmp_lg_u32 {s(sJ)}, 14")
        a("s_cbranch_scc1 L_no_epoch")
        a("v_lshlrev_b32 v8, 3, v0")
        a(f"s_mov_b32 {s(sT0)}, {XCCO}")
        self.poll([f"buffer_load_dwordx2 v[10:11], v8, {srd(SWS)}, {s(sT0)} offen sc1"], [11])
        a("s_barrier")
        a("v_mov_b32 v8, 0")
        a(f"s_cmp_eq_u32 {s(sW)}, 0")
        a("s_cselect_b64 exec, 1, 0")
        a(f"buffer_store_dword v11, v8, {srd(SWS)}, 0 offen sc1")
        a("s_mov_b64 exec, -1")
        a("L_no_epoch:")
        if self.o.get("touch", 1):
            a(f"v_lshlrev_b32 v8, 3, {v(vL16)}")
            a(f"s_sub_u32 {s(sT0)}, {s(sM)}, 28")
            a(f"s_lshl_b32 {s(sT0)}, {s(sT0)}, 2")
            a(f"s_add_u32 {s(sT0)}, {s(sT0)}, {s(sW)}")
            a(f"s_lshl_b32 {s(sT0)}, {s(sT0)}, 11")
            a(f"s_add_u32 {s(sT0)}, {s(sT0)}, {s(sGB)}")
            a(f"s_add_u32 {s(sT0)}, {s(sT0)}, {STO}")
            self.touch(8, SWS, sT0, 16)
        if self.o.get("hwarm", 0):
            a(f"v_lshlrev_b32 v8, 3, {v(vL16)}")
            a(f"s_sub_u32 {s(sT0)}, s2, 224")
            a(f"s_lshl_b32 {s(sT0)}, {s(sT0)}, 2")
            a(f"s_add_u32 {s(sT0)}, {s(sT0)}, {s(sW)}")
            a(f"s_lshl_b32 {s(sT0)}, {s(sT0)}, 13")
            a(f"s_mul_i32 {s(sT1)}, {s(sT0)}, 34")
            a(f"s_lshr_b32 {s(sT1)}, {s(sT1)}, 6")
            a(f"s_add_u32 {s(sT1)}, {s(sT1)}, {128 * 8192}")
            for sr in (SWG, SWU):
                self.touch(8, sr, sT0)
            a("s_mov_b32 exec_hi, 3")
            for sr in (SWG, SWU):
                self.touch(8, sr, sT1)
            a("s_mov_b64 exec, -1")
            self.touch(8, SWD, sT0)
            a("s_mov_b32 exec_hi, 3")
            self.touch(8, SWD, sT1)
            a("s_mov_b64 exec, -1")
        xl = self.xcc_load(10, 4)
        self.poll([xl], [5])
        a.wait_all()
        a("s_barrier")
        self.p2_setup()
        self.ones_prefill()
        self.choose_mode(4, "L_p2_slow")
        a("s_branch L_p2_fast")

    def p2_setup(self):
        a = self.a
        vKV, vVP, vRF, vWG, vMK = 12, 13, 14, 15, 16
        a(f"s_and_b32 {s(sHD)}, {s(sM)}, 15")
        a(f"s_lshr_b32 {s(sB)}, {s(sM)}, 4")
        a(f"s_mul_i32 {s(sWS0)}, {s(sHD)}, 7")
        a(f"s_lshr_b32 {s(sWS0)}, {s(sWS0)}, 1")
        a(f"s_bitcmp1_b32 {s(sHD)}, 0")
        a(f"s_cselect_b32 {s(sP1)}, 15, 0xf0000000")
        a(f"s_mov_b32 {s(sP1 + 1)}, {s(sP1)}")
        a(f"s_lshl_b32 {s(sKVL)}, {s(sW)}, 12")
        a(f"s_add_u32 {s(sKVL)}, {s(sKVL)}, {L_KV}")
        a(f"v_add_u32 {v(vKV)}, {s(sKVL)}, {v(vL16)}")
        a(f"v_bfe_u32 v24, {v(vL16)}, 4, 5")
        a(f"v_lshrrev_b32 v25, 9, {v(vL16)}")
        a("v_lshlrev_b32 v26, 2, v25")
        a("v_sub_u32 v26, v24, v26")
        for r in range(16):
            a(f"v_cmp_le_i32 {s(sMASK + 2 * r, 2)}, {8 * (r >> 2) + (r & 3)}, v26")
        a("v_mov_b32 v27, 0")
        a("v_mov_b32 v28, 0xffff")
        a("v_mov_b32 v29, 0xffff0000")
        for i in range(8):
            a(f"v_cndmask_b32 {v(vMK + i)}, v27, v28, {s(sMASK + 4 * i, 2)}")
            a(f"v_cndmask_b32 v30, v27, v29, {s(sMASK + 4 * i + 2, 2)}")
            a(f"v_or_b32 {v(vMK + i)}, {v(vMK + i)}, v30")
        a("v_and_b32 v26, 0x13, v24")
        a("v_and_b32 v27, 4, v24")
        a("v_lshl_or_b32 v26, v27, 1, v26")
        a("v_and_b32 v27, 8, v24")
        a("v_lshrrev_b32 v27, 1, v27")
        a("v_or_b32 v26, v26, v27")
        a("v_lshlrev_b32 v26, 4, v26")
        a(f"v_mul_u32_u24 {v(vVP)}, 7168, v25")
        a(f"v_add_u32 {v(vVP)}, {v(vVP)}, v26")
        a(f"s_lshl_b32 {s(sT0)}, {s(sB)}, 2")
        a(f"s_add_u32 {s(sT0)}, {s(sT0)}, {s(sW)}")
        a(f"s_sub_u32 {s(sMISS)}, 8, {s(sT0)}")
        a(f"s_cmp_eq_u32 {s(sG)}, 0")
        a(f"s_cselect_b32 {s(sMISS)}, {s(sMISS)}, 0")
        a(f"s_mul_i32 {s(sTQ)}, {s(sT0)}, {TILE_B}")
        a(f"s_add_u32 {s(sTQ)}, {s(sTQ)}, {s(sGB)}")
        a(f"s_max_u32 {s(sT0)}, {s(sG)}, 1")
        a(f"s_lshl_b32 {s(sT0)}, {s(sT0)}, 12")
        a(f"s_add_u32 {s(sT0)}, {s(sT0)}, {RFO - 4096}")
        a(f"v_lshl_add_u32 {v(vRF)}, v24, 7, {s(sT0)}")
        self.w_dma_pattern(vWG, 24, 3584)
        a(f"s_min_u32 {s(sT0)}, {s(sM)}, 27")
        a(f"s_lshl_b32 {s(sT0)}, {s(sT0)}, 7")
        a(f"s_mul_i32 {s(sT1)}, {s(sW)}, {8 * 3584}")
        a(f"s_add_u32 {s(sWSRC)}, {s(sT0)}, {s(sT1)}")

    def ones_prefill(self):
        a = self.a
        for j in range(4):
            a(f"v_mov_b32 {v(24 + j)}, 0x3f803f80")
        a(f"s_mov_b64 exec, {s(sP1, 2)}")
        for i in range(3):
            for t in range(2):
                a(f"ds_write_b128 v12, v[24:27] offset:{i * 16384 + 2048 + t * 1024}")
        a("s_mov_b64 exec, -1")

    def wgu(self, n):
        for _ in range(n):
            if self.pre:
                vr, sr, lo, so = self.pre.pop(0)
                self.t_wgu = self.dma(vr, sr, sT5, lo, sWSRC, so)

    def p2(self):
        a = self.a
        a("L_p2_slow:" if self.slow else "L_p2_fast:")
        a.vm_done = a.vm_n
        vQ, vMK, vKV, vVP, vRF, vM, vNM = 24, 16, 12, 13, 14, 8, 10
        vS, vP2, vO = 32, 176, 192
        a("v_xor_b32 v6, 32, v15")
        a(f"s_lshl_b32 {s(sT5)}, {s(sW)}, 10")
        self.poll_local(0, 28, 8)
        a(f"s_lshl_b32 {s(sT1)}, {s(sWS0)}, 9")
        a(f"s_add_u32 {s(sT2)}, {s(sTQ)}, {s(sT1)}")
        for t in range(2):
            a.vm(f"buffer_load_dwordx4 {v(vQ + 4 * t, 4)}, {v(vL16)}, {srd(SWS)}, {s(sT2)} offen offset:{t * 1024} sc1")
        ksrc, vsrc = (sT0, sT1, sT2), (sT3, sT4, sT6)

        def ldK(i):
            for t in range(2):
                tk = self.dma(vL16, SWS, sKVL, i * 16384 + t * 1024, ksrc[i], 0, sc1=True, imm=t * 1024)
            return tk

        def ldV(i):
            for t in range(2):
                tk = self.dma(vVP, SWS, sKVL, i * 16384 + 2048 + t * 1024, vsrc[i], t * 14336, sc1=True)
            return tk

        a(f"s_lshl_b32 {s(sT0)}, {s(sWS0)}, 7")
        a(f"s_add_u32 {s(sT6)}, {s(sTQ)}, {s(sT0)}")
        a(f"s_add_u32 {s(sT6)}, {s(sT6)}, {VO}")
        a(f"s_add_u32 {s(sT2)}, {s(sT2)}, {KO}")
        ldK(2)
        a(f"s_andn2_b64 exec, -1, {s(sP1, 2)}")
        ldV(2)
        a("s_mov_b64 exec, -1")
        a(f"s_lshl_b32 {s(sT7)}, {s(sG)}, 19")
        a(f"s_add_u32 {s(sT7)}, {s(sT7)}, {RBO - 0x80000 + 8 * TILE_B - KO}")
        a(f"s_sub_u32 {s(sT7)}, {s(sT7)}, {s(sGB)}")
        a(f"s_cmp_eq_u32 {s(sG)}, 0")
        a(f"s_cselect_b32 {s(sT7)}, {OOB}, {s(sT7)}")
        a(f"s_add_u32 {s(sT0)}, {s(sT2)}, {s(sT7)}")
        a(f"s_sub_u32 {s(sT0)}, {s(sT0)}, {8 * TILE_B}")
        a(f"s_add_u32 {s(sT3)}, {s(sT6)}, {s(sT7)}")
        a(f"s_sub_u32 {s(sT3)}, {s(sT3)}, {8 * TILE_B}")
        a(f"s_cmp_eq_u32 {s(sB)}, 0")
        a(f"s_cselect_b32 {s(sT7)}, {s(sT7)}, 0")
        a(f"s_add_u32 {s(sT1)}, {s(sT2)}, {s(sT7)}")
        a(f"s_sub_u32 {s(sT1)}, {s(sT1)}, {4 * TILE_B}")
        a(f"s_add_u32 {s(sT4)}, {s(sT6)}, {s(sT7)}")
        a(f"s_sub_u32 {s(sT4)}, {s(sT4)}, {4 * TILE_B}")
        self.stamp(6)
        self.poll([f"buffer_load_dword v8, {v(vRF)}, {srd(SWS)}, 0 offen sc1"], [8], exec_lo=0x0FFFFFFF, exec_hi=0)
        self.stamp(7)
        ldK(0)
        t_k = ldK(1)
        a(f"s_andn2_b64 exec, -1, {s(sP1, 2)}")
        ldV(0)
        t_v = ldV(1)
        a("s_mov_b64 exec, -1")
        self.p3_early_loads()
        if self.o.get("touch_y", 1):
            a(f"s_mul_i32 {s(sT0)}, {s(sTILE)}, {TILE_B}")
            a(f"s_add_u32 {s(sT0)}, {s(sT0)}, {s(sGB)}")
            a(f"s_lshl_b32 {s(sT1)}, {s(sCB)}, 1")
            a(f"s_add_u32 {s(sT1)}, {s(sT1)}, {s(sCH)}")
            a(f"s_lshl_b32 {s(sT1)}, {s(sT1)}, 11")
            a(f"s_add_u32 {s(sT0)}, {s(sT0)}, {s(sT1)}")
            a(f"s_add_u32 {s(sT0)}, {s(sT0)}, {YO}")
            a(f"v_lshlrev_b32 v8, 3, {v(vL16)}")
            self.touch(8, SWS, sT0, 16)
        self.pre = []
        for i in range(14):
            self.pre.append((15, SWG, LA + i * 4096, i * 32 * 3584))
            self.pre.append((6, SWU, LB + i * 4096, i * 32 * 3584))
        budget = [self.o.get("n_att", 16)]

        def prefetch(n):
            n = min(n, budget[0])
            budget[0] -= n
            self.wgu(n)

        a(f"s_bitcmp1_b32 {s(sHD)}, 0")
        a(f"s_cselect_b32 {s(sP0)}, -1, 0")
        a(f"s_mov_b32 {s(sP0 + 1)}, 0")
        a(f"s_mov_b64 exec, {s(sP0, 2)}")
        a(f"v_mov_b32 {v(vQ)}, 0")
        a(f"v_mov_b32 {v(vQ + 1)}, 0")
        a(f"s_not_b32 exec_hi, {s(sP0)}")
        a("s_mov_b32 exec_lo, 0")
        a(f"v_mov_b32 {v(vQ + 6)}, 0")
        a(f"v_mov_b32 {v(vQ + 7)}, 0")
        a("s_mov_b64 exec, -1")
        a.wait(vm=t_k)
        a.wait_all(vm=False)
        a("s_barrier")
        self.stamp(8)
        order = [0, 8, 1, 2, 3, 4, 5, 6, 7]
        kt = {}

        def rdK(n):
            i = order[n]
            a.lg(f"ds_read_b128 {a_(8 * n, 4)}, {v(vKV)} offset:{i * 4096}")
            kt[n] = a.lg(f"ds_read_b128 {a_(8 * n + 4, 4)}, {v(vKV)} offset:{i * 4096 + 1024}")

        vorder = [1, 2, 3, 4, 5, 6, 7, 8, 0]
        vt = {}

        def rdV(n):
            i = vorder[n]
            base = 72 + 8 * n if n < 7 else 8 * (n - 7)
            a.lg(f"ds_read_b128 {a_(base, 4)}, {v(vKV)} offset:{i * 4096 + 2048}")
            vt[i] = (base, a.lg(f"ds_read_b128 {a_(base + 4, 4)}, {v(vKV)} offset:{i * 4096 + 3072}"))

        def patch(i):
            L = a.label("miss")
            a(f"s_cmp_gt_i32 {s(sMISS)}, {i}")
            a(f"s_cbranch_scc1 {L}")
            a(f"{L}_back:")
            blk = [f"{L}:", "s_nop 15"]
            blk += [f"v_mov_b32 {v(vS + 16 * i + r)}, 0xf149f2ca" for r in range(16)]
            blk += [f"s_branch {L}_back"]
            self.tail.append(blk)

        valu = []
        first = [True]

        def q_max(i):
            b = vS + 16 * i
            ops = []
            if first[0]:
                ops.append(f"v_max3_f32 {v(vM)}, {v(b)}, {v(b + 1)}, {v(b + 2)}")
                ops.append(f"v_max3_f32 {v(vM + 1)}, {v(b + 3)}, {v(b + 4)}, {v(b + 5)}")
                rest = list(range(6, 16, 2))
                first[0] = False
            else:
                rest = list(range(0, 16, 2))
            for n, r in enumerate(rest):
                m = vM + (n & 1)
                ops.append(f"v_max3_f32 {v(m)}, {v(m)}, {v(b + r)}, {v(b + r + 1)}")
            return ops

        for n in range(4):
            rdK(n)
        for n in range(9):
            i = order[n]
            if n + 4 < 9:
                rdK(n + 4)
            else:
                if n == 5:
                    a.wait(vm=t_v)
                    a("s_barrier")
                rdV(n - 5)
            a.wait(lg=kt[n])
            d = v(vS + 16 * i, 16)
            a(f"v_mfma_f32_32x32x16_bf16 {d}, {a_(8 * n, 4)}, {v(vQ, 4)}, 0")
            for _ in range(5):
                if valu:
                    a(valu.pop(0))
            a(f"v_mfma_f32_32x32x16_bf16 {d}, {a_(8 * n + 4, 4)}, {v(vQ + 4, 4)}, {d}")
            for _ in range(5):
                if valu:
                    a(valu.pop(0))
            if n == 2:
                patch(0)
                valu += [f"v_cndmask_b32 {v(vS + 128 + r)}, {v(vS + r)}, {v(vS + 128 + r)}, {s(sMASK + 2 * r, 2)}" for r in range(16)]
                valu += q_max(8)
            elif n >= 3:
                patch(order[n - 1])
                valu += q_max(order[n - 1])
            prefetch(1)
        for op in valu:
            a(op)
        patch(7)
        for op in q_max(7):
            a(op)
        a(f"v_max_f32 {v(vM)}, {v(vM)}, {v(vM + 1)}")
        self.both_halves(vM, vM + 1, "v_max_f32")
        a(f"v_sub_f32 {v(vNM)}, 0, {v(vM)}")
        self.stamp(9)
        firstpv = [True]

        def pv(i, t, p):
            base, tk = vt[i]
            a.wait(lg=tk)
            c = 0 if firstpv[0] else v(vO, 16)
            firstpv[0] = False
            a(f"v_mfma_f32_32x32x16_bf16 {v(vO, 16)}, {a_(base + 4 * t, 4)}, {v(p + 4 * t, 4)}, {c}")

        pend = []
        for n, i in enumerate([1, 2, 3, 4, 5, 6, 7, 8]):
            b = vS + 16 * i
            p = vS + 8 * (n & 1)
            if n + 4 < 9:
                rdV(n + 4)
            for r in range(0, 16, 2):
                a(f"v_pk_add_f32 {v(b + r, 2)}, {v(b + r, 2)}, {v(vNM, 2)} op_sel_hi:[1,0]")
            for t in range(2):
                if pend:
                    pv(*pend.pop(0))
                for r in range(8 * t, 8 * t + 8):
                    a(f"v_exp_f32 {v(b + r)}, {v(b + r)}")
                    if r >= 8 * t + 3 and (r & 1):
                        j = (r - 3) >> 1
                        a(f"v_cvt_pk_bf16_f32 {v(p + j)}, {v(b + 2 * j)}, {v(b + 2 * j + 1)}")
                j = 4 * t + 3
                prefetch(1)
                a(f"v_cvt_pk_bf16_f32 {v(p + j)}, {v(b + 2 * j)}, {v(b + 2 * j + 1)}")
            if i != 8:
                pend = [(i, 0, p), (i, 1, p)]
            else:
                for j in range(8):
                    a(f"v_and_b32 {v(vP2 + j)}, {v(p + j)}, {v(vMK + j)}")
                    a(f"v_xor_b32 {v(vP2 + 8 + j)}, {v(p + j)}, {v(vP2 + j)}")
                    if j == 3:
                        pv(8, 0, vP2)
                pv(0, 0, vP2 + 8)
                pv(8, 1, vP2)
                pv(0, 1, vP2 + 8)
        a(f"s_lshl_b32 {s(sT1)}, {s(sWS0)}, 9")
        a(f"s_add_u32 {s(sT1)}, {s(sT1)}, {s(sTQ)}")
        a(f"s_add_u32 {s(sT1)}, {s(sT1)}, {OO}")
        a(f"s_bitcmp1_b32 {s(sHD)}, 0")
        a(f"s_cselect_b64 {s(sP0, 2)}, -1, 0")
        a(f"v_cndmask_b32 v8, {v(vO + 12)}, {v(vO)}, {s(sP0, 2)}")
        a("v_mov_b32 v9, v8")
        a("v_permlane32_swap_b32 v9, v8")
        a(f"v_cndmask_b32 v8, v8, v9, {s(sP0, 2)}")
        a("v_rcp_f32 v8, v8")
        for r in range(16):
            a(f"v_mul_f32 {v(vO + r)}, v8, {v(vO + r)}")
        for j in range(8):
            a(f"v_cvt_pk_bf16_f32 {v(vP2 + j)}, {v(vO + 2 * j)}, {v(vO + 2 * j + 1)}")
        Lodd, Ldone = a.label("odd"), a.label("ost")
        base = f"{v(vL16)}, {srd(SWS)}, {s(sT1)} offen"
        a(f"s_cbranch_scc1 {Lodd}")
        a(f"buffer_store_dwordx4 {v(vP2, 4)}, {base}{self.st('o')}")
        a("s_mov_b32 exec_hi, 0")
        a(f"buffer_store_dwordx4 {v(vP2 + 4, 4)}, {base} offset:1024{self.st('o')}")
        a("s_not_b64 exec, exec")
        a(f"buffer_store_dwordx2 {v(vP2 + 4, 2)}, {base} offset:1024{self.st('o')}")
        a(f"s_branch {Ldone}")
        a(f"{Lodd}:")
        a(f"buffer_store_dwordx4 {v(vP2 + 4, 4)}, {base} offset:1024{self.st('o')}")
        a("s_mov_b32 exec_lo, 0")
        a(f"buffer_store_dwordx4 {v(vP2, 4)}, {base}{self.st('o')}")
        a("s_not_b64 exec, exec")
        a(f"buffer_store_dwordx2 {v(vP2 + 2, 2)}, {base} offset:8{self.st('o')}")
        a(f"{Ldone}:")
        a("s_mov_b64 exec, -1")
        self.stamp(10)
        Lc = a.label("comp")
        a(f"s_cmp_lt_u32 {s(sM)}, 28")
        a(f"s_cbranch_scc1 {Lc}")
        self.local_flag(1, 8)
        a("s_branch " + ("L_end" if self.slow else "L_helper_tail"))
        a(f"{Lc}:")

    def exchange(self, acc):
        a = self.a
        a(f"s_lshl_b32 {s(sT0)}, {s(sW)}, 12")
        a(f"s_add_u32 {s(sT0)}, {s(sT0)}, {L_XB}")
        a(f"v_add_u32 v8, {s(sT0)}, {v(vL16)}")
        a(f"v_xor_b32 v9, 4096, v8")
        Lk, Ld = a.label("xk"), a.label("xd")
        a(f"s_cmp_eq_u32 {s(sCH)}, 0")
        a("s_nop 7")
        a(f"s_cbranch_scc1 {Lk}")
        for q in range(4):
            a(f"ds_write_b128 v8, {v(acc + 4 * q, 4)} offset:{q * 1024}")
        for r in range(16):
            a(f"v_mov_b32 {v(acc + r)}, {v(acc + 16 + r)}")
        a(f"s_branch {Ld}")
        a(f"{Lk}:")
        for q in range(4):
            a(f"ds_write_b128 v8, {v(acc + 16 + 4 * q, 4)} offset:{q * 1024}")
        a(f"{Ld}:")
        a.wait_all(vm=False)
        a("s_barrier")
        tk = [a.lg(f"ds_read_b128 {v(acc + 16 + 4 * q, 4)}, v9 offset:{q * 1024}") for q in range(4)]
        for q in range(4):
            a.wait(lg=tk[q])
            for r in range(4 * q, 4 * q + 4, 2):
                a(f"v_pk_add_f32 {v(acc + r, 2)}, {v(acc + r, 2)}, {v(acc + 16 + r, 2)}")

    def unpack16(self, dst, src):
        a = self.a
        for j in range(8):
            a(f"v_lshlrev_b32 {v(dst + 2 * j)}, 16, {v(src + j)}")
            a(f"v_and_b32 {v(dst + 2 * j + 1)}, 0xffff0000, {v(src + j)}")

    def mod2_loads(self):
        return [f"buffer_load_dwordx2 {v(216 + 2 * i, 2)}, v224, {srd(SWS)}, {s(sT0)} offen offset:{i * 1792 if i < 2 else (i - 2) * 1792} sc1"
                .replace(s(sT0), s(sT0 if i < 2 else sT2)) for i in range(4)]

    def p3_early_loads(self):
        a = self.a
        a(f"v_bfe_u32 v3, {v(vL16)}, 4, 5")
        a("v_mul_u32_u24 v3, 896, v3")
        a(f"v_lshrrev_b32 v4, 9, {v(vL16)}")
        a("v_lshl_add_u32 v3, v4, 4, v3")
        a(f"s_lshl_b32 {s(sT0)}, {s(sG)}, 3")
        a(f"s_add_u32 {s(sT0)}, {s(sT0)}, {s(sTILE)}")
        a(f"s_mul_i32 {s(sT0)}, {s(sT0)}, {TILE_B}")
        a(f"s_lshl_b32 {s(sT1)}, {s(sCB)}, 1")
        a(f"s_add_u32 {s(sT1)}, {s(sT1)}, {s(sCH)}")
        a(f"s_lshl_b32 {s(sT1)}, {s(sT1)}, 6")
        a(f"s_add_u32 {s(sXCC)}, {s(sT0)}, {s(sT1)}")
        for b in range(2):
            a(f"buffer_load_dwordx4 {v(208 + 4 * b, 4)}, v3, {srd(SX)}, {s(sXCC)} offen offset:{32 * b}")
        a("v_min_u32 v224, 223, v0")
        a("v_lshlrev_b32 v224, 3, v224")
        a(f"s_mov_b32 {s(sT0)}, {MODO + 448 * 8}")
        a(f"s_mov_b32 {s(sT2)}, {MODO + 448 * 8 + 3584}")
        for t in self.mod2_loads():
            a(t)

    def p3(self):
        a = self.a
        acc, vGA, vG2, vXR, vXF = 32, 64, 80, 208, 104
        a("v_mov_b32 v5, v15")
        self.pre = [(5 if vr == 15 else vr, sr, lo, so) for vr, sr, lo, so in self.pre]
        a("s_barrier")
        self.local_flag(1, 8)
        Lok = a.label("m2ok")
        a(f"v_cmp_ne_u32 vcc, {s(sTAG)}, v217")
        for r in (219, 221, 223):
            a(f"v_cmp_ne_u32 {s(sP0, 2)}, {s(sTAG)}, {v(r)}")
            a(f"s_or_b64 vcc, vcc, {s(sP0, 2)}")
        a(f"s_cbranch_vccz {Lok}")
        a(f"s_mov_b32 {s(sT0)}, {MODO + 448 * 8}")
        a(f"s_mov_b32 {s(sT2)}, {MODO + 448 * 8 + 3584}")
        self.poll(self.mod2_loads(), [217, 219, 221, 223])
        a(f"{Lok}:")
        a("v_lshlrev_b32 v18, 16, v220")
        a("v_and_b32 v19, 0xffff0000, v220")
        a("v_add_f32 v18, 1.0, v18")
        a("v_add_f32 v19, 1.0, v19")
        a("v_cvt_pk_bf16_f32 v220, v18, v19")
        a("v_lshrrev_b32 v8, 1, v224")
        a(f"v_add_u32 v8, {L_T2}, v8")
        for i in range(4):
            a(f"ds_write_b32 v8, {v(216 + 2 * i)} offset:{896 * i}")
        a(f"s_lshl_b32 {s(sT1)}, {s(sCB)}, 1")
        a(f"s_add_u32 {s(sT1)}, {s(sT1)}, {s(sCH)}")
        a(f"s_lshl_b32 {s(sT1)}, {s(sT1)}, 6")
        a.wait_all(vm=False)
        a("s_barrier")
        a(f"v_lshl_add_u32 v8, v4, 4, {s(sT1)}")
        a(f"v_add_u32 v8, {L_T2}, v8")
        for b in range(2):
            a(f"ds_read_b128 {v(12 + 4 * b, 4)}, v8 offset:{32 * b}")
            a(f"ds_read_b128 {v(20 + 4 * b, 4)}, v8 offset:{2 * 896 + 32 * b}")
        a(f"s_lshl_b32 {s(sT0)}, {s(sRT)}, 5")
        a(f"v_add_u32 v8, {s(sT0)}, v8")
        a(f"ds_read_b128 {v(vGBP, 4)}, v8 offset:{3 * 896}")
        a(f"s_mul_i32 {s(sT2)}, {s(sTILE)}, {TILE_B}")
        a(f"s_add_u32 {s(sT2)}, {s(sT2)}, {s(sGB)}")
        a(f"s_mul_i32 {s(sT3)}, {s(sCH)}, {14 * 1024}")
        a(f"s_add_u32 {s(sT3)}, {s(sT3)}, {s(sT2)}")
        a(f"s_add_u32 {s(sT3)}, {s(sT3)}, {OO}")
        self.unpack16(vXF, vXR)
        a.wait_all(vm=False)
        self.unpack16(vGA, 12)
        self.unpack16(vG2, 20)
        self.stamp(11)
        self.poll_local(1, 32, 8)
        self.stamp(12)
        tk = []

        def ldO(k):
            if k and k % 4 == 0:
                a(f"s_add_u32 {s(sT3)}, {s(sT3)}, 4096")
            tk.append(a.vm(f"buffer_load_dwordx4 {a_(4 * k, 4)}, {v(vL16)}, {srd(SWS)}, {s(sT3)} offen offset:{(k % 4) * 1024} sc1"))

        for k in range(8):
            ldO(k)
        n3 = self.o.get("n_p3", 0)
        for k in range(14):
            a.wait(vm=tk[k])
            for ct in range(2):
                d = v(acc + 16 * ct, 16)
                a(f"v_mfma_f32_32x32x16_bf16 {d}, {a_(128 + 8 * k + 4 * ct, 4)}, {a_(4 * k, 4)}, {d if k else 0}")
                if ct == 0 and k + 8 < 14:
                    ldO(k + 8)
                elif k >= 6 and n3:
                    self.wgu(1)
                    n3 -= 1
        self.exchange(acc)
        for r in range(16):
            a(f"v_fma_f32 {v(acc + r)}, {v(acc + r)}, {v(vGA + r)}, {v(vXF + r)}")
        for j in range(8):
            a(f"v_cvt_pk_bf16_f32 {v(vX2 + j)}, {v(acc + 2 * j)}, {v(acc + 2 * j + 1)}")
        a(f"s_lshl_b32 {s(sT0)}, {s(sW)}, 11")
        a(f"s_add_u32 {s(sT0)}, {s(sT0)}, {L_X2}")
        a(f"v_add_u32 v8, {s(sT0)}, {v(vL16)}")
        for b in range(2):
            a(f"ds_write_b128 v8, {v(vX2 + 4 * b, 4)} offset:{1024 * b}")
        self.unpack16(acc, vX2)
        for r in range(0, 16, 2):
            a(f"v_pk_mul_f32 {v(acc + 16 + r, 2)}, {v(acc + r, 2)}, {v(vG2 + r, 2)}")
        for j in range(8):
            a(f"v_cvt_pk_bf16_f32 {v(12 + j)}, {v(acc + 16 + 2 * j)}, {v(acc + 16 + 2 * j + 1)}")
        a(f"s_lshl_b32 {s(sT0)}, {s(sT1)}, 5")
        a(f"s_add_u32 {s(sT0)}, {s(sT0)}, {s(sT2)}")
        a(f"s_add_u32 {s(sT0)}, {s(sT0)}, {YO}")
        for b in range(2):
            a(f"buffer_store_dwordx4 {v(12 + 4 * b, 4)}, {v(vL16)}, {srd(SWS)}, {s(sT0)} offen offset:{1024 * b}{self.st('y')}")
        a(f"v_pk_mul_f32 v[22:23], {v(acc, 2)}, {v(acc, 2)}")
        a(f"v_pk_add_f32 v[20:21], {v(acc, 2)}, {v(acc + 2, 2)}")
        a(f"v_pk_fma_f32 v[22:23], {v(acc + 2, 2)}, {v(acc + 2, 2)}, v[22:23]")
        for r in range(4, 16, 2):
            a(f"v_pk_add_f32 v[20:21], v[20:21], {v(acc + r, 2)}")
            a(f"v_pk_fma_f32 v[22:23], {v(acc + r, 2)}, {v(acc + r, 2)}, v[22:23]")
        a("v_add_f32 v20, v20, v21")
        a("v_add_f32 v21, v22, v23")
        self.both_halves(20, 24, "v_add_f32")
        self.both_halves(21, 25, "v_add_f32")
        a(f"s_lshl_b32 {s(sT0)}, {s(sT1)}, 5")
        a(f"s_lshl_b32 {s(sT3)}, {s(sTILE)}, 8")
        a(f"s_add_u32 {s(sT0)}, {s(sT0)}, {s(sT3)}")
        a(f"s_add_u32 {s(sT0)}, {s(sT0)}, {s(sGB)}")
        a(f"s_add_u32 {s(sT0)}, {s(sT0)}, {STO}")
        a(f"v_lshrrev_b32 v24, 1, {v(vL16)}")
        a("s_mov_b32 exec_hi, 0")
        a(f"buffer_store_dwordx2 v[20:21], v24, {srd(SWS)}, {s(sT0)} offen{self.st('y')}")
        a("s_mov_b64 exec, -1")
        self.local_flag(2, 8)
        self.stamp(13)

    def p45(self):
        a, o = self.a, self.o
        acc, vW, vTB, vTQ, vAUG, vR2, vU, vH = 32, 160, 208, 12, 16, 24, 224, 224
        vTBA, vAGA, vWD, vSTA, vPD, vFA, vST = 26, 27, 28, 30, 2, 31, 96
        NSW = 12
        K0 = min(28 - len(self.pre), o.get("k0", 28))
        late = len(self.pre)
        self.tr_pattern(vTQ, 8, True)
        a(f"v_bfe_u32 v8, {v(vL16)}, 8, 1")
        a(f"v_mul_u32_u24 v8, {LB - LA}, v8")
        a(f"s_mul_i32 {s(sT0)}, {s(sW)}, 10240")
        a(f"s_add_u32 {s(sB)}, {s(sT0)}, {L_F}")
        a(f"v_add_u32 {v(vWD)}, {s(sB)}, {v(vTQ)}")
        a(f"v_xor_b32 {v(vWD + 1)}, 64, {v(vWD)}")
        a(f"v_add_u32 {v(vTQ)}, {v(vTQ)}, v8")
        a(f"s_lshl_b32 {s(sT0)}, {s(sW)}, 5")
        a(f"v_xor_b32 {v(vTQ)}, {s(sT0)}, {v(vTQ)}")
        for q in range(1, 4):
            a(f"v_xor_b32 {v(vTQ + q)}, {32 * q}, {v(vTQ)}")
        a(f"v_bfe_u32 v8, {v(vL16)}, 4, 5")
        a("v_cmp_eq_u32 vcc, 1, v8")
        a(f"v_mov_b32 v8, {L_T2 + 2 * 896}")
        a(f"v_mov_b32 v9, {L_T2 + 896}")
        a("v_cndmask_b32 v8, v8, v9, vcc")
        a(f"v_lshl_add_u32 {v(vTBA)}, v4, 4, v8")
        a(f"s_add_u32 {s(sT0)}, {s(sT5)}, {L_AUG}")
        a(f"v_add_u32 {v(vAGA)}, {s(sT0)}, {v(vL16)}")
        a(f"s_lshl_b32 {s(sT0)}, {s(sCH)}, 11")
        a(f"s_lshl_b32 {s(sT1)}, {s(sRT)}, 10")
        a(f"s_add_u32 {s(sT0)}, {s(sT0)}, {s(sT1)}")
        a(f"s_add_u32 {s(sT0)}, {s(sT0)}, {L_X2}")
        a(f"v_add_u32 v8, {s(sT0)}, {v(vL16)}")
        a.wait_all(vm=False)
        a("s_barrier")
        for rt in range(2):
            a(f"ds_read_b128 {v(vX2 + 4 * rt, 4)}, v8 offset:{4096 * rt}")
        ut = {}

        def rdT(k):
            ut[k] = a.lg(f"ds_read_b128 {v(vTB + 4 * (k % 4), 4)}, {v(vTBA)} offset:{32 * k}")

        def mfmaU(k, wreg):
            a(f"v_mfma_f32_32x32x16_bf16 {v(vU, 16)}, {v(vTB + 4 * (k % 4), 4)}, {wreg}, {v(vU, 16) if k else 0}")

        setup = self.capture(lambda: self.p45_setup(vSTA, vPD, vFA))
        pt = {}

        def rdP(k):
            rdT(k)
            pt[k] = self.tr2(("v", vW + 4 * (k % 4)), vTQ, k * 2048)

        for k in range(min(3, K0)):
            rdP(k)
        for k in range(K0):
            a.wait(lg=pt[k])
            mfmaU(k, v(vW + 4 * (k % 4), 4))
            if k + 3 < K0:
                rdP(k + 3)
            for _ in range(3):
                if setup:
                    a(setup.pop(0))
        for g in setup:
            a(g)
        self.stamp(14)
        self.poll_local(2, 28, 8)
        self.stamp(15)
        a(f"s_lshl_b32 {s(sT0)}, {s(sM)}, 4")
        a(f"s_lshl_b32 {s(sT1)}, {s(sW)}, 2")
        a(f"s_add_u32 {s(sT0)}, {s(sT0)}, {s(sT1)}")
        a(f"s_add_u32 {s(sT0)}, {s(sT0)}, {LFO + 3 * 512}")
        a(f"v_mov_b32 v10, {s(sT0)}")
        a(f"v_mov_b32 v11, {s(sTAG)}")

        KA = 4
        steps = []
        for k in range(28):
            steps.append(("f", 0, k, 0))
            if k >= K0:
                steps.append(("u", 0, k, 0))
            steps += [("f", 0, k, q) for q in range(1, 4)]
        for k in range(28):
            if k == KA:
                steps += [("g", 0, 28, q) for q in range(4)]
            steps += [("f", 1, k, q) for q in range(4)]
        steps += [("g", 1, 28, q) for q in range(4)]
        steps += [("d", rt, j, ct) for rt in range(2) for j in range(28) for ct in range(2)]
        at = {st: n for n, st in enumerate(steps)}
        N = len(steps)
        ev = [[] for _ in range(N + 1)]
        post = [[] for _ in range(N + 1)]

        pool = {("a", 4 * i): [] for i in range(64)}
        pool.update({("v", vW + 4 * i): [(0, at[("f", 1, 27, 3)] + 1)] for i in range(NSW)})

        def alloc(n0, n1):
            for key in sorted(pool, key=lambda x: (x[0] == "v", -x[1])):
                if all(n1 < b0 or n0 > b1 for b0, b1 in pool[key]):
                    pool[key].append((n0, n1))
                    return key
            return None

        R = lambda key: (a_ if key[0] == "a" else v)(key[1], 4)

        n_wd0, per, D = at[("f", 0, o.get("kd", 14), 0)], o.get("wd_per", 8), 4
        wd_dma_t, wd_tr_t = {}, {}

        def wd_issue(j):
            if j >= 5:
                a.wait(lg=wd_tr_t[j - 5])
            for i in range(2):
                wd_dma_t[j] = self.dma(vPD, SWD, sB, (j % 5) * 2048 + i * 1024, sT4, (16 * j + 8 * i) * 896)

        def wd_read(j, ct):
            a.wait(vm=wd_dma_t[j])
            wd_tr_t[j] = self.tr2(("a", 8 * j + 4 * ct), vWD + ct, (j % 5) * 2048)

        for j in range(28):
            n = n_wd0 + per * j
            m = min(n + per * D, at[("d", 0, j, 0)] - 4)
            n = min(n, m - 12)
            post[n + 2].append(lambda j=j: wd_issue(j))
            post[m].append(lambda j=j: wd_read(j, 0))
            post[m + 1].append(lambda j=j: wd_read(j, 1))
            for ct in range(2):
                pool[("a", 8 * j + 4 * ct)].append((m, N))

        yt, yr = {}, {}

        def ldY(n):
            if n and n % 4 == 0:
                a(f"s_add_u32 {s(sTQ)}, {s(sTQ)}, 4096")
            yt[n] = a.vm(f"buffer_load_dwordx4 {R(yr[n])}, {v(vL16)}, {srd(SWS)}, {s(sTQ)} offen offset:{(n % 4) * 1024} sc1")

        Y0, YL = o.get("y0", 6), o.get("ylook", 10)
        prev = -1
        for n in range(56):
            use0, use1 = at[("f", n // 28, n % 28, 0)], at[("f", n // 28, n % 28, 3)]
            want = -1 if n < Y0 else max(prev + 2, at[("f", (n - YL) // 28, (n - YL) % 28, 0)] if n >= YL else 0)
            while True:
                key = alloc(want, use1)
                if key:
                    break
                want += 1
                assert want < use0 - 4
            yr[n] = key
            prev = want
            if want < 0:
                ldY(n)
            else:
                post[want].append(lambda n=n: ldY(n))

        if late:
            first = (28 - late) // 2
            tick = {}

            def late_dma(i):
                self.wgu(1)
                tick[i] = self.t_wgu

            for i in range(late):
                post[at[("f", 0, i * o.get("late_num", 1) // o.get("late_den", 1), 2)]].append(lambda i=i: late_dma(i))
            blocks = list(range(first, 14))
            groups = [blocks[i:i + 2] for i in range(0, len(blocks), 2)]
            assert at[("f", 0, 2 * first - 2, 0)] <= n_wd0 + 2
            for gb in groups:
                n = at[("f", 0, 2 * gb[0] - 2, 0)]
                ev[n].append(lambda gb=gb: (a.wait(vm=tick[2 * (gb[-1] - first) + 1]), a("s_barrier")))
        else:
            ev[at[("f", 0, 8, 0)]].append(lambda: a("s_barrier"))

        t_st = [0]

        def ldS(p):
            for rt in range(2):
                t_st[0] = a.vm(f"buffer_load_dwordx2 {v(vST + 14 * rt + 2 * p, 2)}, {v(vSTA)}, {srd(SWS)}, {s(sKVL)} offen offset:{256 * rt + (p & 1) * 2048} sc1")
            if p & 1:
                a(f"s_add_u32 {s(sKVL)}, {s(sKVL)}, 4096")

        for p in range(7):
            post[at[("f", 0, 2 + p, 1)]].append(lambda p=p: ldS(p))
        fill = []
        ev[at[("f", 0, 16, 0)]].append(lambda: (a.wait(vm=t_st[0]), fill.extend(self.ln2_stats(vST, vAUG, vR2))))

        t_aug = [0]

        def aug_build():
            fill.extend([
                f"v_cvt_pk_bf16_f32 {v(vU + 4)}, {v(vU)}, {v(vU + 1)}",
                f"v_lshlrev_b32 {v(vU + 5)}, 16, {v(vU + 4)}",
                f"v_and_b32 {v(vU + 6)}, 0xffff0000, {v(vU + 4)}",
                f"v_sub_f32 {v(vU + 5)}, {v(vU)}, {v(vU + 5)}",
                f"v_sub_f32 {v(vU + 6)}, {v(vU + 1)}, {v(vU + 6)}",
                f"v_cvt_pk_bf16_f32 {v(vU + 5)}, {v(vU + 5)}, {v(vU + 6)}",
                f"v_perm_b32 {v(vU + 8)}, {v(vU + 5)}, {v(vU + 4)}, {s(sHD)}",
                f"v_perm_b32 {v(vU + 10)}, {v(vU + 4)}, {v(vU + 5)}, {s(sP1 + 1)}",
                f"v_cndmask_b32 {v(vU + 8)}, 0, {v(vU + 8)}, {s(sMASK, 2)}",
                f"v_cndmask_b32 {v(vU + 9)}, 0, {v(vU + 4)}, {s(sMASK, 2)}",
                f"v_cndmask_b32 {v(vU + 10)}, 0, {v(vU + 10)}, {s(sMASK, 2)}",
                f"v_mov_b32 {v(vU + 11)}, 0"])

        ev[at[("f", 1, 0, 1)]].append(aug_build)

        def aug_write():
            assert not fill
            t_aug[0] = a.lg(f"ds_write_b128 {v(vAGA)}, {v(vU + 8, 4)}")

        ev[at[("f", 1, 1, 3)]].append(aug_write)
        gt = {}

        def aug_read():
            a.wait(lg=t_aug[0])
            a("s_barrier")
            for q in range(4):
                if q:
                    a(f"v_xor_b32 v8, {q << 10}, {v(vAGA)}")
                gt[q] = a.lg(f"ds_read_b128 {v(vTB + 4 * q, 4)}, {v(8 if q else vAGA)}")

        ev[at[("f", 1, KA - 1, 0)]].append(aug_read)

        t_h = {}

        def epilogue(rt):
            ops = []
            for q in range(4):
                b, oq = acc + 64 * rt + 16 * q, vH + 4 * q
                for r in range(8):
                    ops.append(f"v_max_f32 {v(b + r)}, 0, {v(b + r)}")
                    ops.append(f"v_mul_f32 {v(b + 8 + r)}, {v(vR2 + rt)}, {v(b + 8 + r)}")
                for r in range(8):
                    ops.append(f"v_mul_f32 {v(b + r)}, {v(b + r)}, {v(b + 8 + r)}")
                for j in range(4):
                    ops.append(f"v_cvt_pk_bf16_f32 {v(oq + j)}, {v(b + 2 * j)}, {v(b + 2 * j + 1)}")
                ops.append(f"s_xor_b32 {s(sT1)}, {s(sT3)}, {q << 10}\n"
                           f"buffer_store_dwordx4 {v(oq, 4)}, {v(vL16)}, {srd(SWS)}, {s(sT1)} offen{self.st('h')}")
            ops.append(lambda: t_h.__setitem__(rt, a.vm_n))
            ops.append(f"s_add_u32 {s(sT3)}, {s(sT3)}, {HT_B}")
            fill.extend(ops)

        def flag(rt):
            assert rt in t_h
            a.wait(vm=t_h[rt])
            a("s_mov_b64 exec, 1")
            a(f"buffer_store_dword v11, v10, {srd(SWS)}, {s(sGB)} offen offset:{512 * rt}{self.st('f')}")
            a("s_mov_b64 exec, -1")

        t_p = {}

        def poll_text(rt):
            return f"buffer_load_dword v9, {v(vFA)}, {srd(SWS)}, {s(sGB)} offen offset:{512 * rt} sc1"

        def poll_check(rt):
            L = a.label("hw")
            a.wait(vm=t_p[rt])
            a(f"v_cmp_ne_u32 vcc, {s(sTAG)}, v9")
            a(f"s_cbranch_vccnz {L}")
            a(f"{L}_back:")
            self.tail.append([f"{L}:", f"s_mov_b32 {s(sSPIN)}, 0", f"{L}_spin:", poll_text(rt),
                              f"s_add_u32 {s(sSPIN)}, {s(sSPIN)}, 1", f"s_cmp_gt_u32 {s(sSPIN)}, {SPIN_MAX}",
                              "s_cbranch_scc1 L_abort", "s_waitcnt vmcnt(0)", f"v_cmp_ne_u32 vcc, {s(sTAG)}, v9",
                              f"s_cbranch_vccnz {L}_spin", f"s_branch {L}_back"])

        nE0 = at[("f", 1, KA + 1, 0)]
        nF0 = at[("f", 1, o.get("kf0", 18), 0)]
        nP0 = at[("f", 1, o.get("kp0", 22), 0)]
        nC0 = at[("f", 1, o.get("kc0", 25), 0)]
        nE1 = at[("d", 0, 1, 0)]
        nF1 = at[("d", 0, o.get("jf1", 16), 0)]
        nP1 = at[("d", 0, o.get("jp1", 21), 0)]
        nC1 = at[("d", 0, o.get("jc1", 24), 0)]
        for rt, (nE, nF, nP, nC) in enumerate(((nE0, nF0, nP0, nC0), (nE1, nF1, nP1, nC1))):
            ev[nE].append(lambda rt=rt: epilogue(rt))
            ev[nF].append(lambda rt=rt: flag(rt))
            post[nP].append(lambda rt=rt: t_p.__setitem__(rt, a.vm(poll_text(rt))))
            ev[nC].append(lambda rt=rt: poll_check(rt))

        ht, hr = {}, {}

        def ldH(n):
            if n == 28:
                a(f"s_add_u32 {s(sT6)}, {s(sT6)}, {HT_B - 24 * 1024}")
            elif n % 28 and n % 28 % 4 == 0:
                a(f"s_add_u32 {s(sT6)}, {s(sT6)}, 4096")
            ht[n] = a.vm(f"buffer_load_dwordx4 {R(hr[n])}, {v(vL16)}, {srd(SWS)}, {s(sT6)} offen offset:{(n % 28 % 4) * 1024} sc1")

        HL = o.get("hlook", 12)
        prev = nC0 - 1
        for n in range(56):
            rt, j = divmod(n, 28)
            use0, use1 = at[("d", rt, j, 0)], at[("d", rt, j, 1)]
            want = max(prev + 1, use0 - 2 * HL, nC1 if rt else nC0)
            while True:
                key = alloc(want, use1)
                if key:
                    break
                want += 1
                assert want < use0 - 1, (n, want, use0)
            hr[n] = key
            prev = want
            post[want].append(lambda n=n: ldH(n))

        def red_write(rt):
            return [f"ds_write_b128 v8, {v(acc + 32 * rt + 4 * i, 4)} offset:{32768 * rt + 1024 * i}" for i in range(8)]

        def red_finish(rt):
            t0, ops, tk = 96, [], {}
            for w in range(4):
                for i in range(2):
                    ops.append(lambda w=w, i=i: tk.__setitem__(w, a.lg(
                        f"ds_read_b128 {v(t0 + 8 * w + 4 * i, 4)}, v9 offset:{32768 * rt + 8192 * w + 1024 * i}")))
            for j in range(4):
                ops.append(f"v_lshlrev_b32 {v(136 + 2 * j)}, 16, {v(vX2 + 4 * rt + j)}")
                ops.append(f"v_and_b32 {v(137 + 2 * j)}, 0xffff0000, {v(vX2 + 4 * rt + j)}")
            ops.append(lambda: a.wait(lg=tk[1]))
            ops += [f"v_add_f32 {v(t0 + r)}, {v(t0 + r)}, {v(t0 + 8 + r)}" for r in range(8)]
            ops.append(lambda: a.wait(lg=tk[3]))
            ops += [f"v_add_f32 {v(t0 + 16 + r)}, {v(t0 + 16 + r)}, {v(t0 + 24 + r)}" for r in range(8)]
            ops += [f"v_add_f32 {v(t0 + r)}, {v(t0 + r)}, {v(t0 + 16 + r)}" for r in range(8)]
            ops += [f"v_fma_f32 {v(t0 + r)}, {v(t0 + r)}, {v(128 + r)}, {v(136 + r)}" for r in range(8)]
            ops += [f"v_cvt_pk_bf16_f32 {v(144 + 4 * rt + j)}, {v(t0 + 2 * j)}, {v(t0 + 2 * j + 1)}" for j in range(4)]
            ops.append(f"buffer_store_dwordx4 {v(144 + 4 * rt, 4)}, v3, {srd(SOUT)}, {s(sXCC)} offen{' sc1' if o.get('out_sc1') else ''}")
            ops.append(f"s_add_u32 {s(sXCC)}, {s(sXCC)}, {TILE_B}")
            return ops

        def red_setup():
            assert not fill
            a("s_barrier")
            fill.extend([f"s_lshl_b32 {s(sT0)}, {s(sW)}, 13", f"v_add_u32 v8, {s(sT0)}, {v(vL16)}",
                         f"s_lshl_b32 {s(sT0)}, {s(sCH)}, 12", f"s_lshl_b32 {s(sT1)}, {s(sRT)}, 11",
                         f"s_add_u32 {s(sT0)}, {s(sT0)}, {s(sT1)}", f"v_add_u32 v9, {s(sT0)}, {v(vL16)}"])
            for j in range(4):
                fill.extend([f"v_lshlrev_b32 {v(128 + 2 * j)}, 16, {v(vGBP + j)}",
                             f"v_and_b32 {v(129 + 2 * j)}, 0xffff0000, {v(vGBP + j)}"])

        ev[at[("d", 1, 0, 0)]].append(red_setup)
        t_rw = [0]
        for i in range(8):
            post[at[("d", 1, 4 + i, 0)]].append(lambda i=i: t_rw.__setitem__(0, a.lg(red_write(0)[i])))
        ev[at[("d", 1, 14, 0)]].append(lambda: (a.wait(lg=t_rw[0]), a("s_barrier"), fill.extend(red_finish(0))))

        fsteps = [n for n, st in enumerate(steps) if st[0] == "f"]
        LOOK = o.get("look4", 6)
        wt, wslot = {}, {n: vW + 4 * (i % NSW) for i, n in enumerate(fsteps)}

        def rdW(i):
            n = fsteps[i]
            _, rt, k, q = steps[n]
            wt[n] = self.tr2(("v", wslot[n]), vTQ + q, k * 2048)
            if rt == 0 and q == 0 and k >= K0:
                rdT(k)

        for i in range(LOOK):
            rdW(i)
        nf = 0
        stamps = {at[("f", 0, 8, 0)]: 22, at[("f", 1, 0, 0)]: 21, at[("d", 0, 0, 0)]: 23, at[("d", 1, 0, 0)]: 24}
        for n, (kind, rt, k, q) in enumerate(steps):
            if n in stamps:
                self.stamp(stamps[n])
            for f in ev[n]:
                f()
            if kind == "f":
                if nf + LOOK < len(fsteps):
                    rdW(nf + LOOK)
                nf += 1
                d = v(acc + 64 * rt + 16 * q, 16)
                a.wait(vm=yt[28 * rt + k], lg=wt[n])
                a(f"v_mfma_f32_32x32x16_bf16 {d}, {v(wslot[n], 4)}, {R(yr[28 * rt + k])}, {d if k else 0}")
            elif kind == "u":
                a.wait(lg=ut[k])
                mfmaU(k, v(wslot[n - 1], 4))
            elif kind == "g":
                d = v(acc + 64 * rt + 16 * q, 16)
                a.wait(lg=gt[q])
                a(f"v_mfma_f32_32x32x16_bf16 {d}, {v(vTB + 4 * q, 4)}, {v(vAUG + 4 * rt, 4)}, {d}")
            else:
                d = v(acc + 32 * rt + 16 * q, 16)
                a.wait(vm=ht[28 * rt + k], lg=wd_tr_t[k])
                a(f"v_mfma_f32_32x32x16_bf16 {d}, {a_(8 * k + 4 * q, 4)}, {R(hr[28 * rt + k])}, {d if k else 0}")
            for f in post[n]:
                f()
            budget = o.get("fill5", 5) if kind == "d" else (o.get("fill4", 3) if not post[n] else o.get("fill4b", 2))
            while fill and budget:
                f = fill.pop(0)
                if callable(f):
                    f()
                else:
                    a(f)
                    budget -= 1
        assert not fill
        self.stamp(18)
        for t in red_write(1):
            a(t)
        a.wait_all(vm=False)
        a("s_barrier")
        for f in red_finish(1):
            f() if callable(f) else a(f)
        self.stamp(19)

    def p45_setup(self, vSTA, vPD, vFA):
        a = self.a
        self.w_dma_pattern(vPD, 8, 896)
        a(f"s_lshl_b32 {s(sT0)}, {s(sCB)}, 7")
        a(f"s_mul_i32 {s(sT1)}, {s(sW)}, {448 * 896}")
        a(f"s_add_u32 {s(sT4)}, {s(sT0)}, {s(sT1)}")
        a(f"s_mul_i32 {s(sTQ)}, {s(sW)}, {2 * TILE_B}")
        a(f"s_add_u32 {s(sTQ)}, {s(sTQ)}, {s(sGB)}")
        a(f"s_add_u32 {s(sTQ)}, {s(sTQ)}, {YO}")
        a(f"v_and_b32 {v(vSTA)}, 0x1f0, {v(vL16)}")
        a(f"v_lshrrev_b32 {v(vSTA)}, 1, {v(vSTA)}")
        a("v_mul_u32_u24 v8, 14336, v4")
        a(f"v_add_u32 {v(vSTA)}, {v(vSTA)}, v8")
        a(f"s_lshl_b32 {s(sT1)}, {s(sW)}, 9")
        a(f"s_add_u32 {s(sT1)}, {s(sT1)}, {s(sGB)}")
        a(f"s_add_u32 {s(sKVL)}, {s(sT1)}, {STO}")
        a(f"s_mov_b32 {s(sP1)}, 0x01000100")
        a(f"s_mov_b32 {s(sP1 + 1)}, 0x07060302")
        a(f"s_mov_b32 {s(sHD)}, 0x05040100")
        a(f"s_mov_b32 {s(sT2)}, 0xffff")
        a(f"s_mov_b32 {s(sMASK)}, -1")
        a(f"s_mov_b32 {s(sMASK + 1)}, 0")
        a(f"s_mul_i32 {s(sT3)}, {s(sW)}, {2 * HT_B + 1024}")
        a(f"s_add_u32 {s(sT3)}, {s(sT3)}, {s(sGB)}")
        a(f"s_lshl_b32 {s(sT1)}, {s(sM)}, 12")
        a(f"s_add_u32 {s(sT3)}, {s(sT3)}, {s(sT1)}")
        a(f"s_add_u32 {s(sT3)}, {s(sT3)}, {HO}")
        a(f"s_mul_i32 {s(sT6)}, {s(sRQ)}, {2 * HT_B}")
        a(f"s_mul_i32 {s(sT1)}, {s(sW)}, {28 * 1024}")
        a(f"s_add_u32 {s(sT6)}, {s(sT6)}, {s(sT1)}")
        a(f"s_add_u32 {s(sT6)}, {s(sT6)}, {s(sGB)}")
        a(f"s_add_u32 {s(sT6)}, {s(sT6)}, {HO}")
        a(f"v_min_u32 {v(vFA)}, 96, {v(vL16)}")
        a(f"s_mul_i32 {s(sT0)}, {s(sW)}, 112")
        a(f"s_lshl_b32 {s(sT1)}, {s(sRQ)}, 2")
        a(f"s_add_u32 {s(sT0)}, {s(sT0)}, {s(sT1)}")
        a(f"s_add_u32 {s(sT0)}, {s(sT0)}, {LFO + 3 * 512}")
        a(f"v_add_u32 {v(vFA)}, {s(sT0)}, {v(vFA)}")
        a(f"s_mul_i32 {s(sT0)}, {s(sRT)}, {TILE_B - 32}")
        a(f"s_sub_u32 {s(sXCC)}, {s(sXCC)}, {s(sT0)}")

    def ln2_stats(self, vST, vAUG, vR2):
        ops = []
        for rt in range(2):
            b = vST + 14 * rt
            for p in range(1, 7):
                ops += [f"v_add_f32 {v(b)}, {v(b)}, {v(b + 2 * p)}", f"v_add_f32 {v(b + 1)}, {v(b + 1)}, {v(b + 2 * p + 1)}"]
            ops += [f"v_mov_b32 {v(b + 2)}, {v(b)}", f"v_mov_b32 {v(b + 3)}, {v(b + 1)}",
                    f"v_permlane32_swap_b32 {v(b + 2)}, {v(b)}", f"v_permlane32_swap_b32 {v(b + 3)}, {v(b + 1)}",
                    f"v_add_f32 {v(b)}, {v(b)}, {v(b + 2)}", f"v_add_f32 {v(b + 1)}, {v(b + 1)}, {v(b + 3)}",
                    f"v_mul_f32 {v(b)}, {f2u(-1 / 448):#x}, {v(b)}",
                    f"v_mul_f32 {v(b + 1)}, {f2u(1 / 448):#x}, {v(b + 1)}",
                    f"v_fma_f32 {v(b + 1)}, -{v(b)}, {v(b)}, {v(b + 1)}",
                    f"v_max_f32 {v(b + 1)}, 0, {v(b + 1)}",
                    f"v_add_f32 {v(b + 1)}, {f2u(1e-5):#x}, {v(b + 1)}",
                    f"v_rcp_f32 {v(vR2 + rt)}, {v(b + 1)}",
                    f"v_sqrt_f32 {v(b + 1)}, {v(b + 1)}",
                    f"v_cvt_pk_bf16_f32 {v(b + 2)}, {v(b)}, {v(b + 1)}",
                    f"v_lshlrev_b32 {v(b + 3)}, 16, {v(b + 2)}",
                    f"v_and_b32 {v(b + 4)}, 0xffff0000, {v(b + 2)}",
                    f"v_sub_f32 {v(b + 3)}, {v(b)}, {v(b + 3)}",
                    f"v_sub_f32 {v(b + 4)}, {v(b + 1)}, {v(b + 4)}",
                    f"v_cvt_pk_bf16_f32 {v(b + 3)}, {v(b + 3)}, {v(b + 4)}",
                    f"v_perm_b32 {v(vAUG + 4 * rt)}, {v(b + 2)}, {v(b + 2)}, {s(sP1)}",
                    f"v_bfi_b32 {v(vAUG + 4 * rt + 1)}, {s(sT2)}, {v(b + 3)}, {v(b + 2)}",
                    f"v_perm_b32 {v(vAUG + 4 * rt + 2)}, {v(b + 3)}, {v(b + 2)}, {s(sP1 + 1)}",
                    f"v_mov_b32 {v(vAUG + 4 * rt + 3)}, 0"]
        return ops

    def helper_tail(self):
        a = self.a
        a("L_helper_tail:")
        a.vm_done, a.lg_done = a.vm_n, a.lg_n
        if self.o.get("hmall", 1):
            row0 = 16 * self.o.get("n_att", 16)
            per = -(-(448 - row0) * 28 // 128)
            a(f"v_lshlrev_b32 v8, 3, {v(vL16)}")
            a(f"s_sub_u32 {s(sT0)}, s2, 224")
            a(f"s_lshl_b32 {s(sT0)}, {s(sT0)}, 2")
            a(f"s_add_u32 {s(sT0)}, {s(sT0)}, {s(sW)}")
            a(f"s_mul_i32 {s(sT1)}, {s(sT0)}, {per * 128}")
            a(f"s_add_u32 {s(sT1)}, {s(sT1)}, {row0 * 3584}")
            a(f"s_mul_i32 {s(sT0)}, {s(sT0)}, {98 * 128}")
            assert 32 < per <= 64
            a(f"s_mov_b32 exec_hi, {(1 << (per - 32)) - 1:#x}")
            self.touch(8, SWG, sT1)
            self.touch(8, SWU, sT1)
            a("s_mov_b32 exec_hi, 0x1ffff")
            self.touch(8, SWD, sT0)
            a(f"s_add_u32 {s(sT0)}, {s(sT0)}, {49 * 128}")
            self.touch(8, SWD, sT0)
            a("s_mov_b64 exec, -1")
        if self.o.get("touch_h", 1):
            a(f"v_lshlrev_b32 v8, 3, {v(vL16)}")
            a(f"s_sub_u32 {s(sT0)}, {s(sM)}, 28")
            a(f"s_lshl_b32 {s(sT0)}, {s(sT0)}, 2")
            a(f"s_add_u32 {s(sT0)}, {s(sT0)}, {s(sW)}")
            a(f"s_lshl_b32 {s(sT0)}, {s(sT0)}, 13")
            a(f"s_add_u32 {s(sT0)}, {s(sT0)}, {s(sGB)}")
            a(f"s_add_u32 {s(sT0)}, {s(sT0)}, 0xA8000")
            for i in range(2):
                self.touch(8, SWS, sT0)
                a(f"s_add_u32 {s(sT0)}, {s(sT0)}, {16 * 8192}")
        if self.o.get("hl2", 1):
            a(f"s_sub_u32 {s(sT2)}, {s(sM)}, 28")
            a(f"s_lshl_b32 {s(sT2)}, {s(sT2)}, 2")
            a(f"s_add_u32 {s(sT2)}, {s(sT2)}, {s(sW)}")
            a(f"v_lshlrev_b32 v8, 3, {v(vL16)}")
            row0 = 16 * self.o.get("n_att", 16)
            nins = -(-(448 - row0) * 28 // (64 * 16))
            a(f"s_lshl_b32 {s(sT0)}, {s(sT2)}, 13")
            a(f"s_add_u32 {s(sT0)}, {s(sT0)}, {row0 * 3584}")
            for i in range(nins if self.o.get("hl2_gu", 0) else 0):
                self.touch(8, SWG, sT0)
                self.touch(8, SWU, sT0)
                a(f"s_add_u32 {s(sT0)}, {s(sT0)}, {16 * 8192}")
                a("s_waitcnt vmcnt(2)")
            a(f"s_and_b32 {s(sT0)}, {s(sT2)}, 3")
            a(f"s_mul_i32 {s(sT0)}, {s(sT0)}, {448 * 896}")
            a(f"s_lshr_b32 {s(sT1)}, {s(sT2)}, 2")
            a(f"s_mul_i32 {s(sT1)}, {s(sT1)}, {8 * 896}")
            a(f"s_add_u32 {s(sT0)}, {s(sT0)}, {s(sT1)}")
            a("s_mov_b32 exec_hi, 0x00ffffff")
            for i in range(14 if self.o.get("hl2_d", 1) else 0):
                self.touch(8, SWD, sT0)
                a(f"s_add_u32 {s(sT0)}, {s(sT0)}, {32 * 896}")
                a("s_waitcnt vmcnt(2)")
            a("s_mov_b64 exec, -1")
        if self.o.get("wb", 0) and self.stop is None:
            a(f"s_cmp_lg_u32 {s(sM)}, 28")
            a("s_cbranch_scc1 L_end")
            a(f"s_cmp_lg_u32 {s(sW)}, 0")
            a("s_cbranch_scc1 L_end")
            self.poll_local(self.o.get("wb_phase", 4), 28, 8)
            a("buffer_wbl2 sc1")
            a.wait_all()
        self.finish()

    def body(self, slow):
        self.slow = slow
        a = self.a
        if slow:
            a("L_p1_slow:")
        a.vm_done, a.lg_done = a.vm_n, a.lg_n
        self.p1_gemm()
        self.p2()
        if self.stop == 2:
            return self.finish()
        self.p3()
        if self.stop == 3:
            return self.finish()
        self.p45()
        self.finish()

    def flush_tail(self):
        for blk in self.tail:
            for t in blk:
                self.a(t)
        self.tail = []

    def build(self):
        a = self.a
        self.entry()
        self.p1_front()
        self.body(False)
        self.helper()
        self.helper_tail()
        self.flush_tail()
        a("L_abort:")
        a("s_mov_b64 exec, -1")
        a("L_end:")
        if self.prof:
            a(f"s_lshl_b32 {s(sT0)}, s2, 2")
            a(f"s_add_u32 {s(sT0)}, {s(sT0)}, {s(sW)}")
            a(f"s_lshl_b32 {s(sT0)}, {s(sT0)}, 8")
            a(f"s_add_u32 {s(sT0)}, {s(sT0)}, {PROF}")
            a("s_waitcnt vmcnt(0)")
            self.stamp(20)
            a(f"v_lshrrev_b32 v8, 2, {v(vL16)}")
            a(f"buffer_store_dword {v(vSTAMP)}, v8, {srd(SWS)}, {s(sT0)} offen")
        if self.o.get("diag_cycles"):
            a(f"s_mov_b32 {s(sT0)}, {self.o['diag_cycles'] // 1024}")
            a("L_diag:")
            for i in range(256):
                a(f"v_fma_f32 v{8 + i % 16}, v8, v9, v10")
            a(f"s_sub_u32 {s(sT0)}, {s(sT0)}, 1")
            a(f"s_cmp_lg_u32 {s(sT0)}, 0")
            a("s_cbranch_scc1 L_diag")
        if self.o.get("diag_wall"):
            a("L_diag:")
            a(f"s_memrealtime {s(sST, 2)}")
            a("s_waitcnt lgkmcnt(0)")
            a(f"s_sub_u32 {s(sT0)}, {s(sST)}, s43")
            a(f"s_cmp_lt_u32 {s(sT0)}, {self.o['diag_wall']}")
            a("s_cbranch_scc1 L_diag")
        a("L_exit:")
        a("s_endpgm")
        a("L_fast_end:")
        self.body(True)
        self.flush_tail()
        a("s_endpgm")
        return a.text()


HEADER = """; Fused adaLN block: x + ga*Attn(LN(x)*(1+ca)+sa), then + gb*ReGLU-FFN(LN(.)*(1+cb)+sb); one persistent launch.
; per-launch value derived from ws[0]. Each group checks at run time (HW_REG_XCC_ID) that its members share a die;
; @launch grid=(256,1,1) block=(256,1,1) lds={lds}
.amdgcn_target "amdgcn-amd-amdhsa--gfx950"
.text
.globl {k}
.p2align 8
.type {k},@function
{k}:
"""
FOOTER = """
.section .rodata,"a"
.p2align 6
.amdhsa_kernel {k}
  .amdhsa_next_free_vgpr 512
  .amdhsa_next_free_sgpr 102
  .amdhsa_accum_offset 256
  .amdhsa_group_segment_fixed_size 0
  .amdhsa_kernarg_size 96
  .amdhsa_user_sgpr_count 2
  .amdhsa_user_sgpr_kernarg_segment_ptr 1
  .amdhsa_system_sgpr_workgroup_id_x 1
  .amdhsa_float_denorm_mode_32 3
.end_amdhsa_kernel
"""


def generate(prof=False, stop=None, opts=None):
    g = Gen(prof, stop, opts)
    body = g.build()
    return HEADER.format(k=KNAME, lds=LDS_BYTES) + body + FOOTER.format(k=KNAME), g


if __name__ == "__main__":
    out = sys.argv[1] if len(sys.argv) > 1 else f"cdna_kernels/{NAME}.s"
    opts = dict(kv.split("=") for kv in sys.argv[2:])
    opts = {k: int(x) for k, x in opts.items()}
    text, g = generate(prof=bool(opts.pop("prof", 0)), stop=opts.pop("stop", None), opts=opts)
    open(out, "w").write(text)
    print("wrote", out, len(text), "bytes;", len(g.a.ins), "lines;", g.a.nops, "hazard nops")
```

```python
import sys
from asmlib import Asm, v, a_, s

NAME = "adaLN_cond__sliding_block__glu_gated_reglu__prompt"
KNAME = NAME + "_kernel"

TILE_B = 28672
HT_B = 114688
QO, KO, VO, OO, YO, HO, STO, LFO = 0, 0x38000, 0x70000, 0, 0xE0000, 0, 0x118000, 0x11F000
XCCO, MODO, CFO, RFO, PROF = 0x400, 0x1000, 0x4000, 0x8000, 0x100000
WS_BYTES = 0x1200000
OOB = 0x7F000000
SPIN_MAX = 1 << 18

LA, LB, LC, LD = 0, 57344, 114688, 159744
LDS_BYTES = 163840
L_KV = LC
L_XB = LC
L_X2 = LC + 16384
L_AUG = LC + 40960
L_T2 = LD
L_F = LC

SX, SWQKV, SWO, SWG, SWU, SWD, SOUT, SWS, SWMOD, SC = 4, 8, 12, 16, 20, 24, 28, 32, 36, 40
sG, sM, sW, sTAG, sGB, sRQ, sCB, sXCC, sSPIN = 44, 45, 46, 47, 48, 49, 50, 51, 52
sT0, sT1, sT2, sT3, sT4, sT5, sT6, sT7 = 53, 54, 55, 56, 57, 58, 59, 60
sRT, sCH, sTILE = 61, 62, 63
sHD, sB, sWS0, sMISS, sTQ, sKVL, sWSRC, sWO = 36, 37, 38, 39, 40, 41, 42, 43
sMASK = 64
sST = 96
sP0, sP1 = 98, 100

vL16, vSTAMP = 1, 7
vZ = 32
vX2, vGBP = 240, 248

QSCALE = 28 ** -0.5 * 1.4426950408889634


def f2u(x):
    import struct
    return struct.unpack("<I", struct.pack("<f", x))[0]


def srd(i):
    return s(i, 4)


class Gen:
    def __init__(self, prof=False, stop=None, opts=None):
        self.a = Asm()
        self.prof = prof
        self.stop = stop
        self.o = opts or {}
        self.tail = []
        self.slow = False

    def stamp(self, i):
        if not self.prof:
            return
        only = self.o.get("stamps")
        if only is not None and i != 20 and not (only >> i) & 1:
            return
        a = self.a
        if i == 20:
            a(f"s_memrealtime {s(sST, 2)}")
            a.wait_all(vm=False)
            a(f"v_writelane_b32 {v(vSTAMP)}, {s(sST)}, {i}")
        a(f"s_mem{'real' if self.o.get('rt') else ''}time {s(sST, 2)}")
        a.wait_all(vm=False)
        a(f"v_writelane_b32 {v(vSTAMP)}, {s(sST)}, {32 + i}")

    def dma(self, vaddr, sr, lds_base, lds_off, src_base, src_off, sc1=False, imm=0):
        a = self.a
        lo = lds_off - imm
        if lds_base is None:
            a(f"s_mov_b32 m0, {lo}")
        else:
            a(f"s_add_u32 m0, {s(lds_base)}, {lo}" if lo >= 0 else f"s_sub_u32 m0, {s(lds_base)}, {-lo}")
        if src_off:
            a(f"s_add_u32 {s(sT7)}, {s(src_base)}, {src_off}")
            so = sT7
        else:
            so = src_base
        return a.vm(f"buffer_load_dwordx4 {v(vaddr)}, {srd(sr)}, {s(so)} offen"
                    + (f" offset:{imm}" if imm else "") + (" sc1" if sc1 else "") + " lds")

    def st(self, what=None):
        return " sc1" if self.slow or self.o.get("sc_" + str(what)) else ""

    def poll(self, loads, tagregs, exec_lo=None, exec_hi=None, preloaded=False):
        a = self.a
        L = a.label("poll")
        if exec_lo is not None:
            a(f"s_mov_b32 exec_lo, {exec_lo:#x}")
        if exec_hi is not None:
            a(f"s_mov_b32 exec_hi, {exec_hi:#x}")
        a(f"s_mov_b32 {s(sSPIN)}, 0")
        if not preloaded:
            for t in loads:
                a(t)
        a(f"{L}:")
        a.wait_all(lg=False)
        t0, rest = tagregs[0], list(tagregs[1:])
        if len(tagregs) > 2:
            acc = 255
            a(f"v_xor_b32 {v(acc)}, {s(sTAG)}, {v(t0)}")
            for r in rest:
                a(f"v_bitop3_b32 {v(acc)}, {v(acc)}, {v(r)}, {s(sTAG)} bitop3:0xf6")
            a(f"v_cmp_ne_u32 vcc, 0, {v(acc)}")
        else:
            a(f"v_cmp_ne_u32 vcc, {s(sTAG)}, {v(t0)}")
            for r in rest:
                a(f"v_cmp_ne_u32 {s(sP0, 2)}, {s(sTAG)}, {v(r)}")
                a(f"s_or_b64 vcc, vcc, {s(sP0, 2)}")
        a(f"s_cbranch_vccnz {L}_again")
        if exec_lo is not None or exec_hi is not None:
            a("s_mov_b64 exec, -1")
        self.tail.append([f"{L}_again:"] + list(loads) +
                         [f"s_add_u32 {s(sSPIN)}, {s(sSPIN)}, 1", f"s_cmp_gt_u32 {s(sSPIN)}, {SPIN_MAX}",
                          f"s_cbranch_scc0 {L}", "s_branch L_abort"])

    def check_tags(self, loads, tagregs):
        a = self.a
        L = a.label("chk")
        chk = [f"v_xor_b32 v255, {s(sTAG)}, {v(tagregs[0])}"]
        chk += [f"v_bitop3_b32 v255, v255, {v(r)}, {s(sTAG)} bitop3:0xf6" for r in tagregs[1:]]
        chk += ["v_cmp_ne_u32 vcc, 0, v255"]
        for t in chk:
            a(t)
        a(f"s_cbranch_vccnz {L}")
        a(f"{L}_back:")
        self.tail.append([f"{L}:", f"s_mov_b32 {s(sSPIN)}, 0", f"{L}_spin:"] + list(loads) +
                         [f"s_add_u32 {s(sSPIN)}, {s(sSPIN)}, 1", f"s_cmp_gt_u32 {s(sSPIN)}, {SPIN_MAX}",
                          "s_cbranch_scc1 L_abort", "s_waitcnt vmcnt(0)"] + chk +
                         [f"s_cbranch_vccnz {L}_spin", f"s_branch {L}_back"])

    def local_flag(self, phase, vt, ticket=None):
        a = self.a
        a(f"s_lshl_b32 {s(sT0)}, {s(sM)}, 4")
        a(f"s_lshl_b32 {s(sT1)}, {s(sW)}, 2")
        a(f"s_add_u32 {s(sT0)}, {s(sT0)}, {s(sT1)}")
        a(f"s_add_u32 {s(sT0)}, {s(sT0)}, {LFO + phase * 512}")
        a(f"v_mov_b32 {v(vt)}, {s(sT0)}")
        a(f"v_mov_b32 {v(vt + 1)}, {s(sTAG)}")
        if ticket is None:
            a.wait_all(lg=False)
        else:
            a.wait(vm=ticket)
        a("s_mov_b64 exec, 1")
        a(f"buffer_store_dword {v(vt + 1)}, {v(vt)}, {srd(SWS)}, {s(sGB)} offen{self.st('f')}")
        a("s_mov_b64 exec, -1")

    def poll_local(self, phase, nprod, vt):
        a = self.a
        a(f"v_lshrrev_b32 {v(vt)}, 1, {v(vL16)}")
        a(f"s_add_u32 {s(sT0)}, {s(sGB)}, {LFO + phase * 512}")
        self.poll([f"buffer_load_dwordx2 {v(vt + 2, 2)}, {v(vt)}, {srd(SWS)}, {s(sT0)} offen sc1"], [vt + 2, vt + 3],
                  exec_hi=None if nprod == 32 else 0x00FFFFFF)

    def tr_pattern(self, vd, vt, perm, ct_sgpr=None, ct_imm=0):
        a = self.a
        a(f"v_lshrrev_b32 {v(vt)}, 4, {v(vL16)}")
        a(f"v_bfe_u32 {v(vt + 1)}, {v(vt)}, 2, 2")
        a(f"v_lshrrev_b32 {v(vt + 2)}, 5, {v(vt)}")
        a(f"v_lshl_add_u32 {v(vt + 2)}, {v(vt + 2)}, 3, {v(vt + 1)}")
        a(f"v_lshlrev_b32 {v(vd)}, 7, {v(vt + 2)}")
        a(f"v_lshrrev_b32 {v(vt + 1)}, 1, {v(vt + 1)}")
        a(f"v_lshlrev_b32 {v(vt + 1)}, 6, {v(vt + 1)}")
        if perm:
            a(f"v_and_b32 {v(vt + 2)}, 1, {v(vt)}")
            a(f"v_lshlrev_b32 {v(vt + 2)}, 4, {v(vt + 2)}")
            a(f"v_xor_b32 {v(vt + 1)}, {v(vt + 1)}, {v(vt + 2)}")
            a(f"v_and_b32 {v(vt + 2)}, 2, {v(vt)}")
            a(f"v_lshlrev_b32 {v(vt + 2)}, 2, {v(vt + 2)}")
        else:
            a(f"v_and_b32 {v(vt + 2)}, 3, {v(vt)}")
            a(f"v_lshlrev_b32 {v(vt + 2)}, 3, {v(vt + 2)}")
        a(f"v_xor_b32 {v(vt + 1)}, {v(vt + 1)}, {v(vt + 2)}")
        a(f"v_and_b32 {v(vt + 2)}, 16, {v(vt)}")
        a(f"v_lshlrev_b32 {v(vt + 2)}, 1, {v(vt + 2)}")
        a(f"v_xor_b32 {v(vt + 1)}, {v(vt + 1)}, {v(vt + 2)}")
        if ct_sgpr is not None:
            a(f"s_lshl_b32 {s(sT0)}, {s(ct_sgpr)}, 6")
            a(f"v_xor_b32 {v(vt + 1)}, {s(sT0)}, {v(vt + 1)}")
        elif ct_imm:
            a(f"v_xor_b32 {v(vt + 1)}, {ct_imm * 64}, {v(vt + 1)}")
        a(f"v_add_u32 {v(vd)}, {v(vd)}, {v(vt + 1)}")

    def w_dma_pattern(self, vd, vt, stride, up=False):
        a = self.a
        a(f"v_lshrrev_b32 {v(vt)}, 7, {v(vL16)}")
        a(f"v_mul_u32_u24 {v(vd)}, {stride}, {v(vt)}")
        a(f"v_and_b32 {v(vt)}, 2, {v(vt)}")
        a(f"v_lshlrev_b32 {v(vt)}, 5, {v(vt)}")
        a(f"v_and_b32 {v(vt + 1)}, 0x70, {v(vL16)}")
        a(f"v_xor_b32 {v(vt)}, {v(vt)}, {v(vt + 1)}")
        if up:
            a(f"v_xor_b32 {v(vt)}, 32, {v(vt)}")
        a(f"v_add_u32 {v(vd)}, {v(vd)}, {v(vt)}")

    def tr2(self, dst, vaddr, off):
        f = v if dst[0] == "v" else a_
        self.a.lg(f"ds_read_b64_tr_b16 {f(dst[1], 2)}, {v(vaddr)} offset:{off}")
        return self.a.lg(f"ds_read_b64_tr_b16 {f(dst[1] + 2, 2)}, {v(vaddr)} offset:{off + 512}")

    def both_halves(self, vx, vt, op):
        a = self.a
        a(f"v_mov_b32 {v(vt)}, {v(vx)}")
        a(f"v_permlane32_swap_b32 {v(vt)}, {v(vx)}")
        a(f"{op} {v(vx)}, {v(vx)}, {v(vt)}")

    def finish(self):
        self.a("s_branch L_end")

    def entry(self):
        a = self.a
        KA = 64
        self.ptr = {SX: 0, SWQKV: 1, SWO: 2, SWG: 4, SWU: 5, SWD: 6, SC: 7, SWMOD: 8, SOUT: 9, SWS: 11}
        self.size = {SX: 2048 * 896, SWQKV: 448 * 2688, SWO: 448 * 896, SWG: 448 * 3584, SWU: 448 * 3584,
                     SWD: 1792 * 896, SOUT: 2048 * 896, SWS: WS_BYTES, SWMOD: 448 * 5376, SC: 896}
        a(f"s_load_dwordx16 {s(KA, 16)}, s[0:1], 0")
        a(f"s_load_dwordx8 {s(KA + 16, 8)}, s[0:1], 64")
        a("s_lshr_b32 s3, s2, 8")
        a("s_cbranch_scc1 L_exit")
        if self.prof or self.o.get("diag_wall"):
            a(f"v_mov_b32 {v(vSTAMP)}, 0")
            a(f"s_memrealtime {s(sST, 2)}")
        a("v_lshrrev_b32 v2, 6, v0")
        a("v_and_b32 v3, 63, v0")
        a(f"v_readfirstlane_b32 {s(sW)}, v2")
        a(f"s_getpc_b64 {s(sP0, 2)}")
        a("L_pc:")
        a(f"s_lshr_b32 {s(sM)}, s2, 3")
        a(f"s_lshl2_add_u32 {s(sT0)}, {s(sM)}, {s(sW)}")
        a(f"s_lshl_b32 {s(sT0)}, {s(sT0)}, 9")
        a(f"v_lshl_add_u32 v4, v3, 7, {s(sT0)}")
        a("v_min_u32 v4, L_fast_end-L_pc-4, v4")
        a("s_mov_b64 exec, 15")
        a.vm(f"global_load_dword {a_(255)}, v4, {s(sP0, 2)}")
        a("s_mov_b64 exec, -1")
        a(f"v_lshlrev_b32 {v(vL16)}, 4, v3")
        a(f"s_and_b32 {s(sG)}, s2, 7")
        a(f"s_mul_i32 {s(sRQ)}, {s(sM)}, 37")
        a(f"s_lshr_b32 {s(sRQ)}, {s(sRQ)}, 8")
        a(f"s_cmp_ge_u32 {s(sM)}, 28")
        a("s_cbranch_scc1 L_helper0")

    def make_srd(self, *rs):
        for r in rs:
            self.a(f"s_mov_b64 {s(r, 2)}, {s(64 + 2 * self.ptr[r], 2)}")
            self.a(f"s_mov_b32 {s(r + 2)}, {self.size[r]:#x}")
            self.a(f"s_mov_b32 {s(r + 3)}, 0x20000")

    def first_stamp(self):
        a = self.a
        if self.prof:
            a(f"v_writelane_b32 {v(vSTAMP)}, {s(sST)}, 0")
            a(f"s_mem{'real' if self.o.get('rt') else ''}time {s(sST, 2)}")
            a("s_waitcnt lgkmcnt(0)")
            a(f"v_writelane_b32 {v(vSTAMP)}, {s(sST)}, 32")
        if self.o.get("diag_wall"):
            a(f"s_mov_b32 s101, {s(sST)}")

    def common_setup(self, done):
        a = self.a
        self.make_srd(*[r for r in (SWS, SX, SWQKV, SWO, SWG, SWU, SWD, SOUT) if r not in done])
        a(f"s_load_dword {s(sTAG)}, {s(SWS, 2)}, 0")
        a(f"s_getreg_b32 {s(sXCC)}, hwreg(HW_REG_XCC_ID, 0, 4)")
        a(f"s_add_u32 {s(sGB)}, {s(sG)}, 1")
        a(f"s_lshl_b32 {s(sGB)}, {s(sGB)}, 21")
        a(f"s_mul_i32 {s(sT0)}, {s(sRQ)}, 7")
        a(f"s_sub_u32 {s(sCB)}, {s(sM)}, {s(sT0)}")
        a(f"s_lshr_b32 {s(sRT)}, {s(sW)}, 1")
        a(f"s_and_b32 {s(sCH)}, {s(sW)}, 1")
        a(f"s_lshl1_add_u32 {s(sTILE)}, {s(sRQ)}, {s(sRT)}")

    def warm0(self):
        a = self.a
        a(f"s_lshl2_add_u32 s3, s2, {s(sW)}")
        a("v_lshlrev_b32 v4, 7, v3")
        a(f"s_lshr_b32 {s(sT3)}, s3, 1")
        a(f"s_and_b32 {s(sT1)}, s3, 1")
        a(f"s_mul_i32 {s(sT1)}, {s(sT1)}, 896")
        a(f"s_mul_i32 {s(sT0)}, {s(sT3)}, 5376")
        a(f"s_add_u32 {s(sT0)}, {s(sT0)}, {s(sT1)}")
        a(f"s_mul_i32 {s(sT3)}, {s(sT3)}, 2688")
        a(f"s_add_u32 {s(sT1)}, {s(sT1)}, {s(sT3)}")
        a(f"s_and_b32 {s(sT3)}, s3, 511")
        a(f"s_lshl_b32 {s(sT3)}, {s(sT3)}, 7")
        a("s_mov_b64 exec, 0x7f")
        if self.o.get("warm0", 1) & 1:
            a(f"buffer_load_dword {a_(255)}, v4, {srd(SWMOD)}, {s(sT0)} offen")
        a(f"buffer_load_dword {a_(255)}, v4, {srd(SWQKV)}, {s(sT1)} offen offset:896")
        a("s_mov_b64 exec, 1")
        a(f"buffer_load_dword {a_(255)}, v4, {srd(SWS)}, {s(sT3)} offen")
        a("s_mov_b64 exec, -1")

    def touch(self, vaddr, sr, soff, lanes=64):
        a = self.a
        if lanes < 64:
            a(f"s_mov_b64 exec, {(1 << lanes) - 1:#x}")
        t = a.vm(f"buffer_load_dword {a_(255)}, {v(vaddr)}, {srd(sr)}, {s(soff)} offen")
        if lanes < 64:
            a("s_mov_b64 exec, -1")
        return t

    def make_tag_and_publish_xcc(self, vt):
        a = self.a
        a.wait_all(vm=False)
        a(f"s_mul_i32 {s(sTAG)}, {s(sTAG)}, 1664525")
        a(f"s_add_u32 {s(sTAG)}, {s(sTAG)}, 1013904223")
        a(f"s_lshl_b32 {s(sT0)}, {s(sG)}, 8")
        a(f"s_lshl_b32 {s(sT1)}, {s(sM)}, 3")
        a(f"s_add_u32 {s(sT0)}, {s(sT0)}, {s(sT1)}")
        a(f"v_mov_b32 {v(vt)}, {s(sXCC)}")
        a(f"v_mov_b32 {v(vt + 1)}, {s(sTAG)}")
        a(f"v_mov_b32 {v(vt + 2)}, {XCCO}")
        a(f"s_cmp_eq_u32 {s(sW)}, 0")
        a("s_cselect_b64 exec, 1, 0")
        a.vm(f"buffer_store_dwordx2 {v(vt, 2)}, {v(vt + 2)}, {srd(SWS)}, {s(sT0)} offen sc1")
        a("s_mov_b64 exec, -1")

    def xcc_load(self, vaddr, vd):
        a = self.a
        a(f"v_and_b32 {v(vaddr)}, 0x1f0, {v(vL16)}")
        a(f"v_lshrrev_b32 {v(vaddr)}, 1, {v(vaddr)}")
        a(f"s_lshl_b32 {s(sT6)}, {s(sG)}, 8")
        return f"buffer_load_dwordx2 {v(vd, 2)}, {v(vaddr)}, {srd(SWS)}, {s(sT6)} offen offset:{XCCO} sc1"

    def choose_mode(self, vd, slow_label):
        a = self.a
        a(f"v_cmp_ne_u32 vcc, {s(sXCC)}, {v(vd)}")
        if self.o.get("force_slow"):
            a(f"s_branch {slow_label}")
        else:
            a(f"s_cbranch_vccnz {slow_label}")

    def p1_front(self):
        a = self.a
        vPW, vRAW, vS, vQ2 = 6, 160, 224, 240
        a(f"v_mov_b32 v5, {OOB}")
        a("v_cmp_gt_u32 vcc, 56, v3")
        a(f"s_lshl2_add_u32 {s(sT2)}, {s(sG)}, {s(sRQ)}")
        a(f"s_lshl2_add_u32 {s(sT2)}, {s(sT2)}, {s(sW)}")
        a(f"s_mul_i32 {s(sT2)}, {s(sT2)}, {16 * 896}")
        a(f"v_cndmask_b32 v5, v5, {v(vL16)}, vcc")
        a(f"s_mul_i32 {s(sT0)}, {s(sRQ)}, 7")
        a(f"s_sub_u32 {s(sCB)}, {s(sM)}, {s(sT0)}")
        a(f"s_lshl_b32 {s(sT0)}, {s(sCB)}, 7")
        a("v_mul_u32_u24 v4, 896, v3")
        a(f"s_add_u32 {s(sT0)}, {s(sT0)}, {s(sT2)}")
        a("s_waitcnt lgkmcnt(0)")
        self.first_stamp()
        self.make_srd(SX)
        if self.o.get("xt", 1):
            a("s_mov_b64 exec, 0xffff")
            a(f"buffer_load_dword {a_(255)}, v4, {srd(SX)}, {s(sT0)} offen")
            a("s_mov_b64 exec, -1")
        tx = []

        def ldx():
            r = len(tx)
            if r < 16:
                if r and r % 4 == 0:
                    a(f"s_add_u32 {s(sT2)}, {s(sT2)}, {4 * 896}")
                tx.append(a.vm(f"buffer_load_dwordx4 {v(vRAW + 4 * r, 4)}, v5, {srd(SX)}, {s(sT2)} offen offset:{(r % 4) * 896}"))

        xf = self.o.get("x_first", 8)
        for r in range(self.o.get("x_pre", 4)):
            ldx()
        self.make_srd(SWMOD, SWQKV, SWS)
        if self.o.get("warm0", 1):
            self.warm0()
        while len(tx) < xf:
            ldx()
        self.stamp(28)
        a("s_branch L_front")
        self.helper_first_loads()
        a("L_front:")
        self.common_setup((SX, SWQKV, SWS))
        self.w_dma_pattern(vPW, 8, 2688)
        a(f"s_mul_i32 {s(sT0)}, {s(sW)}, {8 * 2688}")
        a(f"s_lshl_b32 {s(sT1)}, {s(sCB)}, 7")
        a(f"s_add_u32 {s(sT4)}, {s(sT0)}, {s(sT1)}")
        a(f"s_lshl_b32 {s(sT5)}, {s(sW)}, 10")
        self.tr_pattern(2, 8, True, ct_sgpr=sCH)
        self.tr_pattern(4, 8, False, ct_sgpr=sCH)
        a(f"v_add_u32 v3, {LC}, v4")
        a(f"v_add_u32 v2, {LB}, v2")
        self.w1_prepare()
        a(f"s_mul_i32 {s(sT0)}, {s(sRT)}, {TILE_B}")
        a(f"s_lshl_b32 {s(sT1)}, {s(sCH)}, 8")
        a(f"s_add_u32 {s(sT1)}, {s(sT1)}, {s(sT0)}")
        a(f"v_lshlrev_b32 v16, 5, {v(vL16)}")
        a(f"v_and_b32 v12, 0x70, {v(vL16)}")
        a(f"v_add3_u32 v16, v16, v12, {s(sT1)}")
        a(f"v_cmp_gt_u32 vcc, 896, {v(vL16)}")
        a("v_mov_b32 v12, 0x100000")
        a("v_cndmask_b32 v16, v12, v16, vcc")
        for r in range(1, 8):
            a(f"v_xor_b32 {v(16 + r)}, {16 * r}, v16")
        a(f"v_lshrrev_b32 v12, 9, {v(vL16)}")
        a("v_lshlrev_b32 v12, 4, v12")
        a(f"v_xor_b32 v12, v12, {v(vL16)}")
        a(f"v_add_u32 v8, {s(sT0)}, v12")
        for q in range(1, 4):
            a(f"v_xor_b32 {v(8 + q)}, {32 * q}, v8")
        a(f"v_min_u32 v30, 880, {v(vL16)}")
        a("v_lshlrev_b32 v30, 1, v30")
        xl = self.xcc_load(31, 14)
        wq = [(sT5, LA + i * 4096, sT4, 1792 + (12 + i) * 32 * 2688) for i in range(2)]
        for i in range(14):
            wq.append((sT5, LB + i * 4096, sT4, 896 + i * 32 * 2688))
            if i < 12:
                wq.append((sT5, LC + i * 4096, sT4, 1792 + i * 32 * 2688))
        n_early = self.o.get("n_early", 28)
        wt = []

        def wdma(n=1):
            for _ in range(n):
                if len(tx) < 16:
                    ldx()
                elif wq and (len(wt) < n_early or n == 99):
                    lb, lo, sb, so = wq.pop(0)
                    wt.append(self.dma(vPW, SWQKV, lb, lo, sb, so))

        a("s_mov_b32 s36, 0xffff0000")
        a("s_mov_b32 s37, 0x3f803f80")
        self.stamp(29)
        for r in range(16):
            a.wait(vm=tx[r])
            if r == 0:
                self.stamp(1)
            if r == self.o.get("tag_r", 6):
                self.make_tag_and_publish_xcc(12)
            if r == self.o.get("mq_r", 9) and self.o.get("mq", 1):
                a("s_mov_b64 exec, 15")
                a(f"buffer_load_dword {a_(255)}, v29, {srd(SWQKV)}, 0 offen")
                a(f"buffer_load_dword {a_(255)}, v28, {srd(SWO)}, 0 offen")
                R = self.o.get("pf_rows", 0)
                if R and self.o.get("pf_mall", 1):
                    a(f"s_mov_b64 exec, {(1 << (R // 32)) - 1}")
                    a(f"buffer_load_dword {a_(255)}, v253, {srd(SWG)}, 0 offen")
                    a(f"buffer_load_dword {a_(255)}, v253, {srd(SWU)}, 0 offen")
                a("s_mov_b64 exec, -1")
            raw, z = vRAW + 4 * r, vZ + 8 * r
            for j in range(4):
                a(f"v_dot2_f32_bf16 {v(vS + r)}, {v(raw + j)}, s37, {v(vS + r) if j else 0}")
                a(f"v_dot2_f32_bf16 {v(vQ2 + r)}, {v(raw + j)}, {v(raw + j)}, {v(vQ2 + r) if j else 0}")
                a(f"v_lshlrev_b32 {v(z + 2 * j)}, 16, {v(raw + j)}")
                a(f"v_and_b32 {v(z + 2 * j + 1)}, s36, {v(raw + j)}")
                if j == 0 or (j == 2 and r < self.o.get("x_fast", 6)):
                    wdma(1)
        self.stamp(30)
        for i in range(16):
            a(f"v_permlane32_swap_b32 {v(vS + i)}, {v(vQ2 + i)}")
        wdma(1)
        for i in range(16):
            a(f"v_add_f32 {v(vS + i)}, {v(vS + i)}, {v(vQ2 + i)}")
        wdma(1)
        for i in range(8):
            a(f"v_permlane16_swap_b32 {v(vS + i)}, {v(vS + 8 + i)}")
        for i in range(8):
            a(f"v_add_f32 {v(vS + i)}, {v(vS + i)}, {v(vS + 8 + i)}")
        wdma(1)
        for sh in (8, 4, 2, 1):
            for i in range(8):
                a(f"v_add_f32_dpp {v(vS + i)}, {v(vS + i)}, {v(vS + i)} row_ror:{sh} row_mask:0xf bank_mask:0xf")
            if sh in (4, 1):
                wdma(1)
        a(f"s_mov_b32 {s(sP0)}, 0x02020202")
        a(f"s_mov_b32 {s(sP0 + 1)}, {s(sP0)}")
        for j in range(1, 8):
            a(f"v_cndmask_b32 {v(vS)}, {v(vS)}, {v(vS + j)}, {s(sP0, 2)}")
            a(f"s_lshl_b64 {s(sP0, 2)}, {s(sP0, 2)}, 1")
        wdma(1)
        a(f"v_mov_b32 v12, {v(vS)}")
        a(f"v_permlane32_swap_b32 v12, {v(vS)}")
        a(f"v_mul_f32 v12, {f2u(1 / 448):#x}, v12")
        a(f"v_mul_f32 v13, {f2u(1 / 448):#x}, {v(vS)}")
        a("v_fma_f32 v13, -v12, v12, v13")
        a("v_max_f32 v13, 0, v13")
        a(f"v_add_f32 v13, {f2u(1e-5):#x}, v13")
        a("v_rsq_f32 v13, v13")
        a("v_mul_f32 v12, v12, v13")
        a("v_sub_f32 v12, 0, v12")
        wdma(1)
        for r in range(16):
            ln = 16 * (r >> 3) + (r & 7)
            a(f"v_readlane_b32 {s(sMASK + 2 * r)}, v13, {ln}")
            a(f"v_readlane_b32 {s(sMASK + 2 * r + 1)}, v12, {ln}")
            if r % 8 == 7:
                wdma(1)
        g0 = vRAW
        a(f"s_mov_b32 {s(sT0)}, {MODO}")
        loads = [f"buffer_load_dwordx4 {v(g0 + 4 * i, 4)}, v30, {srd(SWS)}, {s(sT0)} offen offset:{(i >> 1) * 1792 + (i & 1) * 16} sc1"
                 for i in range(4)] + [xl]
        tags = [g0 + 2 * i + 1 for i in range(8)] + [15]
        wdma(28)
        for t in loads:
            a(t)
        a.wait(vm=wt[1])
        a("s_barrier")
        for k in range(4):
            self.tr2(("a", 4 * k), 4, k * 2048)
        for r in range(16):
            p = s(sMASK + 2 * r, 2)
            for j in range(4):
                z = v(vZ + 8 * r + 2 * j, 2)
                a(f"v_pk_fma_f32 {z}, {z}, {p}, {p} op_sel:[0,0,1] op_sel_hi:[1,0,1]")
        a.wait_all(vm=False)
        a("s_barrier")
        self.stamp(2)
        self.poll(loads, tags, preloaded=True)
        self.stamp(3)
        early_touch = not wq
        if early_touch:
            self.w1_touch()
        vG, vB = g0 + 16, g0 + 24
        for j in range(4):
            a(f"v_lshlrev_b32 {v(vG + 2 * j)}, 16, {v(g0 + 8 + 2 * j)}")
            a(f"v_and_b32 {v(vG + 2 * j + 1)}, 0xffff0000, {v(g0 + 8 + 2 * j)}")
            a(f"v_lshlrev_b32 {v(vB + 2 * j)}, 16, {v(g0 + 2 * j)}")
            a(f"v_and_b32 {v(vB + 2 * j + 1)}, 0xffff0000, {v(g0 + 2 * j)}")
        for j in range(8):
            a(f"v_add_f32 {v(vG + j)}, 1.0, {v(vG + j)}")
        for j in range(4):
            a(f"v_cvt_pk_bf16_f32 {v(g0 + j)}, {v(vG + 2 * j)}, {v(vG + 2 * j + 1)}")
        for j in range(4):
            a(f"v_lshlrev_b32 {v(vG + 2 * j)}, 16, {v(g0 + j)}")
            a(f"v_and_b32 {v(vG + 2 * j + 1)}, 0xffff0000, {v(g0 + j)}")
        for r in range(16):
            z = vZ + 8 * r
            for j in range(4):
                a(f"v_pk_fma_f32 {v(z + 2 * j, 2)}, {v(z + 2 * j, 2)}, {v(vG + 2 * j, 2)}, {v(vB + 2 * j, 2)}")
            for j in range(4):
                a(f"v_cvt_pk_bf16_f32 {v(z + j)}, {v(z + 2 * j)}, {v(z + 2 * j + 1)}")
            a(f"ds_write_b128 {v(16 + (r & 7))}, {v(z, 4)} offset:{(r >> 3) * 128}")
            if wq:
                lb, lo, sb, so = wq.pop(0)
                self.t_wlate = self.dma(vPW, SWQKV, lb, lo, sb, so)
        self.n_after = a.vm_n
        if not early_touch:
            self.w1_touch()
        self.n_after = 63 if early_touch else a.vm_n - self.n_after
        a.wait_all(vm=False)
        a("s_barrier")
        self.stamp(26)
        self.choose_mode(14, "L_p1_slow")

    def w1_prepare(self):
        a = self.a
        a(f"v_lshrrev_b32 v24, 4, {v(vL16)}")
        a(f"s_lshl_b32 {s(sT0)}, {s(sRQ)}, 2")
        a(f"s_add_u32 {s(sT0)}, {s(sT0)}, {s(sW)}")
        a(f"s_mul_i32 {s(sT0)}, {s(sT0)}, 28")
        a(f"v_add_u32 v25, {s(sT0)}, v24")
        a("v_mul_u32_u24 v26, 2688, v25")
        a("v_mul_u32_u24 v25, 896, v25")
        a(f"s_lshl_b32 s3, {s(sCB)}, 7")
        a(f"s_mul_i32 {s(sT0)}, {s(sTILE)}, {TILE_B}")
        a(f"s_add_u32 {s(sT0)}, {s(sT0)}, {s(sGB)}")
        a(f"s_lshl_b32 {s(sT1)}, {s(sCB)}, 1")
        a(f"s_add_u32 {s(sT1)}, {s(sT1)}, {s(sCH)}")
        a(f"s_lshl_b32 {s(sT1)}, {s(sT1)}, 11")
        a(f"s_add_u32 {s(sT0)}, {s(sT0)}, {s(sT1)}")
        a(f"v_lshl_add_u32 v27, v24, 7, {s(sT0)}")
        a(f"s_lshl2_add_u32 {s(sT1)}, s2, {s(sW)}")
        a(f"s_lshr_b32 {s(sT0)}, {s(sT1)}, 1")
        a(f"s_and_b32 {s(sT1)}, {s(sT1)}, 1")
        a(f"s_mul_i32 {s(sT1)}, {s(sT1)}, 384")
        a(f"v_lshl_add_u32 v28, v24, 7, {s(sT1)}")
        a(f"s_mul_i32 {s(sT1)}, {s(sT0)}, 2688")
        a(f"v_add_u32 v29, {s(sT1)}, v28")
        a(f"s_mul_i32 {s(sT1)}, {s(sT0)}, 896")
        a(f"v_add_u32 v28, {s(sT1)}, v28")
        R = self.o.get("pf_rows", 0)
        if R:
            a(f"s_lshl2_add_u32 {s(sT1)}, s2, {s(sW)}")
            a(f"s_mul_i32 {s(sT1)}, {s(sT1)}, {R // 32 * 128}")
            a(f"v_lshl_add_u32 v253, v24, 7, {s(sT1)}")
            a(f"s_mul_i32 {s(sT0)}, {s(sW)}, {R // 4 * 3584}")
            a(f"s_lshl_b32 {s(sT1)}, {s(sM)}, 7")
            a(f"s_add_u32 s38, {s(sT0)}, {s(sT1)}")
            a("v_mul_u32_u24 v24, 3584, v24")

    def w1_touch(self):
        a = self.a
        if self.o.get("pf_qo", 1):
            a("s_mov_b64 exec, 0x0fffffff")
            a(f"buffer_load_dword {a_(255)}, v26, {srd(SWQKV)}, s3 offen")
            a(f"buffer_load_dword {a_(255)}, v25, {srd(SWO)}, s3 offen")
            a("s_mov_b64 exec, -1")
        if self.o.get("touch_q", 1):
            a("s_mov_b64 exec, 0xffff")
            a(f"buffer_load_dword {a_(255)}, v27, {srd(SWS)}, 0 offen")
            a("s_mov_b64 exec, -1")
        R = self.o.get("pf_rows", 0)
        if R:
            m = (1 << (R // 4)) - 1
            a(f"s_mov_b32 exec_lo, {m & 0xffffffff:#x}")
            a(f"s_mov_b32 exec_hi, {m >> 32:#x}")
            a(f"buffer_load_dword {a_(255)}, v24, {srd(SWG)}, s38 offen")
            a(f"buffer_load_dword {a_(255)}, v24, {srd(SWU)}, s38 offen")
            a("s_mov_b64 exec, -1")

    def p1_gemm(self):
        a = self.a
        vTK, vTV, vPW = 2, 3, 6
        vH1, cK, cV, cQ, vW = 32, 144, 160, 176, 192
        ht, wt = {}, {}

        def rdH(k):
            ht[k] = a.lg(f"ds_read_b128 {v(vH1 + 4 * k, 4)}, {v(8 + (k & 3))} offset:{k * 1024}")

        def rdW(kind, k):
            if kind == "v" and k >= 24:
                wt[(kind, k)] = (a_(4 * (k - 24), 4), 0)
                return
            slot = vW + 4 * ((2 * k + (kind == "v")) % 16)
            wt[(kind, k)] = (v(slot, 4), self.tr2(("v", slot), vTK if kind == "k" else vTV, k * 2048))

        def store_addresses():
            a(f"s_mul_i32 {s(sT0)}, {s(sTILE)}, {TILE_B}")
            a(f"s_lshl_b32 {s(sT1)}, {s(sCB)}, 1")
            a(f"s_add_u32 {s(sT1)}, {s(sT1)}, {s(sCH)}")
            a(f"s_lshl_b32 {s(sT2)}, {s(sT1)}, 11")
            a(f"s_add_u32 {s(sT2)}, {s(sT2)}, {s(sT0)}")
            a(f"s_lshl_b32 {s(sT1)}, {s(sT1)}, 9")
            a(f"s_add_u32 {s(sT1)}, {s(sT1)}, {s(sT0)}")
            a(f"s_add_u32 {s(sT2)}, {s(sT2)}, {s(sGB)}")
            a(f"s_add_u32 {s(sT3)}, {s(sT2)}, {KO}")
            a(f"s_add_u32 {s(sT1)}, {s(sT1)}, {s(sGB)}")
            a(f"s_add_u32 {s(sT0)}, {s(sT1)}, {VO}")
            a(f"v_lshrrev_b32 v4, 9, {v(vL16)}")
            a("v_mul_u32_u24 v4, 7168, v4")
            a(f"v_and_b32 v5, 0x1f0, {v(vL16)}")
            a("v_add_u32 v4, v4, v5")
            a("v_add_u32 v5, 14336, v4")
            a(f"v_subrev_u32 v31, {LB - LA}, {v(vTK)}")
            self.w_dma_pattern(30, 24, 896)
            a(f"s_mul_i32 {s(sWO)}, {s(sW)}, {8 * 896}")
            a(f"s_lshl_b32 {s(sT6)}, {s(sCB)}, 7")
            a(f"s_add_u32 {s(sWO)}, {s(sWO)}, {s(sT6)}")

        fill = self.capture(store_addresses)
        LOOK = 2
        hn = [0]

        def moreH(n):
            for _ in range(n):
                if hn[0] < 28:
                    rdH(hn[0])
                    hn[0] += 1

        wqn = [0]

        def wq_dma():
            if wqn[0] < 14:
                self.t_wq = self.dma(vPW, SWQKV, sT5, LA + wqn[0] * 4096, sT4, wqn[0] * 32 * 2688)
                wqn[0] += 1

        for k in range(LOOK):
            moreH(1); rdW("k", k); rdW("v", k)
        for k in range(28):
            h = v(vH1 + 4 * k, 4)
            if k == 14:
                a.wait(lg=ht[27])
                a(f"s_waitcnt vmcnt({self.n_after})")
                a("s_barrier")
            moreH(1)
            if k + LOOK < 28:
                rdW("k", k + LOOK)
            reg, t = wt[("k", k)]
            a.wait(lg=max(t, ht[k]))
            a(f"v_mfma_f32_32x32x16_bf16 {v(cK, 16)}, {reg}, {h}, {v(cK, 16) if k else 0}")
            moreH(1)
            if k + LOOK < 28:
                rdW("v", k + LOOK)
            if k >= 14 and k % 2 == 0:
                wq_dma()
            reg, t = wt[("v", k)]
            a.wait(lg=t)
            a(f"v_mfma_f32_32x32x16_bf16 {v(cV, 16)}, {h}, {reg}, {v(cV, 16) if k else 0}")
            if k >= 14:
                wq_dma()
            if k >= 16 or k < 4:
                for _ in range(2):
                    if fill:
                        a(fill.pop(0))
        assert not fill and wqn[0] == 14

        def pack(acc, b):
            for j in range(4):
                a(f"v_cvt_pk_bf16_f32 {v(acc + 8 * b + j)}, {v(acc + 8 * b + 2 * j)}, {v(acc + 8 * b + 2 * j + 1)}")
            return v(acc + 8 * b, 4)

        for b in range(2):
            a.vm(f"buffer_store_dwordx4 {pack(cK, b)}, {v(vL16)}, {srd(SWS)}, {s(sT3)} offen offset:{b * 1024} sc1")
        for b in range(2):
            t_kv = a.vm(f"buffer_store_dwordx4 {pack(cV, b)}, {v(4 + b)}, {srd(SWS)}, {s(sT0)} offen sc1")
        a.wait(vm=self.t_wq)
        a("s_barrier")
        self.stamp(4)

        def rdQ(k):
            slot = vW + 4 * (k % 8)
            wt[("q", k)] = (v(slot, 4), self.tr2(("v", slot), 31, k * 2048))

        for k in range(4):
            rdQ(k)
        fill = [f"s_lshl_b32 s3, {s(sG)}, 5", f"s_add_u32 s3, s3, {s(sM)}", "s_lshl_b32 s3, s3, 7",
                f"v_mov_b32 v10, {RFO}", f"v_mov_b32 v11, {s(sTAG)}"]
        fill += self.capture(self.p2_setup)
        early = self.p3_early_loads()
        fill += [g for g in early if not g.startswith("buffer_")]
        self.early = [g for g in early if g.startswith("buffer_")]
        kf = self.o.get("kvf", 24)
        won = [0]

        def wo_dma():
            if won[0] < 14:
                self.dma(6, SWO, sT5, LB + won[0] * 4096, sWO, won[0] * 32 * 896)
                won[0] += 1

        def kv_flag():
            a.wait(vm=t_kv)
            a("s_barrier")
            a(f"s_cmp_eq_u32 {s(sW)}, 0")
            a("s_cselect_b64 exec, 1, 0")
            a.vm(f"buffer_store_dword v11, v10, {srd(SWS)}, s3 offen sc1")
            a("s_mov_b64 exec, -1")

        a("v_mov_b32 v6, v30")
        for k in range(28):
            if k == kf:
                kv_flag()
            if k + 4 < 28:
                rdQ(k + 4)
            reg, t = wt[("q", k + 1 if k % 2 == 0 else k)]
            a.wait(lg=t)
            reg, t = wt[("q", k)]
            a(f"v_mfma_f32_32x32x16_bf16 {v(cQ, 16)}, {reg}, {v(vH1 + 4 * k, 4)}, {v(cQ, 16) if k else 0}")
            if (k % 4 == 1 and won[0] < self.o.get("wo0", 5)) or k > kf:
                wo_dma()
            else:
                for _ in range(self.o.get("fillq", 4)):
                    if fill:
                        a(fill.pop(0))
        a(f"s_mov_b32 {s(sT3)}, {f2u(QSCALE):#x}")
        for _ in range(8):
            if fill:
                a(fill.pop(0))
        for r in range(16):
            a(f"v_mul_f32 {v(cQ + r)}, {s(sT3)}, {v(cQ + r)}")
        for b in range(2):
            t_q = a.vm(f"buffer_store_dwordx4 {pack(cQ, b)}, {v(vL16)}, {srd(SWS)}, {s(sT2)} offen offset:{b * 1024}{self.st('q')}")
        if kf >= 28:
            kv_flag()
        self.stamp(5)
        while won[0] < 14:
            wo_dma()
        for g in fill:
            a(g)
        self.local_flag(0, 8, ticket=t_q)
        self.ones_prefill()
        self.tr_pattern(2, 8, True)
        a(f"s_mul_i32 {s(sT0)}, {s(sCH)}, {14 * 2048}")
        a(f"s_add_u32 {s(sT0)}, {s(sT0)}, {LB}")
        a(f"v_add_u32 v2, {s(sT0)}, v2")
        self.stamp(27)

    def capture(self, fn):
        n = len(self.a.ins)
        fn()
        lines = []
        for i in self.a.ins[n:]:
            assert i.kind in ("valu", "salu", "trans")
            if i.op.startswith("s_cselect"):
                lines[-1] += "\n" + i.text
            else:
                lines.append(i.text)
        del self.a.ins[n:]
        return lines

    def helper_first_loads(self):
        a = self.a
        n0 = a.vm_n
        sJ = sT4
        a("L_helper0:")
        a("v_min_u32 v8, 223, v0")
        a("v_lshlrev_b32 v8, 2, v8")
        a(f"s_lshl_b32 {s(sJ)}, {s(sG)}, 2")
        a(f"s_add_u32 {s(sJ)}, {s(sJ)}, {s(sM)}")
        a(f"s_sub_u32 {s(sJ)}, {s(sJ)}, 28")
        a("v_lshrrev_b32 v10, 2, v3")
        a("v_mul_u32_u24 v10, 5376, v10")
        a(f"v_and_b32 v11, 48, {v(vL16)}")
        a("v_add_u32 v5, v10, v11")
        a(f"s_mul_i32 {s(sT0)}, {s(sW)}, {16 * 5376}")
        a(f"s_lshl_b32 {s(sT1)}, {s(sJ)}, 6")
        a(f"s_add_u32 {s(sT0)}, {s(sT0)}, {s(sT1)}")
        a(f"s_cmp_lt_u32 {s(sJ)}, 28")
        a(f"s_cselect_b32 {s(sT0)}, {s(sT0)}, {OOB}")
        a(f"s_lshl_b32 {s(sT5)}, {s(sW)}, 10")
        a(f"s_mov_b32 {s(sT2)}, {s(sT5)}")
        a(f"s_add_u32 {s(sT3)}, {s(sT2)}, {7 * 4096}")
        a("s_waitcnt lgkmcnt(0)")
        self.first_stamp()
        self.make_srd(SC, SWMOD)
        a(f"buffer_load_dword v9, v8, {srd(SC)}, 0 offen")
        a("L_mdma:")
        a(f"s_mov_b32 m0, {s(sT2)}")
        a(f"s_add_u32 {s(sT2)}, {s(sT2)}, 4096")
        a(f"buffer_load_dwordx4 v5, {srd(SWMOD)}, {s(sT0)} offen lds")
        a(f"s_add_u32 {s(sT0)}, {s(sT0)}, {64 * 5376}")
        a(f"s_cmp_lg_u32 {s(sT2)}, {s(sT3)}")
        a("s_cbranch_scc1 L_mdma")
        a("s_branch L_helper")
        a.vm_n = n0

    def mod_job(self, vaddr, step, half, dst):
        a = self.a
        tk = []
        for k in range(14):
            a.lg(f"ds_read_b64_tr_b16 {v(36 + 8 * k, 2)}, {v(vaddr)} offset:{k * step}")
            tk.append(a.lg(f"ds_read_b64_tr_b16 {v(38 + 8 * k, 2)}, {v(vaddr)} offset:{k * step + half}"))
            if k >= 4:
                a.wait(lg=tk[k - 4])
                kk = k - 4
                a(f"v_mfma_f32_16x16x32_bf16 v[16:19], {v(32 + 8 * kk, 4)}, {v(36 + 8 * kk, 4)}, {'v[16:19]' if kk else 0}")
        for kk in range(10, 14):
            a.wait(lg=tk[kk])
            a(f"v_mfma_f32_16x16x32_bf16 v[16:19], {v(32 + 8 * kk, 4)}, {v(36 + 8 * kk, 4)}, v[16:19]")
        a("v_mov_b32_dpp v17, v16 quad_perm:[1,0,3,2] row_mask:0xf bank_mask:0xf")
        a("v_cvt_pk_bf16_f32 v20, v16, v17")
        a("s_mov_b64 exec, 0x5555")
        a(f"buffer_store_dwordx2 v[20:21], v4, {srd(SWS)}, {s(dst)} offen sc1")
        a("s_mov_b64 exec, -1")

    def group_prefetch(self, srds, lo, iters):
        a = self.a
        if not iters:
            return
        L = a.label("gp")
        a(f"v_lshlrev_b32 v8, 3, {v(vL16)}")
        a(f"s_sub_u32 {s(sT2)}, {s(sM)}, 28")
        a(f"s_lshl_b32 {s(sT2)}, {s(sT2)}, 2")
        a(f"s_add_u32 {s(sT2)}, {s(sT2)}, {s(sW)}")
        a(f"s_lshl_b32 {s(sT2)}, {s(sT2)}, 13")
        a(f"s_add_u32 {s(sT2)}, {s(sT2)}, {lo}")
        a(f"s_mul_i32 {s(sT0)}, {s(sG)}, {iters}")
        a(f"s_lshr_b32 {s(sT0)}, {s(sT0)}, 3")
        a(f"s_mov_b32 {s(sT3)}, {iters}")
        a(f"{L}:")
        a(f"s_lshl_b32 {s(sT1)}, {s(sT0)}, 17")
        a(f"s_add_u32 {s(sT1)}, {s(sT1)}, {s(sT2)}")
        for sr in srds:
            self.touch(8, sr, sT1)
        a(f"s_add_u32 {s(sT0)}, {s(sT0)}, 1")
        a(f"s_cmp_eq_u32 {s(sT0)}, {iters}")
        a(f"s_cselect_b32 {s(sT0)}, 0, {s(sT0)}")
        a(f"s_waitcnt vmcnt({len(srds)})")
        a(f"s_sub_u32 {s(sT3)}, {s(sT3)}, 1")
        a(f"s_cmp_lg_u32 {s(sT3)}, 0")
        a(f"s_cbranch_scc1 {L}")

    def helper(self):
        a = self.a
        a("L_helper:")
        a.vm_done = a.vm_n
        a.lg_done = a.lg_n
        sJ = sT4
        self.common_setup(())
        self.make_tag_and_publish_xcc(20)
        a("s_waitcnt vmcnt(8)")
        a("v_lshlrev_b32 v10, 16, v9")
        a("v_and_b32 v11, 0xffff0000, v9")
        for r in (10, 11):
            a(f"v_mul_f32 {v(r + 2)}, {f2u(-1.4426950408889634):#x}, {v(r)}")
        for r in (12, 13):
            a(f"v_exp_f32 {v(r)}, {v(r)}")
        for r in (12, 13):
            a(f"v_add_f32 {v(r)}, 1.0, {v(r)}")
        for r in (12, 13):
            a(f"v_rcp_f32 {v(r)}, {v(r)}")
        for r in (10, 11):
            a(f"v_mul_f32 {v(r)}, {v(r)}, {v(r + 2)}")
        a("v_cvt_pk_bf16_f32 v10, v10, v11")
        a(f"v_add_u32 v8, {LD}, v8")
        a("ds_write_b32 v8, v10")
        a("v_bfe_u32 v11, v3, 2, 2")
        a("v_lshrrev_b32 v12, 4, v3")
        a("v_lshl_add_u32 v13, v12, 3, v11")
        a("v_lshlrev_b32 v2, 7, v13")
        a("v_lshlrev_b32 v5, 6, v13")
        a("v_lshrrev_b32 v11, 1, v11")
        a("v_lshlrev_b32 v11, 6, v11")
        a("v_and_b32 v13, 3, v3")
        a("v_lshlrev_b32 v13, 3, v13")
        a(f"s_lshl_b32 {s(sT0)}, {s(sCH)}, 5")
        a(f"v_add3_u32 v5, v5, v13, {s(sT0)}")
        a("v_xor_b32 v11, v11, v13")
        a(f"s_lshl_b32 {s(sT0)}, {s(sW)}, 5")
        a(f"v_xor_b32 v11, {s(sT0)}, v11")
        a("v_add_u32 v2, v2, v11")
        a("v_lshlrev_b32 v12, 4, v12")
        a(f"v_add_u32 v12, {LD}, v12")
        a("v_lshlrev_b32 v4, 2, v3")
        a(f"s_lshl_b32 {s(sT6)}, {s(sJ)}, 7")
        a(f"s_lshl_b32 {s(sT1)}, {s(sCH)}, 6")
        a(f"s_add_u32 {s(sT6)}, {s(sT6)}, {s(sT1)}")
        a(f"s_add_u32 {s(sT6)}, {s(sT6)}, {MODO}")
        a(f"s_cmp_lt_u32 {s(sJ)}, 28")
        a(f"s_cselect_b32 {s(sT6)}, {s(sT6)}, {OOB}")
        a(f"s_cmp_lt_u32 {s(sW)}, 2")
        a(f"s_cselect_b32 {s(sT6)}, {s(sT6)}, {OOB}")
        a.wait_all(vm=False)
        a("s_barrier")
        for k in range(14):
            a(f"ds_read_b128 {v(32 + 8 * k, 4)}, v12 offset:{k * 64}")
        self.w_dma_pattern(6, 10, 5376)
        a.wait_all()
        a("s_barrier")
        self.stamp(1)
        self.mod_job(5, 2048, 256, sT6)
        self.stamp(2)
        a(f"s_sub_u32 {s(sJ)}, {s(sM)}, 28")
        a(f"s_lshl_b32 {s(sJ)}, {s(sJ)}, 3")
        a(f"s_add_u32 {s(sJ)}, {s(sJ)}, {s(sG)}")
        a(f"s_cmp_ge_u32 {s(sJ)}, 28")
        a("s_cbranch_scc1 L_jobs_done")
        a(f"s_mul_i32 {s(sT0)}, {s(sW)}, {8 * 5376}")
        a(f"s_lshl_b32 {s(sT1)}, {s(sJ)}, 7")
        a(f"s_add_u32 {s(sT0)}, {s(sT0)}, {s(sT1)}")
        a(f"s_add_u32 {s(sT0)}, {s(sT0)}, {14 * 128}")
        a(f"s_add_u32 {s(sT2)}, {s(sT5)}, {LB}")
        a(f"s_add_u32 {s(sT3)}, {s(sT2)}, {14 * 4096}")
        a("L_mdma2:")
        a(f"s_mov_b32 m0, {s(sT2)}")
        a(f"s_add_u32 {s(sT2)}, {s(sT2)}, 4096")
        a(f"buffer_load_dwordx4 v6, {srd(SWMOD)}, {s(sT0)} offen lds")
        a(f"s_add_u32 {s(sT0)}, {s(sT0)}, {32 * 5376}")
        a(f"s_cmp_lg_u32 {s(sT2)}, {s(sT3)}")
        a("s_cbranch_scc1 L_mdma2")
        a(f"v_add_u32 v2, {LB}, v2")
        a(f"s_lshl_b32 {s(sT6)}, {s(sJ)}, 8")
        a(f"s_lshl_b32 {s(sT1)}, {s(sW)}, 6")
        a(f"s_add_u32 {s(sT6)}, {s(sT6)}, {s(sT1)}")
        a(f"s_add_u32 {s(sT6)}, {s(sT6)}, {MODO + 14 * 256}")
        a.wait_all()
        a("s_barrier")
        self.mod_job(2, 4096, 512, sT6)
        a("L_jobs_done:")
        self.stamp(3)
        a(f"s_cmp_lg_u32 {s(sJ)}, 31")
        a("s_cbranch_scc1 L_no_epoch")
        a("v_lshlrev_b32 v8, 3, v0")
        a(f"s_mov_b32 {s(sT0)}, {XCCO}")
        self.poll([f"buffer_load_dwordx2 v[10:11], v8, {srd(SWS)}, {s(sT0)} offen sc1"], [11])
        a("s_barrier")
        a("v_mov_b32 v8, 0")
        a(f"s_cmp_eq_u32 {s(sW)}, 0")
        a("s_cselect_b64 exec, 1, 0")
        a(f"buffer_store_dword v11, v8, {srd(SWS)}, 0 offen sc1")
        a("s_mov_b64 exec, -1")
        a("L_no_epoch:")
        a(f"v_lshlrev_b32 v8, 3, {v(vL16)}")
        a(f"s_sub_u32 {s(sT0)}, {s(sM)}, 28")
        a(f"s_lshl_b32 {s(sT0)}, {s(sT0)}, 2")
        a(f"s_add_u32 {s(sT0)}, {s(sT0)}, {s(sW)}")
        a(f"s_lshl_b32 {s(sT0)}, {s(sT0)}, 11")
        a(f"s_add_u32 {s(sT0)}, {s(sT0)}, {s(sGB)}")
        a(f"s_add_u32 {s(sT0)}, {s(sT0)}, {STO}")
        self.touch(8, SWS, sT0, 16)
        self.group_prefetch((SWG, SWU), self.o.get("pf_rows", 0) * 3584, self.o.get("hp1", 2))
        xl = self.xcc_load(10, 4)
        self.poll([xl], [5])
        a.wait_all()
        a("s_barrier")
        self.stamp(4)
        for r in (2, 3, 240, 241, 242):
            a(f"v_mov_b32 {v(r)}, 0")
        self.p2_setup()
        self.ones_prefill()
        self.choose_mode(4, "L_p2_slow")
        a("s_branch L_p2_fast")

    def p2_setup(self):
        a = self.a
        vKV, vVP, vRF, vWG, vMK = 12, 13, 14, 15, 16
        a(f"s_and_b32 {s(sHD)}, {s(sM)}, 15")
        a(f"s_lshr_b32 {s(sB)}, {s(sM)}, 4")
        a(f"s_mul_i32 {s(sWS0)}, {s(sHD)}, 7")
        a(f"s_lshr_b32 {s(sWS0)}, {s(sWS0)}, 1")
        a(f"s_bitcmp1_b32 {s(sHD)}, 0")
        a(f"s_cselect_b32 {s(sP1)}, 15, 0xf0000000")
        a(f"s_mov_b32 {s(sP1 + 1)}, {s(sP1)}")
        a(f"s_lshl_b32 {s(sKVL)}, {s(sW)}, 12")
        a(f"s_add_u32 {s(sKVL)}, {s(sKVL)}, {L_KV}")
        a(f"v_add_u32 {v(vKV)}, {s(sKVL)}, {v(vL16)}")
        a(f"v_bfe_u32 v24, {v(vL16)}, 4, 5")
        a(f"v_lshrrev_b32 v25, 9, {v(vL16)}")
        a("v_lshlrev_b32 v26, 2, v25")
        a("v_sub_u32 v26, v24, v26")
        for r in range(16):
            a(f"v_cmp_le_i32 {s(sMASK + 2 * r, 2)}, {8 * (r >> 2) + (r & 3)}, v26")
        a("v_mov_b32 v27, 0")
        a("v_mov_b32 v28, 0xffff")
        a("v_mov_b32 v29, 0xffff0000")
        for i in range(8):
            a(f"v_cndmask_b32 {v(vMK + i)}, v27, v28, {s(sMASK + 4 * i, 2)}")
            a(f"v_cndmask_b32 v30, v27, v29, {s(sMASK + 4 * i + 2, 2)}")
            a(f"v_or_b32 {v(vMK + i)}, {v(vMK + i)}, v30")
        a("v_and_b32 v26, 0x13, v24")
        a("v_and_b32 v27, 4, v24")
        a("v_lshl_or_b32 v26, v27, 1, v26")
        a("v_and_b32 v27, 8, v24")
        a("v_lshrrev_b32 v27, 1, v27")
        a("v_or_b32 v26, v26, v27")
        a("v_lshlrev_b32 v26, 4, v26")
        a(f"v_mul_u32_u24 {v(vVP)}, 7168, v25")
        a(f"v_add_u32 {v(vVP)}, {v(vVP)}, v26")
        a(f"s_lshl_b32 {s(sT0)}, {s(sB)}, 2")
        a(f"s_add_u32 {s(sT0)}, {s(sT0)}, {s(sW)}")
        a(f"s_sub_u32 {s(sMISS)}, 8, {s(sT0)}")
        a(f"s_cmp_eq_u32 {s(sG)}, 0")
        a(f"s_cselect_b32 {s(sMISS)}, {s(sMISS)}, 0")
        a(f"s_mul_i32 {s(sTQ)}, {s(sT0)}, {TILE_B}")
        a(f"s_add_u32 {s(sTQ)}, {s(sTQ)}, {s(sGB)}")
        a(f"s_min_u32 {s(sT0)}, {s(sG)}, 1")
        a(f"s_lshl_b32 {s(sT0)}, {s(sT0)}, 12")
        a(f"v_mul_u32_u24 v25, {s(sT0)}, v25")
        a("v_min_u32 v24, 27, v24")
        a("v_lshlrev_b32 v24, 7, v24")
        a("v_sub_u32 v24, v24, v25")
        a(f"s_lshl_b32 {s(sT0)}, {s(sG)}, 12")
        a(f"s_add_u32 {s(sT0)}, {s(sT0)}, {RFO}")
        a(f"v_add_u32 {v(vRF)}, {s(sT0)}, v24")
        self.w_dma_pattern(vWG, 24, 3584)
        a(f"s_min_u32 {s(sT0)}, {s(sM)}, 27")
        a(f"s_lshl_b32 {s(sT0)}, {s(sT0)}, 7")
        a(f"s_mul_i32 {s(sT1)}, {s(sW)}, {8 * 3584}")
        a(f"s_add_u32 {s(sWSRC)}, {s(sT0)}, {s(sT1)}")

    def ones_prefill(self):
        a = self.a
        for j in range(4):
            a(f"v_mov_b32 {v(24 + j)}, 0x3f803f80")
        a(f"s_mov_b64 exec, {s(sP1, 2)}")
        for i in range(3):
            for t in range(2):
                a(f"ds_write_b128 v12, v[24:27] offset:{i * 16384 + 2048 + t * 1024}")
        a("s_mov_b64 exec, -1")

    def touch_y(self):
        a = self.a
        a(f"s_mul_i32 {s(sT0)}, {s(sTILE)}, {TILE_B}")
        a(f"s_add_u32 {s(sT0)}, {s(sT0)}, {s(sGB)}")
        a(f"s_lshl_b32 {s(sT1)}, {s(sCB)}, 1")
        a(f"s_add_u32 {s(sT1)}, {s(sT1)}, {s(sCH)}")
        a(f"s_lshl_b32 {s(sT1)}, {s(sT1)}, 11")
        a(f"s_add_u32 {s(sT0)}, {s(sT0)}, {s(sT1)}")
        a(f"s_add_u32 {s(sT0)}, {s(sT0)}, {YO}")
        a(f"v_lshlrev_b32 v5, 3, {v(vL16)}")
        self.touch(5, SWS, sT0, 16)

    def wgu(self, n):
        for _ in range(n):
            if self.pre:
                vr, sr, lo, so = self.pre.pop(0)
                self.t_wgu = self.dma(vr, sr, sT5, lo, sWSRC, so)

    def p2(self):
        a = self.a
        a("L_p2_slow:" if self.slow else "L_p2_fast:")
        a.vm_done = a.vm_n
        vQ, vMK, vKV, vVP, vRF, vM, vNM = 24, 16, 12, 13, 14, 8, 10
        vS, vP2, vO = 32, 176, 192
        a("v_xor_b32 v6, 32, v15")
        a(f"s_lshl_b32 {s(sT5)}, {s(sW)}, 10")
        ksrc, vsrc = (sT0, sT1, sT2), (sT3, sT4, sT6)

        def ldK(i):
            for t in range(2):
                tk = self.dma(vL16, SWS, sKVL, i * 16384 + t * 1024, ksrc[i], 0, sc1=True, imm=t * 1024)
            return tk

        def ldV(i):
            for t in range(2):
                tk = self.dma(vVP, SWS, sKVL, i * 16384 + 2048 + t * 1024, vsrc[i], t * 14336, sc1=True)
            return tk

        a(f"s_lshl_b32 {s(sT1)}, {s(sWS0)}, 9")
        a(f"s_add_u32 {s(sT2)}, {s(sTQ)}, {s(sT1)}")
        a(f"s_mov_b32 s3, {s(sT2)}")
        a(f"s_lshl_b32 {s(sT0)}, {s(sWS0)}, 7")
        a(f"s_add_u32 {s(sT6)}, {s(sTQ)}, {s(sT0)}")
        a(f"s_add_u32 {s(sT6)}, {s(sT6)}, {VO}")
        a(f"s_add_u32 {s(sT2)}, {s(sT2)}, {KO}")
        a(f"s_cmp_eq_u32 {s(sG)}, 0")
        a(f"s_cselect_b32 {s(sT7)}, {OOB}, 0")
        a(f"s_sub_u32 {s(sT7)}, {s(sT7)}, {0x200000 - 8 * TILE_B}")
        a(f"s_add_u32 {s(sT0)}, {s(sT2)}, {s(sT7)}")
        a(f"s_sub_u32 {s(sT0)}, {s(sT0)}, {8 * TILE_B}")
        a(f"s_add_u32 {s(sT3)}, {s(sT6)}, {s(sT7)}")
        a(f"s_sub_u32 {s(sT3)}, {s(sT3)}, {8 * TILE_B}")
        a(f"s_cmp_eq_u32 {s(sB)}, 0")
        a(f"s_cselect_b32 {s(sT7)}, {s(sT7)}, 0")
        a(f"s_add_u32 {s(sT1)}, {s(sT2)}, {s(sT7)}")
        a(f"s_sub_u32 {s(sT1)}, {s(sT1)}, {4 * TILE_B}")
        a(f"s_add_u32 {s(sT4)}, {s(sT6)}, {s(sT7)}")
        a(f"s_sub_u32 {s(sT4)}, {s(sT4)}, {4 * TILE_B}")
        a(f"v_min_u32 v5, 880, {v(vL16)}")
        a("v_lshrrev_b32 v5, 1, v5")
        a(f"v_add_u32 v5, {LFO}, v5")
        self.stamp(6)
        self.poll([f"buffer_load_dword v8, {v(vRF)}, {srd(SWS)}, 0 offen sc1",
                   f"buffer_load_dwordx2 v[10:11], v5, {srd(SWS)}, {s(sGB)} offen sc1"], [8, 10, 11])
        self.stamp(7)
        for i in range(3):
            ldK(i)
        for t in range(2):
            t_k = a.vm(f"buffer_load_dwordx4 {v(vQ + 4 * t, 4)}, {v(vL16)}, {srd(SWS)}, s3 offen offset:{t * 1024} sc1")
        a(f"s_andn2_b64 exec, -1, {s(sP1, 2)}")
        for i in range(3):
            t_v = ldV(i)
        a("s_mov_b64 exec, -1")
        self.pre = []
        for i in range(14):
            self.pre.append((15, SWG, LA + i * 4096, i * 32 * 3584))
            self.pre.append((6, SWU, LB + i * 4096, i * 32 * 3584))
        n_att = self.o.get("n_att", 14)
        bg = [lambda: self.wgu(1)] * n_att
        for i, t in enumerate(self.early):
            bg.insert(2 + 2 * i, lambda t=t: a(t))
        if self.o.get("touch_y", 1):
            bg.insert(self.o.get("ty_at", 4), self.touch_y)

        def prefetch(n):
            for _ in range(n):
                if bg:
                    bg.pop(0)()

        a("s_barrier")
        a("v_xor_b32 v5, 64, v2")
        for k in range(14):
            for ct in range(2):
                self.tr2(("a", 128 + 8 * k + 4 * ct), 5 if ct else 2, k * 2048)
        a(f"s_bitcmp1_b32 {s(sHD)}, 0")
        a(f"s_cselect_b32 {s(sP0)}, -1, 0")
        a(f"s_mov_b32 {s(sP0 + 1)}, 0")
        a.wait(vm=t_k)
        a.wait_all(vm=False)
        a("s_barrier")
        a(f"s_mov_b64 exec, {s(sP0, 2)}")
        a(f"v_mov_b32 {v(vQ)}, 0")
        a(f"v_mov_b32 {v(vQ + 1)}, 0")
        a(f"s_not_b32 exec_hi, {s(sP0)}")
        a("s_mov_b32 exec_lo, 0")
        a(f"v_mov_b32 {v(vQ + 6)}, 0")
        a(f"v_mov_b32 {v(vQ + 7)}, 0")
        a("s_mov_b64 exec, -1")
        self.stamp(8)
        order = [0, 8, 1, 2, 3, 4, 5, 6, 7]
        kt = {}

        def rdK(n):
            i = order[n]
            a.lg(f"ds_read_b128 {a_(8 * n, 4)}, {v(vKV)} offset:{i * 4096}")
            kt[n] = a.lg(f"ds_read_b128 {a_(8 * n + 4, 4)}, {v(vKV)} offset:{i * 4096 + 1024}")

        vorder = [1, 2, 3, 4, 5, 6, 7, 8, 0]
        vt = {}

        def rdV(n):
            i = vorder[n]
            base = 72 + 8 * n if n < 7 else 8 * (n - 7)
            a.lg(f"ds_read_b128 {a_(base, 4)}, {v(vKV)} offset:{i * 4096 + 2048}")
            vt[i] = (base, a.lg(f"ds_read_b128 {a_(base + 4, 4)}, {v(vKV)} offset:{i * 4096 + 3072}"))

        def patch(i):
            L = a.label("miss")
            a(f"s_cmp_gt_i32 {s(sMISS)}, {i}")
            a(f"s_cbranch_scc1 {L}")
            a(f"{L}_back:")
            blk = [f"{L}:", "s_nop 15"]
            blk += [f"v_mov_b32 {v(vS + 16 * i + r)}, 0xf149f2ca" for r in range(16)]
            blk += [f"s_branch {L}_back"]
            self.tail.append(blk)

        valu = []
        first = [True]

        def q_max(i):
            b = vS + 16 * i
            ops = []
            if first[0]:
                ops.append(f"v_max3_f32 {v(vM)}, {v(b)}, {v(b + 1)}, {v(b + 2)}")
                ops.append(f"v_max3_f32 {v(vM + 1)}, {v(b + 3)}, {v(b + 4)}, {v(b + 5)}")
                rest = list(range(6, 16, 2))
                first[0] = False
            else:
                rest = list(range(0, 16, 2))
            for n, r in enumerate(rest):
                m = vM + (n & 1)
                ops.append(f"v_max3_f32 {v(m)}, {v(m)}, {v(b + r)}, {v(b + r + 1)}")
            return ops

        for n in range(4):
            rdK(n)
        for n in range(9):
            i = order[n]
            if n + 4 < 9:
                rdK(n + 4)
            a.wait(lg=kt[n])
            d = v(vS + 16 * i, 16)
            a(f"v_mfma_f32_32x32x16_bf16 {d}, {a_(8 * n, 4)}, {v(vQ, 4)}, 0")
            for _ in range(5):
                if valu:
                    a(valu.pop(0))
            a(f"v_mfma_f32_32x32x16_bf16 {d}, {a_(8 * n + 4, 4)}, {v(vQ + 4, 4)}, {d}")
            for _ in range(5):
                if valu:
                    a(valu.pop(0))
            if n == 2:
                patch(0)
                valu += [f"v_cndmask_b32 {v(vS + 128 + r)}, {v(vS + r)}, {v(vS + 128 + r)}, {s(sMASK + 2 * r, 2)}" for r in range(16)]
                valu += q_max(8)
            elif n >= 3:
                patch(order[n - 1])
                valu += q_max(order[n - 1])
            if n >= self.o.get("bg1", 0):
                prefetch(1)
        for op in valu:
            a(op)
        patch(7)
        for op in q_max(7):
            a(op)
        a(f"v_max_f32 {v(vM)}, {v(vM)}, {v(vM + 1)}")
        self.both_halves(vM, vM + 1, "v_max_f32")
        a(f"v_sub_f32 {v(vNM)}, 0, {v(vM)}")
        a(f"s_lshl_b32 {s(sT0)}, {s(sG)}, 5")
        a(f"s_add_u32 {s(sT0)}, {s(sT0)}, {s(sM)}")
        a(f"s_lshl_b32 {s(sT0)}, {s(sT0)}, 2")
        a(f"v_mov_b32 v8, {CFO}")
        a(f"v_mov_b32 v9, {s(sTAG)}")
        a.wait(vm=t_v)
        a("s_barrier")
        for n in range(4):
            rdV(n)
        a(f"s_cmp_eq_u32 {s(sW)}, 0")
        a("s_cselect_b64 exec, 1, 0")
        a.vm(f"buffer_store_dword v9, v8, {srd(SWS)}, {s(sT0)} offen sc1")
        a("s_mov_b64 exec, -1")
        self.stamp(9)
        firstpv = [True]

        def pv(i, t, p):
            base, tk = vt[i]
            a.wait(lg=tk)
            c = 0 if firstpv[0] else v(vO, 16)
            firstpv[0] = False
            a(f"v_mfma_f32_32x32x16_bf16 {v(vO, 16)}, {a_(base + 4 * t, 4)}, {v(p + 4 * t, 4)}, {c}")

        pend = []
        for n, i in enumerate([1, 2, 3, 4, 5, 6, 7, 8]):
            b = vS + 16 * i
            p = vS + 8 * (n & 1)
            if n + 4 < 9:
                rdV(n + 4)
            for r in range(0, 16, 2):
                a(f"v_pk_add_f32 {v(b + r, 2)}, {v(b + r, 2)}, {v(vNM, 2)} op_sel_hi:[1,0]")
            for t in range(2):
                if pend:
                    pv(*pend.pop(0))
                for r in range(8 * t, 8 * t + 8):
                    a(f"v_exp_f32 {v(b + r)}, {v(b + r)}")
                    if r >= 8 * t + 3 and (r & 1):
                        j = (r - 3) >> 1
                        a(f"v_cvt_pk_bf16_f32 {v(p + j)}, {v(b + 2 * j)}, {v(b + 2 * j + 1)}")
                j = 4 * t + 3
                prefetch(1)
                a(f"v_cvt_pk_bf16_f32 {v(p + j)}, {v(b + 2 * j)}, {v(b + 2 * j + 1)}")
            if i != 8:
                pend = [(i, 0, p), (i, 1, p)]
            else:
                for j in range(8):
                    a(f"v_and_b32 {v(vP2 + j)}, {v(p + j)}, {v(vMK + j)}")
                    a(f"v_xor_b32 {v(vP2 + 8 + j)}, {v(p + j)}, {v(vP2 + j)}")
                    if j == 3:
                        pv(8, 0, vP2)
                pv(0, 0, vP2 + 8)
                pv(8, 1, vP2)
                pv(0, 1, vP2 + 8)
        prefetch(99)
        a(f"s_lshl_b32 {s(sT1)}, {s(sWS0)}, 9")
        a(f"s_add_u32 {s(sT1)}, {s(sT1)}, {s(sTQ)}")
        a(f"s_add_u32 {s(sT1)}, {s(sT1)}, {OO}")
        a(f"s_bitcmp1_b32 {s(sHD)}, 0")
        a(f"s_cselect_b64 {s(sP0, 2)}, -1, 0")
        a(f"v_cndmask_b32 v8, {v(vO + 12)}, {v(vO)}, {s(sP0, 2)}")
        a("v_mov_b32 v9, v8")
        a("v_permlane32_swap_b32 v9, v8")
        a(f"v_cndmask_b32 v8, v8, v9, {s(sP0, 2)}")
        a("v_rcp_f32 v8, v8")
        for r in range(16):
            a(f"v_mul_f32 {v(vO + r)}, v8, {v(vO + r)}")
        for j in range(8):
            a(f"v_cvt_pk_bf16_f32 {v(vP2 + j)}, {v(vO + 2 * j)}, {v(vO + 2 * j + 1)}")
        Lodd, Ldone = a.label("odd"), a.label("ost")
        base = f"{v(vL16)}, {srd(SWS)}, {s(sT1)} offen"
        a(f"s_cbranch_scc1 {Lodd}")
        a(f"buffer_store_dwordx4 {v(vP2, 4)}, {base}{self.st('o')}")
        a("s_mov_b32 exec_hi, 0")
        a(f"buffer_store_dwordx4 {v(vP2 + 4, 4)}, {base} offset:1024{self.st('o')}")
        a("s_not_b64 exec, exec")
        a(f"buffer_store_dwordx2 {v(vP2 + 4, 2)}, {base} offset:1024{self.st('o')}")
        a(f"s_branch {Ldone}")
        a(f"{Lodd}:")
        a(f"buffer_store_dwordx4 {v(vP2 + 4, 4)}, {base} offset:1024{self.st('o')}")
        a("s_mov_b32 exec_lo, 0")
        a(f"buffer_store_dwordx4 {v(vP2, 4)}, {base}{self.st('o')}")
        a("s_not_b64 exec, exec")
        a(f"buffer_store_dwordx2 {v(vP2 + 2, 2)}, {base} offset:8{self.st('o')}")
        a(f"{Ldone}:")
        a("s_mov_b64 exec, -1")
        self.stamp(10)
        Lc = a.label("comp")
        a(f"s_cmp_lt_u32 {s(sM)}, 28")
        a(f"s_cbranch_scc1 {Lc}")
        self.local_flag(1, 8)
        a("s_branch " + ("L_end" if self.slow else "L_helper_tail"))
        a(f"{Lc}:")

    def exchange(self, acc):
        a = self.a
        a(f"s_lshl_b32 {s(sT0)}, {s(sW)}, 12")
        a(f"s_add_u32 {s(sT0)}, {s(sT0)}, {L_XB}")
        a(f"v_add_u32 v8, {s(sT0)}, {v(vL16)}")
        a(f"v_xor_b32 v9, 4096, v8")
        Lk, Ld = a.label("xk"), a.label("xd")
        a(f"s_cmp_eq_u32 {s(sCH)}, 0")
        a("s_nop 7")
        a(f"s_cbranch_scc1 {Lk}")
        for q in range(4):
            a(f"ds_write_b128 v8, {v(acc + 4 * q, 4)} offset:{q * 1024}")
        for r in range(16):
            a(f"v_mov_b32 {v(acc + r)}, {v(acc + 16 + r)}")
        a(f"s_branch {Ld}")
        a(f"{Lk}:")
        for q in range(4):
            a(f"ds_write_b128 v8, {v(acc + 16 + 4 * q, 4)} offset:{q * 1024}")
        a(f"{Ld}:")
        a.wait_all(vm=False)
        a("s_barrier")
        tk = [a.lg(f"ds_read_b128 {v(acc + 16 + 4 * q, 4)}, v9 offset:{q * 1024}") for q in range(4)]
        for q in range(4):
            a.wait(lg=tk[q])
            for r in range(4 * q, 4 * q + 4, 2):
                a(f"v_pk_add_f32 {v(acc + r, 2)}, {v(acc + r, 2)}, {v(acc + 16 + r, 2)}")

    def unpack16(self, dst, src):
        a = self.a
        for j in range(8):
            a(f"v_lshlrev_b32 {v(dst + 2 * j)}, 16, {v(src + j)}")
            a(f"v_and_b32 {v(dst + 2 * j + 1)}, 0xffff0000, {v(src + j)}")

    def mod2_loads(self):
        return [f"buffer_load_dwordx2 {v(232 + 2 * i, 2)}, {v(241 + (i >> 1))}, {srd(SWS)}, 0 offen offset:{(i & 1) * 1792} sc1"
                for i in range(4)]

    def p3_early_loads(self):
        g = [f"v_bfe_u32 v3, {v(vL16)}, 4, 5", "v_mul_u32_u24 v3, 896, v3", f"v_lshrrev_b32 v4, 9, {v(vL16)}",
             "v_lshl_add_u32 v3, v4, 4, v3",
             f"s_lshl3_add_u32 {s(sT6)}, {s(sG)}, {s(sTILE)}", f"s_mul_i32 {s(sT6)}, {s(sT6)}, {TILE_B}",
             f"s_lshl1_add_u32 {s(sXCC)}, {s(sCB)}, {s(sCH)}", f"s_lshl_b32 {s(sXCC)}, {s(sXCC)}, 6",
             f"s_add_u32 {s(sXCC)}, {s(sXCC)}, {s(sT6)}"]
        g += [f"buffer_load_dwordx4 {v(224 + 4 * b, 4)}, v3, {srd(SX)}, {s(sXCC)} offen offset:{32 * b}" for b in range(2)]
        g += ["v_min_u32 v240, 223, v0", "v_lshlrev_b32 v240, 3, v240",
              f"v_add_u32 v241, {MODO + 448 * 8}, v240", f"v_add_u32 v242, {MODO + 448 * 8 + 3584}, v240"]
        g += self.mod2_loads()
        return g

    def p3(self):
        a = self.a
        acc, vGA, vG2, vXR, vXF = 32, 64, 80, 224, 104
        a("v_mov_b32 v5, v15")
        self.pre = [(5 if vr == 15 else vr, sr, lo, so) for vr, sr, lo, so in self.pre]
        self.local_flag(1, 8)
        self.check_tags(self.mod2_loads(), [233, 235, 237, 239])
        a("v_lshlrev_b32 v18, 16, v236")
        a("v_and_b32 v19, 0xffff0000, v236")
        a("v_add_f32 v18, 1.0, v18")
        a("v_add_f32 v19, 1.0, v19")
        a("v_cvt_pk_bf16_f32 v236, v18, v19")
        a("v_lshrrev_b32 v10, 1, v240")
        a(f"v_add_u32 v10, {L_T2}, v10")
        a("s_barrier")
        for i in range(4):
            t_t2 = a.lg(f"ds_write_b32 v10, {v(232 + 2 * i)} offset:{896 * i}")
        a(f"s_lshl_b32 {s(sT1)}, {s(sCB)}, 1")
        a(f"s_add_u32 {s(sT1)}, {s(sT1)}, {s(sCH)}")
        a(f"s_lshl_b32 {s(sT1)}, {s(sT1)}, 6")
        a(f"s_mul_i32 {s(sT2)}, {s(sTILE)}, {TILE_B}")
        a(f"s_add_u32 {s(sT2)}, {s(sT2)}, {s(sGB)}")
        a(f"s_mul_i32 {s(sT3)}, {s(sCH)}, {14 * 1024}")
        a(f"s_add_u32 {s(sT3)}, {s(sT3)}, {s(sT2)}")
        a(f"s_add_u32 {s(sT3)}, {s(sT3)}, {OO}")
        self.stamp(11)
        self.poll_local(1, 32, 8)
        self.stamp(12)
        tk = []

        def ldO(k):
            if k and k % 4 == 0:
                a(f"s_add_u32 {s(sT3)}, {s(sT3)}, 4096")
            tk.append(a.vm(f"buffer_load_dwordx4 {a_(4 * k, 4)}, {v(vL16)}, {srd(SWS)}, {s(sT3)} offen offset:{(k % 4) * 1024} sc1"))

        for k in range(8):
            ldO(k)
        a.wait(lg=t_t2)
        a("s_barrier")
        a(f"v_lshl_add_u32 v8, v4, 4, {s(sT1)}")
        a(f"v_add_u32 v8, {L_T2}, v8")
        for b in range(2):
            a(f"ds_read_b128 {v(12 + 4 * b, 4)}, v8 offset:{32 * b}")
            a(f"ds_read_b128 {v(20 + 4 * b, 4)}, v8 offset:{2 * 896 + 32 * b}")
        a(f"s_lshl_b32 {s(sT0)}, {s(sRT)}, 5")
        a(f"v_add_u32 v8, {s(sT0)}, v8")
        t_c = a.lg(f"ds_read_b128 {v(vGBP, 4)}, v8 offset:{3 * 896}")
        fill = self.capture(lambda: self.unpack16(vXF, vXR))
        fill += [lambda: a.wait(lg=t_c)] + self.capture(lambda: (self.unpack16(vGA, 12), self.unpack16(vG2, 20)))
        for k in range(14):
            a.wait(vm=tk[k])
            for ct in range(2):
                d = v(acc + 16 * ct, 16)
                a(f"v_mfma_f32_32x32x16_bf16 {d}, {a_(128 + 8 * k + 4 * ct, 4)}, {a_(4 * k, 4)}, {d if k else 0}")
                if ct == 0 and k + 8 < 14:
                    ldO(k + 8)
                for _ in range(2):
                    if fill:
                        f = fill.pop(0)
                        f() if callable(f) else a(f)
        assert not fill
        self.exchange(acc)
        for r in range(16):
            a(f"v_fma_f32 {v(acc + r)}, {v(acc + r)}, {v(vGA + r)}, {v(vXF + r)}")
        for j in range(8):
            a(f"v_cvt_pk_bf16_f32 {v(vX2 + j)}, {v(acc + 2 * j)}, {v(acc + 2 * j + 1)}")
        a(f"s_lshl_b32 {s(sT0)}, {s(sW)}, 11")
        a(f"s_add_u32 {s(sT0)}, {s(sT0)}, {L_X2}")
        a(f"v_add_u32 v8, {s(sT0)}, {v(vL16)}")
        for b in range(2):
            a(f"ds_write_b128 v8, {v(vX2 + 4 * b, 4)} offset:{1024 * b}")
        self.unpack16(acc, vX2)
        for r in range(0, 16, 2):
            a(f"v_pk_mul_f32 {v(acc + 16 + r, 2)}, {v(acc + r, 2)}, {v(vG2 + r, 2)}")
        for j in range(8):
            a(f"v_cvt_pk_bf16_f32 {v(12 + j)}, {v(acc + 16 + 2 * j)}, {v(acc + 16 + 2 * j + 1)}")
        a(f"s_lshl_b32 {s(sT0)}, {s(sT1)}, 5")
        a(f"s_add_u32 {s(sT0)}, {s(sT0)}, {s(sT2)}")
        a(f"s_add_u32 {s(sT0)}, {s(sT0)}, {YO}")
        for b in range(2):
            a(f"buffer_store_dwordx4 {v(12 + 4 * b, 4)}, {v(vL16)}, {srd(SWS)}, {s(sT0)} offen offset:{1024 * b}{self.st('y')}")
        a(f"v_pk_mul_f32 v[22:23], {v(acc, 2)}, {v(acc, 2)}")
        a(f"v_pk_add_f32 v[20:21], {v(acc, 2)}, {v(acc + 2, 2)}")
        a(f"v_pk_fma_f32 v[22:23], {v(acc + 2, 2)}, {v(acc + 2, 2)}, v[22:23]")
        for r in range(4, 16, 2):
            a(f"v_pk_add_f32 v[20:21], v[20:21], {v(acc + r, 2)}")
            a(f"v_pk_fma_f32 v[22:23], {v(acc + r, 2)}, {v(acc + r, 2)}, v[22:23]")
        a("v_add_f32 v20, v20, v21")
        a("v_add_f32 v21, v22, v23")
        self.both_halves(20, 24, "v_add_f32")
        self.both_halves(21, 25, "v_add_f32")
        a(f"s_lshl_b32 {s(sT0)}, {s(sT1)}, 5")
        a(f"s_lshl_b32 {s(sT3)}, {s(sTILE)}, 8")
        a(f"s_add_u32 {s(sT0)}, {s(sT0)}, {s(sT3)}")
        a(f"s_add_u32 {s(sT0)}, {s(sT0)}, {s(sGB)}")
        a(f"s_add_u32 {s(sT0)}, {s(sT0)}, {STO}")
        a(f"v_lshrrev_b32 v24, 1, {v(vL16)}")
        a("s_mov_b32 exec_hi, 0")
        a(f"buffer_store_dwordx2 v[20:21], v24, {srd(SWS)}, {s(sT0)} offen{self.st('y')}")
        a("s_mov_b64 exec, -1")
        self.local_flag(2, 8)
        self.stamp(13)

    def p45(self):
        a, o = self.a, self.o
        acc, vW, vTB, vTQ, vAUG, vR2, vU, vH = 32, 160, 208, 12, 16, 24, 224, 224
        vTBA, vAGA, vWD, vSTA, vPD, vFA, vST = 26, 27, 28, 30, 2, 31, 96
        NSW = 12
        K0 = min(28 - len(self.pre), o.get("k0", 28))
        late = len(self.pre)
        self.tr_pattern(vTQ, 8, True)
        a(f"v_bfe_u32 v8, {v(vL16)}, 8, 1")
        a(f"v_mul_u32_u24 v8, {LB - LA}, v8")
        a(f"s_mul_i32 {s(sT0)}, {s(sW)}, 10240")
        a(f"s_add_u32 {s(sB)}, {s(sT0)}, {L_F}")
        a(f"v_add_u32 {v(vWD)}, {s(sB)}, {v(vTQ)}")
        a(f"v_xor_b32 {v(vWD + 1)}, 64, {v(vWD)}")
        a(f"v_add_u32 {v(vTQ)}, {v(vTQ)}, v8")
        a(f"s_lshl_b32 {s(sT0)}, {s(sW)}, 5")
        a(f"v_xor_b32 {v(vTQ)}, {s(sT0)}, {v(vTQ)}")
        for q in range(1, 4):
            a(f"v_xor_b32 {v(vTQ + q)}, {32 * q}, {v(vTQ)}")
        a(f"v_bfe_u32 v8, {v(vL16)}, 4, 5")
        a("v_cmp_eq_u32 vcc, 1, v8")
        a(f"v_mov_b32 v8, {L_T2 + 2 * 896}")
        a(f"v_mov_b32 v9, {L_T2 + 896}")
        a("v_cndmask_b32 v8, v8, v9, vcc")
        a(f"v_lshl_add_u32 {v(vTBA)}, v4, 4, v8")
        a(f"s_add_u32 {s(sT0)}, {s(sT5)}, {L_AUG}")
        a(f"v_add_u32 {v(vAGA)}, {s(sT0)}, {v(vL16)}")
        a(f"s_lshl_b32 {s(sT0)}, {s(sCH)}, 11")
        a(f"s_lshl_b32 {s(sT1)}, {s(sRT)}, 10")
        a(f"s_add_u32 {s(sT0)}, {s(sT0)}, {s(sT1)}")
        a(f"s_add_u32 {s(sT0)}, {s(sT0)}, {L_X2}")
        a(f"v_add_u32 v8, {s(sT0)}, {v(vL16)}")
        a.wait_all(vm=False)
        a("s_barrier")
        for rt in range(2):
            a(f"ds_read_b128 {v(vX2 + 4 * rt, 4)}, v8 offset:{4096 * rt}")
        ut = {}

        def rdT(k):
            ut[k] = a.lg(f"ds_read_b128 {v(vTB + 4 * (k % 4), 4)}, {v(vTBA)} offset:{32 * k}")

        def mfmaU(k, wreg):
            a(f"v_mfma_f32_32x32x16_bf16 {v(vU, 16)}, {v(vTB + 4 * (k % 4), 4)}, {wreg}, {v(vU, 16) if k else 0}")

        setup = self.capture(lambda: self.p45_setup(vSTA, vPD, vFA))
        pt = {}

        def rdP(k):
            rdT(k)
            pt[k] = self.tr2(("v", vW + 4 * (k % 4)), vTQ, k * 2048)

        for k in range(min(3, K0)):
            rdP(k)
        for k in range(K0):
            a.wait(lg=pt[k])
            mfmaU(k, v(vW + 4 * (k % 4), 4))
            if k + 3 < K0:
                rdP(k + 3)
            for _ in range(3):
                if setup:
                    a(setup.pop(0))
        for g in setup:
            a(g)
        a.wait_all(vm=False)
        a("s_barrier")
        self.stamp(14)
        self.poll_local(2, 28, 8)
        self.stamp(15)
        a(f"s_lshl_b32 {s(sT0)}, {s(sM)}, 4")
        a(f"s_lshl_b32 {s(sT1)}, {s(sW)}, 2")
        a(f"s_add_u32 {s(sT0)}, {s(sT0)}, {s(sT1)}")
        a(f"s_add_u32 {s(sT0)}, {s(sT0)}, {LFO + 3 * 512}")
        a(f"v_mov_b32 v10, {s(sT0)}")
        a(f"v_mov_b32 v11, {s(sTAG)}")

        KA = 4
        steps = []
        for k in range(28):
            steps.append(("f", 0, k, 0))
            if k >= K0:
                steps.append(("u", 0, k, 0))
            steps += [("f", 0, k, q) for q in range(1, 4)]
        for k in range(28):
            if k == KA:
                steps += [("g", 0, 28, q) for q in range(4)]
            steps += [("f", 1, k, q) for q in range(4)]
        steps += [("g", 1, 28, q) for q in range(4)]
        steps += [("d", rt, j, ct) for rt in range(2) for j in range(28) for ct in range(2)]
        at = {st: n for n, st in enumerate(steps)}
        N = len(steps)
        ev = [[] for _ in range(N + 1)]
        R = lambda key: (a_ if key[0] == "a" else v)(key[1], 4)

        LAT, FAR, UNIT, LIM = o.get("lat", 450), o.get("far", 450), o.get("unit", 72), o.get("lim", 10)
        MF, GAP = o.get("mf", 40), o.get("gap", 6)
        sim = dict(T=0, free=0, last=0)
        arr, tick = {}, {}
        memq, fill, wq2 = [], [], []
        need = dict(vm=0, lg=0)
        cur = [0]

        def plan(name, cost, lat, *ops):
            st = max(sim["T"], sim["free"])
            sim["free"] = st + cost
            sim["last"] = max(sim["last"], sim["free"] + lat)
            arr[name] = sim["last"]
            memq.extend(ops[:-1])
            memq.append(lambda: tick.__setitem__(name, a.vm(ops[-1])))

        def emit(chain, n):
            done = 0
            while chain and done < n:
                f = chain.pop(0)
                n0 = len(a.ins)
                f() if callable(f) else a(f)
                done += len(a.ins) - n0
            return done

        def issued(name):
            while name not in tick:
                assert memq, name
                emit(memq, 1)
            return tick[name]

        def inflight():
            return sum(1 for x in arr.values() if x > sim["T"])

        def stall_until(name):
            while arr[name] > sim["T"] + 20 and serve(cur[0]):
                emit(memq, 99)
                sim["T"] += 16
            sim["T"] = max(sim["T"], arr[name])

        free_q = [("a", 4 * i) for i in range(63, -1, -1)]
        wd_next = [0]
        reg = {}

        def take_quad(horizon):
            for key in free_q:
                if key[0] == "v" or key[1] >= 8 * min(28, wd_next[0] + horizon):
                    free_q.remove(key)
                    return key
            return None

        def ldY(n):
            key = take_quad(o.get("hor", 5))
            if key is None:
                return False
            reg[("y", n)] = key
            pre = [f"s_add_u32 {s(sTQ)}, {s(sTQ)}, 4096"] if n and n % 4 == 0 else []
            plan(("y", n), UNIT, LAT, *pre,
                 f"buffer_load_dwordx4 {R(key)}, {v(vL16)}, {srd(SWS)}, {s(sTQ)} offen offset:{(n % 4) * 1024} sc1")
            return True

        def ldH(n):
            key = take_quad(28)
            if key is None:
                return False
            reg[("h", n)] = key
            pre = []
            if n == 28:
                pre = [f"s_add_u32 {s(sT6)}, {s(sT6)}, {HT_B - 24 * 1024}"]
            elif n % 28 and n % 28 % 4 == 0:
                pre = [f"s_add_u32 {s(sT6)}, {s(sT6)}, 4096"]
            plan(("h", n), UNIT, LAT, *pre,
                 f"buffer_load_dwordx4 {R(key)}, {v(vL16)}, {srd(SWS)}, {s(sT6)} offen offset:{(n % 28 % 4) * 1024} sc1")
            return True

        wd_tr_t = {}

        def ldD(j):
            if j >= 5 and (j - 5 not in wd_tr_t or wd_tr_t[j - 5] > a.lg_done):
                return False
            far = o.get("far_d", FAR)
            plan(("d0", j), UNIT, far, f"s_add_u32 m0, {s(sB)}, {(j % 5) * 2048}", f"s_add_u32 {s(sT4)}, {s(sT4)}, {16 * 896}",
                 f"buffer_load_dwordx4 {v(vPD)}, {srd(SWD)}, {s(sT4)} offen lds")
            plan(("d", j), UNIT, far, f"buffer_load_dwordx4 v0, {srd(SWD)}, {s(sT4)} offen offset:1024 lds")
            return True

        wd_pending = [None]

        def wd_read(must=False):
            j = wd_next[0]
            if wd_pending[0] is not None or j >= 28 or ("d", j) not in arr:
                return
            if not must and (arr[("d", j)] > sim["T"] or ("d", j) not in tick):
                return
            if any(("a", 8 * j + 4 * ct) not in free_q for ct in range(2)):
                assert not must
                return
            for ct in range(2):
                free_q.remove(("a", 8 * j + 4 * ct))
            need["vm"] = max(need["vm"], issued(("d", j)))
            wd_pending[0] = j

        def wd_queue():
            j = wd_pending[0]
            if j is None:
                return
            for ct in range(2):
                for u in range(2):
                    t = f"ds_read_b64_tr_b16 {a_(8 * j + 4 * ct + 2 * u, 2)}, {v(vWD + ct)} offset:{(j % 5) * 2048 + 512 * u}"
                    wq2.append((lambda t=t: wd_tr_t.__setitem__(j, a.lg(t))) if ct and u else t)
            wd_pending[0] = None
            wd_next[0] += 1

        def ldL(i):
            (vg, sg_, lg_, so), (vu, su, lu, _) = self.pre.pop(0), self.pre.pop(0)
            far = o.get("far_l", FAR)
            plan(("l0", i), UNIT, far, f"s_add_u32 m0, {s(sT5)}, {lg_}", f"s_add_u32 {s(sT7)}, {s(sWSRC)}, {so}",
                 f"buffer_load_dwordx4 {v(vg)}, {srd(sg_)}, {s(sT7)} offen lds")
            plan(("l", i), UNIT, far, f"s_add_u32 m0, {s(sT5)}, {lu}\ns_nop 0",
                 f"buffer_load_dwordx4 {v(vu)}, {srd(su)}, {s(sT7)} offen lds")
            return True

        def ldS(p):
            for rt in range(2):
                plan(("s", p, rt), UNIT // 2, LAT,
                     f"buffer_load_dwordx2 {v(vST + 14 * rt + 2 * p, 2)}, {v(vSTA)}, {srd(SWS)}, {s(sKVL)} offen offset:{256 * rt + (p & 1) * 2048} sc1")
            if p & 1:
                memq.append(f"s_add_u32 {s(sKVL)}, {s(sKVL)}, 4096")
            return True

        assert late % 2 == 0
        first = (28 - late) // 2
        bar_at = {b: at[("f", 0, 2 * (b - (b - first) % 2) - 2, 0)] for b in range(first, 14)}
        nS = at[("f", 0, o.get("ks", 17), 0)]
        YL, HL, LEAD = o.get("ylook", 6), o.get("hlook", 12), 20
        gate = {0: None, 1: None}
        queues = {
            "y": [(at[("f", max(n - YL, 0) // 28, max(n - YL, 0) % 28, 0)] if n >= YL else -1,
                   at[("f", n // 28, n % 28, 0)] - LEAD, lambda n=n: ldY(n)) for n in range(56)],
            "l": [(0, bar_at[first + i] - o.get("lead_l", 30), lambda i=i: ldL(i)) for i in range(late // 2)],
            "s": [(at[("f", 0, 6, 0)], nS - 20, lambda p=p: ldS(p)) for p in range(7)],
            "d": [(0, at[("d", 0, j, 0)] - LEAD - o.get("lead_d", 6), lambda j=j: ldD(j)) for j in range(28)],
            "h": [(("h", n // 28, at[("d", n // 28, n % 28, 0)] - 2 * HL), at[("d", n // 28, n % 28, 0)] - LEAD,
                   lambda n=n: ldH(n)) for n in range(56)],
        }

        def serve(n):
            if len(memq) > 2 or inflight() >= LIM or sim["free"] >= sim["T"] + o.get("ahead", 300):
                return False
            cand = []
            for name, q in queues.items():
                if q:
                    e = q[0][0]
                    if isinstance(e, tuple):
                        if gate[e[1]] is None:
                            continue
                        e = max(e[2], gate[e[1]])
                    if e <= n:
                        cand.append((q[0][1], name))
            for _, name in sorted(cand):
                if queues[name][0][2]():
                    queues[name].pop(0)
                    return True
            return False

        def force(qname, name):
            while name not in arr:
                if qname == "d" and not queues[qname][0][2]():
                    wd_read(must=True)
                    a.wait(vm=need["vm"])
                    wd_queue()
                    emit(wq2, 99)
                    a.wait(lg=a.lg_n)
                    continue
                if qname != "d":
                    assert queues[qname][0][2](), name
                queues[qname].pop(0)
            return issued(name)

        def hard_wait(qname, name):
            t = force(qname, name) if qname else issued(name)
            stall_until(name)
            a.wait(vm=t)

        for b in sorted(set(bar_at.values())):
            i = max(x for x in bar_at if bar_at[x] == b) - first
            ev[b].append(lambda i=i: (hard_wait("l", ("l", i)), a("s_barrier")))
        ev[nS].append(lambda: (hard_wait("s", ("s", 6, 1)), fill.extend(self.ln2_stats(vST, vAUG, vR2))))

        t_aug = [0]

        def aug_build():
            fill.extend([
                f"v_cvt_pk_bf16_f32 {v(vU + 4)}, {v(vU)}, {v(vU + 1)}",
                f"v_lshlrev_b32 {v(vU + 5)}, 16, {v(vU + 4)}",
                f"v_and_b32 {v(vU + 6)}, 0xffff0000, {v(vU + 4)}",
                f"v_sub_f32 {v(vU + 5)}, {v(vU)}, {v(vU + 5)}",
                f"v_sub_f32 {v(vU + 6)}, {v(vU + 1)}, {v(vU + 6)}",
                f"v_cvt_pk_bf16_f32 {v(vU + 5)}, {v(vU + 5)}, {v(vU + 6)}",
                f"v_perm_b32 {v(vU + 8)}, {v(vU + 5)}, {v(vU + 4)}, {s(sHD)}",
                f"v_perm_b32 {v(vU + 10)}, {v(vU + 4)}, {v(vU + 5)}, {s(sP1 + 1)}",
                f"v_cndmask_b32 {v(vU + 8)}, 0, {v(vU + 8)}, {s(sMASK, 2)}",
                f"v_cndmask_b32 {v(vU + 9)}, 0, {v(vU + 4)}, {s(sMASK, 2)}",
                f"v_cndmask_b32 {v(vU + 10)}, 0, {v(vU + 10)}, {s(sMASK, 2)}",
                f"v_mov_b32 {v(vU + 11)}, 0",
                lambda: t_aug.__setitem__(0, a.lg(f"ds_write_b128 {v(vAGA)}, {v(vU + 8, 4)}"))])

        ev[at[("f", 1, 0, 0)]].append(lambda: emit(fill, 999))
        ev[at[("f", 1, 0, 1)]].append(aug_build)
        gt = {}

        def aug_read():
            emit(fill, 999)
            a.wait(lg=t_aug[0])
            a("s_barrier")
            for q in range(4):
                if q:
                    fill.append(f"v_xor_b32 v8, {q << 10}, {v(vAGA)}")
                fill.append(lambda q=q: gt.__setitem__(q, a.lg(f"ds_read_b128 {v(vTB + 4 * q, 4)}, {v(8 if q else vAGA)}")))

        ev[at[("f", 1, KA - 1, 0)]].append(aug_read)
        ev[at[("g", 0, 28, 0)]].append(lambda: emit(fill, 999))

        def spin_block(L, text):
            self.tail.append([f"{L}:", f"s_mov_b32 {s(sSPIN)}, 0", f"{L}_spin:", text,
                              f"s_add_u32 {s(sSPIN)}, {s(sSPIN)}, 1", f"s_cmp_gt_u32 {s(sSPIN)}, {SPIN_MAX}",
                              "s_cbranch_scc1 L_abort", "s_waitcnt vmcnt(0)", f"v_cmp_ne_u32 vcc, {s(sTAG)}, v9",
                              f"s_cbranch_vccnz {L}_spin", f"s_branch {L}_back"])

        def check(name, text):
            L = a.label("hw")
            hard_wait(None, name)
            a(f"v_cmp_ne_u32 vcc, {s(sTAG)}, v9")
            a(f"s_cbranch_vccnz {L}")
            a(f"{L}_back:")
            spin_block(L, text)

        ctext = f"buffer_load_dword v9, v8, {srd(SWS)}, {s(sT0)} offen sc1"
        ev[at[("f", 0, 17, 0)]].append(lambda: plan("c", 20, FAR, f"s_add_u32 {s(sT0)}, {s(sG)}, 1", f"s_min_u32 {s(sT0)}, {s(sT0)}, 7",
                                                    f"s_lshl_b32 {s(sT0)}, {s(sT0)}, 7", f"s_add_u32 {s(sT0)}, {s(sT0)}, {CFO}",
                                                    f"v_bfe_u32 v8, {v(vL16)}, 2, 7", ctext))
        ev[at[("f", 1, 1, 0)]].append(lambda: check("c", ctext))

        def st_h(rt, q):
            plan(("st", rt, q), 2 * UNIT, LAT, f"s_xor_b32 {s(sT1)}, {s(sT3)}, {q << 10}",
                 f"buffer_store_dwordx4 {v(vH + 4 * q, 4)}, {v(vL16)}, {srd(SWS)}, {s(sT1)} offen{self.st('h')}")
            if q == 3:
                memq.append(f"s_add_u32 {s(sT3)}, {s(sT3)}, {HT_B}")

        def epilogue(rt):
            for q in range(4):
                b, oq = acc + 64 * rt + 16 * q, vH + 4 * q
                for r in range(8):
                    fill.append(f"v_max_f32 {v(b + r)}, 0, {v(b + r)}")
                    fill.append(f"v_mul_f32 {v(b + 8 + r)}, {v(vR2 + rt)}, {v(b + 8 + r)}")
                for r in range(8):
                    fill.append(f"v_mul_f32 {v(b + r)}, {v(b + r)}, {v(b + 8 + r)}")
                for j in range(4):
                    fill.append(f"v_cvt_pk_bf16_f32 {v(oq + j)}, {v(b + 2 * j)}, {v(b + 2 * j + 1)}")
                fill.append(lambda q=q: st_h(rt, q))

        def poll_text(rt):
            return f"buffer_load_dword v9, {v(vFA)}, {srd(SWS)}, {s(sGB)} offen offset:{512 * rt} sc1"

        def handoff(n, rt, must=False):
            hs, fl, pl = ("st", rt, 3), ("fl", rt), ("pl", rt)
            if hs in arr and fl not in arr and (must or (hs in tick and arr[hs] <= sim["T"])):
                hard_wait(None, hs)
                emit(memq, 99)
                a("s_mov_b64 exec, 1")
                plan(fl, 20, LAT, f"buffer_store_dword v11, v10, {srd(SWS)}, {s(sGB)} offen offset:{512 * rt}{self.st('f')}")
                emit(memq, 99)
                a("s_mov_b64 exec, -1")
                if not must:
                    return
            if fl in arr and pl not in arr and (must or arr[fl] + o.get("skew", 100) - LAT <= sim["T"]):
                plan(pl, 20, LAT, poll_text(rt))
                if not must:
                    return
            if pl in arr and gate[rt] is None and (must or (pl in tick and arr[pl] <= sim["T"])):
                check(pl, poll_text(rt))
                gate[rt] = n

        ev[at[("f", 1, KA + 1, 0)]].append(lambda: epilogue(0))
        ev[at[("d", 0, 1, 0)]].append(lambda: epilogue(1))

        def red_write(rt):
            return [f"ds_write_b128 v6, {v(acc + 32 * rt + 4 * i, 4)} offset:{32768 * rt + 1024 * i}" for i in range(8)]

        def red_finish(rt):
            t0, ops, tk = 96, [], {}
            for w in range(4):
                for i in range(2):
                    ops.append(lambda w=w, i=i: tk.__setitem__(w, a.lg(
                        f"ds_read_b128 {v(t0 + 8 * w + 4 * i, 4)}, v5 offset:{32768 * rt + 8192 * w + 1024 * i}")))
            for j in range(4):
                ops.append(f"v_lshlrev_b32 {v(136 + 2 * j)}, 16, {v(vX2 + 4 * rt + j)}")
                ops.append(f"v_and_b32 {v(137 + 2 * j)}, 0xffff0000, {v(vX2 + 4 * rt + j)}")
            ops.append(lambda: a.wait(lg=tk[1]))
            ops += [f"v_add_f32 {v(t0 + r)}, {v(t0 + r)}, {v(t0 + 8 + r)}" for r in range(8)]
            ops.append(lambda: a.wait(lg=tk[3]))
            ops += [f"v_add_f32 {v(t0 + 16 + r)}, {v(t0 + 16 + r)}, {v(t0 + 24 + r)}" for r in range(8)]
            ops += [f"v_add_f32 {v(t0 + r)}, {v(t0 + r)}, {v(t0 + 16 + r)}" for r in range(8)]
            ops += [f"v_fma_f32 {v(t0 + r)}, {v(t0 + r)}, {v(128 + r)}, {v(136 + r)}" for r in range(8)]
            ops += [f"v_cvt_pk_bf16_f32 {v(144 + 4 * rt + j)}, {v(t0 + 2 * j)}, {v(t0 + 2 * j + 1)}" for j in range(4)]
            ops.append(f"buffer_store_dwordx4 {v(144 + 4 * rt, 4)}, v3, {srd(SOUT)}, {s(sXCC)} offen{' sc1' if o.get('out_sc1') else ''}")
            ops.append(f"s_add_u32 {s(sXCC)}, {s(sXCC)}, {TILE_B}")
            return ops

        def red_setup():
            emit(fill, 999)
            emit(memq, 99)
            fill.extend([f"s_lshl_b32 {s(sT0)}, {s(sW)}, 13", f"v_add_u32 v6, {s(sT0)}, {v(vL16)}",
                         f"s_lshl_b32 {s(sT0)}, {s(sCH)}, 12", f"s_lshl_b32 {s(sT1)}, {s(sRT)}, 11",
                         f"s_add_u32 {s(sT0)}, {s(sT0)}, {s(sT1)}", f"v_add_u32 v5, {s(sT0)}, {v(vL16)}"])
            for j in range(4):
                fill.extend([f"v_lshlrev_b32 {v(128 + 2 * j)}, 16, {v(vGBP + j)}",
                             f"v_and_b32 {v(129 + 2 * j)}, 0xffff0000, {v(vGBP + j)}"])

        ev[at[("d", 1, 0, 0)]].append(red_setup)
        ev[at[("d", 1, 3, 0)]].append(lambda: (emit(fill, 999), a("s_barrier")))
        t_rw = [0]
        for i in range(8):
            ev[at[("d", 1, 4 + i, 1)]].append(lambda i=i: t_rw.__setitem__(0, a.lg(red_write(0)[i])))
        ev[at[("d", 1, 14, 0)]].append(lambda: (a.wait(lg=t_rw[0]), a("s_barrier"), fill.extend(red_finish(0))))

        fsteps = [n for n, st in enumerate(steps) if st[0] == "f"]
        wslot = {n: vW + 4 * (i % NSW) for i, n in enumerate(fsteps)}
        wt, wchain = {}, []
        for i, n in enumerate(fsteps):
            _, rt, k, q = steps[n]
            ok = fsteps[i - NSW + 1] if i >= NSW - 1 else -1
            if rt == 0 and k // 2 in bar_at:
                ok = max(ok, bar_at[k // 2] - 1)
            for u in range(2):
                t = f"ds_read_b64_tr_b16 {v(wslot[n] + 2 * u, 2)}, {v(vTQ + q)} offset:{k * 2048 + 512 * u}"
                wchain.append((ok, n, (lambda t=t, n=n: wt.__setitem__(n, a.lg(t))) if u else t))
            if rt == 0 and q == 0 and k >= K0:
                okt = at[("u", 0, k - 4, 0)] if k - 4 >= K0 else -1
                wchain.append((max(ok, okt), n + 1, lambda k=k: rdT(k)))
        LO, HI = o.get("wlo", 3), o.get("whi", 6)

        def wread(n, horizon, maxn):
            done = 0
            while wchain and done < maxn and wchain[0][0] <= n and wchain[0][1] <= n + horizon:
                f = wchain.pop(0)[2]
                f() if callable(f) else a(f)
                done += 1
            return done

        for n in range(o.get("y0", 5)):
            force("y", ("y", n))
        wread(-1, HI, 99)
        stamps = {at[("f", 0, 8, 0)]: 22, at[("f", 1, 0, 0)]: 21, at[("d", 0, 0, 0)]: 23, at[("d", 1, 0, 0)]: 24}
        self.model, self.gaps = {}, []
        g0 = len(a.ins)
        for n, (kind, rt, k, q) in enumerate(steps):
            cur[0] = n
            if n in stamps:
                self.stamp(stamps[n])
                self.model[stamps[n]] = (sim["T"], wd_next[0], sum(x[0] == "h" for x in reg))
            for f in ev[n]:
                f()
            lg, vm = 0, 0
            if kind == "f":
                wread(n - 1, 1, 99)
                m = 28 * rt + k
                d, A = v(acc + 64 * rt + 16 * q, 16), v(wslot[n], 4)
                vm = force("y", ("y", m))
                stall_until(("y", m))
                B, lg = R(reg[("y", m)]), wt[n]
                if lg > a.lg_done and n + 1 in wt:
                    lg = wt[n + 1]
            elif kind == "u":
                wread(n - 1, 1, 99)
                d, A, B, lg = v(vU, 16), v(vTB + 4 * (k % 4), 4), v(wslot[n - 1], 4), ut[k]
            elif kind == "g":
                d, A, B, lg = v(acc + 64 * rt + 16 * q, 16), v(vTB + 4 * q, 4), v(vAUG + 4 * rt, 4), gt[q]
            else:
                m = 28 * rt + k
                if gate[rt] is None:
                    emit(fill, 999)
                    handoff(n, rt, must=True)
                vm = force("h", ("h", m))
                while k not in wd_tr_t:
                    if wd_next[0] <= k and wd_pending[0] is None and not wq2:
                        force("d", ("d", wd_next[0]))
                        stall_until(("d", wd_next[0]))
                        wd_read(must=True)
                    a.wait(vm=need["vm"])
                    wd_queue()
                    emit(wq2, 99)
                stall_until(("h", m))
                d, A, B, lg = v(acc + 32 * rt + 16 * q, 16), a_(8 * k + 4 * q, 4), R(reg[("h", m)]), wd_tr_t[k]
            a.wait(vm=max(vm, need["vm"]), lg=lg)
            wd_queue()
            self.gaps.append(len(a.ins) - g0)
            C = d if (k or kind == "g") else 0
            a(f"v_mfma_f32_32x32x16_bf16 {d}, {A}, {B}, {C}")
            g0 = len(a.ins)
            if kind == "f" and q == 3:
                free_q.append(reg[("y", m)])
                free_q.sort(key=lambda x: (x[0] == "v", -x[1]))
            if n == fsteps[-1]:
                free_q.extend(("v", vW + 4 * i) for i in range(NSW))
            if kind == "d" and q == 1:
                free_q.append(reg[("h", m)])
            sim["T"] += o.get("mfd", 36) if kind == "d" else MF
            handoff(n, 0)
            handoff(n, 1)
            wd_read()
            serve(n)
            nw = 1
            if n + 1 < N and need["vm"] <= a.vm_done:
                k2, r2, s2, q2 = steps[n + 1]
                if k2 == "f" and wt.get(n + 1, 1 << 30) <= a.lg_done and tick.get(("y", 28 * r2 + s2), 1 << 30) <= a.vm_done:
                    nw = 0
                if k2 == "d" and wd_tr_t.get(s2, 1 << 30) <= a.lg_done and tick.get(("h", 28 * r2 + s2), 1 << 30) <= a.vm_done:
                    nw = 0
            room = lambda: GAP - nw - (len(a.ins) - g0)
            wread(n, LO, max(room(), 0))
            if room() > 0:
                emit(fill, min(room(), o.get("fpri", 2)))
            if room() > 0:
                emit(memq, min(room(), 2))
            if room() > 0:
                emit(wq2, min(room(), 2))
            if room() > 0:
                emit(fill, room())
            if room() > 0:
                wread(n, HI, room())
            if room() > 0:
                emit(memq, room())
        emit(fill, 999)
        assert not memq and not wq2 and not any(queues.values())
        self.stamp(18)
        self.model[18] = sim["T"]
        for t in red_write(1):
            a(t)
        a.wait_all(vm=False)
        a("s_barrier")
        for f in red_finish(1):
            f() if callable(f) else a(f)
        self.stamp(19)

    def p45_setup(self, vSTA, vPD, vFA):
        a = self.a
        self.w_dma_pattern(vPD, 8, 896)
        a(f"s_lshl_b32 {s(sT0)}, {s(sCB)}, 7")
        a(f"s_mul_i32 {s(sT1)}, {s(sW)}, {448 * 896}")
        a(f"s_add_u32 {s(sT4)}, {s(sT0)}, {s(sT1)}")
        a(f"s_sub_u32 {s(sT4)}, {s(sT4)}, {16 * 896}")
        a(f"v_add_u32 v0, {8 * 896 - 1024}, {v(vPD)}")
        a(f"s_mul_i32 {s(sTQ)}, {s(sW)}, {2 * TILE_B}")
        a(f"s_add_u32 {s(sTQ)}, {s(sTQ)}, {s(sGB)}")
        a(f"s_add_u32 {s(sTQ)}, {s(sTQ)}, {YO}")
        a(f"v_and_b32 {v(vSTA)}, 0x1f0, {v(vL16)}")
        a(f"v_lshrrev_b32 {v(vSTA)}, 1, {v(vSTA)}")
        a("v_mul_u32_u24 v8, 14336, v4")
        a(f"v_add_u32 {v(vSTA)}, {v(vSTA)}, v8")
        a(f"s_lshl_b32 {s(sT1)}, {s(sW)}, 9")
        a(f"s_add_u32 {s(sT1)}, {s(sT1)}, {s(sGB)}")
        a(f"s_add_u32 {s(sKVL)}, {s(sT1)}, {STO}")
        a(f"s_mov_b32 {s(sP1)}, 0x01000100")
        a(f"s_mov_b32 {s(sP1 + 1)}, 0x07060302")
        a(f"s_mov_b32 {s(sHD)}, 0x05040100")
        a(f"s_mov_b32 {s(sT2)}, 0xffff")
        a(f"s_mov_b32 {s(sMASK)}, -1")
        a(f"s_mov_b32 {s(sMASK + 1)}, 0")
        a(f"s_mul_i32 {s(sT3)}, {s(sW)}, {2 * HT_B + 1024}")
        a(f"s_add_u32 {s(sT3)}, {s(sT3)}, {s(sGB)}")
        a(f"s_lshl_b32 {s(sT1)}, {s(sM)}, 12")
        a(f"s_add_u32 {s(sT3)}, {s(sT3)}, {s(sT1)}")
        a(f"s_add_u32 {s(sT3)}, {s(sT3)}, {HO}")
        a(f"s_mul_i32 {s(sT6)}, {s(sRQ)}, {2 * HT_B}")
        a(f"s_mul_i32 {s(sT1)}, {s(sW)}, {28 * 1024}")
        a(f"s_add_u32 {s(sT6)}, {s(sT6)}, {s(sT1)}")
        a(f"s_add_u32 {s(sT6)}, {s(sT6)}, {s(sGB)}")
        a(f"s_add_u32 {s(sT6)}, {s(sT6)}, {HO}")
        a(f"v_min_u32 {v(vFA)}, 96, {v(vL16)}")
        a(f"s_mul_i32 {s(sT0)}, {s(sW)}, 112")
        a(f"s_lshl_b32 {s(sT1)}, {s(sRQ)}, 2")
        a(f"s_add_u32 {s(sT0)}, {s(sT0)}, {s(sT1)}")
        a(f"s_add_u32 {s(sT0)}, {s(sT0)}, {LFO + 3 * 512}")
        a(f"v_add_u32 {v(vFA)}, {s(sT0)}, {v(vFA)}")
        a(f"s_mul_i32 {s(sT0)}, {s(sRT)}, {TILE_B - 32}")
        a(f"s_sub_u32 {s(sXCC)}, {s(sXCC)}, {s(sT0)}")

    def ln2_stats(self, vST, vAUG, vR2):
        ops = []
        for rt in range(2):
            b = vST + 14 * rt
            for p in range(1, 7):
                ops += [f"v_add_f32 {v(b)}, {v(b)}, {v(b + 2 * p)}", f"v_add_f32 {v(b + 1)}, {v(b + 1)}, {v(b + 2 * p + 1)}"]
            ops += [f"v_mov_b32 {v(b + 2)}, {v(b)}", f"v_mov_b32 {v(b + 3)}, {v(b + 1)}",
                    f"v_permlane32_swap_b32 {v(b + 2)}, {v(b)}", f"v_permlane32_swap_b32 {v(b + 3)}, {v(b + 1)}",
                    f"v_add_f32 {v(b)}, {v(b)}, {v(b + 2)}", f"v_add_f32 {v(b + 1)}, {v(b + 1)}, {v(b + 3)}",
                    f"v_mul_f32 {v(b)}, {f2u(-1 / 448):#x}, {v(b)}",
                    f"v_mul_f32 {v(b + 1)}, {f2u(1 / 448):#x}, {v(b + 1)}",
                    f"v_fma_f32 {v(b + 1)}, -{v(b)}, {v(b)}, {v(b + 1)}",
                    f"v_max_f32 {v(b + 1)}, 0, {v(b + 1)}",
                    f"v_add_f32 {v(b + 1)}, {f2u(1e-5):#x}, {v(b + 1)}",
                    f"v_rcp_f32 {v(vR2 + rt)}, {v(b + 1)}",
                    f"v_sqrt_f32 {v(b + 1)}, {v(b + 1)}",
                    f"v_cvt_pk_bf16_f32 {v(b + 2)}, {v(b)}, {v(b + 1)}",
                    f"v_lshlrev_b32 {v(b + 3)}, 16, {v(b + 2)}",
                    f"v_and_b32 {v(b + 4)}, 0xffff0000, {v(b + 2)}",
                    f"v_sub_f32 {v(b + 3)}, {v(b)}, {v(b + 3)}",
                    f"v_sub_f32 {v(b + 4)}, {v(b + 1)}, {v(b + 4)}",
                    f"v_cvt_pk_bf16_f32 {v(b + 3)}, {v(b + 3)}, {v(b + 4)}",
                    f"v_perm_b32 {v(vAUG + 4 * rt)}, {v(b + 2)}, {v(b + 2)}, {s(sP1)}",
                    f"v_bfi_b32 {v(vAUG + 4 * rt + 1)}, {s(sT2)}, {v(b + 3)}, {v(b + 2)}",
                    f"v_perm_b32 {v(vAUG + 4 * rt + 2)}, {v(b + 3)}, {v(b + 2)}, {s(sP1 + 1)}",
                    f"v_mov_b32 {v(vAUG + 4 * rt + 3)}, 0"]
        return ops

    def helper_tail(self):
        a = self.a
        a("L_helper_tail:")
        a.vm_done, a.lg_done = a.vm_n, a.lg_n
        if self.o.get("hmall", 1):
            row0 = 16 * self.o.get("n_att", 14)
            per = -(-(448 - row0) * 28 // 128)
            a(f"v_lshlrev_b32 v8, 3, {v(vL16)}")
            a(f"s_sub_u32 {s(sT0)}, s2, 224")
            a(f"s_lshl_b32 {s(sT0)}, {s(sT0)}, 2")
            a(f"s_add_u32 {s(sT0)}, {s(sT0)}, {s(sW)}")
            a(f"s_mul_i32 {s(sT1)}, {s(sT0)}, {per * 128}")
            a(f"s_add_u32 {s(sT1)}, {s(sT1)}, {row0 * 3584}")
            a(f"s_mul_i32 {s(sT0)}, {s(sT0)}, {98 * 128}")
            per = min(per, 64)
            a(f"s_mov_b32 exec_hi, {(1 << max(per - 32, 0)) - 1:#x}")
            self.touch(8, SWG, sT1)
            self.touch(8, SWU, sT1)
            a("s_mov_b32 exec_hi, 0x1ffff")
            self.touch(8, SWD, sT0)
            a(f"s_add_u32 {s(sT0)}, {s(sT0)}, {49 * 128}")
            self.touch(8, SWD, sT0)
            a("s_mov_b64 exec, -1")
        if self.o.get("touch_h", 1):
            a(f"v_lshlrev_b32 v8, 3, {v(vL16)}")
            a(f"s_sub_u32 {s(sT0)}, {s(sM)}, 28")
            a(f"s_lshl_b32 {s(sT0)}, {s(sT0)}, 2")
            a(f"s_add_u32 {s(sT0)}, {s(sT0)}, {s(sW)}")
            a(f"s_lshl_b32 {s(sT0)}, {s(sT0)}, 13")
            a(f"s_add_u32 {s(sT0)}, {s(sT0)}, {s(sGB)}")
            a(f"s_add_u32 {s(sT0)}, {s(sT0)}, 0xA8000")
            for i in range(2):
                self.touch(8, SWS, sT0)
                a(f"s_add_u32 {s(sT0)}, {s(sT0)}, {16 * 8192}")
        if self.o.get("hl2", 1):
            a(f"s_sub_u32 {s(sT2)}, {s(sM)}, 28")
            a(f"s_lshl_b32 {s(sT2)}, {s(sT2)}, 2")
            a(f"s_add_u32 {s(sT2)}, {s(sT2)}, {s(sW)}")
            a(f"v_lshlrev_b32 v8, 3, {v(vL16)}")
            row0 = 16 * self.o.get("n_att", 14)
            nins = -(-(448 - row0) * 28 // (64 * 16))
            a(f"s_lshl_b32 {s(sT0)}, {s(sT2)}, 13")
            a(f"s_add_u32 {s(sT0)}, {s(sT0)}, {row0 * 3584}")
            for i in range(nins if self.o.get("hl2_gu", 1) else 0):
                self.touch(8, SWG, sT0)
                self.touch(8, SWU, sT0)
                a(f"s_add_u32 {s(sT0)}, {s(sT0)}, {16 * 8192}")
                a("s_waitcnt vmcnt(2)")
            a(f"s_and_b32 {s(sT0)}, {s(sT2)}, 3")
            a(f"s_mul_i32 {s(sT0)}, {s(sT0)}, {448 * 896}")
            a(f"s_lshr_b32 {s(sT1)}, {s(sT2)}, 2")
            a(f"s_mul_i32 {s(sT1)}, {s(sT1)}, {8 * 896}")
            a(f"s_add_u32 {s(sT0)}, {s(sT0)}, {s(sT1)}")
            a("s_mov_b32 exec_hi, 0x00ffffff")
            for i in range(14 if self.o.get("hl2_d", 1) else 0):
                self.touch(8, SWD, sT0)
                a(f"s_add_u32 {s(sT0)}, {s(sT0)}, {32 * 896}")
                a("s_waitcnt vmcnt(2)")
            a("s_mov_b64 exec, -1")
        if self.o.get("wb", 0) and self.stop is None:
            a(f"s_cmp_lg_u32 {s(sM)}, 28")
            a("s_cbranch_scc1 L_end")
            a(f"s_cmp_lg_u32 {s(sW)}, 0")
            a("s_cbranch_scc1 L_end")
            self.poll_local(self.o.get("wb_phase", 4), 28, 8)
            a("buffer_wbl2 sc1")
            a.wait_all()
        self.finish()

    def body(self, slow):
        self.slow = slow
        a = self.a
        if slow:
            a("L_p1_slow:")
        a.vm_done, a.lg_done = a.vm_n, a.lg_n
        self.p1_gemm()
        self.p2()
        if self.stop == 2:
            return self.finish()
        self.p3()
        if self.stop == 3:
            return self.finish()
        self.p45()
        self.finish()

    def flush_tail(self):
        for blk in self.tail:
            for t in blk:
                self.a(t)
        self.tail = []

    def build(self):
        a = self.a
        self.entry()
        self.p1_front()
        self.body(False)
        self.helper()
        self.helper_tail()
        self.flush_tail()
        a("L_abort:")
        a("s_mov_b64 exec, -1")
        a("L_end:")
        if self.prof:
            a(f"s_lshl_b32 {s(sT0)}, s2, 2")
            a(f"s_add_u32 {s(sT0)}, {s(sT0)}, {s(sW)}")
            a(f"s_lshl_b32 {s(sT0)}, {s(sT0)}, 8")
            a(f"s_add_u32 {s(sT0)}, {s(sT0)}, {PROF}")
            a("s_waitcnt vmcnt(0)")
            self.stamp(20)
            a(f"v_lshrrev_b32 v8, 2, {v(vL16)}")
            a(f"buffer_store_dword {v(vSTAMP)}, v8, {srd(SWS)}, {s(sT0)} offen")
        if self.o.get("diag_cycles"):
            a(f"s_mov_b32 {s(sT0)}, {self.o['diag_cycles'] // 1024}")
            a("L_diag:")
            for i in range(256):
                a(f"v_fma_f32 v{8 + i % 16}, v8, v9, v10")
            a(f"s_sub_u32 {s(sT0)}, {s(sT0)}, 1")
            a(f"s_cmp_lg_u32 {s(sT0)}, 0")
            a("s_cbranch_scc1 L_diag")
        if self.o.get("diag_wall"):
            a("L_diag:")
            a(f"s_memrealtime {s(sST, 2)}")
            a("s_waitcnt lgkmcnt(0)")
            a(f"s_sub_u32 {s(sT0)}, {s(sST)}, s101")
            a(f"s_cmp_lt_u32 {s(sT0)}, {self.o['diag_wall']}")
            a("s_cbranch_scc1 L_diag")
        a("L_exit:")
        a("s_endpgm")
        a("L_fast_end:")
        self.body(True)
        self.flush_tail()
        a("s_endpgm")
        return a.text()


HEADER = """; Fused adaLN block: x + ga*Attn(LN(x)*(1+ca)+sa), then + gb*ReGLU-FFN(LN(.)*(1+cb)+sb); one persistent launch.
; per-launch value derived from ws[0]. Each group checks at run time (HW_REG_XCC_ID) that its members share a die;
; @launch grid=(256,1,1) block=(256,1,1) lds={lds}
.amdgcn_target "amdgcn-amd-amdhsa--gfx950"
.text
.globl {k}
.p2align 8
.type {k},@function
{k}:
"""
FOOTER = """
.section .rodata,"a"
.p2align 6
.amdhsa_kernel {k}
  .amdhsa_next_free_vgpr 512
  .amdhsa_next_free_sgpr 102
  .amdhsa_accum_offset 256
  .amdhsa_group_segment_fixed_size 0
  .amdhsa_kernarg_size 96
  .amdhsa_user_sgpr_count 2
  .amdhsa_user_sgpr_kernarg_segment_ptr 1
  .amdhsa_system_sgpr_workgroup_id_x 1
  .amdhsa_float_denorm_mode_32 3
.end_amdhsa_kernel
"""


def generate(prof=False, stop=None, opts=None):
    g = Gen(prof, stop, opts)
    body = g.build()
    return HEADER.format(k=KNAME, lds=LDS_BYTES) + body + FOOTER.format(k=KNAME), g


if __name__ == "__main__":
    out = sys.argv[1] if len(sys.argv) > 1 else f"cdna_kernels/{NAME}.s"
    opts = dict(kv.split("=") for kv in sys.argv[2:])
    opts = {k: int(x) for k, x in opts.items()}
    text, g = generate(prof=bool(opts.pop("prof", 0)), stop=opts.pop("stop", None), opts=opts)
    open(out, "w").write(text)
    print("wrote", out, len(text), "bytes;", len(g.a.ins), "lines;", g.a.nops, "hazard nops; model", getattr(g, "model", None))
    import collections
    print("gap histogram", sorted(collections.Counter(getattr(g, "gaps", [])).items()))
```

```python
import sys
from asmlib import Asm, v, a_, s

NAME = "adaLN_cond__sliding_block__glu_gated_reglu__prompt"
KNAME = NAME + "_kernel"

TILE_B = 28672
HT_B = 114688
QO, KO, VO, OO, YO, HO, STO, LFO = 0, 0x38000, 0x70000, 0, 0xE0000, 0, 0x118000, 0x11F000
XCCO, MODO, CFO, RFO, PROF = 0x400, 0x1000, 0x4000, 0x8000, 0x100000
WS_BYTES = 0x1200000
OOB = 0x7F000000
SPIN_MAX = 1 << 18

LA, LB, LC, LD = 0, 57344, 114688, 159744
LDS_BYTES = 163840
L_KV = LC
L_XB = LC
L_X2 = LC + 16384
L_AUG = LC + 40960
L_T2 = LD
L_F = LC

SX, SWQKV, SWO, SWG, SWU, SWD, SOUT, SWS, SWMOD, SC = 4, 8, 12, 16, 20, 24, 28, 32, 36, 40
sG, sM, sW, sTAG, sGB, sRQ, sCB, sXCC, sSPIN = 44, 45, 46, 47, 48, 49, 50, 51, 52
sT0, sT1, sT2, sT3, sT4, sT5, sT6, sT7 = 53, 54, 55, 56, 57, 58, 59, 60
sRT, sCH, sTILE = 61, 62, 63
sHD, sB, sWS0, sMISS, sTQ, sKVL, sWSRC, sWO = 36, 37, 38, 39, 40, 41, 42, 43
sMASK = 64
sST = 96
sP0, sP1 = 98, 100

vL16, vSTAMP = 1, 7
vZ = 32
vX2, vGBP = 240, 248

QSCALE = 28 ** -0.5 * 1.4426950408889634


def f2u(x):
    import struct
    return struct.unpack("<I", struct.pack("<f", x))[0]


def srd(i):
    return s(i, 4)


class Gen:
    def __init__(self, prof=False, stop=None, opts=None):
        self.a = Asm()
        self.prof = prof
        self.stop = stop
        self.o = opts or {}
        self.tail = []
        self.slow = False

    def stamp(self, i):
        if self.o.get("diag_wall") and self.o.get("diag_at") == i and not getattr(self, "in_helper", False):
            self.a(f"s_memrealtime {s(sST, 2)}")
            self.a.wait_all(vm=False)
            self.a(f"v_writelane_b32 {v(vSTAMP)}, {s(sST)}, 0")
        if not self.prof:
            return
        only = self.o.get("stamps")
        if only is not None and i != 20 and not (only >> i) & 1:
            return
        a = self.a
        if i == 20:
            a(f"s_memrealtime {s(sST, 2)}")
            a.wait_all(vm=False)
            a(f"v_writelane_b32 {v(vSTAMP)}, {s(sST)}, {i}")
        a(f"s_mem{'real' if self.o.get('rt') else ''}time {s(sST, 2)}")
        a.wait_all(vm=False)
        a(f"v_writelane_b32 {v(vSTAMP)}, {s(sST)}, {32 + i}")

    def dma(self, vaddr, sr, lds_base, lds_off, src_base, src_off, sc1=False, imm=0):
        a = self.a
        lo = lds_off - imm
        if lds_base is None:
            a(f"s_mov_b32 m0, {lo}")
        else:
            a(f"s_add_u32 m0, {s(lds_base)}, {lo}" if lo >= 0 else f"s_sub_u32 m0, {s(lds_base)}, {-lo}")
        if src_off:
            a(f"s_add_u32 {s(sT7)}, {s(src_base)}, {src_off}")
            so = sT7
        else:
            so = src_base
        return a.vm(f"buffer_load_dwordx4 {v(vaddr)}, {srd(sr)}, {s(so)} offen"
                    + (f" offset:{imm}" if imm else "") + (" sc1" if sc1 else "") + " lds")

    def st(self, what=None):
        return " sc1" if self.slow or self.o.get("sc_" + str(what)) else ""

    def poll(self, loads, tagregs, exec_lo=None, exec_hi=None, preloaded=False):
        a = self.a
        L = a.label("poll")
        if exec_lo is not None:
            a(f"s_mov_b32 exec_lo, {exec_lo:#x}")
        if exec_hi is not None:
            a(f"s_mov_b32 exec_hi, {exec_hi:#x}")
        a(f"s_mov_b32 {s(sSPIN)}, 0")
        if not preloaded:
            for t in loads:
                a(t)
        a(f"{L}:")
        a.wait_all(lg=False)
        t0, rest = tagregs[0], list(tagregs[1:])
        if len(tagregs) > 2:
            acc = 255
            a(f"v_xor_b32 {v(acc)}, {s(sTAG)}, {v(t0)}")
            for r in rest:
                a(f"v_bitop3_b32 {v(acc)}, {v(acc)}, {v(r)}, {s(sTAG)} bitop3:0xf6")
            a(f"v_cmp_ne_u32 vcc, 0, {v(acc)}")
        else:
            a(f"v_cmp_ne_u32 vcc, {s(sTAG)}, {v(t0)}")
            for r in rest:
                a(f"v_cmp_ne_u32 {s(sP0, 2)}, {s(sTAG)}, {v(r)}")
                a(f"s_or_b64 vcc, vcc, {s(sP0, 2)}")
        a(f"s_cbranch_vccnz {L}_again")
        if exec_lo is not None or exec_hi is not None:
            a("s_mov_b64 exec, -1")
        self.tail.append([f"{L}_again:"] + list(loads) +
                         [f"s_add_u32 {s(sSPIN)}, {s(sSPIN)}, 1", f"s_cmp_gt_u32 {s(sSPIN)}, {SPIN_MAX}",
                          f"s_cbranch_scc0 {L}", "s_branch L_abort"])

    def check_tags(self, loads, tagregs):
        a = self.a
        L = a.label("chk")
        chk = [f"v_xor_b32 v255, {s(sTAG)}, {v(tagregs[0])}"]
        chk += [f"v_bitop3_b32 v255, v255, {v(r)}, {s(sTAG)} bitop3:0xf6" for r in tagregs[1:]]
        chk += ["v_cmp_ne_u32 vcc, 0, v255"]
        for t in chk:
            a(t)
        a(f"s_cbranch_vccnz {L}")
        a(f"{L}_back:")
        self.tail.append([f"{L}:", f"s_mov_b32 {s(sSPIN)}, 0", f"{L}_spin:"] + list(loads) +
                         [f"s_add_u32 {s(sSPIN)}, {s(sSPIN)}, 1", f"s_cmp_gt_u32 {s(sSPIN)}, {SPIN_MAX}",
                          "s_cbranch_scc1 L_abort", "s_waitcnt vmcnt(0)"] + chk +
                         [f"s_cbranch_vccnz {L}_spin", f"s_branch {L}_back"])

    def local_flag(self, phase, vt, ticket=None):
        a = self.a
        a(f"s_lshl_b32 {s(sT0)}, {s(sM)}, 4")
        a(f"s_lshl_b32 {s(sT1)}, {s(sW)}, 2")
        a(f"s_add_u32 {s(sT0)}, {s(sT0)}, {s(sT1)}")
        a(f"s_add_u32 {s(sT0)}, {s(sT0)}, {LFO + phase * 512}")
        a(f"v_mov_b32 {v(vt)}, {s(sT0)}")
        a(f"v_mov_b32 {v(vt + 1)}, {s(sTAG)}")
        if ticket is None:
            a.wait_all(lg=False)
        else:
            a.wait(vm=ticket)
        a("s_mov_b64 exec, 1")
        a(f"buffer_store_dword {v(vt + 1)}, {v(vt)}, {srd(SWS)}, {s(sGB)} offen{self.st('f')}")
        a("s_mov_b64 exec, -1")

    def poll_local(self, phase, nprod, vt):
        a = self.a
        a(f"v_lshrrev_b32 {v(vt)}, 1, {v(vL16)}")
        a(f"s_add_u32 {s(sT0)}, {s(sGB)}, {LFO + phase * 512}")
        self.poll([f"buffer_load_dwordx2 {v(vt + 2, 2)}, {v(vt)}, {srd(SWS)}, {s(sT0)} offen sc1"], [vt + 2, vt + 3],
                  exec_hi=None if nprod == 32 else 0x00FFFFFF)

    def tr_pattern(self, vd, vt, perm, ct_sgpr=None, ct_imm=0):
        a = self.a
        a(f"v_lshrrev_b32 {v(vt)}, 4, {v(vL16)}")
        a(f"v_bfe_u32 {v(vt + 1)}, {v(vt)}, 2, 2")
        a(f"v_lshrrev_b32 {v(vt + 2)}, 5, {v(vt)}")
        a(f"v_lshl_add_u32 {v(vt + 2)}, {v(vt + 2)}, 3, {v(vt + 1)}")
        a(f"v_lshlrev_b32 {v(vd)}, 7, {v(vt + 2)}")
        a(f"v_lshrrev_b32 {v(vt + 1)}, 1, {v(vt + 1)}")
        a(f"v_lshlrev_b32 {v(vt + 1)}, 6, {v(vt + 1)}")
        if perm:
            a(f"v_and_b32 {v(vt + 2)}, 1, {v(vt)}")
            a(f"v_lshlrev_b32 {v(vt + 2)}, 4, {v(vt + 2)}")
            a(f"v_xor_b32 {v(vt + 1)}, {v(vt + 1)}, {v(vt + 2)}")
            a(f"v_and_b32 {v(vt + 2)}, 2, {v(vt)}")
            a(f"v_lshlrev_b32 {v(vt + 2)}, 2, {v(vt + 2)}")
        else:
            a(f"v_and_b32 {v(vt + 2)}, 3, {v(vt)}")
            a(f"v_lshlrev_b32 {v(vt + 2)}, 3, {v(vt + 2)}")
        a(f"v_xor_b32 {v(vt + 1)}, {v(vt + 1)}, {v(vt + 2)}")
        a(f"v_and_b32 {v(vt + 2)}, 16, {v(vt)}")
        a(f"v_lshlrev_b32 {v(vt + 2)}, 1, {v(vt + 2)}")
        a(f"v_xor_b32 {v(vt + 1)}, {v(vt + 1)}, {v(vt + 2)}")
        if ct_sgpr is not None:
            a(f"s_lshl_b32 {s(sT0)}, {s(ct_sgpr)}, 6")
            a(f"v_xor_b32 {v(vt + 1)}, {s(sT0)}, {v(vt + 1)}")
        elif ct_imm:
            a(f"v_xor_b32 {v(vt + 1)}, {ct_imm * 64}, {v(vt + 1)}")
        a(f"v_add_u32 {v(vd)}, {v(vd)}, {v(vt + 1)}")

    def w_dma_pattern(self, vd, vt, stride, up=False):
        a = self.a
        a(f"v_lshrrev_b32 {v(vt)}, 7, {v(vL16)}")
        a(f"v_mul_u32_u24 {v(vd)}, {stride}, {v(vt)}")
        a(f"v_and_b32 {v(vt)}, 2, {v(vt)}")
        a(f"v_lshlrev_b32 {v(vt)}, 5, {v(vt)}")
        a(f"v_and_b32 {v(vt + 1)}, 0x70, {v(vL16)}")
        a(f"v_xor_b32 {v(vt)}, {v(vt)}, {v(vt + 1)}")
        if up:
            a(f"v_xor_b32 {v(vt)}, 32, {v(vt)}")
        a(f"v_add_u32 {v(vd)}, {v(vd)}, {v(vt)}")

    def tr2(self, dst, vaddr, off):
        f = v if dst[0] == "v" else a_
        self.a.lg(f"ds_read_b64_tr_b16 {f(dst[1], 2)}, {v(vaddr)} offset:{off}")
        return self.a.lg(f"ds_read_b64_tr_b16 {f(dst[1] + 2, 2)}, {v(vaddr)} offset:{off + 512}")

    def both_halves(self, vx, vt, op):
        a = self.a
        a(f"v_mov_b32 {v(vt)}, {v(vx)}")
        a(f"v_permlane32_swap_b32 {v(vt)}, {v(vx)}")
        a(f"{op} {v(vx)}, {v(vx)}, {v(vt)}")

    def finish(self):
        self.a("s_branch L_end")

    def entry(self):
        a = self.a
        KA = 64
        self.ptr = {SX: 0, SWQKV: 1, SWO: 2, SWG: 4, SWU: 5, SWD: 6, SC: 7, SWMOD: 8, SOUT: 9, SWS: 11}
        self.size = {SX: 2048 * 896, SWQKV: 448 * 2688, SWO: 448 * 896, SWG: 448 * 3584, SWU: 448 * 3584,
                     SWD: 1792 * 896, SOUT: 2048 * 896, SWS: WS_BYTES, SWMOD: 448 * 5376, SC: 896}
        a(f"s_load_dwordx16 {s(KA, 16)}, s[0:1], 0")
        a(f"s_load_dwordx8 {s(KA + 16, 8)}, s[0:1], 64")
        a("s_lshr_b32 s3, s2, 8")
        a("s_cbranch_scc1 L_exit")
        if self.prof or self.o.get("diag_wall"):
            a(f"v_mov_b32 {v(vSTAMP)}, 0")
            a(f"s_memrealtime {s(sST, 2)}")
        a("v_lshrrev_b32 v2, 6, v0")
        a("v_and_b32 v3, 63, v0")
        a(f"v_readfirstlane_b32 {s(sW)}, v2")
        a(f"s_getpc_b64 {s(sP0, 2)}")
        a("L_pc:")
        a(f"s_lshr_b32 {s(sM)}, s2, 3")
        a(f"s_lshl2_add_u32 {s(sT0)}, {s(sM)}, {s(sW)}")
        a(f"s_lshl_b32 {s(sT0)}, {s(sT0)}, 9")
        a(f"v_lshl_add_u32 v4, v3, 7, {s(sT0)}")
        a("v_min_u32 v4, L_fast_end-L_pc-4, v4")
        a("s_mov_b64 exec, 15")
        a.vm(f"global_load_dword {a_(255)}, v4, {s(sP0, 2)}")
        a("s_mov_b64 exec, -1")
        a(f"v_lshlrev_b32 {v(vL16)}, 4, v3")
        a(f"s_and_b32 {s(sG)}, s2, 7")
        a(f"s_mul_i32 {s(sRQ)}, {s(sM)}, 37")
        a(f"s_lshr_b32 {s(sRQ)}, {s(sRQ)}, 8")
        a(f"s_cmp_ge_u32 {s(sM)}, 28")
        a("s_cbranch_scc1 L_helper0")

    def make_srd(self, *rs):
        for r in rs:
            self.a(f"s_mov_b64 {s(r, 2)}, {s(64 + 2 * self.ptr[r], 2)}")
            self.a(f"s_mov_b32 {s(r + 2)}, {self.size[r]:#x}")
            self.a(f"s_mov_b32 {s(r + 3)}, 0x20000")

    def first_stamp(self):
        a = self.a
        if self.prof:
            a(f"v_writelane_b32 {v(vSTAMP)}, {s(sST)}, 0")
            a(f"s_mem{'real' if self.o.get('rt') else ''}time {s(sST, 2)}")
            a("s_waitcnt lgkmcnt(0)")
            a(f"v_writelane_b32 {v(vSTAMP)}, {s(sST)}, 32")
        if self.o.get("diag_wall"):
            a(f"v_writelane_b32 {v(vSTAMP)}, {s(sST)}, 0")

    def common_setup(self, done):
        a = self.a
        self.make_srd(*[r for r in (SWS, SX, SWQKV, SWO, SWG, SWU, SWD, SOUT) if r not in done])
        a(f"s_load_dword {s(sTAG)}, {s(SWS, 2)}, 0")
        a(f"s_getreg_b32 {s(sXCC)}, hwreg(HW_REG_XCC_ID, 0, 4)")
        a(f"s_add_u32 {s(sGB)}, {s(sG)}, 1")
        a(f"s_lshl_b32 {s(sGB)}, {s(sGB)}, 21")
        a(f"s_mul_i32 {s(sT0)}, {s(sRQ)}, 7")
        a(f"s_sub_u32 {s(sCB)}, {s(sM)}, {s(sT0)}")
        a(f"s_lshr_b32 {s(sRT)}, {s(sW)}, 1")
        a(f"s_and_b32 {s(sCH)}, {s(sW)}, 1")
        a(f"s_lshl1_add_u32 {s(sTILE)}, {s(sRQ)}, {s(sRT)}")
        if self.o.get("tlb", 0):
            a(f"s_sub_u32 {s(sT0)}, {s(sGB)}, 0x200000")
            a(f"s_cmp_eq_u32 {s(sW)}, 3")
            a("s_cselect_b64 exec, 1, 0")
            for r in (SWO, SWG, SWU, SWD, SOUT):
                a(f"buffer_load_dword {a_(255)}, {v(vL16)}, {srd(r)}, 0 offen")
            a(f"buffer_load_dword {a_(255)}, {v(vL16)}, {srd(SWS)}, {s(sGB)} offen")
            a(f"buffer_load_dword {a_(255)}, {v(vL16)}, {srd(SWS)}, {s(sT0)} offen")
            a("s_mov_b64 exec, -1")

    def warm0(self):
        a = self.a
        a(f"s_lshl2_add_u32 s3, s2, {s(sW)}")
        a("v_lshlrev_b32 v4, 7, v3")
        a(f"s_lshr_b32 {s(sT3)}, s3, 1")
        a(f"s_and_b32 {s(sT1)}, s3, 1")
        a(f"s_mul_i32 {s(sT1)}, {s(sT1)}, 896")
        a(f"s_mul_i32 {s(sT0)}, {s(sT3)}, 5376")
        a(f"s_add_u32 {s(sT0)}, {s(sT0)}, {s(sT1)}")
        a(f"s_mul_i32 {s(sT3)}, {s(sT3)}, 2688")
        a(f"s_add_u32 {s(sT1)}, {s(sT1)}, {s(sT3)}")
        a(f"s_and_b32 {s(sT3)}, s3, 511")
        a(f"s_lshl_b32 {s(sT3)}, {s(sT3)}, 7")
        a("s_mov_b64 exec, 0x7f")
        if self.o.get("warm0", 1) & 1:
            a(f"buffer_load_dword {a_(255)}, v4, {srd(SWMOD)}, {s(sT0)} offen")
        a(f"buffer_load_dword {a_(255)}, v4, {srd(SWQKV)}, {s(sT1)} offen offset:896")
        a("s_mov_b64 exec, 1")
        a(f"buffer_load_dword {a_(255)}, v4, {srd(SWS)}, {s(sT3)} offen")
        a("s_mov_b64 exec, -1")

    def touch(self, vaddr, sr, soff, lanes=64):
        a = self.a
        if lanes < 64:
            a(f"s_mov_b64 exec, {(1 << lanes) - 1:#x}")
        t = a.vm(f"buffer_load_dword {a_(255)}, {v(vaddr)}, {srd(sr)}, {s(soff)} offen")
        if lanes < 64:
            a("s_mov_b64 exec, -1")
        return t

    def make_tag_and_publish_xcc(self, vt):
        a = self.a
        a.wait_all(vm=False)
        a(f"s_mul_i32 {s(sTAG)}, {s(sTAG)}, 1664525")
        a(f"s_add_u32 {s(sTAG)}, {s(sTAG)}, 1013904223")
        a(f"s_lshl_b32 {s(sT0)}, {s(sG)}, 8")
        a(f"s_lshl_b32 {s(sT1)}, {s(sM)}, 3")
        a(f"s_add_u32 {s(sT0)}, {s(sT0)}, {s(sT1)}")
        a(f"v_mov_b32 {v(vt)}, {s(sXCC)}")
        a(f"v_mov_b32 {v(vt + 1)}, {s(sTAG)}")
        a(f"v_mov_b32 {v(vt + 2)}, {XCCO}")
        a(f"s_cmp_eq_u32 {s(sW)}, 0")
        a("s_cselect_b64 exec, 1, 0")
        a.vm(f"buffer_store_dwordx2 {v(vt, 2)}, {v(vt + 2)}, {srd(SWS)}, {s(sT0)} offen sc1")
        a("s_mov_b64 exec, -1")

    def xcc_load(self, vaddr, vd):
        a = self.a
        a(f"v_and_b32 {v(vaddr)}, 0x1f0, {v(vL16)}")
        a(f"v_lshrrev_b32 {v(vaddr)}, 1, {v(vaddr)}")
        a(f"s_lshl_b32 {s(sT6)}, {s(sG)}, 8")
        return f"buffer_load_dwordx2 {v(vd, 2)}, {v(vaddr)}, {srd(SWS)}, {s(sT6)} offen offset:{XCCO} sc1"

    def choose_mode(self, vd, slow_label):
        a = self.a
        a(f"v_cmp_ne_u32 vcc, {s(sXCC)}, {v(vd)}")
        if self.o.get("force_slow"):
            a(f"s_branch {slow_label}")
        else:
            a(f"s_cbranch_vccnz {slow_label}")

    def p1_front(self):
        a = self.a
        vPW, vRAW, vS, vQ2 = 6, 160, 224, 240
        a(f"v_mov_b32 v5, {OOB}")
        a("v_cmp_gt_u32 vcc, 56, v3")
        a(f"s_lshl2_add_u32 {s(sT2)}, {s(sG)}, {s(sRQ)}")
        a(f"s_lshl2_add_u32 {s(sT2)}, {s(sT2)}, {s(sW)}")
        a(f"s_mul_i32 {s(sT2)}, {s(sT2)}, {16 * 896}")
        a(f"v_cndmask_b32 v5, v5, {v(vL16)}, vcc")
        a(f"s_mul_i32 {s(sT0)}, {s(sRQ)}, 7")
        a(f"s_sub_u32 {s(sCB)}, {s(sM)}, {s(sT0)}")
        a(f"s_lshl_b32 {s(sT0)}, {s(sCB)}, 7")
        a("v_mul_u32_u24 v4, 896, v3")
        a(f"s_add_u32 {s(sT0)}, {s(sT0)}, {s(sT2)}")
        a("s_waitcnt lgkmcnt(0)")
        self.first_stamp()
        self.make_srd(SX)
        if self.o.get("xt", 1):
            a("s_mov_b64 exec, 0xffff")
            a(f"buffer_load_dword {a_(255)}, v4, {srd(SX)}, {s(sT0)} offen")
            a("s_mov_b64 exec, -1")
        tx = []

        def ldx():
            r = len(tx)
            if r < 16:
                if r and r % 4 == 0:
                    a(f"s_add_u32 {s(sT2)}, {s(sT2)}, {4 * 896}")
                tx.append(a.vm(f"buffer_load_dwordx4 {v(vRAW + 4 * r, 4)}, v5, {srd(SX)}, {s(sT2)} offen offset:{(r % 4) * 896}"))

        xf = self.o.get("x_first", 8)
        for r in range(self.o.get("x_pre", 4)):
            ldx()
        self.make_srd(SWMOD, SWQKV, SWS)
        if self.o.get("warm0", 1):
            self.warm0()
        while len(tx) < xf:
            ldx()
        self.stamp(28)
        a("s_branch L_front")
        self.helper_first_loads()
        a("L_front:")
        self.common_setup((SX, SWQKV, SWS))
        self.w_dma_pattern(vPW, 8, 2688)
        a(f"s_mul_i32 {s(sT0)}, {s(sW)}, {8 * 2688}")
        a(f"s_lshl_b32 {s(sT1)}, {s(sCB)}, 7")
        a(f"s_add_u32 {s(sT4)}, {s(sT0)}, {s(sT1)}")
        a(f"s_lshl_b32 {s(sT5)}, {s(sW)}, 10")
        self.tr_pattern(2, 8, True, ct_sgpr=sCH)
        self.tr_pattern(4, 8, False, ct_sgpr=sCH)
        a(f"v_add_u32 v3, {LC}, v4")
        a(f"v_add_u32 v2, {LB}, v2")
        self.w1_prepare()
        a(f"s_mul_i32 {s(sT0)}, {s(sRT)}, {TILE_B}")
        a(f"s_lshl_b32 {s(sT1)}, {s(sCH)}, 8")
        a(f"s_add_u32 {s(sT1)}, {s(sT1)}, {s(sT0)}")
        a(f"v_lshlrev_b32 v16, 5, {v(vL16)}")
        a(f"v_and_b32 v12, 0x70, {v(vL16)}")
        a(f"v_add3_u32 v16, v16, v12, {s(sT1)}")
        a(f"v_cmp_gt_u32 vcc, 896, {v(vL16)}")
        a("v_mov_b32 v12, 0x100000")
        a("v_cndmask_b32 v16, v12, v16, vcc")
        for r in range(1, 8):
            a(f"v_xor_b32 {v(16 + r)}, {16 * r}, v16")
        a(f"v_lshrrev_b32 v12, 9, {v(vL16)}")
        a("v_lshlrev_b32 v12, 4, v12")
        a(f"v_xor_b32 v12, v12, {v(vL16)}")
        a(f"v_add_u32 v8, {s(sT0)}, v12")
        for q in range(1, 4):
            a(f"v_xor_b32 {v(8 + q)}, {32 * q}, v8")
        a(f"v_min_u32 v30, 880, {v(vL16)}")
        a("v_lshlrev_b32 v30, 1, v30")
        xl = self.xcc_load(31, 14)
        wq = [(sT5, LA + i * 4096, sT4, 1792 + (12 + i) * 32 * 2688) for i in range(2)]
        for i in range(14):
            wq.append((sT5, LB + i * 4096, sT4, 896 + i * 32 * 2688))
            if i < 12:
                wq.append((sT5, LC + i * 4096, sT4, 1792 + i * 32 * 2688))
        n_early = self.o.get("n_early", 28)
        wt = []

        def wdma(n=1):
            for _ in range(n):
                if len(tx) < 16:
                    ldx()
                elif wq and (len(wt) < n_early or n == 99):
                    lb, lo, sb, so = wq.pop(0)
                    wt.append(self.dma(vPW, SWQKV, lb, lo, sb, so))

        a("s_mov_b32 s36, 0xffff0000")
        a("s_mov_b32 s37, 0x3f803f80")
        self.stamp(29)
        for r in range(16):
            a.wait(vm=tx[r])
            if r == 0:
                self.stamp(1)
            if r == self.o.get("tag_r", 6):
                self.make_tag_and_publish_xcc(12)
            if r == self.o.get("mq_r", 9) and self.o.get("mq", 1):
                a("s_mov_b64 exec, 15")
                a(f"buffer_load_dword {a_(255)}, v29, {srd(SWQKV)}, 0 offen")
                a(f"buffer_load_dword {a_(255)}, v28, {srd(SWO)}, 0 offen")
                R = self.o.get("pf_rows", 0)
                if R and self.o.get("pf_mall", 1):
                    a(f"s_mov_b64 exec, {(1 << (R // 32)) - 1}")
                    a(f"buffer_load_dword {a_(255)}, v253, {srd(SWG)}, 0 offen")
                    a(f"buffer_load_dword {a_(255)}, v253, {srd(SWU)}, 0 offen")
                a("s_mov_b64 exec, -1")
            raw, z = vRAW + 4 * r, vZ + 8 * r
            for j in range(4):
                a(f"v_dot2_f32_bf16 {v(vS + r)}, {v(raw + j)}, s37, {v(vS + r) if j else 0}")
                a(f"v_dot2_f32_bf16 {v(vQ2 + r)}, {v(raw + j)}, {v(raw + j)}, {v(vQ2 + r) if j else 0}")
                a(f"v_lshlrev_b32 {v(z + 2 * j)}, 16, {v(raw + j)}")
                a(f"v_and_b32 {v(z + 2 * j + 1)}, s36, {v(raw + j)}")
                if j == 0 or (j == 2 and r < self.o.get("x_fast", 6)):
                    wdma(1)
        self.stamp(30)
        for i in range(16):
            a(f"v_permlane32_swap_b32 {v(vS + i)}, {v(vQ2 + i)}")
        wdma(1)
        for i in range(16):
            a(f"v_add_f32 {v(vS + i)}, {v(vS + i)}, {v(vQ2 + i)}")
        wdma(1)
        for i in range(8):
            a(f"v_permlane16_swap_b32 {v(vS + i)}, {v(vS + 8 + i)}")
        for i in range(8):
            a(f"v_add_f32 {v(vS + i)}, {v(vS + i)}, {v(vS + 8 + i)}")
        wdma(1)
        for sh in (8, 4, 2, 1):
            for i in range(8):
                a(f"v_add_f32_dpp {v(vS + i)}, {v(vS + i)}, {v(vS + i)} row_ror:{sh} row_mask:0xf bank_mask:0xf")
            if sh in (4, 1):
                wdma(1)
        a(f"s_mov_b32 {s(sP0)}, 0x02020202")
        a(f"s_mov_b32 {s(sP0 + 1)}, {s(sP0)}")
        for j in range(1, 8):
            a(f"v_cndmask_b32 {v(vS)}, {v(vS)}, {v(vS + j)}, {s(sP0, 2)}")
            a(f"s_lshl_b64 {s(sP0, 2)}, {s(sP0, 2)}, 1")
        wdma(1)
        a(f"v_mov_b32 v12, {v(vS)}")
        a(f"v_permlane32_swap_b32 v12, {v(vS)}")
        a(f"v_mul_f32 v12, {f2u(1 / 448):#x}, v12")
        a(f"v_mul_f32 v13, {f2u(1 / 448):#x}, {v(vS)}")
        a("v_fma_f32 v13, -v12, v12, v13")
        a("v_max_f32 v13, 0, v13")
        a(f"v_add_f32 v13, {f2u(1e-5):#x}, v13")
        a("v_rsq_f32 v13, v13")
        a("v_mul_f32 v12, v12, v13")
        a("v_sub_f32 v12, 0, v12")
        wdma(1)
        for r in range(16):
            ln = 16 * (r >> 3) + (r & 7)
            a(f"v_readlane_b32 {s(sMASK + 2 * r)}, v13, {ln}")
            a(f"v_readlane_b32 {s(sMASK + 2 * r + 1)}, v12, {ln}")
            if r % 8 == 7:
                wdma(1)
        g0 = vRAW
        a(f"s_mov_b32 {s(sT0)}, {MODO}")
        loads = [f"buffer_load_dwordx4 {v(g0 + 4 * i, 4)}, v30, {srd(SWS)}, {s(sT0)} offen offset:{(i >> 1) * 1792 + (i & 1) * 16} sc1"
                 for i in range(4)] + [xl]
        tags = [g0 + 2 * i + 1 for i in range(8)] + [15]
        wdma(28)
        for t in loads:
            a(t)
        a.wait(vm=wt[1])
        a("s_barrier")
        for k in range(4):
            self.tr2(("a", 4 * k), 4, k * 2048)
        for r in range(16):
            p = s(sMASK + 2 * r, 2)
            for j in range(4):
                z = v(vZ + 8 * r + 2 * j, 2)
                a(f"v_pk_fma_f32 {z}, {z}, {p}, {p} op_sel:[0,0,1] op_sel_hi:[1,0,1]")
        a.wait_all(vm=False)
        a("s_barrier")
        self.stamp(2)
        self.poll(loads, tags, preloaded=True)
        self.stamp(3)
        early_touch = not wq
        if early_touch:
            self.w1_touch()
        vG, vB = g0 + 16, g0 + 24
        for j in range(4):
            a(f"v_lshlrev_b32 {v(vG + 2 * j)}, 16, {v(g0 + 8 + 2 * j)}")
            a(f"v_and_b32 {v(vG + 2 * j + 1)}, 0xffff0000, {v(g0 + 8 + 2 * j)}")
            a(f"v_lshlrev_b32 {v(vB + 2 * j)}, 16, {v(g0 + 2 * j)}")
            a(f"v_and_b32 {v(vB + 2 * j + 1)}, 0xffff0000, {v(g0 + 2 * j)}")
        for j in range(8):
            a(f"v_add_f32 {v(vG + j)}, 1.0, {v(vG + j)}")
        for j in range(4):
            a(f"v_cvt_pk_bf16_f32 {v(g0 + j)}, {v(vG + 2 * j)}, {v(vG + 2 * j + 1)}")
        for j in range(4):
            a(f"v_lshlrev_b32 {v(vG + 2 * j)}, 16, {v(g0 + j)}")
            a(f"v_and_b32 {v(vG + 2 * j + 1)}, 0xffff0000, {v(g0 + j)}")
        for r in range(16):
            z = vZ + 8 * r
            for j in range(4):
                a(f"v_pk_fma_f32 {v(z + 2 * j, 2)}, {v(z + 2 * j, 2)}, {v(vG + 2 * j, 2)}, {v(vB + 2 * j, 2)}")
            for j in range(4):
                a(f"v_cvt_pk_bf16_f32 {v(z + j)}, {v(z + 2 * j)}, {v(z + 2 * j + 1)}")
            a(f"ds_write_b128 {v(16 + (r & 7))}, {v(z, 4)} offset:{(r >> 3) * 128}")
            if wq:
                lb, lo, sb, so = wq.pop(0)
                self.t_wlate = self.dma(vPW, SWQKV, lb, lo, sb, so)
        self.n_after = a.vm_n
        if not early_touch:
            self.w1_touch()
        self.n_after = 63 if early_touch else a.vm_n - self.n_after
        a.wait_all(vm=False)
        a("s_barrier")
        self.stamp(26)
        self.choose_mode(14, "L_p1_slow")

    def w1_prepare(self):
        a = self.a
        a(f"v_lshrrev_b32 v24, 4, {v(vL16)}")
        a(f"s_lshl_b32 {s(sT0)}, {s(sRQ)}, 2")
        a(f"s_add_u32 {s(sT0)}, {s(sT0)}, {s(sW)}")
        a(f"s_mul_i32 {s(sT0)}, {s(sT0)}, 28")
        a(f"v_add_u32 v25, {s(sT0)}, v24")
        a("v_mul_u32_u24 v26, 2688, v25")
        a("v_mul_u32_u24 v25, 896, v25")
        a(f"s_lshl_b32 s3, {s(sCB)}, 7")
        a(f"s_mul_i32 {s(sT0)}, {s(sTILE)}, {TILE_B}")
        a(f"s_add_u32 {s(sT0)}, {s(sT0)}, {s(sGB)}")
        a(f"s_lshl_b32 {s(sT1)}, {s(sCB)}, 1")
        a(f"s_add_u32 {s(sT1)}, {s(sT1)}, {s(sCH)}")
        a(f"s_lshl_b32 {s(sT1)}, {s(sT1)}, 11")
        a(f"s_add_u32 {s(sT0)}, {s(sT0)}, {s(sT1)}")
        a(f"v_lshl_add_u32 v27, v24, 7, {s(sT0)}")
        a(f"s_lshl2_add_u32 {s(sT1)}, s2, {s(sW)}")
        a(f"s_lshr_b32 {s(sT0)}, {s(sT1)}, 1")
        a(f"s_and_b32 {s(sT1)}, {s(sT1)}, 1")
        a(f"s_mul_i32 {s(sT1)}, {s(sT1)}, 384")
        a(f"v_lshl_add_u32 v28, v24, 7, {s(sT1)}")
        a(f"s_mul_i32 {s(sT1)}, {s(sT0)}, 2688")
        a(f"v_add_u32 v29, {s(sT1)}, v28")
        a(f"s_mul_i32 {s(sT1)}, {s(sT0)}, 896")
        a(f"v_add_u32 v28, {s(sT1)}, v28")
        R = self.o.get("pf_rows", 0)
        if R:
            a(f"s_lshl2_add_u32 {s(sT1)}, s2, {s(sW)}")
            a(f"s_mul_i32 {s(sT1)}, {s(sT1)}, {R // 32 * 128}")
            a(f"v_lshl_add_u32 v253, v24, 7, {s(sT1)}")
            a(f"s_mul_i32 {s(sT0)}, {s(sW)}, {R // 4 * 3584}")
            a(f"s_lshl_b32 {s(sT1)}, {s(sM)}, 7")
            a(f"s_add_u32 s38, {s(sT0)}, {s(sT1)}")
            a("v_mul_u32_u24 v24, 3584, v24")

    def w1_touch(self):
        a = self.a
        if self.o.get("pf_qo", 1):
            a("s_mov_b64 exec, 0x0fffffff")
            a(f"buffer_load_dword {a_(255)}, v26, {srd(SWQKV)}, s3 offen")
            a(f"buffer_load_dword {a_(255)}, v25, {srd(SWO)}, s3 offen")
            a("s_mov_b64 exec, -1")
        if self.o.get("touch_q", 1):
            a("s_mov_b64 exec, 0xffff")
            a(f"buffer_load_dword {a_(255)}, v27, {srd(SWS)}, 0 offen")
            a("s_mov_b64 exec, -1")
        R = self.o.get("pf_rows", 0)
        if R:
            m = (1 << (R // 4)) - 1
            a(f"s_mov_b32 exec_lo, {m & 0xffffffff:#x}")
            a(f"s_mov_b32 exec_hi, {m >> 32:#x}")
            a(f"buffer_load_dword {a_(255)}, v24, {srd(SWG)}, s38 offen")
            a(f"buffer_load_dword {a_(255)}, v24, {srd(SWU)}, s38 offen")
            a("s_mov_b64 exec, -1")

    def p1_gemm(self):
        a = self.a
        vTK, vTV, vPW = 2, 3, 6
        vH1, cK, cV, cQ, vW = 32, 144, 160, 176, 192
        ht, wt = {}, {}

        def rdH(k):
            ht[k] = a.lg(f"ds_read_b128 {v(vH1 + 4 * k, 4)}, {v(8 + (k & 3))} offset:{k * 1024}")

        def rdW(kind, k):
            if kind == "v" and k >= 24:
                wt[(kind, k)] = (a_(4 * (k - 24), 4), 0)
                return
            slot = vW + 4 * ((2 * k + (kind == "v")) % 16)
            wt[(kind, k)] = (v(slot, 4), self.tr2(("v", slot), vTK if kind == "k" else vTV, k * 2048))

        def store_addresses():
            a(f"s_mul_i32 {s(sT0)}, {s(sTILE)}, {TILE_B}")
            a(f"s_lshl_b32 {s(sT1)}, {s(sCB)}, 1")
            a(f"s_add_u32 {s(sT1)}, {s(sT1)}, {s(sCH)}")
            a(f"s_lshl_b32 {s(sT2)}, {s(sT1)}, 11")
            a(f"s_add_u32 {s(sT2)}, {s(sT2)}, {s(sT0)}")
            a(f"s_lshl_b32 {s(sT1)}, {s(sT1)}, 9")
            a(f"s_add_u32 {s(sT1)}, {s(sT1)}, {s(sT0)}")
            a(f"s_add_u32 {s(sT2)}, {s(sT2)}, {s(sGB)}")
            a(f"s_add_u32 {s(sT3)}, {s(sT2)}, {KO}")
            a(f"s_add_u32 {s(sT1)}, {s(sT1)}, {s(sGB)}")
            a(f"s_add_u32 {s(sT0)}, {s(sT1)}, {VO}")
            a(f"v_lshrrev_b32 v4, 9, {v(vL16)}")
            a("v_mul_u32_u24 v4, 7168, v4")
            a(f"v_and_b32 v5, 0x1f0, {v(vL16)}")
            a("v_add_u32 v4, v4, v5")
            a("v_add_u32 v5, 14336, v4")
            a(f"v_subrev_u32 v31, {LB - LA}, {v(vTK)}")
            self.w_dma_pattern(30, 24, 896)
            a(f"s_mul_i32 {s(sWO)}, {s(sW)}, {8 * 896}")
            a(f"s_lshl_b32 {s(sT6)}, {s(sCB)}, 7")
            a(f"s_add_u32 {s(sWO)}, {s(sWO)}, {s(sT6)}")

        fill = self.capture(store_addresses)
        LOOK = 2
        hn = [0]

        def moreH(n):
            for _ in range(n):
                if hn[0] < 28:
                    rdH(hn[0])
                    hn[0] += 1

        wqn = [0]

        def wq_dma():
            if wqn[0] < 14:
                self.t_wq = self.dma(vPW, SWQKV, sT5, LA + wqn[0] * 4096, sT4, wqn[0] * 32 * 2688)
                wqn[0] += 1

        for k in range(LOOK):
            moreH(1); rdW("k", k); rdW("v", k)
        for k in range(28):
            h = v(vH1 + 4 * k, 4)
            if k == 14:
                a.wait(lg=ht[27])
                a(f"s_waitcnt vmcnt({self.n_after})")
                a("s_barrier")
            moreH(1)
            if k + LOOK < 28:
                rdW("k", k + LOOK)
            reg, t = wt[("k", k)]
            a.wait(lg=max(t, ht[k]))
            a(f"v_mfma_f32_32x32x16_bf16 {v(cK, 16)}, {reg}, {h}, {v(cK, 16) if k else 0}")
            moreH(1)
            if k + LOOK < 28:
                rdW("v", k + LOOK)
            if k >= 14 and k % 2 == 0:
                wq_dma()
            reg, t = wt[("v", k)]
            a.wait(lg=t)
            a(f"v_mfma_f32_32x32x16_bf16 {v(cV, 16)}, {h}, {reg}, {v(cV, 16) if k else 0}")
            if k >= 14:
                wq_dma()
            if k >= 16 or k < 4:
                for _ in range(2):
                    if fill:
                        a(fill.pop(0))
        assert not fill and wqn[0] == 14

        def pack(acc, b):
            for j in range(4):
                a(f"v_cvt_pk_bf16_f32 {v(acc + 8 * b + j)}, {v(acc + 8 * b + 2 * j)}, {v(acc + 8 * b + 2 * j + 1)}")
            return v(acc + 8 * b, 4)

        for b in range(2):
            a.vm(f"buffer_store_dwordx4 {pack(cK, b)}, {v(vL16)}, {srd(SWS)}, {s(sT3)} offen offset:{b * 1024} sc1")
        for b in range(2):
            t_kv = a.vm(f"buffer_store_dwordx4 {pack(cV, b)}, {v(4 + b)}, {srd(SWS)}, {s(sT0)} offen sc1")
        self.stamp(17)
        a.wait(vm=self.t_wq)
        a("s_barrier")
        self.stamp(4)

        def rdQ(k):
            slot = vW + 4 * (k % 8)
            wt[("q", k)] = (v(slot, 4), self.tr2(("v", slot), 31, k * 2048))

        for k in range(4):
            rdQ(k)
        fill = [f"s_lshl_b32 s3, {s(sG)}, 5", f"s_add_u32 s3, s3, {s(sM)}", "s_lshl_b32 s3, s3, 7",
                f"v_mov_b32 v10, {RFO}", f"v_mov_b32 v11, {s(sTAG)}"]
        fill += self.capture(self.p2_setup)
        early = self.p3_early_loads()
        fill += [g for g in early if not g.startswith("buffer_")]
        self.early = [g for g in early if g.startswith("buffer_")]
        kf = self.o.get("kvf", 24)
        won = [0]

        def wo_dma():
            if won[0] < 14:
                self.dma(6, SWO, sT5, LB + won[0] * 4096, sWO, won[0] * 32 * 896)
                won[0] += 1

        def kv_flag():
            a.wait(vm=t_kv)
            a("s_barrier")
            a(f"s_cmp_eq_u32 {s(sW)}, 0")
            a("s_cselect_b64 exec, 1, 0")
            a.vm(f"buffer_store_dword v11, v10, {srd(SWS)}, s3 offen sc1")
            a("s_mov_b64 exec, -1")
            self.stamp(16)

        a("v_mov_b32 v6, v30")
        for k in range(28):
            if k == kf:
                kv_flag()
            if k + 4 < 28:
                rdQ(k + 4)
            reg, t = wt[("q", k + 1 if k % 2 == 0 else k)]
            a.wait(lg=t)
            reg, t = wt[("q", k)]
            a(f"v_mfma_f32_32x32x16_bf16 {v(cQ, 16)}, {reg}, {v(vH1 + 4 * k, 4)}, {v(cQ, 16) if k else 0}")
            if (k % 4 == 1 and won[0] < self.o.get("wo0", 5)) or k > kf:
                wo_dma()
            else:
                for _ in range(self.o.get("fillq", 4)):
                    if fill:
                        a(fill.pop(0))
        a(f"s_mov_b32 {s(sT3)}, {f2u(QSCALE):#x}")
        for _ in range(8):
            if fill:
                a(fill.pop(0))
        for r in range(16):
            a(f"v_mul_f32 {v(cQ + r)}, {s(sT3)}, {v(cQ + r)}")
        for b in range(2):
            t_q = a.vm(f"buffer_store_dwordx4 {pack(cQ, b)}, {v(vL16)}, {srd(SWS)}, {s(sT2)} offen offset:{b * 1024}{self.st('q')}")
        if kf >= 28:
            kv_flag()
        self.stamp(5)
        while won[0] < 14:
            wo_dma()
        for g in fill:
            a(g)
        self.local_flag(0, 8, ticket=t_q)
        self.stamp(31)
        self.ones_prefill()
        self.tr_pattern(2, 8, True)
        a(f"s_mul_i32 {s(sT0)}, {s(sCH)}, {14 * 2048}")
        a(f"s_add_u32 {s(sT0)}, {s(sT0)}, {LB}")
        a(f"v_add_u32 v2, {s(sT0)}, v2")
        self.stamp(27)

    def capture(self, fn):
        n = len(self.a.ins)
        fn()
        lines = []
        for i in self.a.ins[n:]:
            assert i.kind in ("valu", "salu", "trans")
            if i.op.startswith("s_cselect"):
                lines[-1] += "\n" + i.text
            else:
                lines.append(i.text)
        del self.a.ins[n:]
        return lines

    def helper_first_loads(self):
        a = self.a
        n0 = a.vm_n
        sJ = sT4
        a("L_helper0:")
        a("v_min_u32 v8, 223, v0")
        a("v_lshlrev_b32 v8, 2, v8")
        a(f"s_lshl_b32 {s(sJ)}, {s(sG)}, 2")
        a(f"s_add_u32 {s(sJ)}, {s(sJ)}, {s(sM)}")
        a(f"s_sub_u32 {s(sJ)}, {s(sJ)}, 28")
        a("v_lshrrev_b32 v10, 2, v3")
        a("v_mul_u32_u24 v10, 5376, v10")
        a(f"v_and_b32 v11, 48, {v(vL16)}")
        a("v_add_u32 v5, v10, v11")
        a(f"s_mul_i32 {s(sT0)}, {s(sW)}, {16 * 5376}")
        a(f"s_lshl_b32 {s(sT1)}, {s(sJ)}, 6")
        a(f"s_add_u32 {s(sT0)}, {s(sT0)}, {s(sT1)}")
        a(f"s_cmp_lt_u32 {s(sJ)}, 28")
        a(f"s_cselect_b32 {s(sT0)}, {s(sT0)}, {OOB}")
        a(f"s_lshl_b32 {s(sT5)}, {s(sW)}, 10")
        a(f"s_mov_b32 {s(sT2)}, {s(sT5)}")
        a(f"s_add_u32 {s(sT3)}, {s(sT2)}, {7 * 4096}")
        a("s_waitcnt lgkmcnt(0)")
        self.first_stamp()
        self.make_srd(SC, SWMOD)
        a(f"buffer_load_dword v9, v8, {srd(SC)}, 0 offen")
        a("L_mdma:")
        a(f"s_mov_b32 m0, {s(sT2)}")
        a(f"s_add_u32 {s(sT2)}, {s(sT2)}, 4096")
        a(f"buffer_load_dwordx4 v5, {srd(SWMOD)}, {s(sT0)} offen lds")
        a(f"s_add_u32 {s(sT0)}, {s(sT0)}, {64 * 5376}")
        a(f"s_cmp_lg_u32 {s(sT2)}, {s(sT3)}")
        a("s_cbranch_scc1 L_mdma")
        a("s_branch L_helper")
        a.vm_n = n0

    def mod_job(self, vaddr, step, half, dst):
        a = self.a
        tk = []
        for k in range(14):
            a.lg(f"ds_read_b64_tr_b16 {v(36 + 8 * k, 2)}, {v(vaddr)} offset:{k * step}")
            tk.append(a.lg(f"ds_read_b64_tr_b16 {v(38 + 8 * k, 2)}, {v(vaddr)} offset:{k * step + half}"))
            if k >= 4:
                a.wait(lg=tk[k - 4])
                kk = k - 4
                a(f"v_mfma_f32_16x16x32_bf16 v[16:19], {v(32 + 8 * kk, 4)}, {v(36 + 8 * kk, 4)}, {'v[16:19]' if kk else 0}")
        for kk in range(10, 14):
            a.wait(lg=tk[kk])
            a(f"v_mfma_f32_16x16x32_bf16 v[16:19], {v(32 + 8 * kk, 4)}, {v(36 + 8 * kk, 4)}, v[16:19]")
        a("v_mov_b32_dpp v17, v16 quad_perm:[1,0,3,2] row_mask:0xf bank_mask:0xf")
        a("v_cvt_pk_bf16_f32 v20, v16, v17")
        a("s_mov_b64 exec, 0x5555")
        a(f"buffer_store_dwordx2 v[20:21], v4, {srd(SWS)}, {s(dst)} offen sc1")
        a("s_mov_b64 exec, -1")

    def group_prefetch(self, srds, lo, iters):
        a = self.a
        if not iters:
            return
        L = a.label("gp")
        a(f"v_lshlrev_b32 v8, 3, {v(vL16)}")
        a(f"s_sub_u32 {s(sT2)}, {s(sM)}, 28")
        a(f"s_lshl_b32 {s(sT2)}, {s(sT2)}, 2")
        a(f"s_add_u32 {s(sT2)}, {s(sT2)}, {s(sW)}")
        a(f"s_lshl_b32 {s(sT2)}, {s(sT2)}, 13")
        a(f"s_add_u32 {s(sT2)}, {s(sT2)}, {lo}")
        a(f"s_mul_i32 {s(sT0)}, {s(sG)}, {iters}")
        a(f"s_lshr_b32 {s(sT0)}, {s(sT0)}, 3")
        a(f"s_mov_b32 {s(sT3)}, {iters}")
        a(f"{L}:")
        a(f"s_lshl_b32 {s(sT1)}, {s(sT0)}, 17")
        a(f"s_add_u32 {s(sT1)}, {s(sT1)}, {s(sT2)}")
        for sr in srds:
            self.touch(8, sr, sT1)
        a(f"s_add_u32 {s(sT0)}, {s(sT0)}, 1")
        a(f"s_cmp_eq_u32 {s(sT0)}, {iters}")
        a(f"s_cselect_b32 {s(sT0)}, 0, {s(sT0)}")
        a(f"s_waitcnt vmcnt({len(srds)})")
        a(f"s_sub_u32 {s(sT3)}, {s(sT3)}, 1")
        a(f"s_cmp_lg_u32 {s(sT3)}, 0")
        a(f"s_cbranch_scc1 {L}")

    def helper(self):
        a = self.a
        a("L_helper:")
        a.vm_done = a.vm_n
        a.lg_done = a.lg_n
        sJ = sT4
        self.common_setup(())
        self.make_tag_and_publish_xcc(20)
        a(f"s_waitcnt vmcnt({15 if self.o.get('tlb', 0) else 8})")
        a("v_lshlrev_b32 v10, 16, v9")
        a("v_and_b32 v11, 0xffff0000, v9")
        for r in (10, 11):
            a(f"v_mul_f32 {v(r + 2)}, {f2u(-1.4426950408889634):#x}, {v(r)}")
        for r in (12, 13):
            a(f"v_exp_f32 {v(r)}, {v(r)}")
        for r in (12, 13):
            a(f"v_add_f32 {v(r)}, 1.0, {v(r)}")
        for r in (12, 13):
            a(f"v_rcp_f32 {v(r)}, {v(r)}")
        for r in (10, 11):
            a(f"v_mul_f32 {v(r)}, {v(r)}, {v(r + 2)}")
        a("v_cvt_pk_bf16_f32 v10, v10, v11")
        a(f"v_add_u32 v8, {LD}, v8")
        a("ds_write_b32 v8, v10")
        a("v_bfe_u32 v11, v3, 2, 2")
        a("v_lshrrev_b32 v12, 4, v3")
        a("v_lshl_add_u32 v13, v12, 3, v11")
        a("v_lshlrev_b32 v2, 7, v13")
        a("v_lshlrev_b32 v5, 6, v13")
        a("v_lshrrev_b32 v11, 1, v11")
        a("v_lshlrev_b32 v11, 6, v11")
        a("v_and_b32 v13, 3, v3")
        a("v_lshlrev_b32 v13, 3, v13")
        a(f"s_lshl_b32 {s(sT0)}, {s(sCH)}, 5")
        a(f"v_add3_u32 v5, v5, v13, {s(sT0)}")
        a("v_xor_b32 v11, v11, v13")
        a(f"s_lshl_b32 {s(sT0)}, {s(sW)}, 5")
        a(f"v_xor_b32 v11, {s(sT0)}, v11")
        a("v_add_u32 v2, v2, v11")
        a("v_lshlrev_b32 v12, 4, v12")
        a(f"v_add_u32 v12, {LD}, v12")
        a("v_lshlrev_b32 v4, 2, v3")
        a(f"s_lshl_b32 {s(sT6)}, {s(sJ)}, 7")
        a(f"s_lshl_b32 {s(sT1)}, {s(sCH)}, 6")
        a(f"s_add_u32 {s(sT6)}, {s(sT6)}, {s(sT1)}")
        a(f"s_add_u32 {s(sT6)}, {s(sT6)}, {MODO}")
        a(f"s_cmp_lt_u32 {s(sJ)}, 28")
        a(f"s_cselect_b32 {s(sT6)}, {s(sT6)}, {OOB}")
        a(f"s_cmp_lt_u32 {s(sW)}, 2")
        a(f"s_cselect_b32 {s(sT6)}, {s(sT6)}, {OOB}")
        a.wait_all(vm=False)
        a("s_barrier")
        for k in range(14):
            a(f"ds_read_b128 {v(32 + 8 * k, 4)}, v12 offset:{k * 64}")
        self.w_dma_pattern(6, 10, 5376)
        a.wait_all()
        a("s_barrier")
        self.stamp(1)
        self.mod_job(5, 2048, 256, sT6)
        self.stamp(2)
        a(f"s_sub_u32 {s(sJ)}, {s(sM)}, 28")
        a(f"s_lshl_b32 {s(sJ)}, {s(sJ)}, 3")
        a(f"s_add_u32 {s(sJ)}, {s(sJ)}, {s(sG)}")
        a(f"s_cmp_ge_u32 {s(sJ)}, 28")
        a("s_cbranch_scc1 L_jobs_done")
        a(f"s_mul_i32 {s(sT0)}, {s(sW)}, {8 * 5376}")
        a(f"s_lshl_b32 {s(sT1)}, {s(sJ)}, 7")
        a(f"s_add_u32 {s(sT0)}, {s(sT0)}, {s(sT1)}")
        a(f"s_add_u32 {s(sT0)}, {s(sT0)}, {14 * 128}")
        a(f"s_add_u32 {s(sT2)}, {s(sT5)}, {LB}")
        a(f"s_add_u32 {s(sT3)}, {s(sT2)}, {14 * 4096}")
        a("L_mdma2:")
        a(f"s_mov_b32 m0, {s(sT2)}")
        a(f"s_add_u32 {s(sT2)}, {s(sT2)}, 4096")
        a(f"buffer_load_dwordx4 v6, {srd(SWMOD)}, {s(sT0)} offen lds")
        a(f"s_add_u32 {s(sT0)}, {s(sT0)}, {32 * 5376}")
        a(f"s_cmp_lg_u32 {s(sT2)}, {s(sT3)}")
        a("s_cbranch_scc1 L_mdma2")
        a(f"v_add_u32 v2, {LB}, v2")
        a(f"s_lshl_b32 {s(sT6)}, {s(sJ)}, 8")
        a(f"s_lshl_b32 {s(sT1)}, {s(sW)}, 6")
        a(f"s_add_u32 {s(sT6)}, {s(sT6)}, {s(sT1)}")
        a(f"s_add_u32 {s(sT6)}, {s(sT6)}, {MODO + 14 * 256}")
        a.wait_all()
        a("s_barrier")
        self.mod_job(2, 4096, 512, sT6)
        a("L_jobs_done:")
        self.stamp(3)
        a(f"s_cmp_lg_u32 {s(sJ)}, 31")
        a("s_cbranch_scc1 L_no_epoch")
        a("v_lshlrev_b32 v8, 3, v0")
        a(f"s_mov_b32 {s(sT0)}, {XCCO}")
        self.poll([f"buffer_load_dwordx2 v[10:11], v8, {srd(SWS)}, {s(sT0)} offen sc1"], [11])
        a("s_barrier")
        a("v_mov_b32 v8, 0")
        a(f"s_cmp_eq_u32 {s(sW)}, 0")
        a("s_cselect_b64 exec, 1, 0")
        a(f"buffer_store_dword v11, v8, {srd(SWS)}, 0 offen sc1")
        a("s_mov_b64 exec, -1")
        a("L_no_epoch:")
        a(f"v_lshlrev_b32 v8, 3, {v(vL16)}")
        a(f"s_sub_u32 {s(sT0)}, {s(sM)}, 28")
        a(f"s_lshl_b32 {s(sT0)}, {s(sT0)}, 2")
        a(f"s_add_u32 {s(sT0)}, {s(sT0)}, {s(sW)}")
        a(f"s_lshl_b32 {s(sT0)}, {s(sT0)}, 11")
        a(f"s_add_u32 {s(sT0)}, {s(sT0)}, {s(sGB)}")
        a(f"s_add_u32 {s(sT0)}, {s(sT0)}, {STO}")
        self.touch(8, SWS, sT0, 16)
        self.group_prefetch((SWG, SWU), self.o.get("pf_rows", 0) * 3584, self.o.get("hp1", 2))
        xl = self.xcc_load(10, 4)
        self.poll([xl], [5])
        a.wait_all()
        a("s_barrier")
        self.stamp(4)
        for r in (2, 3, 240, 241, 242):
            a(f"v_mov_b32 {v(r)}, 0")
        self.p2_setup()
        self.ones_prefill()
        self.choose_mode(4, "L_p2_slow")
        a("s_branch L_p2_fast")

    def p2_setup(self):
        a = self.a
        vKV, vVP, vRF, vWG, vMK = 12, 13, 14, 15, 16
        a(f"s_and_b32 {s(sHD)}, {s(sM)}, 15")
        a(f"s_lshr_b32 {s(sB)}, {s(sM)}, 4")
        a(f"s_mul_i32 {s(sWS0)}, {s(sHD)}, 7")
        a(f"s_lshr_b32 {s(sWS0)}, {s(sWS0)}, 1")
        a(f"s_bitcmp1_b32 {s(sHD)}, 0")
        a(f"s_cselect_b32 {s(sP1)}, 15, 0xf0000000")
        a(f"s_mov_b32 {s(sP1 + 1)}, {s(sP1)}")
        a(f"s_lshl_b32 {s(sKVL)}, {s(sW)}, 12")
        a(f"s_add_u32 {s(sKVL)}, {s(sKVL)}, {L_KV}")
        a(f"v_add_u32 {v(vKV)}, {s(sKVL)}, {v(vL16)}")
        a(f"v_bfe_u32 v24, {v(vL16)}, 4, 5")
        a(f"v_lshrrev_b32 v25, 9, {v(vL16)}")
        a("v_lshlrev_b32 v26, 2, v25")
        a("v_sub_u32 v26, v24, v26")
        for r in range(16):
            a(f"v_cmp_le_i32 {s(sMASK + 2 * r, 2)}, {8 * (r >> 2) + (r & 3)}, v26")
        a("v_mov_b32 v27, 0")
        a("v_mov_b32 v28, 0xffff")
        a("v_mov_b32 v29, 0xffff0000")
        for i in range(8):
            a(f"v_cndmask_b32 {v(vMK + i)}, v27, v28, {s(sMASK + 4 * i, 2)}")
            a(f"v_cndmask_b32 v30, v27, v29, {s(sMASK + 4 * i + 2, 2)}")
            a(f"v_or_b32 {v(vMK + i)}, {v(vMK + i)}, v30")
        a("v_and_b32 v26, 0x13, v24")
        a("v_and_b32 v27, 4, v24")
        a("v_lshl_or_b32 v26, v27, 1, v26")
        a("v_and_b32 v27, 8, v24")
        a("v_lshrrev_b32 v27, 1, v27")
        a("v_or_b32 v26, v26, v27")
        a("v_lshlrev_b32 v26, 4, v26")
        a(f"v_mul_u32_u24 {v(vVP)}, 7168, v25")
        a(f"v_add_u32 {v(vVP)}, {v(vVP)}, v26")
        a(f"s_lshl_b32 {s(sT0)}, {s(sB)}, 2")
        a(f"s_add_u32 {s(sT0)}, {s(sT0)}, {s(sW)}")
        a(f"s_sub_u32 {s(sMISS)}, 8, {s(sT0)}")
        a(f"s_cmp_eq_u32 {s(sG)}, 0")
        a(f"s_cselect_b32 {s(sMISS)}, {s(sMISS)}, 0")
        a(f"s_mul_i32 {s(sTQ)}, {s(sT0)}, {TILE_B}")
        a(f"s_add_u32 {s(sTQ)}, {s(sTQ)}, {s(sGB)}")
        a(f"s_min_u32 {s(sT0)}, {s(sG)}, 1")
        a(f"s_lshl_b32 {s(sT0)}, {s(sT0)}, 12")
        a(f"v_mul_u32_u24 v25, {s(sT0)}, v25")
        a("v_min_u32 v24, 27, v24")
        a("v_lshlrev_b32 v24, 7, v24")
        a("v_sub_u32 v24, v24, v25")
        a(f"s_lshl_b32 {s(sT0)}, {s(sG)}, 12")
        a(f"s_add_u32 {s(sT0)}, {s(sT0)}, {RFO}")
        a(f"v_add_u32 {v(vRF)}, {s(sT0)}, v24")
        self.w_dma_pattern(vWG, 24, 3584)
        a(f"s_min_u32 {s(sT0)}, {s(sM)}, 27")
        a(f"s_lshl_b32 {s(sT0)}, {s(sT0)}, 7")
        a(f"s_mul_i32 {s(sT1)}, {s(sW)}, {8 * 3584}")
        a(f"s_add_u32 {s(sWSRC)}, {s(sT0)}, {s(sT1)}")

    def ones_prefill(self):
        a = self.a
        for j in range(4):
            a(f"v_mov_b32 {v(24 + j)}, 0x3f803f80")
        a(f"s_mov_b64 exec, {s(sP1, 2)}")
        for i in range(3):
            for t in range(2):
                a(f"ds_write_b128 v12, v[24:27] offset:{i * 16384 + 2048 + t * 1024}")
        a("s_mov_b64 exec, -1")

    def touch_y(self):
        a = self.a
        a(f"s_mul_i32 {s(sT0)}, {s(sTILE)}, {TILE_B}")
        a(f"s_add_u32 {s(sT0)}, {s(sT0)}, {s(sGB)}")
        a(f"s_lshl_b32 {s(sT1)}, {s(sCB)}, 1")
        a(f"s_add_u32 {s(sT1)}, {s(sT1)}, {s(sCH)}")
        a(f"s_lshl_b32 {s(sT1)}, {s(sT1)}, 11")
        a(f"s_add_u32 {s(sT0)}, {s(sT0)}, {s(sT1)}")
        a(f"s_add_u32 {s(sT0)}, {s(sT0)}, {YO}")
        a(f"v_lshlrev_b32 v5, 3, {v(vL16)}")
        self.touch(5, SWS, sT0, 16)

    def wgu(self, n):
        for _ in range(n):
            if self.pre:
                vr, sr, lo, so = self.pre.pop(0)
                self.t_wgu = self.dma(vr, sr, sT5, lo, sWSRC, so)

    def p2(self):
        a = self.a
        a("L_p2_slow:" if self.slow else "L_p2_fast:")
        a.vm_done = a.vm_n
        vQ, vMK, vKV, vVP, vRF, vM, vNM = 24, 16, 12, 13, 14, 8, 10
        vS, vP2, vO = 32, 176, 192
        a("v_xor_b32 v6, 32, v15")
        a(f"s_lshl_b32 {s(sT5)}, {s(sW)}, 10")
        ksrc, vsrc = (sT0, sT1, sT2), (sT3, sT4, sT6)

        def ldK(i):
            for t in range(2):
                tk = self.dma(vL16, SWS, sKVL, i * 16384 + t * 1024, ksrc[i], 0, sc1=True, imm=t * 1024)
            return tk

        def ldV(i):
            for t in range(2):
                tk = self.dma(vVP, SWS, sKVL, i * 16384 + 2048 + t * 1024, vsrc[i], t * 14336, sc1=True)
            return tk

        a(f"s_lshl_b32 {s(sT1)}, {s(sWS0)}, 9")
        a(f"s_add_u32 {s(sT2)}, {s(sTQ)}, {s(sT1)}")
        a(f"s_mov_b32 s3, {s(sT2)}")
        a(f"s_lshl_b32 {s(sT0)}, {s(sWS0)}, 7")
        a(f"s_add_u32 {s(sT6)}, {s(sTQ)}, {s(sT0)}")
        a(f"s_add_u32 {s(sT6)}, {s(sT6)}, {VO}")
        a(f"s_add_u32 {s(sT2)}, {s(sT2)}, {KO}")
        a(f"s_cmp_eq_u32 {s(sG)}, 0")
        a(f"s_cselect_b32 {s(sT7)}, {OOB}, 0")
        a(f"s_sub_u32 {s(sT7)}, {s(sT7)}, {0x200000 - 8 * TILE_B}")
        a(f"s_add_u32 {s(sT0)}, {s(sT2)}, {s(sT7)}")
        a(f"s_sub_u32 {s(sT0)}, {s(sT0)}, {8 * TILE_B}")
        a(f"s_add_u32 {s(sT3)}, {s(sT6)}, {s(sT7)}")
        a(f"s_sub_u32 {s(sT3)}, {s(sT3)}, {8 * TILE_B}")
        a(f"s_cmp_eq_u32 {s(sB)}, 0")
        a(f"s_cselect_b32 {s(sT7)}, {s(sT7)}, 0")
        a(f"s_add_u32 {s(sT1)}, {s(sT2)}, {s(sT7)}")
        a(f"s_sub_u32 {s(sT1)}, {s(sT1)}, {4 * TILE_B}")
        a(f"s_add_u32 {s(sT4)}, {s(sT6)}, {s(sT7)}")
        a(f"s_sub_u32 {s(sT4)}, {s(sT4)}, {4 * TILE_B}")
        a(f"v_min_u32 v5, 880, {v(vL16)}")
        a("v_lshrrev_b32 v5, 1, v5")
        a(f"v_add_u32 v5, {LFO}, v5")
        self.stamp(6)
        self.poll([f"buffer_load_dword v8, {v(vRF)}, {srd(SWS)}, 0 offen sc1",
                   f"buffer_load_dwordx2 v[10:11], v5, {srd(SWS)}, {s(sGB)} offen sc1"], [8, 10, 11])
        self.stamp(7)
        for i in range(3):
            ldK(i)
        for t in range(2):
            t_k = a.vm(f"buffer_load_dwordx4 {v(vQ + 4 * t, 4)}, {v(vL16)}, {srd(SWS)}, s3 offen offset:{t * 1024} sc1")
        a(f"s_andn2_b64 exec, -1, {s(sP1, 2)}")
        for i in range(3):
            t_v = ldV(i)
        a("s_mov_b64 exec, -1")
        self.pre = []
        for i in range(14):
            self.pre.append((15, SWG, LA + i * 4096, i * 32 * 3584))
            self.pre.append((6, SWU, LB + i * 4096, i * 32 * 3584))
        n_att = self.o.get("n_att", 14)
        bg = [lambda: self.wgu(1)] * n_att
        for i, t in enumerate(self.early):
            bg.insert(2 + 2 * i, lambda t=t: a(t))
        if self.o.get("touch_y", 1):
            bg.insert(self.o.get("ty_at", 4), self.touch_y)

        def prefetch(n):
            for _ in range(n):
                if bg:
                    bg.pop(0)()

        a("s_barrier")
        a("v_xor_b32 v5, 64, v2")
        for k in range(14):
            for ct in range(2):
                self.tr2(("a", 128 + 8 * k + 4 * ct), 5 if ct else 2, k * 2048)
        a(f"s_bitcmp1_b32 {s(sHD)}, 0")
        a(f"s_cselect_b32 {s(sP0)}, -1, 0")
        a(f"s_mov_b32 {s(sP0 + 1)}, 0")
        a.wait(vm=t_k)
        a.wait_all(vm=False)
        a("s_barrier")
        a(f"s_mov_b64 exec, {s(sP0, 2)}")
        a(f"v_mov_b32 {v(vQ)}, 0")
        a(f"v_mov_b32 {v(vQ + 1)}, 0")
        a(f"s_not_b32 exec_hi, {s(sP0)}")
        a("s_mov_b32 exec_lo, 0")
        a(f"v_mov_b32 {v(vQ + 6)}, 0")
        a(f"v_mov_b32 {v(vQ + 7)}, 0")
        a("s_mov_b64 exec, -1")
        self.stamp(8)
        order = [0, 8, 1, 2, 3, 4, 5, 6, 7]
        kt = {}

        def rdK(n):
            i = order[n]
            a.lg(f"ds_read_b128 {a_(8 * n, 4)}, {v(vKV)} offset:{i * 4096}")
            kt[n] = a.lg(f"ds_read_b128 {a_(8 * n + 4, 4)}, {v(vKV)} offset:{i * 4096 + 1024}")

        vorder = [1, 2, 3, 4, 5, 6, 7, 8, 0]
        vt = {}

        def rdV(n):
            i = vorder[n]
            base = 72 + 8 * n if n < 7 else 8 * (n - 7)
            a.lg(f"ds_read_b128 {a_(base, 4)}, {v(vKV)} offset:{i * 4096 + 2048}")
            vt[i] = (base, a.lg(f"ds_read_b128 {a_(base + 4, 4)}, {v(vKV)} offset:{i * 4096 + 3072}"))

        def patch(i):
            L = a.label("miss")
            a(f"s_cmp_gt_i32 {s(sMISS)}, {i}")
            a(f"s_cbranch_scc1 {L}")
            a(f"{L}_back:")
            blk = [f"{L}:", "s_nop 15"]
            blk += [f"v_mov_b32 {v(vS + 16 * i + r)}, 0xf149f2ca" for r in range(16)]
            blk += [f"s_branch {L}_back"]
            self.tail.append(blk)

        valu = []
        first = [True]

        def q_max(i):
            b = vS + 16 * i
            ops = []
            if first[0]:
                ops.append(f"v_max3_f32 {v(vM)}, {v(b)}, {v(b + 1)}, {v(b + 2)}")
                ops.append(f"v_max3_f32 {v(vM + 1)}, {v(b + 3)}, {v(b + 4)}, {v(b + 5)}")
                rest = list(range(6, 16, 2))
                first[0] = False
            else:
                rest = list(range(0, 16, 2))
            for n, r in enumerate(rest):
                m = vM + (n & 1)
                ops.append(f"v_max3_f32 {v(m)}, {v(m)}, {v(b + r)}, {v(b + r + 1)}")
            return ops

        for n in range(4):
            rdK(n)
        for n in range(9):
            i = order[n]
            if n + 4 < 9:
                rdK(n + 4)
            a.wait(lg=kt[n])
            d = v(vS + 16 * i, 16)
            a(f"v_mfma_f32_32x32x16_bf16 {d}, {a_(8 * n, 4)}, {v(vQ, 4)}, 0")
            for _ in range(5):
                if valu:
                    a(valu.pop(0))
            a(f"v_mfma_f32_32x32x16_bf16 {d}, {a_(8 * n + 4, 4)}, {v(vQ + 4, 4)}, {d}")
            for _ in range(5):
                if valu:
                    a(valu.pop(0))
            if n == 2:
                patch(0)
                valu += [f"v_cndmask_b32 {v(vS + 128 + r)}, {v(vS + r)}, {v(vS + 128 + r)}, {s(sMASK + 2 * r, 2)}" for r in range(16)]
                valu += q_max(8)
            elif n >= 3:
                patch(order[n - 1])
                valu += q_max(order[n - 1])
            if n >= self.o.get("bg1", 0):
                prefetch(1)
        for op in valu:
            a(op)
        patch(7)
        for op in q_max(7):
            a(op)
        a(f"v_max_f32 {v(vM)}, {v(vM)}, {v(vM + 1)}")
        self.both_halves(vM, vM + 1, "v_max_f32")
        a(f"v_sub_f32 {v(vNM)}, 0, {v(vM)}")
        a(f"s_lshl_b32 {s(sT0)}, {s(sG)}, 5")
        a(f"s_add_u32 {s(sT0)}, {s(sT0)}, {s(sM)}")
        a(f"s_lshl_b32 {s(sT0)}, {s(sT0)}, 2")
        a(f"v_mov_b32 v8, {CFO}")
        a(f"v_mov_b32 v9, {s(sTAG)}")
        a.wait(vm=t_v)
        a("s_barrier")
        for n in range(4):
            rdV(n)
        a(f"s_cmp_eq_u32 {s(sW)}, 0")
        a("s_cselect_b64 exec, 1, 0")
        a.vm(f"buffer_store_dword v9, v8, {srd(SWS)}, {s(sT0)} offen sc1")
        a("s_mov_b64 exec, -1")
        self.stamp(9)
        firstpv = [True]

        def pv(i, t, p):
            base, tk = vt[i]
            a.wait(lg=tk)
            c = 0 if firstpv[0] else v(vO, 16)
            firstpv[0] = False
            a(f"v_mfma_f32_32x32x16_bf16 {v(vO, 16)}, {a_(base + 4 * t, 4)}, {v(p + 4 * t, 4)}, {c}")

        pend = []
        for n, i in enumerate([1, 2, 3, 4, 5, 6, 7, 8]):
            b = vS + 16 * i
            p = vS + 8 * (n & 1)
            if n + 4 < 9:
                rdV(n + 4)
            for r in range(0, 16, 2):
                a(f"v_pk_add_f32 {v(b + r, 2)}, {v(b + r, 2)}, {v(vNM, 2)} op_sel_hi:[1,0]")
            for t in range(2):
                if pend:
                    pv(*pend.pop(0))
                for r in range(8 * t, 8 * t + 8):
                    a(f"v_exp_f32 {v(b + r)}, {v(b + r)}")
                    if r >= 8 * t + 3 and (r & 1):
                        j = (r - 3) >> 1
                        a(f"v_cvt_pk_bf16_f32 {v(p + j)}, {v(b + 2 * j)}, {v(b + 2 * j + 1)}")
                j = 4 * t + 3
                prefetch(1)
                a(f"v_cvt_pk_bf16_f32 {v(p + j)}, {v(b + 2 * j)}, {v(b + 2 * j + 1)}")
            if i != 8:
                pend = [(i, 0, p), (i, 1, p)]
            else:
                for j in range(8):
                    a(f"v_and_b32 {v(vP2 + j)}, {v(p + j)}, {v(vMK + j)}")
                    a(f"v_xor_b32 {v(vP2 + 8 + j)}, {v(p + j)}, {v(vP2 + j)}")
                    if j == 3:
                        pv(8, 0, vP2)
                pv(0, 0, vP2 + 8)
                pv(8, 1, vP2)
                pv(0, 1, vP2 + 8)
        prefetch(99)
        a(f"s_lshl_b32 {s(sT1)}, {s(sWS0)}, 9")
        a(f"s_add_u32 {s(sT1)}, {s(sT1)}, {s(sTQ)}")
        a(f"s_add_u32 {s(sT1)}, {s(sT1)}, {OO}")
        a(f"s_bitcmp1_b32 {s(sHD)}, 0")
        a(f"s_cselect_b64 {s(sP0, 2)}, -1, 0")
        a(f"v_cndmask_b32 v8, {v(vO + 12)}, {v(vO)}, {s(sP0, 2)}")
        a("v_mov_b32 v9, v8")
        a("v_permlane32_swap_b32 v9, v8")
        a(f"v_cndmask_b32 v8, v8, v9, {s(sP0, 2)}")
        a("v_rcp_f32 v8, v8")
        for r in range(16):
            a(f"v_mul_f32 {v(vO + r)}, v8, {v(vO + r)}")
        for j in range(8):
            a(f"v_cvt_pk_bf16_f32 {v(vP2 + j)}, {v(vO + 2 * j)}, {v(vO + 2 * j + 1)}")
        Lodd, Ldone = a.label("odd"), a.label("ost")
        base = f"{v(vL16)}, {srd(SWS)}, {s(sT1)} offen"
        a(f"s_cbranch_scc1 {Lodd}")
        a(f"buffer_store_dwordx4 {v(vP2, 4)}, {base}{self.st('o')}")
        a("s_mov_b32 exec_hi, 0")
        a(f"buffer_store_dwordx4 {v(vP2 + 4, 4)}, {base} offset:1024{self.st('o')}")
        a("s_not_b64 exec, exec")
        a(f"buffer_store_dwordx2 {v(vP2 + 4, 2)}, {base} offset:1024{self.st('o')}")
        a(f"s_branch {Ldone}")
        a(f"{Lodd}:")
        a(f"buffer_store_dwordx4 {v(vP2 + 4, 4)}, {base} offset:1024{self.st('o')}")
        a("s_mov_b32 exec_lo, 0")
        a(f"buffer_store_dwordx4 {v(vP2, 4)}, {base}{self.st('o')}")
        a("s_not_b64 exec, exec")
        a(f"buffer_store_dwordx2 {v(vP2 + 2, 2)}, {base} offset:8{self.st('o')}")
        a(f"{Ldone}:")
        a("s_mov_b64 exec, -1")
        self.stamp(10)
        Lc = a.label("comp")
        a(f"s_cmp_lt_u32 {s(sM)}, 28")
        a(f"s_cbranch_scc1 {Lc}")
        self.local_flag(1, 8)
        a("s_branch " + ("L_end" if self.slow else "L_helper_tail"))
        a(f"{Lc}:")

    def exchange(self, acc):
        a = self.a
        a(f"s_lshl_b32 {s(sT0)}, {s(sW)}, 12")
        a(f"s_add_u32 {s(sT0)}, {s(sT0)}, {L_XB}")
        a(f"v_add_u32 v8, {s(sT0)}, {v(vL16)}")
        a(f"v_xor_b32 v9, 4096, v8")
        Lk, Ld = a.label("xk"), a.label("xd")
        a(f"s_cmp_eq_u32 {s(sCH)}, 0")
        a("s_nop 7")
        a(f"s_cbranch_scc1 {Lk}")
        for q in range(4):
            a(f"ds_write_b128 v8, {v(acc + 4 * q, 4)} offset:{q * 1024}")
        for r in range(16):
            a(f"v_mov_b32 {v(acc + r)}, {v(acc + 16 + r)}")
        a(f"s_branch {Ld}")
        a(f"{Lk}:")
        for q in range(4):
            a(f"ds_write_b128 v8, {v(acc + 16 + 4 * q, 4)} offset:{q * 1024}")
        a(f"{Ld}:")
        a.wait_all(vm=False)
        a("s_barrier")
        tk = [a.lg(f"ds_read_b128 {v(acc + 16 + 4 * q, 4)}, v9 offset:{q * 1024}") for q in range(4)]
        for q in range(4):
            a.wait(lg=tk[q])
            for r in range(4 * q, 4 * q + 4, 2):
                a(f"v_pk_add_f32 {v(acc + r, 2)}, {v(acc + r, 2)}, {v(acc + 16 + r, 2)}")

    def unpack16(self, dst, src):
        a = self.a
        for j in range(8):
            a(f"v_lshlrev_b32 {v(dst + 2 * j)}, 16, {v(src + j)}")
            a(f"v_and_b32 {v(dst + 2 * j + 1)}, 0xffff0000, {v(src + j)}")

    def mod2_loads(self):
        return [f"buffer_load_dwordx2 {v(232 + 2 * i, 2)}, {v(241 + (i >> 1))}, {srd(SWS)}, 0 offen offset:{(i & 1) * 1792} sc1"
                for i in range(4)]

    def p3_early_loads(self):
        g = [f"v_bfe_u32 v3, {v(vL16)}, 4, 5", "v_mul_u32_u24 v3, 896, v3", f"v_lshrrev_b32 v4, 9, {v(vL16)}",
             "v_lshl_add_u32 v3, v4, 4, v3",
             f"s_lshl3_add_u32 {s(sT6)}, {s(sG)}, {s(sTILE)}", f"s_mul_i32 {s(sT6)}, {s(sT6)}, {TILE_B}",
             f"s_lshl1_add_u32 {s(sXCC)}, {s(sCB)}, {s(sCH)}", f"s_lshl_b32 {s(sXCC)}, {s(sXCC)}, 6",
             f"s_add_u32 {s(sXCC)}, {s(sXCC)}, {s(sT6)}"]
        g += [f"buffer_load_dwordx4 {v(224 + 4 * b, 4)}, v3, {srd(SX)}, {s(sXCC)} offen offset:{32 * b}" for b in range(2)]
        g += ["v_min_u32 v240, 223, v0", "v_lshlrev_b32 v240, 3, v240",
              f"v_add_u32 v241, {MODO + 448 * 8}, v240", f"v_add_u32 v242, {MODO + 448 * 8 + 3584}, v240"]
        g += self.mod2_loads()
        return g

    def p3(self):
        a = self.a
        acc, vGA, vG2, vXR, vXF = 32, 64, 80, 224, 104
        a("v_mov_b32 v5, v15")
        self.pre = [(5 if vr == 15 else vr, sr, lo, so) for vr, sr, lo, so in self.pre]
        self.local_flag(1, 8)
        self.check_tags(self.mod2_loads(), [233, 235, 237, 239])
        a("v_lshlrev_b32 v18, 16, v236")
        a("v_and_b32 v19, 0xffff0000, v236")
        a("v_add_f32 v18, 1.0, v18")
        a("v_add_f32 v19, 1.0, v19")
        a("v_cvt_pk_bf16_f32 v236, v18, v19")
        a("v_lshrrev_b32 v10, 1, v240")
        a(f"v_add_u32 v10, {L_T2}, v10")
        a("s_barrier")
        for i in range(4):
            t_t2 = a.lg(f"ds_write_b32 v10, {v(232 + 2 * i)} offset:{896 * i}")
        a(f"s_lshl_b32 {s(sT1)}, {s(sCB)}, 1")
        a(f"s_add_u32 {s(sT1)}, {s(sT1)}, {s(sCH)}")
        a(f"s_lshl_b32 {s(sT1)}, {s(sT1)}, 6")
        a(f"s_mul_i32 {s(sT2)}, {s(sTILE)}, {TILE_B}")
        a(f"s_add_u32 {s(sT2)}, {s(sT2)}, {s(sGB)}")
        a(f"s_mul_i32 {s(sT3)}, {s(sCH)}, {14 * 1024}")
        a(f"s_add_u32 {s(sT3)}, {s(sT3)}, {s(sT2)}")
        a(f"s_add_u32 {s(sT3)}, {s(sT3)}, {OO}")
        self.stamp(11)
        self.poll_local(1, 32, 8)
        self.stamp(12)
        tk = []

        def ldO(k):
            if k and k % 4 == 0:
                a(f"s_add_u32 {s(sT3)}, {s(sT3)}, 4096")
            tk.append(a.vm(f"buffer_load_dwordx4 {a_(4 * k, 4)}, {v(vL16)}, {srd(SWS)}, {s(sT3)} offen offset:{(k % 4) * 1024} sc1"))

        for k in range(8):
            ldO(k)
        a.wait(lg=t_t2)
        a("s_barrier")
        a(f"v_lshl_add_u32 v8, v4, 4, {s(sT1)}")
        a(f"v_add_u32 v8, {L_T2}, v8")
        for b in range(2):
            a(f"ds_read_b128 {v(12 + 4 * b, 4)}, v8 offset:{32 * b}")
            a(f"ds_read_b128 {v(20 + 4 * b, 4)}, v8 offset:{2 * 896 + 32 * b}")
        a(f"s_lshl_b32 {s(sT0)}, {s(sRT)}, 5")
        a(f"v_add_u32 v8, {s(sT0)}, v8")
        t_c = a.lg(f"ds_read_b128 {v(vGBP, 4)}, v8 offset:{3 * 896}")
        fill = self.capture(lambda: self.unpack16(vXF, vXR))
        fill += [lambda: a.wait(lg=t_c)] + self.capture(lambda: (self.unpack16(vGA, 12), self.unpack16(vG2, 20)))
        for k in range(14):
            a.wait(vm=tk[k])
            for ct in range(2):
                d = v(acc + 16 * ct, 16)
                a(f"v_mfma_f32_32x32x16_bf16 {d}, {a_(128 + 8 * k + 4 * ct, 4)}, {a_(4 * k, 4)}, {d if k else 0}")
                if ct == 0 and k + 8 < 14:
                    ldO(k + 8)
                for _ in range(2):
                    if fill:
                        f = fill.pop(0)
                        f() if callable(f) else a(f)
        assert not fill
        self.stamp(25)
        self.exchange(acc)
        for r in range(16):
            a(f"v_fma_f32 {v(acc + r)}, {v(acc + r)}, {v(vGA + r)}, {v(vXF + r)}")
        for j in range(8):
            a(f"v_cvt_pk_bf16_f32 {v(vX2 + j)}, {v(acc + 2 * j)}, {v(acc + 2 * j + 1)}")
        a(f"s_lshl_b32 {s(sT0)}, {s(sW)}, 11")
        a(f"s_add_u32 {s(sT0)}, {s(sT0)}, {L_X2}")
        a(f"v_add_u32 v8, {s(sT0)}, {v(vL16)}")
        for b in range(2):
            a(f"ds_write_b128 v8, {v(vX2 + 4 * b, 4)} offset:{1024 * b}")
        self.unpack16(acc, vX2)
        for r in range(0, 16, 2):
            a(f"v_pk_mul_f32 {v(acc + 16 + r, 2)}, {v(acc + r, 2)}, {v(vG2 + r, 2)}")
        for j in range(8):
            a(f"v_cvt_pk_bf16_f32 {v(12 + j)}, {v(acc + 16 + 2 * j)}, {v(acc + 16 + 2 * j + 1)}")
        a(f"s_lshl_b32 {s(sT0)}, {s(sT1)}, 5")
        a(f"s_add_u32 {s(sT0)}, {s(sT0)}, {s(sT2)}")
        a(f"s_add_u32 {s(sT0)}, {s(sT0)}, {YO}")
        for b in range(2):
            a(f"buffer_store_dwordx4 {v(12 + 4 * b, 4)}, {v(vL16)}, {srd(SWS)}, {s(sT0)} offen offset:{1024 * b}{self.st('y')}")
        a(f"v_pk_mul_f32 v[22:23], {v(acc, 2)}, {v(acc, 2)}")
        a(f"v_pk_add_f32 v[20:21], {v(acc, 2)}, {v(acc + 2, 2)}")
        a(f"v_pk_fma_f32 v[22:23], {v(acc + 2, 2)}, {v(acc + 2, 2)}, v[22:23]")
        for r in range(4, 16, 2):
            a(f"v_pk_add_f32 v[20:21], v[20:21], {v(acc + r, 2)}")
            a(f"v_pk_fma_f32 v[22:23], {v(acc + r, 2)}, {v(acc + r, 2)}, v[22:23]")
        a("v_add_f32 v20, v20, v21")
        a("v_add_f32 v21, v22, v23")
        self.both_halves(20, 24, "v_add_f32")
        self.both_halves(21, 25, "v_add_f32")
        a(f"s_lshl_b32 {s(sT0)}, {s(sT1)}, 5")
        a(f"s_lshl_b32 {s(sT3)}, {s(sTILE)}, 8")
        a(f"s_add_u32 {s(sT0)}, {s(sT0)}, {s(sT3)}")
        a(f"s_add_u32 {s(sT0)}, {s(sT0)}, {s(sGB)}")
        a(f"s_add_u32 {s(sT0)}, {s(sT0)}, {STO}")
        a(f"v_lshrrev_b32 v24, 1, {v(vL16)}")
        a("s_mov_b32 exec_hi, 0")
        a(f"buffer_store_dwordx2 v[20:21], v24, {srd(SWS)}, {s(sT0)} offen{self.st('y')}")
        a("s_mov_b64 exec, -1")
        self.local_flag(2, 8)
        self.stamp(13)

    def p45(self):
        a, o = self.a, self.o
        acc, vW, vTB, vTQ, vAUG, vR2, vU, vH = 32, 160, 208, 12, 16, 24, 224, 224
        vTBA, vAGA, vWD, vSTA, vPD, vFA, vST = 26, 27, 28, 30, 2, 31, 96
        NSW = 12
        K0 = min(28 - len(self.pre), o.get("k0", 28))
        late = len(self.pre)
        self.tr_pattern(vTQ, 8, True)
        a(f"v_bfe_u32 v8, {v(vL16)}, 8, 1")
        a(f"v_mul_u32_u24 v8, {LB - LA}, v8")
        a(f"s_mul_i32 {s(sT0)}, {s(sW)}, 10240")
        a(f"s_add_u32 {s(sB)}, {s(sT0)}, {L_F}")
        a(f"v_add_u32 {v(vWD)}, {s(sB)}, {v(vTQ)}")
        a(f"v_xor_b32 {v(vWD + 1)}, 64, {v(vWD)}")
        a(f"v_add_u32 {v(vTQ)}, {v(vTQ)}, v8")
        a(f"s_lshl_b32 {s(sT0)}, {s(sW)}, 5")
        a(f"v_xor_b32 {v(vTQ)}, {s(sT0)}, {v(vTQ)}")
        for q in range(1, 4):
            a(f"v_xor_b32 {v(vTQ + q)}, {32 * q}, {v(vTQ)}")
        a(f"v_bfe_u32 v8, {v(vL16)}, 4, 5")
        a("v_cmp_eq_u32 vcc, 1, v8")
        a(f"v_mov_b32 v8, {L_T2 + 2 * 896}")
        a(f"v_mov_b32 v9, {L_T2 + 896}")
        a("v_cndmask_b32 v8, v8, v9, vcc")
        a(f"v_lshl_add_u32 {v(vTBA)}, v4, 4, v8")
        a(f"s_add_u32 {s(sT0)}, {s(sT5)}, {L_AUG}")
        a(f"v_add_u32 {v(vAGA)}, {s(sT0)}, {v(vL16)}")
        a(f"s_lshl_b32 {s(sT0)}, {s(sCH)}, 11")
        a(f"s_lshl_b32 {s(sT1)}, {s(sRT)}, 10")
        a(f"s_add_u32 {s(sT0)}, {s(sT0)}, {s(sT1)}")
        a(f"s_add_u32 {s(sT0)}, {s(sT0)}, {L_X2}")
        a(f"v_add_u32 v8, {s(sT0)}, {v(vL16)}")
        a.wait_all(vm=False)
        a("s_barrier")
        for rt in range(2):
            a(f"ds_read_b128 {v(vX2 + 4 * rt, 4)}, v8 offset:{4096 * rt}")
        ut = {}

        def rdT(k):
            ut[k] = a.lg(f"ds_read_b128 {v(vTB + 4 * (k % 4), 4)}, {v(vTBA)} offset:{32 * k}")

        def mfmaU(k, wreg):
            a(f"v_mfma_f32_32x32x16_bf16 {v(vU, 16)}, {v(vTB + 4 * (k % 4), 4)}, {wreg}, {v(vU, 16) if k else 0}")

        setup = self.capture(lambda: self.p45_setup(vSTA, vPD, vFA))
        pt = {}

        def rdP(k):
            rdT(k)
            pt[k] = self.tr2(("v", vW + 4 * (k % 4)), vTQ, k * 2048)

        for k in range(min(3, K0)):
            rdP(k)
        for k in range(K0):
            a.wait(lg=pt[k])
            mfmaU(k, v(vW + 4 * (k % 4), 4))
            if k + 3 < K0:
                rdP(k + 3)
            for _ in range(3):
                if setup:
                    a(setup.pop(0))
        for g in setup:
            a(g)
        a.wait_all(vm=False)
        a("s_barrier")
        self.stamp(14)
        self.poll_local(2, 28, 8)
        self.stamp(15)
        a(f"s_lshl_b32 {s(sT0)}, {s(sM)}, 4")
        a(f"s_lshl_b32 {s(sT1)}, {s(sW)}, 2")
        a(f"s_add_u32 {s(sT0)}, {s(sT0)}, {s(sT1)}")
        a(f"s_add_u32 {s(sT0)}, {s(sT0)}, {LFO + 3 * 512}")
        a(f"v_mov_b32 v10, {s(sT0)}")
        a(f"v_mov_b32 v11, {s(sTAG)}")

        KA = 4
        steps = []
        for k in range(28):
            steps.append(("f", 0, k, 0))
            if k >= K0:
                steps.append(("u", 0, k, 0))
            steps += [("f", 0, k, q) for q in range(1, 4)]
        for k in range(28):
            if k == KA:
                steps += [("g", 0, 28, q) for q in range(4)]
            steps += [("f", 1, k, q) for q in range(4)]
        steps += [("g", 1, 28, q) for q in range(4)]
        steps += [("d", rt, j, ct) for rt in range(2) for j in range(28) for ct in range(2)]
        at = {st: n for n, st in enumerate(steps)}
        N = len(steps)
        ev = [[] for _ in range(N + 1)]
        R = lambda key: (a_ if key[0] == "a" else v)(key[1], 4)

        LAT, FAR, UNIT, LIM = o.get("lat", 450), o.get("far", 450), o.get("unit", 72), o.get("lim", 10)
        MF, GAP = o.get("mf", 40), o.get("gap", 6)
        sim = dict(T=0, free=0, last=0)
        arr, tick = {}, {}
        memq, fill, wq2 = [], [], []
        need = dict(vm=0, lg=0)
        cur = [0]

        def plan(name, cost, lat, *ops):
            st = max(sim["T"], sim["free"])
            sim["free"] = st + cost
            sim["last"] = max(sim["last"], sim["free"] + lat)
            arr[name] = sim["last"]
            memq.extend(ops[:-1])
            memq.append(lambda: tick.__setitem__(name, a.vm(ops[-1])))

        def emit(chain, n):
            done = 0
            while chain and done < n:
                f = chain.pop(0)
                n0 = len(a.ins)
                f() if callable(f) else a(f)
                done += len(a.ins) - n0
            return done

        def issued(name):
            while name not in tick:
                assert memq, name
                emit(memq, 1)
            return tick[name]

        def inflight():
            return sum(1 for x in arr.values() if x > sim["T"])

        def stall_until(name):
            while arr[name] > sim["T"] + 20 and serve(cur[0]):
                emit(memq, 99)
                sim["T"] += 16
            sim["T"] = max(sim["T"], arr[name])

        free_q = [("a", 4 * i) for i in range(63, -1, -1)]
        wd_next = [0]
        reg = {}

        def take_quad(horizon):
            for key in free_q:
                if key[0] == "v" or key[1] >= 8 * min(28, wd_next[0] + horizon):
                    free_q.remove(key)
                    return key
            return None

        def ldY(n):
            key = take_quad(o.get("hor", 5))
            if key is None:
                return False
            reg[("y", n)] = key
            pre = [f"s_add_u32 {s(sTQ)}, {s(sTQ)}, 4096"] if n and n % 4 == 0 else []
            plan(("y", n), UNIT, LAT, *pre,
                 f"buffer_load_dwordx4 {R(key)}, {v(vL16)}, {srd(SWS)}, {s(sTQ)} offen offset:{(n % 4) * 1024} sc1")
            return True

        def ldH(n):
            key = take_quad(28)
            if key is None:
                return False
            reg[("h", n)] = key
            pre = []
            if n == 28:
                pre = [f"s_add_u32 {s(sT6)}, {s(sT6)}, {HT_B - 24 * 1024}"]
            elif n % 28 and n % 28 % 4 == 0:
                pre = [f"s_add_u32 {s(sT6)}, {s(sT6)}, 4096"]
            plan(("h", n), UNIT, LAT, *pre,
                 f"buffer_load_dwordx4 {R(key)}, {v(vL16)}, {srd(SWS)}, {s(sT6)} offen offset:{(n % 28 % 4) * 1024} sc1")
            return True

        wd_tr_t = {}

        def ldD(j):
            if j >= 5 and (j - 5 not in wd_tr_t or wd_tr_t[j - 5] > a.lg_done):
                return False
            far = o.get("far_d", FAR)
            plan(("d0", j), UNIT, far, f"s_add_u32 m0, {s(sB)}, {(j % 5) * 2048}", f"s_add_u32 {s(sT4)}, {s(sT4)}, {16 * 896}",
                 f"buffer_load_dwordx4 {v(vPD)}, {srd(SWD)}, {s(sT4)} offen lds")
            plan(("d", j), UNIT, far, f"buffer_load_dwordx4 v0, {srd(SWD)}, {s(sT4)} offen offset:1024 lds")
            return True

        wd_pending = [None]

        def wd_read(must=False):
            j = wd_next[0]
            if wd_pending[0] is not None or j >= 28 or ("d", j) not in arr:
                return
            if not must and (arr[("d", j)] > sim["T"] or ("d", j) not in tick):
                return
            if any(("a", 8 * j + 4 * ct) not in free_q for ct in range(2)):
                assert not must
                return
            for ct in range(2):
                free_q.remove(("a", 8 * j + 4 * ct))
            need["vm"] = max(need["vm"], issued(("d", j)))
            wd_pending[0] = j

        def wd_queue():
            j = wd_pending[0]
            if j is None:
                return
            for ct in range(2):
                for u in range(2):
                    t = f"ds_read_b64_tr_b16 {a_(8 * j + 4 * ct + 2 * u, 2)}, {v(vWD + ct)} offset:{(j % 5) * 2048 + 512 * u}"
                    wq2.append((lambda t=t: wd_tr_t.__setitem__(j, a.lg(t))) if ct and u else t)
            wd_pending[0] = None
            wd_next[0] += 1

        def ldL(i):
            (vg, sg_, lg_, so), (vu, su, lu, _) = self.pre.pop(0), self.pre.pop(0)
            far = o.get("far_l", FAR)
            plan(("l0", i), UNIT, far, f"s_add_u32 m0, {s(sT5)}, {lg_}", f"s_add_u32 {s(sT7)}, {s(sWSRC)}, {so}",
                 f"buffer_load_dwordx4 {v(vg)}, {srd(sg_)}, {s(sT7)} offen lds")
            plan(("l", i), UNIT, far, f"s_add_u32 m0, {s(sT5)}, {lu}\ns_nop 0",
                 f"buffer_load_dwordx4 {v(vu)}, {srd(su)}, {s(sT7)} offen lds")
            return True

        def ldS(p):
            for rt in range(2):
                plan(("s", p, rt), UNIT // 2, LAT,
                     f"buffer_load_dwordx2 {v(vST + 14 * rt + 2 * p, 2)}, {v(vSTA)}, {srd(SWS)}, {s(sKVL)} offen offset:{256 * rt + (p & 1) * 2048} sc1")
            if p & 1:
                memq.append(f"s_add_u32 {s(sKVL)}, {s(sKVL)}, 4096")
            return True

        assert late % 2 == 0
        first = (28 - late) // 2
        bar_at = {b: at[("f", 0, 2 * (b - (b - first) % 2) - 2, 0)] for b in range(first, 14)}
        nS = at[("f", 0, o.get("ks", 17), 0)]
        YL, HL, LEAD = o.get("ylook", 6), o.get("hlook", 12), 20
        gate = {0: None, 1: None}
        queues = {
            "y": [(at[("f", max(n - YL, 0) // 28, max(n - YL, 0) % 28, 0)] if n >= YL else -1,
                   at[("f", n // 28, n % 28, 0)] - LEAD, lambda n=n: ldY(n)) for n in range(56)],
            "l": [(0, bar_at[first + i] - o.get("lead_l", 30), lambda i=i: ldL(i)) for i in range(late // 2)],
            "s": [(at[("f", 0, 6, 0)], nS - 20, lambda p=p: ldS(p)) for p in range(7)],
            "d": [(0, at[("d", 0, j, 0)] - LEAD - o.get("lead_d", 6), lambda j=j: ldD(j)) for j in range(28)],
            "h": [(("h", n // 28, at[("d", n // 28, n % 28, 0)] - 2 * HL), at[("d", n // 28, n % 28, 0)] - LEAD,
                   lambda n=n: ldH(n)) for n in range(56)],
        }

        def serve(n):
            if len(memq) > 2 or inflight() >= LIM or sim["free"] >= sim["T"] + o.get("ahead", 300):
                return False
            cand = []
            for name, q in queues.items():
                if q:
                    e = q[0][0]
                    if isinstance(e, tuple):
                        if gate[e[1]] is None:
                            continue
                        e = max(e[2], gate[e[1]])
                    if e <= n:
                        cand.append((q[0][1], name))
            for _, name in sorted(cand):
                if queues[name][0][2]():
                    queues[name].pop(0)
                    return True
            return False

        def force(qname, name):
            while name not in arr:
                if qname == "d" and not queues[qname][0][2]():
                    wd_read(must=True)
                    a.wait(vm=need["vm"])
                    wd_queue()
                    emit(wq2, 99)
                    a.wait(lg=a.lg_n)
                    continue
                if qname != "d":
                    assert queues[qname][0][2](), name
                queues[qname].pop(0)
            return issued(name)

        def hard_wait(qname, name):
            t = force(qname, name) if qname else issued(name)
            stall_until(name)
            a.wait(vm=t)

        for b in sorted(set(bar_at.values())):
            i = max(x for x in bar_at if bar_at[x] == b) - first
            ev[b].append(lambda i=i: (hard_wait("l", ("l", i)), a("s_barrier")))
        ev[nS].append(lambda: (hard_wait("s", ("s", 6, 1)), fill.extend(self.ln2_stats(vST, vAUG, vR2))))

        t_aug = [0]

        def aug_build():
            fill.extend([
                f"v_cvt_pk_bf16_f32 {v(vU + 4)}, {v(vU)}, {v(vU + 1)}",
                f"v_lshlrev_b32 {v(vU + 5)}, 16, {v(vU + 4)}",
                f"v_and_b32 {v(vU + 6)}, 0xffff0000, {v(vU + 4)}",
                f"v_sub_f32 {v(vU + 5)}, {v(vU)}, {v(vU + 5)}",
                f"v_sub_f32 {v(vU + 6)}, {v(vU + 1)}, {v(vU + 6)}",
                f"v_cvt_pk_bf16_f32 {v(vU + 5)}, {v(vU + 5)}, {v(vU + 6)}",
                f"v_perm_b32 {v(vU + 8)}, {v(vU + 5)}, {v(vU + 4)}, {s(sHD)}",
                f"v_perm_b32 {v(vU + 10)}, {v(vU + 4)}, {v(vU + 5)}, {s(sP1 + 1)}",
                f"v_cndmask_b32 {v(vU + 8)}, 0, {v(vU + 8)}, {s(sMASK, 2)}",
                f"v_cndmask_b32 {v(vU + 9)}, 0, {v(vU + 4)}, {s(sMASK, 2)}",
                f"v_cndmask_b32 {v(vU + 10)}, 0, {v(vU + 10)}, {s(sMASK, 2)}",
                f"v_mov_b32 {v(vU + 11)}, 0",
                lambda: t_aug.__setitem__(0, a.lg(f"ds_write_b128 {v(vAGA)}, {v(vU + 8, 4)}"))])

        ev[at[("f", 1, 0, 0)]].append(lambda: emit(fill, 999))
        ev[at[("f", 1, 0, 1)]].append(aug_build)
        gt = {}

        def aug_read():
            emit(fill, 999)
            a.wait(lg=t_aug[0])
            a("s_barrier")
            for q in range(4):
                if q:
                    fill.append(f"v_xor_b32 v8, {q << 10}, {v(vAGA)}")
                fill.append(lambda q=q: gt.__setitem__(q, a.lg(f"ds_read_b128 {v(vTB + 4 * q, 4)}, {v(8 if q else vAGA)}")))

        ev[at[("f", 1, KA - 1, 0)]].append(aug_read)
        ev[at[("g", 0, 28, 0)]].append(lambda: emit(fill, 999))

        def spin_block(L, text):
            self.tail.append([f"{L}:", f"s_mov_b32 {s(sSPIN)}, 0", f"{L}_spin:", text,
                              f"s_add_u32 {s(sSPIN)}, {s(sSPIN)}, 1", f"s_cmp_gt_u32 {s(sSPIN)}, {SPIN_MAX}",
                              "s_cbranch_scc1 L_abort", "s_waitcnt vmcnt(0)", f"v_cmp_ne_u32 vcc, {s(sTAG)}, v9",
                              f"s_cbranch_vccnz {L}_spin", f"s_branch {L}_back"])

        def check(name, text):
            L = a.label("hw")
            hard_wait(None, name)
            a(f"v_cmp_ne_u32 vcc, {s(sTAG)}, v9")
            a(f"s_cbranch_vccnz {L}")
            a(f"{L}_back:")
            spin_block(L, text)

        ctext = f"buffer_load_dword v9, v8, {srd(SWS)}, {s(sT0)} offen sc1"
        ev[at[("f", 0, 17, 0)]].append(lambda: plan("c", 20, FAR, f"s_add_u32 {s(sT0)}, {s(sG)}, 1", f"s_min_u32 {s(sT0)}, {s(sT0)}, 7",
                                                    f"s_lshl_b32 {s(sT0)}, {s(sT0)}, 7", f"s_add_u32 {s(sT0)}, {s(sT0)}, {CFO}",
                                                    f"v_bfe_u32 v8, {v(vL16)}, 2, 7", ctext))
        ev[at[("f", 1, 1, 0)]].append(lambda: check("c", ctext))

        def st_h(rt, q):
            plan(("st", rt, q), 2 * UNIT, LAT, f"s_xor_b32 {s(sT1)}, {s(sT3)}, {q << 10}",
                 f"buffer_store_dwordx4 {v(vH + 4 * q, 4)}, {v(vL16)}, {srd(SWS)}, {s(sT1)} offen{self.st('h')}")
            if q == 3:
                memq.append(f"s_add_u32 {s(sT3)}, {s(sT3)}, {HT_B}")

        def epilogue(rt):
            for q in range(4):
                b, oq = acc + 64 * rt + 16 * q, vH + 4 * q
                for r in range(8):
                    fill.append(f"v_max_f32 {v(b + r)}, 0, {v(b + r)}")
                    fill.append(f"v_mul_f32 {v(b + 8 + r)}, {v(vR2 + rt)}, {v(b + 8 + r)}")
                for r in range(8):
                    fill.append(f"v_mul_f32 {v(b + r)}, {v(b + r)}, {v(b + 8 + r)}")
                for j in range(4):
                    fill.append(f"v_cvt_pk_bf16_f32 {v(oq + j)}, {v(b + 2 * j)}, {v(b + 2 * j + 1)}")
                fill.append(lambda q=q: st_h(rt, q))

        def poll_text(rt):
            return f"buffer_load_dword v9, {v(vFA)}, {srd(SWS)}, {s(sGB)} offen offset:{512 * rt} sc1"

        def handoff(n, rt, must=False):
            hs, fl, pl = ("st", rt, 3), ("fl", rt), ("pl", rt)
            if hs in arr and fl not in arr and (must or (hs in tick and arr[hs] <= sim["T"])):
                hard_wait(None, hs)
                emit(memq, 99)
                a("s_mov_b64 exec, 1")
                plan(fl, 20, LAT, f"buffer_store_dword v11, v10, {srd(SWS)}, {s(sGB)} offen offset:{512 * rt}{self.st('f')}")
                emit(memq, 99)
                a("s_mov_b64 exec, -1")
                if not must:
                    return
            if fl in arr and pl not in arr and (must or arr[fl] + o.get("skew", 100) - LAT <= sim["T"]):
                plan(pl, 20, LAT, poll_text(rt))
                if not must:
                    return
            if pl in arr and gate[rt] is None and (must or (pl in tick and arr[pl] <= sim["T"])):
                check(pl, poll_text(rt))
                gate[rt] = n

        ev[at[("f", 1, KA + 1, 0)]].append(lambda: epilogue(0))
        ev[at[("d", 0, 1, 0)]].append(lambda: epilogue(1))

        def red_write(rt):
            return [f"ds_write_b128 v6, {v(acc + 32 * rt + 4 * i, 4)} offset:{32768 * rt + 1024 * i}" for i in range(8)]

        def red_finish(rt):
            t0, ops, tk = 96, [], {}
            for w in range(4):
                for i in range(2):
                    ops.append(lambda w=w, i=i: tk.__setitem__(w, a.lg(
                        f"ds_read_b128 {v(t0 + 8 * w + 4 * i, 4)}, v5 offset:{32768 * rt + 8192 * w + 1024 * i}")))
            for j in range(4):
                ops.append(f"v_lshlrev_b32 {v(136 + 2 * j)}, 16, {v(vX2 + 4 * rt + j)}")
                ops.append(f"v_and_b32 {v(137 + 2 * j)}, 0xffff0000, {v(vX2 + 4 * rt + j)}")
            ops.append(lambda: a.wait(lg=tk[1]))
            ops += [f"v_add_f32 {v(t0 + r)}, {v(t0 + r)}, {v(t0 + 8 + r)}" for r in range(8)]
            ops.append(lambda: a.wait(lg=tk[3]))
            ops += [f"v_add_f32 {v(t0 + 16 + r)}, {v(t0 + 16 + r)}, {v(t0 + 24 + r)}" for r in range(8)]
            ops += [f"v_add_f32 {v(t0 + r)}, {v(t0 + r)}, {v(t0 + 16 + r)}" for r in range(8)]
            ops += [f"v_fma_f32 {v(t0 + r)}, {v(t0 + r)}, {v(128 + r)}, {v(136 + r)}" for r in range(8)]
            ops += [f"v_cvt_pk_bf16_f32 {v(144 + 4 * rt + j)}, {v(t0 + 2 * j)}, {v(t0 + 2 * j + 1)}" for j in range(4)]
            ops.append(f"buffer_store_dwordx4 {v(144 + 4 * rt, 4)}, v3, {srd(SOUT)}, {s(sXCC)} offen{' sc1' if o.get('out_sc1') else ''}")
            ops.append(f"s_add_u32 {s(sXCC)}, {s(sXCC)}, {TILE_B}")
            return ops

        def red_setup():
            emit(fill, 999)
            emit(memq, 99)
            fill.extend([f"s_lshl_b32 {s(sT0)}, {s(sW)}, 13", f"v_add_u32 v6, {s(sT0)}, {v(vL16)}",
                         f"s_lshl_b32 {s(sT0)}, {s(sCH)}, 12", f"s_lshl_b32 {s(sT1)}, {s(sRT)}, 11",
                         f"s_add_u32 {s(sT0)}, {s(sT0)}, {s(sT1)}", f"v_add_u32 v5, {s(sT0)}, {v(vL16)}"])
            for j in range(4):
                fill.extend([f"v_lshlrev_b32 {v(128 + 2 * j)}, 16, {v(vGBP + j)}",
                             f"v_and_b32 {v(129 + 2 * j)}, 0xffff0000, {v(vGBP + j)}"])

        ev[at[("d", 1, 0, 0)]].append(red_setup)
        ev[at[("d", 1, 3, 0)]].append(lambda: (emit(fill, 999), a("s_barrier")))
        t_rw = [0]
        for i in range(8):
            ev[at[("d", 1, 4 + i, 1)]].append(lambda i=i: t_rw.__setitem__(0, a.lg(red_write(0)[i])))
        ev[at[("d", 1, 14, 0)]].append(lambda: (a.wait(lg=t_rw[0]), a("s_barrier"), fill.extend(red_finish(0))))

        fsteps = [n for n, st in enumerate(steps) if st[0] == "f"]
        wslot = {n: vW + 4 * (i % NSW) for i, n in enumerate(fsteps)}
        wt, wchain = {}, []
        for i, n in enumerate(fsteps):
            _, rt, k, q = steps[n]
            ok = fsteps[i - NSW + 1] if i >= NSW - 1 else -1
            if rt == 0 and k // 2 in bar_at:
                ok = max(ok, bar_at[k // 2] - 1)
            for u in range(2):
                t = f"ds_read_b64_tr_b16 {v(wslot[n] + 2 * u, 2)}, {v(vTQ + q)} offset:{k * 2048 + 512 * u}"
                wchain.append((ok, n, (lambda t=t, n=n: wt.__setitem__(n, a.lg(t))) if u else t))
            if rt == 0 and q == 0 and k >= K0:
                okt = at[("u", 0, k - 4, 0)] if k - 4 >= K0 else -1
                wchain.append((max(ok, okt), n + 1, lambda k=k: rdT(k)))
        LO, HI = o.get("wlo", 3), o.get("whi", 6)

        def wread(n, horizon, maxn):
            done = 0
            while wchain and done < maxn and wchain[0][0] <= n and wchain[0][1] <= n + horizon:
                f = wchain.pop(0)[2]
                f() if callable(f) else a(f)
                done += 1
            return done

        for n in range(o.get("y0", 5)):
            force("y", ("y", n))
        wread(-1, HI, 99)
        stamps = {at[("f", 0, 8, 0)]: 22, at[("f", 1, 0, 0)]: 21, at[("d", 0, 0, 0)]: 23, at[("d", 1, 0, 0)]: 24}
        self.model, self.gaps = {}, []
        g0 = len(a.ins)
        for n, (kind, rt, k, q) in enumerate(steps):
            cur[0] = n
            if n in stamps:
                self.stamp(stamps[n])
                self.model[stamps[n]] = (sim["T"], wd_next[0], sum(x[0] == "h" for x in reg))
            for f in ev[n]:
                f()
            lg, vm = 0, 0
            if kind == "f":
                wread(n - 1, 1, 99)
                m = 28 * rt + k
                d, A = v(acc + 64 * rt + 16 * q, 16), v(wslot[n], 4)
                vm = force("y", ("y", m))
                stall_until(("y", m))
                B, lg = R(reg[("y", m)]), wt[n]
                if lg > a.lg_done and n + 1 in wt:
                    lg = wt[n + 1]
            elif kind == "u":
                wread(n - 1, 1, 99)
                d, A, B, lg = v(vU, 16), v(vTB + 4 * (k % 4), 4), v(wslot[n - 1], 4), ut[k]
            elif kind == "g":
                d, A, B, lg = v(acc + 64 * rt + 16 * q, 16), v(vTB + 4 * q, 4), v(vAUG + 4 * rt, 4), gt[q]
            else:
                m = 28 * rt + k
                if gate[rt] is None:
                    emit(fill, 999)
                    handoff(n, rt, must=True)
                vm = force("h", ("h", m))
                while k not in wd_tr_t:
                    if wd_next[0] <= k and wd_pending[0] is None and not wq2:
                        force("d", ("d", wd_next[0]))
                        stall_until(("d", wd_next[0]))
                        wd_read(must=True)
                    a.wait(vm=need["vm"])
                    wd_queue()
                    emit(wq2, 99)
                stall_until(("h", m))
                d, A, B, lg = v(acc + 32 * rt + 16 * q, 16), a_(8 * k + 4 * q, 4), R(reg[("h", m)]), wd_tr_t[k]
            a.wait(vm=max(vm, need["vm"]), lg=lg)
            wd_queue()
            self.gaps.append(len(a.ins) - g0)
            C = d if (k or kind == "g") else 0
            a(f"v_mfma_f32_32x32x16_bf16 {d}, {A}, {B}, {C}")
            g0 = len(a.ins)
            if kind == "f" and q == 3:
                free_q.append(reg[("y", m)])
                free_q.sort(key=lambda x: (x[0] == "v", -x[1]))
            if n == fsteps[-1]:
                free_q.extend(("v", vW + 4 * i) for i in range(NSW))
            if kind == "d" and q == 1:
                free_q.append(reg[("h", m)])
            sim["T"] += o.get("mfd", 36) if kind == "d" else MF
            handoff(n, 0)
            handoff(n, 1)
            wd_read()
            serve(n)
            nw = 1
            if n + 1 < N and need["vm"] <= a.vm_done:
                k2, r2, s2, q2 = steps[n + 1]
                if k2 == "f" and wt.get(n + 1, 1 << 30) <= a.lg_done and tick.get(("y", 28 * r2 + s2), 1 << 30) <= a.vm_done:
                    nw = 0
                if k2 == "d" and wd_tr_t.get(s2, 1 << 30) <= a.lg_done and tick.get(("h", 28 * r2 + s2), 1 << 30) <= a.vm_done:
                    nw = 0
            room = lambda: GAP - nw - (len(a.ins) - g0)
            wread(n, LO, max(room(), 0))
            if room() > 0:
                emit(fill, min(room(), o.get("fpri", 2)))
            if room() > 0:
                emit(memq, min(room(), 2))
            if room() > 0:
                emit(wq2, min(room(), 2))
            if room() > 0:
                emit(fill, room())
            if room() > 0:
                wread(n, HI, room())
            if room() > 0:
                emit(memq, room())
        emit(fill, 999)
        assert not memq and not wq2 and not any(queues.values())
        self.stamp(18)
        self.model[18] = sim["T"]
        for t in red_write(1):
            a(t)
        a.wait_all(vm=False)
        a("s_barrier")
        for f in red_finish(1):
            f() if callable(f) else a(f)
        self.stamp(19)

    def p45_setup(self, vSTA, vPD, vFA):
        a = self.a
        self.w_dma_pattern(vPD, 8, 896)
        a(f"s_lshl_b32 {s(sT0)}, {s(sCB)}, 7")
        a(f"s_mul_i32 {s(sT1)}, {s(sW)}, {448 * 896}")
        a(f"s_add_u32 {s(sT4)}, {s(sT0)}, {s(sT1)}")
        a(f"s_sub_u32 {s(sT4)}, {s(sT4)}, {16 * 896}")
        a(f"v_add_u32 v0, {8 * 896 - 1024}, {v(vPD)}")
        a(f"s_mul_i32 {s(sTQ)}, {s(sW)}, {2 * TILE_B}")
        a(f"s_add_u32 {s(sTQ)}, {s(sTQ)}, {s(sGB)}")
        a(f"s_add_u32 {s(sTQ)}, {s(sTQ)}, {YO}")
        a(f"v_and_b32 {v(vSTA)}, 0x1f0, {v(vL16)}")
        a(f"v_lshrrev_b32 {v(vSTA)}, 1, {v(vSTA)}")
        a("v_mul_u32_u24 v8, 14336, v4")
        a(f"v_add_u32 {v(vSTA)}, {v(vSTA)}, v8")
        a(f"s_lshl_b32 {s(sT1)}, {s(sW)}, 9")
        a(f"s_add_u32 {s(sT1)}, {s(sT1)}, {s(sGB)}")
        a(f"s_add_u32 {s(sKVL)}, {s(sT1)}, {STO}")
        a(f"s_mov_b32 {s(sP1)}, 0x01000100")
        a(f"s_mov_b32 {s(sP1 + 1)}, 0x07060302")
        a(f"s_mov_b32 {s(sHD)}, 0x05040100")
        a(f"s_mov_b32 {s(sT2)}, 0xffff")
        a(f"s_mov_b32 {s(sMASK)}, -1")
        a(f"s_mov_b32 {s(sMASK + 1)}, 0")
        a(f"s_mul_i32 {s(sT3)}, {s(sW)}, {2 * HT_B + 1024}")
        a(f"s_add_u32 {s(sT3)}, {s(sT3)}, {s(sGB)}")
        a(f"s_lshl_b32 {s(sT1)}, {s(sM)}, 12")
        a(f"s_add_u32 {s(sT3)}, {s(sT3)}, {s(sT1)}")
        a(f"s_add_u32 {s(sT3)}, {s(sT3)}, {HO}")
        a(f"s_mul_i32 {s(sT6)}, {s(sRQ)}, {2 * HT_B}")
        a(f"s_mul_i32 {s(sT1)}, {s(sW)}, {28 * 1024}")
        a(f"s_add_u32 {s(sT6)}, {s(sT6)}, {s(sT1)}")
        a(f"s_add_u32 {s(sT6)}, {s(sT6)}, {s(sGB)}")
        a(f"s_add_u32 {s(sT6)}, {s(sT6)}, {HO}")
        a(f"v_min_u32 {v(vFA)}, 96, {v(vL16)}")
        a(f"s_mul_i32 {s(sT0)}, {s(sW)}, 112")
        a(f"s_lshl_b32 {s(sT1)}, {s(sRQ)}, 2")
        a(f"s_add_u32 {s(sT0)}, {s(sT0)}, {s(sT1)}")
        a(f"s_add_u32 {s(sT0)}, {s(sT0)}, {LFO + 3 * 512}")
        a(f"v_add_u32 {v(vFA)}, {s(sT0)}, {v(vFA)}")
        a(f"s_mul_i32 {s(sT0)}, {s(sRT)}, {TILE_B - 32}")
        a(f"s_sub_u32 {s(sXCC)}, {s(sXCC)}, {s(sT0)}")

    def ln2_stats(self, vST, vAUG, vR2):
        ops = []
        for rt in range(2):
            b = vST + 14 * rt
            for p in range(1, 7):
                ops += [f"v_add_f32 {v(b)}, {v(b)}, {v(b + 2 * p)}", f"v_add_f32 {v(b + 1)}, {v(b + 1)}, {v(b + 2 * p + 1)}"]
            ops += [f"v_mov_b32 {v(b + 2)}, {v(b)}", f"v_mov_b32 {v(b + 3)}, {v(b + 1)}",
                    f"v_permlane32_swap_b32 {v(b + 2)}, {v(b)}", f"v_permlane32_swap_b32 {v(b + 3)}, {v(b + 1)}",
                    f"v_add_f32 {v(b)}, {v(b)}, {v(b + 2)}", f"v_add_f32 {v(b + 1)}, {v(b + 1)}, {v(b + 3)}",
                    f"v_mul_f32 {v(b)}, {f2u(-1 / 448):#x}, {v(b)}",
                    f"v_mul_f32 {v(b + 1)}, {f2u(1 / 448):#x}, {v(b + 1)}",
                    f"v_fma_f32 {v(b + 1)}, -{v(b)}, {v(b)}, {v(b + 1)}",
                    f"v_max_f32 {v(b + 1)}, 0, {v(b + 1)}",
                    f"v_add_f32 {v(b + 1)}, {f2u(1e-5):#x}, {v(b + 1)}",
                    f"v_rcp_f32 {v(vR2 + rt)}, {v(b + 1)}",
                    f"v_sqrt_f32 {v(b + 1)}, {v(b + 1)}",
                    f"v_cvt_pk_bf16_f32 {v(b + 2)}, {v(b)}, {v(b + 1)}",
                    f"v_lshlrev_b32 {v(b + 3)}, 16, {v(b + 2)}",
                    f"v_and_b32 {v(b + 4)}, 0xffff0000, {v(b + 2)}",
                    f"v_sub_f32 {v(b + 3)}, {v(b)}, {v(b + 3)}",
                    f"v_sub_f32 {v(b + 4)}, {v(b + 1)}, {v(b + 4)}",
                    f"v_cvt_pk_bf16_f32 {v(b + 3)}, {v(b + 3)}, {v(b + 4)}",
                    f"v_perm_b32 {v(vAUG + 4 * rt)}, {v(b + 2)}, {v(b + 2)}, {s(sP1)}",
                    f"v_bfi_b32 {v(vAUG + 4 * rt + 1)}, {s(sT2)}, {v(b + 3)}, {v(b + 2)}",
                    f"v_perm_b32 {v(vAUG + 4 * rt + 2)}, {v(b + 3)}, {v(b + 2)}, {s(sP1 + 1)}",
                    f"v_mov_b32 {v(vAUG + 4 * rt + 3)}, 0"]
        return ops

    def helper_tail(self):
        a = self.a
        a("L_helper_tail:")
        a.vm_done, a.lg_done = a.vm_n, a.lg_n
        if self.o.get("hmall", 1):
            row0 = 16 * self.o.get("n_att", 14)
            per = -(-(448 - row0) * 28 // 128)
            a(f"v_lshlrev_b32 v8, 3, {v(vL16)}")
            a(f"s_sub_u32 {s(sT0)}, s2, 224")
            a(f"s_lshl_b32 {s(sT0)}, {s(sT0)}, 2")
            a(f"s_add_u32 {s(sT0)}, {s(sT0)}, {s(sW)}")
            a(f"s_mul_i32 {s(sT1)}, {s(sT0)}, {per * 128}")
            a(f"s_add_u32 {s(sT1)}, {s(sT1)}, {row0 * 3584}")
            a(f"s_mul_i32 {s(sT0)}, {s(sT0)}, {98 * 128}")
            per = min(per, 64)
            a(f"s_mov_b32 exec_hi, {(1 << max(per - 32, 0)) - 1:#x}")
            self.touch(8, SWG, sT1)
            self.touch(8, SWU, sT1)
            a("s_mov_b32 exec_hi, 0x1ffff")
            self.touch(8, SWD, sT0)
            a(f"s_add_u32 {s(sT0)}, {s(sT0)}, {49 * 128}")
            self.touch(8, SWD, sT0)
            a("s_mov_b64 exec, -1")
        if self.o.get("touch_h", 1):
            a(f"v_lshlrev_b32 v8, 3, {v(vL16)}")
            a(f"s_sub_u32 {s(sT0)}, {s(sM)}, 28")
            a(f"s_lshl_b32 {s(sT0)}, {s(sT0)}, 2")
            a(f"s_add_u32 {s(sT0)}, {s(sT0)}, {s(sW)}")
            a(f"s_lshl_b32 {s(sT0)}, {s(sT0)}, 13")
            a(f"s_add_u32 {s(sT0)}, {s(sT0)}, {s(sGB)}")
            a(f"s_add_u32 {s(sT0)}, {s(sT0)}, 0xA8000")
            for i in range(2):
                self.touch(8, SWS, sT0)
                a(f"s_add_u32 {s(sT0)}, {s(sT0)}, {16 * 8192}")
        if self.o.get("hl2", 1):
            a(f"s_sub_u32 {s(sT2)}, {s(sM)}, 28")
            a(f"s_lshl_b32 {s(sT2)}, {s(sT2)}, 2")
            a(f"s_add_u32 {s(sT2)}, {s(sT2)}, {s(sW)}")
            a(f"v_lshlrev_b32 v8, 3, {v(vL16)}")
            row0 = 16 * self.o.get("n_att", 14)
            nins = -(-(448 - row0) * 28 // (64 * 16))
            a(f"s_lshl_b32 {s(sT0)}, {s(sT2)}, 13")
            a(f"s_add_u32 {s(sT0)}, {s(sT0)}, {row0 * 3584}")
            for i in range(nins if self.o.get("hl2_gu", 1) else 0):
                self.touch(8, SWG, sT0)
                self.touch(8, SWU, sT0)
                a(f"s_add_u32 {s(sT0)}, {s(sT0)}, {16 * 8192}")
                a("s_waitcnt vmcnt(2)")
            a(f"s_and_b32 {s(sT0)}, {s(sT2)}, 3")
            a(f"s_mul_i32 {s(sT0)}, {s(sT0)}, {448 * 896}")
            a(f"s_lshr_b32 {s(sT1)}, {s(sT2)}, 2")
            a(f"s_mul_i32 {s(sT1)}, {s(sT1)}, {8 * 896}")
            a(f"s_add_u32 {s(sT0)}, {s(sT0)}, {s(sT1)}")
            a("s_mov_b32 exec_hi, 0x00ffffff")
            for i in range(14 if self.o.get("hl2_d", 1) else 0):
                self.touch(8, SWD, sT0)
                a(f"s_add_u32 {s(sT0)}, {s(sT0)}, {32 * 896}")
                a("s_waitcnt vmcnt(2)")
            a("s_mov_b64 exec, -1")
        if self.o.get("wb", 0) and self.stop is None:
            a(f"s_cmp_lg_u32 {s(sM)}, 28")
            a("s_cbranch_scc1 L_end")
            a(f"s_cmp_lg_u32 {s(sW)}, 0")
            a("s_cbranch_scc1 L_end")
            self.poll_local(self.o.get("wb_phase", 4), 28, 8)
            a("buffer_wbl2 sc1")
            a.wait_all()
        self.finish()

    def body(self, slow):
        self.slow = slow
        a = self.a
        if slow:
            a("L_p1_slow:")
        a.vm_done, a.lg_done = a.vm_n, a.lg_n
        self.p1_gemm()
        self.p2()
        if self.stop == 2:
            return self.finish()
        self.p3()
        if self.stop == 3:
            return self.finish()
        self.p45()
        self.finish()

    def flush_tail(self):
        for blk in self.tail:
            for t in blk:
                self.a(t)
        self.tail = []

    def build(self):
        a = self.a
        self.entry()
        self.p1_front()
        self.body(False)
        self.in_helper = True
        self.helper()
        self.helper_tail()
        self.in_helper = False
        self.flush_tail()
        a("L_abort:")
        a("s_mov_b64 exec, -1")
        a("L_end:")
        if self.prof:
            a(f"s_lshl_b32 {s(sT0)}, s2, 2")
            a(f"s_add_u32 {s(sT0)}, {s(sT0)}, {s(sW)}")
            a(f"s_lshl_b32 {s(sT0)}, {s(sT0)}, 8")
            a(f"s_add_u32 {s(sT0)}, {s(sT0)}, {PROF}")
            a("s_waitcnt vmcnt(0)")
            self.stamp(20)
            a(f"v_lshrrev_b32 v8, 2, {v(vL16)}")
            a(f"buffer_store_dword {v(vSTAMP)}, v8, {srd(SWS)}, {s(sT0)} offen")
        if self.o.get("diag_cycles"):
            a(f"s_mov_b32 {s(sT0)}, {self.o['diag_cycles'] // 1024}")
            a("L_diag:")
            for i in range(256):
                a(f"v_fma_f32 v{8 + i % 16}, v8, v9, v10")
            a(f"s_sub_u32 {s(sT0)}, {s(sT0)}, 1")
            a(f"s_cmp_lg_u32 {s(sT0)}, 0")
            a("s_cbranch_scc1 L_diag")
        if self.o.get("diag_wall"):
            a("s_waitcnt vmcnt(0)")
            a(f"v_readlane_b32 s101, {v(vSTAMP)}, 0")
            a("L_diag:")
            a(f"s_memrealtime {s(sST, 2)}")
            a("s_waitcnt lgkmcnt(0)")
            a(f"s_sub_u32 {s(sT0)}, {s(sST)}, s101")
            a(f"s_cmp_lt_u32 {s(sT0)}, {self.o['diag_wall']}")
            a("s_cbranch_scc1 L_diag")
        a("L_exit:")
        a("s_endpgm")
        a("L_fast_end:")
        self.body(True)
        self.flush_tail()
        a("s_endpgm")
        return a.text()


HEADER = """; Fused adaLN block: x + ga*Attn(LN(x)*(1+ca)+sa), then + gb*ReGLU-FFN(LN(.)*(1+cb)+sb); one persistent launch.
; per-launch value derived from ws[0]. Each group checks at run time (HW_REG_XCC_ID) that its members share a die;
; @launch grid=(256,1,1) block=(256,1,1) lds={lds}
.amdgcn_target "amdgcn-amd-amdhsa--gfx950"
.text
.globl {k}
.p2align 8
.type {k},@function
{k}:
"""
FOOTER = """
.section .rodata,"a"
.p2align 6
.amdhsa_kernel {k}
  .amdhsa_next_free_vgpr 512
  .amdhsa_next_free_sgpr 102
  .amdhsa_accum_offset 256
  .amdhsa_group_segment_fixed_size 0
  .amdhsa_kernarg_size 96
  .amdhsa_user_sgpr_count 2
  .amdhsa_user_sgpr_kernarg_segment_ptr 1
  .amdhsa_system_sgpr_workgroup_id_x 1
  .amdhsa_float_denorm_mode_32 3
.end_amdhsa_kernel
"""


def generate(prof=False, stop=None, opts=None):
    g = Gen(prof, stop, opts)
    body = g.build()
    return HEADER.format(k=KNAME, lds=LDS_BYTES) + body + FOOTER.format(k=KNAME), g


if __name__ == "__main__":
    out = sys.argv[1] if len(sys.argv) > 1 else f"cdna_kernels/{NAME}.s"
    opts = dict(kv.split("=") for kv in sys.argv[2:])
    opts = {k: int(x) for k, x in opts.items()}
    text, g = generate(prof=bool(opts.pop("prof", 0)), stop=opts.pop("stop", None), opts=opts)
    open(out, "w").write(text)
    print("wrote", out, len(text), "bytes;", len(g.a.ins), "lines;", g.a.nops, "hazard nops; model", getattr(g, "model", None))
    import collections
    print("gap histogram", sorted(collections.Counter(getattr(g, "gaps", [])).items()))
```

```python
import sys
from asmlib import Asm, v, a_, s

NAME = "adaLN_cond__sliding_block__glu_gated_reglu__prompt"
KNAME = NAME + "_kernel"

TILE_B = 28672
HT_B = 114688
QO, KO, VO, OO, YO, HO, STO, LFO = 0, 0x38000, 0x70000, 0, 0xA8000, 0x100000, 0xE0000, 0xE7000
XCCO, MODO, AFO, RFO, AUGO, PROF = 0x400, 0x1000, 0x4000, 0x8000, 0x20000, 0x100000
WS_BYTES = 0x1200000
OOB = 0x7F000000
SPIN_MAX = 1 << 18

LA, LB, LC, LD = 0, 57344, 114688, 159744
LDS_BYTES = 163840
L_KV = LC
L_XB = LC
L_X2 = LC + 16384
L_AUG = LC + 40960
L_T2 = LD
L_F = LC

SX, SWQKV, SWO, SWG, SWU, SWD, SOUT, SWS, SWMOD, SC = 4, 8, 12, 16, 20, 24, 28, 32, 36, 40
sG, sM, sW, sTAG, sGB, sRQ, sCB, sXCC, sSPIN = 44, 45, 46, 47, 48, 49, 50, 51, 52
sT0, sT1, sT2, sT3, sT4, sT5, sT6, sT7 = 53, 54, 55, 56, 57, 58, 59, 60
sRT, sCH, sTILE = 61, 62, 63
sHD, sB, sWS0, sMISS, sTQ, sKVL, sWSRC, sWO = 36, 37, 38, 39, 40, 41, 42, 43
sMASK = 64
sST = 96
sP0, sP1 = 98, 100

vL16, vSTAMP = 1, 7
vZ = 32
vX2, vGBP = 240, 248

QSCALE = 28 ** -0.5 * 1.4426950408889634


def f2u(x):
    import struct
    return struct.unpack("<I", struct.pack("<f", x))[0]


def srd(i):
    return s(i, 4)


class Gen:
    def __init__(self, prof=False, stop=None, opts=None):
        self.a = Asm()
        self.prof = prof
        self.stop = stop
        self.o = opts or {}
        self.tail = []
        self.slow = False

    def stamp(self, i):
        if self.o.get("diag_wall") and self.o.get("diag_at") == i and not getattr(self, "in_helper", False):
            self.a(f"s_memrealtime {s(sST, 2)}")
            self.a.wait_all(vm=False)
            self.a(f"v_writelane_b32 {v(vSTAMP)}, {s(sST)}, 0")
        if not self.prof:
            return
        only = self.o.get("stamps")
        if only is not None and i != 20 and not (only >> i) & 1:
            return
        a = self.a
        if i == 20:
            a(f"s_memrealtime {s(sST, 2)}")
            a.wait_all(vm=False)
            a(f"v_writelane_b32 {v(vSTAMP)}, {s(sST)}, {i}")
        a(f"s_mem{'real' if self.o.get('rt') else ''}time {s(sST, 2)}")
        a.wait_all(vm=False)
        a(f"v_writelane_b32 {v(vSTAMP)}, {s(sST)}, {32 + i}")

    def dma(self, vaddr, sr, lds_base, lds_off, src_base, src_off, sc1=False, imm=0):
        a = self.a
        lo = lds_off - imm
        if lds_base is None:
            a(f"s_mov_b32 m0, {lo}")
        else:
            a(f"s_add_u32 m0, {s(lds_base)}, {lo}" if lo >= 0 else f"s_sub_u32 m0, {s(lds_base)}, {-lo}")
        if src_off:
            a(f"s_add_u32 {s(sT7)}, {s(src_base)}, {src_off}")
            so = sT7
        else:
            so = src_base
        return a.vm(f"buffer_load_dwordx4 {v(vaddr)}, {srd(sr)}, {s(so)} offen"
                    + (f" offset:{imm}" if imm else "") + (" sc1" if sc1 else "") + " lds")

    def st(self, what=None):
        return " sc1" if self.slow or self.o.get("sc_" + str(what), what == "h") else ""

    def poll(self, loads, tagregs, exec_lo=None, exec_hi=None, preloaded=False):
        a = self.a
        L = a.label("poll")
        if exec_lo is not None:
            a(f"s_mov_b32 exec_lo, {exec_lo:#x}")
        if exec_hi is not None:
            a(f"s_mov_b32 exec_hi, {exec_hi:#x}")
        a(f"s_mov_b32 {s(sSPIN)}, 0")
        if not preloaded:
            for t in loads:
                a(t)
        a(f"{L}:")
        a.wait_all(lg=False)
        t0, rest = tagregs[0], list(tagregs[1:])
        if len(tagregs) > 2:
            acc = 255
            a(f"v_xor_b32 {v(acc)}, {s(sTAG)}, {v(t0)}")
            for r in rest:
                a(f"v_bitop3_b32 {v(acc)}, {v(acc)}, {v(r)}, {s(sTAG)} bitop3:0xf6")
            a(f"v_cmp_ne_u32 vcc, 0, {v(acc)}")
        else:
            a(f"v_cmp_ne_u32 vcc, {s(sTAG)}, {v(t0)}")
            for r in rest:
                a(f"v_cmp_ne_u32 {s(sP0, 2)}, {s(sTAG)}, {v(r)}")
                a(f"s_or_b64 vcc, vcc, {s(sP0, 2)}")
        a(f"s_cbranch_vccnz {L}_again")
        if exec_lo is not None or exec_hi is not None:
            a("s_mov_b64 exec, -1")
        self.tail.append([f"{L}_again:"] + list(loads) +
                         [f"s_add_u32 {s(sSPIN)}, {s(sSPIN)}, 1", f"s_cmp_gt_u32 {s(sSPIN)}, {SPIN_MAX}",
                          f"s_cbranch_scc0 {L}", "s_branch L_abort"])

    def check_tags(self, loads, tagregs):
        a = self.a
        L = a.label("chk")
        chk = [f"v_xor_b32 v255, {s(sTAG)}, {v(tagregs[0])}"]
        chk += [f"v_bitop3_b32 v255, v255, {v(r)}, {s(sTAG)} bitop3:0xf6" for r in tagregs[1:]]
        chk += ["v_cmp_ne_u32 vcc, 0, v255"]
        for t in chk:
            a(t)
        a(f"s_cbranch_vccnz {L}")
        a(f"{L}_back:")
        self.tail.append([f"{L}:", f"s_mov_b32 {s(sSPIN)}, 0", f"{L}_spin:"] + list(loads) +
                         [f"s_add_u32 {s(sSPIN)}, {s(sSPIN)}, 1", f"s_cmp_gt_u32 {s(sSPIN)}, {SPIN_MAX}",
                          "s_cbranch_scc1 L_abort", "s_waitcnt vmcnt(0)"] + chk +
                         [f"s_cbranch_vccnz {L}_spin", f"s_branch {L}_back"])

    def local_flag(self, phase, vt, ticket=None, temps=(sT0, sT1)):
        a = self.a
        t0 = temps[0]
        a(f"s_lshl2_add_u32 {s(t0)}, {s(sM)}, {s(sW)}")
        a(f"s_lshl2_add_u32 {s(t0)}, {s(t0)}, {LFO + phase * 512}")
        a(f"v_mov_b32 {v(vt)}, {s(t0)}")
        a(f"v_mov_b32 {v(vt + 1)}, {s(sTAG)}")
        if ticket is None:
            a.wait_all(lg=False)
        else:
            a.wait(vm=ticket)
        a("s_mov_b64 exec, 1")
        a(f"buffer_store_dword {v(vt + 1)}, {v(vt)}, {srd(SWS)}, {s(sGB)} offen{self.st('f')}")
        a("s_mov_b64 exec, -1")

    def poll_local(self, phase, nprod, vt):
        a = self.a
        a(f"v_lshrrev_b32 {v(vt)}, 1, {v(vL16)}")
        a(f"s_add_u32 {s(sT0)}, {s(sGB)}, {LFO + phase * 512}")
        self.poll([f"buffer_load_dwordx2 {v(vt + 2, 2)}, {v(vt)}, {srd(SWS)}, {s(sT0)} offen sc1"], [vt + 2, vt + 3],
                  exec_hi=None if nprod == 32 else 0x00FFFFFF)

    def tr_pattern(self, vd, vt, perm, ct_sgpr=None, ct_imm=0):
        a = self.a
        a(f"v_lshrrev_b32 {v(vt)}, 4, {v(vL16)}")
        a(f"v_bfe_u32 {v(vt + 1)}, {v(vt)}, 2, 2")
        a(f"v_lshrrev_b32 {v(vt + 2)}, 5, {v(vt)}")
        a(f"v_lshl_add_u32 {v(vt + 2)}, {v(vt + 2)}, 3, {v(vt + 1)}")
        a(f"v_lshlrev_b32 {v(vd)}, 7, {v(vt + 2)}")
        a(f"v_lshrrev_b32 {v(vt + 1)}, 1, {v(vt + 1)}")
        a(f"v_lshlrev_b32 {v(vt + 1)}, 6, {v(vt + 1)}")
        if perm:
            a(f"v_and_b32 {v(vt + 2)}, 1, {v(vt)}")
            a(f"v_lshlrev_b32 {v(vt + 2)}, 4, {v(vt + 2)}")
            a(f"v_xor_b32 {v(vt + 1)}, {v(vt + 1)}, {v(vt + 2)}")
            a(f"v_and_b32 {v(vt + 2)}, 2, {v(vt)}")
            a(f"v_lshlrev_b32 {v(vt + 2)}, 2, {v(vt + 2)}")
        else:
            a(f"v_and_b32 {v(vt + 2)}, 3, {v(vt)}")
            a(f"v_lshlrev_b32 {v(vt + 2)}, 3, {v(vt + 2)}")
        a(f"v_xor_b32 {v(vt + 1)}, {v(vt + 1)}, {v(vt + 2)}")
        a(f"v_and_b32 {v(vt + 2)}, 16, {v(vt)}")
        a(f"v_lshlrev_b32 {v(vt + 2)}, 1, {v(vt + 2)}")
        a(f"v_xor_b32 {v(vt + 1)}, {v(vt + 1)}, {v(vt + 2)}")
        if ct_sgpr is not None:
            a(f"s_lshl_b32 {s(sT0)}, {s(ct_sgpr)}, 6")
            a(f"v_xor_b32 {v(vt + 1)}, {s(sT0)}, {v(vt + 1)}")
        elif ct_imm:
            a(f"v_xor_b32 {v(vt + 1)}, {ct_imm * 64}, {v(vt + 1)}")
        a(f"v_add_u32 {v(vd)}, {v(vd)}, {v(vt + 1)}")

    def w_dma_pattern(self, vd, vt, stride, up=False):
        a = self.a
        a(f"v_lshrrev_b32 {v(vt)}, 7, {v(vL16)}")
        a(f"v_mul_u32_u24 {v(vd)}, {stride}, {v(vt)}")
        a(f"v_and_b32 {v(vt)}, 2, {v(vt)}")
        a(f"v_lshlrev_b32 {v(vt)}, 5, {v(vt)}")
        a(f"v_and_b32 {v(vt + 1)}, 0x70, {v(vL16)}")
        a(f"v_xor_b32 {v(vt)}, {v(vt)}, {v(vt + 1)}")
        if up:
            a(f"v_xor_b32 {v(vt)}, 32, {v(vt)}")
        a(f"v_add_u32 {v(vd)}, {v(vd)}, {v(vt)}")

    def tr2(self, dst, vaddr, off):
        f = v if dst[0] == "v" else a_
        self.a.lg(f"ds_read_b64_tr_b16 {f(dst[1], 2)}, {v(vaddr)} offset:{off}")
        return self.a.lg(f"ds_read_b64_tr_b16 {f(dst[1] + 2, 2)}, {v(vaddr)} offset:{off + 512}")

    def both_halves(self, vx, vt, op):
        a = self.a
        a(f"v_mov_b32 {v(vt)}, {v(vx)}")
        a(f"v_permlane32_swap_b32 {v(vt)}, {v(vx)}")
        a(f"{op} {v(vx)}, {v(vx)}, {v(vt)}")

    def finish(self):
        self.a("s_branch L_end")

    def entry(self):
        a = self.a
        KA = 64
        self.ptr = {SX: 0, SWQKV: 1, SWO: 2, SWG: 4, SWU: 5, SWD: 6, SC: 7, SWMOD: 8, SOUT: 9, SWS: 11}
        self.size = {SX: 2048 * 896, SWQKV: 448 * 2688, SWO: 448 * 896, SWG: 448 * 3584, SWU: 448 * 3584,
                     SWD: 1792 * 896, SOUT: 2048 * 896, SWS: WS_BYTES, SWMOD: 448 * 5376, SC: 896}
        a(f"s_load_dwordx16 {s(KA, 16)}, s[0:1], 0")
        a(f"s_load_dwordx8 {s(KA + 16, 8)}, s[0:1], 64")
        a("s_lshr_b32 s3, s2, 8")
        a("s_cbranch_scc1 L_exit")
        if self.prof or self.o.get("diag_wall"):
            a(f"v_mov_b32 {v(vSTAMP)}, 0")
            a(f"s_memrealtime {s(sST, 2)}")
        a("v_lshrrev_b32 v2, 6, v0")
        a("v_and_b32 v3, 63, v0")
        a(f"v_readfirstlane_b32 {s(sW)}, v2")
        a(f"s_getpc_b64 {s(sP0, 2)}")
        a("L_pc:")
        a(f"s_lshr_b32 {s(sM)}, s2, 3")
        a(f"s_lshl2_add_u32 {s(sT0)}, {s(sM)}, {s(sW)}")
        a(f"s_lshl_b32 {s(sT0)}, {s(sT0)}, 9")
        a(f"v_lshl_add_u32 v4, v3, 7, {s(sT0)}")
        a("v_min_u32 v4, L_fast_end-L_pc-4, v4")
        a("s_mov_b64 exec, 15")
        a.vm(f"global_load_dword {a_(255)}, v4, {s(sP0, 2)}")
        a("s_mov_b64 exec, -1")
        a(f"v_lshlrev_b32 {v(vL16)}, 4, v3")
        a(f"s_and_b32 {s(sG)}, s2, 7")
        a(f"s_mul_i32 {s(sRQ)}, {s(sM)}, 37")
        a(f"s_lshr_b32 {s(sRQ)}, {s(sRQ)}, 8")
        a(f"s_cmp_ge_u32 {s(sM)}, 28")
        a("s_cbranch_scc1 L_helper0")

    def make_srd(self, *rs):
        for r in rs:
            self.a(f"s_mov_b64 {s(r, 2)}, {s(64 + 2 * self.ptr[r], 2)}")
            self.a(f"s_mov_b32 {s(r + 2)}, {self.size[r]:#x}")
            self.a(f"s_mov_b32 {s(r + 3)}, 0x20000")

    def first_stamp(self):
        a = self.a
        if self.prof:
            a(f"v_writelane_b32 {v(vSTAMP)}, {s(sST)}, 0")
            a(f"s_mem{'real' if self.o.get('rt') else ''}time {s(sST, 2)}")
            a("s_waitcnt lgkmcnt(0)")
            a(f"v_writelane_b32 {v(vSTAMP)}, {s(sST)}, 32")
        if self.o.get("diag_wall"):
            a(f"v_writelane_b32 {v(vSTAMP)}, {s(sST)}, 0")

    def common_setup(self, done):
        a = self.a
        self.make_srd(*[r for r in (SWS, SX, SWQKV, SWO, SWG, SWU, SWD, SOUT) if r not in done])
        a(f"s_load_dword {s(sTAG)}, {s(SWS, 2)}, 0")
        a(f"s_getreg_b32 {s(sXCC)}, hwreg(HW_REG_XCC_ID, 0, 4)")
        a(f"s_add_u32 {s(sGB)}, {s(sG)}, 1")
        a(f"s_lshl_b32 {s(sGB)}, {s(sGB)}, 21")
        a(f"s_mul_i32 {s(sT0)}, {s(sRQ)}, 7")
        a(f"s_sub_u32 {s(sCB)}, {s(sM)}, {s(sT0)}")
        a(f"s_lshr_b32 {s(sRT)}, {s(sW)}, 1")
        a(f"s_and_b32 {s(sCH)}, {s(sW)}, 1")
        a(f"s_lshl1_add_u32 {s(sTILE)}, {s(sRQ)}, {s(sRT)}")
        if self.o.get("tlb", 0):
            a(f"s_sub_u32 {s(sT0)}, {s(sGB)}, 0x200000")
            a(f"s_cmp_eq_u32 {s(sW)}, 3")
            a("s_cselect_b64 exec, 1, 0")
            for r in (SWO, SWG, SWU, SWD, SOUT):
                a(f"buffer_load_dword {a_(255)}, {v(vL16)}, {srd(r)}, 0 offen")
            a(f"buffer_load_dword {a_(255)}, {v(vL16)}, {srd(SWS)}, {s(sGB)} offen")
            a(f"buffer_load_dword {a_(255)}, {v(vL16)}, {srd(SWS)}, {s(sT0)} offen")
            a("s_mov_b64 exec, -1")

    def warm0(self):
        a = self.a
        a(f"s_lshl2_add_u32 s3, s2, {s(sW)}")
        a("v_lshlrev_b32 v4, 7, v3")
        a(f"s_lshr_b32 {s(sT3)}, s3, 1")
        a(f"s_and_b32 {s(sT1)}, s3, 1")
        a(f"s_mul_i32 {s(sT1)}, {s(sT1)}, 896")
        a(f"s_mul_i32 {s(sT0)}, {s(sT3)}, 5376")
        a(f"s_add_u32 {s(sT0)}, {s(sT0)}, {s(sT1)}")
        a(f"s_mul_i32 {s(sT3)}, {s(sT3)}, 2688")
        a(f"s_add_u32 {s(sT1)}, {s(sT1)}, {s(sT3)}")
        a(f"s_and_b32 {s(sT3)}, s3, 511")
        a(f"s_lshl_b32 {s(sT3)}, {s(sT3)}, 7")
        a("s_mov_b64 exec, 0x7f")
        if self.o.get("warm0", 1) & 1:
            a(f"buffer_load_dword {a_(255)}, v4, {srd(SWMOD)}, {s(sT0)} offen")
        a(f"buffer_load_dword {a_(255)}, v4, {srd(SWQKV)}, {s(sT1)} offen offset:896")
        a("s_mov_b64 exec, 1")
        a(f"buffer_load_dword {a_(255)}, v4, {srd(SWS)}, {s(sT3)} offen")
        a("s_mov_b64 exec, -1")

    def touch(self, vaddr, sr, soff, lanes=64):
        a = self.a
        if lanes < 64:
            a(f"s_mov_b64 exec, {(1 << lanes) - 1:#x}")
        t = a.vm(f"buffer_load_dword {a_(255)}, {v(vaddr)}, {srd(sr)}, {s(soff)} offen")
        if lanes < 64:
            a("s_mov_b64 exec, -1")
        return t

    def make_tag_and_publish_xcc(self, vt):
        a = self.a
        a.wait_all(vm=False)
        a(f"s_mul_i32 {s(sTAG)}, {s(sTAG)}, 1664525")
        a(f"s_add_u32 {s(sTAG)}, {s(sTAG)}, 1013904223")
        a(f"s_lshl_b32 {s(sT0)}, {s(sG)}, 8")
        a(f"s_lshl_b32 {s(sT1)}, {s(sM)}, 3")
        a(f"s_add_u32 {s(sT0)}, {s(sT0)}, {s(sT1)}")
        a(f"v_mov_b32 {v(vt)}, {s(sXCC)}")
        a(f"v_mov_b32 {v(vt + 1)}, {s(sTAG)}")
        a(f"v_mov_b32 {v(vt + 2)}, {XCCO}")
        a(f"s_cmp_eq_u32 {s(sW)}, 0")
        a("s_cselect_b64 exec, 1, 0")
        a.vm(f"buffer_store_dwordx2 {v(vt, 2)}, {v(vt + 2)}, {srd(SWS)}, {s(sT0)} offen sc1")
        a("s_mov_b64 exec, -1")

    def xcc_load(self, vaddr, vd):
        a = self.a
        a(f"v_and_b32 {v(vaddr)}, 0x1f0, {v(vL16)}")
        a(f"v_lshrrev_b32 {v(vaddr)}, 1, {v(vaddr)}")
        a(f"s_lshl_b32 {s(sT6)}, {s(sG)}, 8")
        return f"buffer_load_dwordx2 {v(vd, 2)}, {v(vaddr)}, {srd(SWS)}, {s(sT6)} offen offset:{XCCO} sc1"

    def choose_mode(self, vd, slow_label):
        a = self.a
        a(f"v_cmp_ne_u32 vcc, {s(sXCC)}, {v(vd)}")
        if self.o.get("force_slow"):
            a(f"s_branch {slow_label}")
        else:
            a(f"s_cbranch_vccnz {slow_label}")

    def p1_front(self):
        a = self.a
        vPW, vRAW, vS, vQ2 = 6, 160, 224, 240
        a(f"v_mov_b32 v5, {OOB}")
        a("v_cmp_gt_u32 vcc, 56, v3")
        a(f"s_lshl2_add_u32 {s(sT2)}, {s(sG)}, {s(sRQ)}")
        a(f"s_lshl2_add_u32 {s(sT2)}, {s(sT2)}, {s(sW)}")
        a(f"s_mul_i32 {s(sT2)}, {s(sT2)}, {16 * 896}")
        a(f"v_cndmask_b32 v5, v5, {v(vL16)}, vcc")
        a(f"s_mul_i32 {s(sT0)}, {s(sRQ)}, 7")
        a(f"s_sub_u32 {s(sCB)}, {s(sM)}, {s(sT0)}")
        a(f"s_lshl_b32 {s(sT0)}, {s(sCB)}, 7")
        a("v_mul_u32_u24 v4, 896, v3")
        a(f"s_add_u32 {s(sT0)}, {s(sT0)}, {s(sT2)}")
        a("s_waitcnt lgkmcnt(0)")
        self.first_stamp()
        self.make_srd(SX)
        if self.o.get("xt", 1):
            a("s_mov_b64 exec, 0xffff")
            a(f"buffer_load_dword {a_(255)}, v4, {srd(SX)}, {s(sT0)} offen")
            a("s_mov_b64 exec, -1")
        tx = []

        def ldx():
            r = len(tx)
            if r < 16:
                if r and r % 4 == 0:
                    a(f"s_add_u32 {s(sT2)}, {s(sT2)}, {4 * 896}")
                tx.append(a.vm(f"buffer_load_dwordx4 {v(vRAW + 4 * r, 4)}, v5, {srd(SX)}, {s(sT2)} offen offset:{(r % 4) * 896}"))

        xf = self.o.get("x_first", 8)
        for r in range(self.o.get("x_pre", 4)):
            ldx()
        self.make_srd(SWMOD, SWQKV, SWS)
        if self.o.get("warm0", 1):
            self.warm0()
        while len(tx) < xf:
            ldx()
        self.stamp(28)
        a("s_branch L_front")
        self.helper_first_loads()
        a("L_front:")
        self.common_setup((SX, SWQKV, SWS))
        self.w_dma_pattern(vPW, 8, 2688)
        a(f"s_mul_i32 {s(sT0)}, {s(sW)}, {8 * 2688}")
        a(f"s_lshl_b32 {s(sT1)}, {s(sCB)}, 7")
        a(f"s_add_u32 {s(sT4)}, {s(sT0)}, {s(sT1)}")
        a(f"s_lshl_b32 {s(sT5)}, {s(sW)}, 10")
        self.tr_pattern(2, 8, True, ct_sgpr=sCH)
        self.tr_pattern(4, 8, False, ct_sgpr=sCH)
        a(f"v_add_u32 v3, {LC}, v4")
        a(f"v_add_u32 v2, {LB}, v2")
        self.w1_prepare()
        a(f"s_mul_i32 {s(sT0)}, {s(sRT)}, {TILE_B}")
        a(f"s_lshl_b32 {s(sT1)}, {s(sCH)}, 8")
        a(f"s_add_u32 {s(sT1)}, {s(sT1)}, {s(sT0)}")
        a(f"v_lshlrev_b32 v16, 5, {v(vL16)}")
        a(f"v_and_b32 v12, 0x70, {v(vL16)}")
        a(f"v_add3_u32 v16, v16, v12, {s(sT1)}")
        a(f"v_cmp_gt_u32 vcc, 896, {v(vL16)}")
        a("v_mov_b32 v12, 0x100000")
        a("v_cndmask_b32 v16, v12, v16, vcc")
        for r in range(1, 8):
            a(f"v_xor_b32 {v(16 + r)}, {16 * r}, v16")
        a(f"v_lshrrev_b32 v12, 9, {v(vL16)}")
        a("v_lshlrev_b32 v12, 4, v12")
        a(f"v_xor_b32 v12, v12, {v(vL16)}")
        a(f"v_add_u32 v8, {s(sT0)}, v12")
        for q in range(1, 4):
            a(f"v_xor_b32 {v(8 + q)}, {32 * q}, v8")
        a(f"v_min_u32 v30, 880, {v(vL16)}")
        a("v_lshlrev_b32 v30, 1, v30")
        xl = self.xcc_load(31, 14)
        wq = [(sT5, LA + i * 4096, sT4, 1792 + (12 + i) * 32 * 2688) for i in range(2)]
        for i in range(14):
            wq.append((sT5, LB + i * 4096, sT4, 896 + i * 32 * 2688))
            if i < 12:
                wq.append((sT5, LC + i * 4096, sT4, 1792 + i * 32 * 2688))
        n_early = self.o.get("n_early", 28)
        wt = []

        def wdma(n=1):
            for _ in range(n):
                if len(tx) < 16:
                    ldx()
                elif wq and (len(wt) < n_early or n == 99):
                    lb, lo, sb, so = wq.pop(0)
                    wt.append(self.dma(vPW, SWQKV, lb, lo, sb, so))

        a("s_mov_b32 s36, 0xffff0000")
        a("s_mov_b32 s37, 0x3f803f80")
        self.stamp(29)
        for r in range(16):
            a.wait(vm=tx[r])
            if r == 0:
                self.stamp(1)
            if r == self.o.get("tag_r", 6):
                self.make_tag_and_publish_xcc(12)
            if r == self.o.get("mq_r", 9) and self.o.get("mq", 1):
                a("s_mov_b64 exec, 15")
                a(f"buffer_load_dword {a_(255)}, v29, {srd(SWQKV)}, 0 offen")
                a(f"buffer_load_dword {a_(255)}, v28, {srd(SWO)}, 0 offen")
                R = self.o.get("pf_rows", 0)
                if R and self.o.get("pf_mall", 1):
                    a(f"s_mov_b64 exec, {(1 << (R // 32)) - 1}")
                    a(f"buffer_load_dword {a_(255)}, v253, {srd(SWG)}, 0 offen")
                    a(f"buffer_load_dword {a_(255)}, v253, {srd(SWU)}, 0 offen")
                a("s_mov_b64 exec, -1")
            raw, z = vRAW + 4 * r, vZ + 8 * r
            for j in range(4):
                a(f"v_dot2_f32_bf16 {v(vS + r)}, {v(raw + j)}, s37, {v(vS + r) if j else 0}")
                a(f"v_dot2_f32_bf16 {v(vQ2 + r)}, {v(raw + j)}, {v(raw + j)}, {v(vQ2 + r) if j else 0}")
                a(f"v_lshlrev_b32 {v(z + 2 * j)}, 16, {v(raw + j)}")
                a(f"v_and_b32 {v(z + 2 * j + 1)}, s36, {v(raw + j)}")
                if j == 0 or (j == 2 and r < self.o.get("x_fast", 6)):
                    wdma(1)
        self.stamp(30)
        for i in range(16):
            a(f"v_permlane32_swap_b32 {v(vS + i)}, {v(vQ2 + i)}")
        wdma(1)
        for i in range(16):
            a(f"v_add_f32 {v(vS + i)}, {v(vS + i)}, {v(vQ2 + i)}")
        wdma(1)
        for i in range(8):
            a(f"v_permlane16_swap_b32 {v(vS + i)}, {v(vS + 8 + i)}")
        for i in range(8):
            a(f"v_add_f32 {v(vS + i)}, {v(vS + i)}, {v(vS + 8 + i)}")
        wdma(1)
        for sh in (8, 4, 2, 1):
            for i in range(8):
                a(f"v_add_f32_dpp {v(vS + i)}, {v(vS + i)}, {v(vS + i)} row_ror:{sh} row_mask:0xf bank_mask:0xf")
            if sh in (4, 1):
                wdma(1)
        a(f"s_mov_b32 {s(sP0)}, 0x02020202")
        a(f"s_mov_b32 {s(sP0 + 1)}, {s(sP0)}")
        for j in range(1, 8):
            a(f"v_cndmask_b32 {v(vS)}, {v(vS)}, {v(vS + j)}, {s(sP0, 2)}")
            a(f"s_lshl_b64 {s(sP0, 2)}, {s(sP0, 2)}, 1")
        wdma(1)
        a(f"v_mov_b32 v12, {v(vS)}")
        a(f"v_permlane32_swap_b32 v12, {v(vS)}")
        a(f"v_mul_f32 v12, {f2u(1 / 448):#x}, v12")
        a(f"v_mul_f32 v13, {f2u(1 / 448):#x}, {v(vS)}")
        a("v_fma_f32 v13, -v12, v12, v13")
        a("v_max_f32 v13, 0, v13")
        a(f"v_add_f32 v13, {f2u(1e-5):#x}, v13")
        a("v_rsq_f32 v13, v13")
        a("v_mul_f32 v12, v12, v13")
        a("v_sub_f32 v12, 0, v12")
        wdma(1)
        for r in range(16):
            ln = 16 * (r >> 3) + (r & 7)
            a(f"v_readlane_b32 {s(sMASK + 2 * r)}, v13, {ln}")
            a(f"v_readlane_b32 {s(sMASK + 2 * r + 1)}, v12, {ln}")
            if r % 8 == 7:
                wdma(1)
        g0 = vRAW
        a(f"s_mov_b32 {s(sT0)}, {MODO}")
        loads = [f"buffer_load_dwordx4 {v(g0 + 4 * i, 4)}, v30, {srd(SWS)}, {s(sT0)} offen offset:{(i >> 1) * 1792 + (i & 1) * 16} sc1"
                 for i in range(4)] + [xl]
        tags = [g0 + 2 * i + 1 for i in range(8)] + [15]
        wdma(28)
        pr = self.o.get("poll_r", 0)
        a.wait(vm=wt[1])
        a("s_barrier")
        for k in range(4):
            self.tr2(("a", 4 * k), 4, k * 2048)
        for r in range(17):
            if r == pr:
                for t in loads:
                    t_poll = a.vm(t)
            if r == 16:
                break
            p = s(sMASK + 2 * r, 2)
            for j in range(4):
                z = v(vZ + 8 * r + 2 * j, 2)
                a(f"v_pk_fma_f32 {z}, {z}, {p}, {p} op_sel:[0,0,1] op_sel_hi:[1,0,1]")
        self.w_late = list(wq)
        a.wait_all(vm=False)
        a("s_barrier")
        self.stamp(2)
        a.wait(vm=t_poll)
        self.check_tags(loads, tags)
        self.stamp(3)
        self.w1_touch()
        vG, vB = g0 + 16, g0 + 24
        for j in range(4):
            a(f"v_lshlrev_b32 {v(vG + 2 * j)}, 16, {v(g0 + 8 + 2 * j)}")
            a(f"v_and_b32 {v(vG + 2 * j + 1)}, 0xffff0000, {v(g0 + 8 + 2 * j)}")
            a(f"v_lshlrev_b32 {v(vB + 2 * j)}, 16, {v(g0 + 2 * j)}")
            a(f"v_and_b32 {v(vB + 2 * j + 1)}, 0xffff0000, {v(g0 + 2 * j)}")
        for j in range(8):
            a(f"v_add_f32 {v(vG + j)}, 1.0, {v(vG + j)}")
        for j in range(4):
            a(f"v_cvt_pk_bf16_f32 {v(g0 + j)}, {v(vG + 2 * j)}, {v(vG + 2 * j + 1)}")
        for j in range(4):
            a(f"v_lshlrev_b32 {v(vG + 2 * j)}, 16, {v(g0 + j)}")
            a(f"v_and_b32 {v(vG + 2 * j + 1)}, 0xffff0000, {v(g0 + j)}")
        for r in range(16):
            z = vZ + 8 * r
            for j in range(4):
                a(f"v_pk_fma_f32 {v(z + 2 * j, 2)}, {v(z + 2 * j, 2)}, {v(vG + 2 * j, 2)}, {v(vB + 2 * j, 2)}")
            for j in range(4):
                a(f"v_cvt_pk_bf16_f32 {v(z + j)}, {v(z + 2 * j)}, {v(z + 2 * j + 1)}")
            a(f"ds_write_b128 {v(16 + (r & 7))}, {v(z, 4)} offset:{(r >> 3) * 128}")
        a.wait_all(vm=False)
        a("s_barrier")
        self.stamp(26)
        self.choose_mode(14, "L_p1_slow")

    def w1_prepare(self):
        a = self.a
        a(f"v_lshrrev_b32 v24, 4, {v(vL16)}")
        a(f"s_lshl_b32 {s(sT0)}, {s(sRQ)}, 2")
        a(f"s_add_u32 {s(sT0)}, {s(sT0)}, {s(sW)}")
        a(f"s_mul_i32 {s(sT0)}, {s(sT0)}, 28")
        a(f"v_add_u32 v25, {s(sT0)}, v24")
        a("v_mul_u32_u24 v26, 2688, v25")
        a("v_mul_u32_u24 v25, 896, v25")
        a(f"s_lshl_b32 s3, {s(sCB)}, 7")
        a(f"s_mul_i32 {s(sT0)}, {s(sTILE)}, {TILE_B}")
        a(f"s_add_u32 {s(sT0)}, {s(sT0)}, {s(sGB)}")
        a(f"s_lshl_b32 {s(sT1)}, {s(sCB)}, 1")
        a(f"s_add_u32 {s(sT1)}, {s(sT1)}, {s(sCH)}")
        a(f"s_lshl_b32 {s(sT1)}, {s(sT1)}, 11")
        a(f"s_add_u32 {s(sT0)}, {s(sT0)}, {s(sT1)}")
        a(f"v_lshl_add_u32 v27, v24, 7, {s(sT0)}")
        a(f"s_lshl2_add_u32 {s(sT1)}, s2, {s(sW)}")
        a(f"s_lshr_b32 {s(sT0)}, {s(sT1)}, 1")
        a(f"s_and_b32 {s(sT1)}, {s(sT1)}, 1")
        a(f"s_mul_i32 {s(sT1)}, {s(sT1)}, 384")
        a(f"v_lshl_add_u32 v28, v24, 7, {s(sT1)}")
        a(f"s_mul_i32 {s(sT1)}, {s(sT0)}, 2688")
        a(f"v_add_u32 v29, {s(sT1)}, v28")
        a(f"s_mul_i32 {s(sT1)}, {s(sT0)}, 896")
        a(f"v_add_u32 v28, {s(sT1)}, v28")
        R = self.o.get("pf_rows", 0)
        if R:
            a(f"s_lshl2_add_u32 {s(sT1)}, s2, {s(sW)}")
            a(f"s_mul_i32 {s(sT1)}, {s(sT1)}, {R // 32 * 128}")
            a(f"v_lshl_add_u32 v253, v24, 7, {s(sT1)}")
            a(f"s_mul_i32 {s(sT0)}, {s(sW)}, {R // 4 * 3584}")
            a(f"s_lshl_b32 {s(sT1)}, {s(sM)}, 7")
            a(f"s_add_u32 s38, {s(sT0)}, {s(sT1)}")
            a("v_mul_u32_u24 v24, 3584, v24")

    def w1_touch(self):
        a = self.a
        if self.o.get("pf_qo", 1):
            a("s_mov_b64 exec, 0x0fffffff")
            a(f"buffer_load_dword {a_(255)}, v26, {srd(SWQKV)}, s3 offen")
            a(f"buffer_load_dword {a_(255)}, v25, {srd(SWO)}, s3 offen")
            a("s_mov_b64 exec, -1")
        if self.o.get("touch_q", 1):
            a("s_mov_b64 exec, 0xffff")
            a(f"buffer_load_dword {a_(255)}, v27, {srd(SWS)}, 0 offen")
            a("s_mov_b64 exec, -1")
        R = self.o.get("pf_rows", 0)
        if R:
            m = (1 << (R // 4)) - 1
            a(f"s_mov_b32 exec_lo, {m & 0xffffffff:#x}")
            a(f"s_mov_b32 exec_hi, {m >> 32:#x}")
            a(f"buffer_load_dword {a_(255)}, v24, {srd(SWG)}, s38 offen")
            a(f"buffer_load_dword {a_(255)}, v24, {srd(SWU)}, s38 offen")
            a("s_mov_b64 exec, -1")

    def p1_gemm(self):
        a = self.a
        vTK, vTV, vPW = 2, 3, 6
        vH1, cK, cV, cQ, vW = 32, 144, 160, 176, 192
        ht, wt = {}, {}

        def rdH(k):
            ht[k] = a.lg(f"ds_read_b128 {v(vH1 + 4 * k, 4)}, {v(8 + (k & 3))} offset:{k * 1024}")

        def store_addresses():
            a(f"s_mul_i32 {s(sT0)}, {s(sTILE)}, {TILE_B}")
            a(f"s_lshl_b32 {s(sT1)}, {s(sCB)}, 1")
            a(f"s_add_u32 {s(sT1)}, {s(sT1)}, {s(sCH)}")
            a(f"s_lshl_b32 {s(sT2)}, {s(sT1)}, 11")
            a(f"s_add_u32 {s(sT2)}, {s(sT2)}, {s(sT0)}")
            a(f"s_lshl_b32 {s(sT1)}, {s(sT1)}, 9")
            a(f"s_add_u32 {s(sT1)}, {s(sT1)}, {s(sT0)}")
            a(f"s_add_u32 {s(sT2)}, {s(sT2)}, {s(sGB)}")
            a(f"s_add_u32 {s(sT3)}, {s(sT2)}, {KO}")
            a(f"s_add_u32 {s(sT1)}, {s(sT1)}, {s(sGB)}")
            a(f"s_add_u32 {s(sT0)}, {s(sT1)}, {VO}")
            a(f"v_lshrrev_b32 v4, 9, {v(vL16)}")
            a("v_mul_u32_u24 v4, 7168, v4")
            a(f"v_and_b32 v5, 0x1f0, {v(vL16)}")
            a("v_add_u32 v4, v4, v5")
            a("v_add_u32 v5, 14336, v4")
            a(f"v_subrev_u32 v31, {LB - LA}, {v(vTK)}")
            self.w_dma_pattern(30, 24, 896)
            a(f"s_mul_i32 {s(sWO)}, {s(sW)}, {8 * 896}")
            a(f"s_lshl_b32 {s(sT6)}, {s(sCB)}, 7")
            a(f"s_add_u32 {s(sWO)}, {s(sWO)}, {s(sT6)}")

        fill = self.capture(store_addresses)
        side = []
        for k in range(28):
            for hk in ((k,) if k < 2 else (2 * k - 2, 2 * k - 1)):
                if hk < 28:
                    side.append((2 * min(hk, k + 1), lambda hk=hk: rdH(hk)))
            for kind in "kv":
                if kind == "v" and k >= 24:
                    wt[(kind, k)] = (a_(4 * (k - 24), 4), 0)
                    continue
                slot = vW + 4 * ((2 * k + (kind == "v")) % 16)
                for u in range(2):
                    t = f"ds_read_b64_tr_b16 {v(slot + 2 * u, 2)}, {v(vTK if kind == 'k' else vTV)} offset:{k * 2048 + 512 * u}"
                    side.append((2 * k + (kind == "v"), (lambda t=t, kind=kind, k=k, slot=slot: wt.__setitem__(
                        (kind, k), (v(slot, 4), a.lg(t)))) if u else t))
        wqd = []
        for i in range(14):
            wqd += [f"s_add_u32 m0, {s(sT5)}, {LA + i * 4096}", f"s_add_u32 {s(sT7)}, {s(sT4)}, {i * 32 * 2688}",
                    lambda: setattr(self, "t_wq", a.vm(f"buffer_load_dwordx4 {v(vPW)}, {srd(SWQKV)}, {s(sT7)} offen lds"))]
        wld = []
        for lb, lo, sb, so in self.w_late:
            wld += [f"s_add_u32 m0, {s(lb)}, {lo}", f"s_add_u32 {s(sT7)}, {s(sb)}, {so}",
                    f"buffer_load_dwordx4 {v(vPW)}, {srd(SWQKV)}, {s(sT7)} offen lds"]
        AH, KB = self.o.get("kv_ah", 6), 15

        def pump(n, room):
            while side and room > 0 and side[0][0] <= n + AH and (n >= 2 * KB or side[0][0] < 2 * KB + 2):
                f = side.pop(0)[1]
                f() if callable(f) else a(f)
                room -= 1
            return room

        pump(-1, 99)
        for n in range(56):
            k, kind = n >> 1, "kv"[n & 1]
            if n == 2 * KB:
                a.wait(lg=ht[27])
                if self.w_late:
                    assert not wld
                    a("s_waitcnt vmcnt(0)")
                a("s_barrier")
            while (kind, k) not in wt or k not in ht:
                f = side.pop(0)[1]
                f() if callable(f) else a(f)
            t = max(wt[(kind, k)][1], ht[k])
            if t > a.lg_done and kind == "k" and ("v", k) in wt:
                t = max(t, wt[("v", k)][1])
            a.wait(lg=t)
            h, reg = v(vH1 + 4 * k, 4), wt[(kind, k)][0]
            c = v(cK if kind == "k" else cV, 16)
            A, B = (reg, h) if kind == "k" else (h, reg)
            a(f"v_mfma_f32_32x32x16_bf16 {c}, {A}, {B}, {c if k else 0}")
            room = pump(n, 3) + (1 if n & 1 else 2)
            chain = wld if wld else (wqd if n >= 2 * KB and wqd else fill)
            while chain and room > 0:
                f = chain.pop(0)
                f() if callable(f) else a(f)
                room -= 1
        for f in wqd + fill:
            f() if callable(f) else a(f)

        def pack(acc, b):
            for j in range(4):
                a(f"v_cvt_pk_bf16_f32 {v(acc + 8 * b + j)}, {v(acc + 8 * b + 2 * j)}, {v(acc + 8 * b + 2 * j + 1)}")
            return v(acc + 8 * b, 4)

        for b in range(2):
            a.vm(f"buffer_store_dwordx4 {pack(cK, b)}, {v(vL16)}, {srd(SWS)}, {s(sT3)} offen offset:{b * 1024} sc1")
        for b in range(2):
            t_kv = a.vm(f"buffer_store_dwordx4 {pack(cV, b)}, {v(4 + b)}, {srd(SWS)}, {s(sT0)} offen sc1")
        self.stamp(17)
        a.wait(vm=self.t_wq)
        a("s_barrier")
        self.stamp(4)

        def rdQ(k):
            slot = vW + 4 * (k % 8)
            wt[("q", k)] = (v(slot, 4), self.tr2(("v", slot), 31, k * 2048))

        for k in range(4):
            rdQ(k)
        fill = [f"s_lshl_b32 s3, {s(sG)}, 5", f"s_add_u32 s3, s3, {s(sM)}", "s_lshl_b32 s3, s3, 7",
                f"v_mov_b32 v10, {RFO}", f"v_mov_b32 v11, {s(sTAG)}"]
        fill += self.capture(self.p2_setup)
        early = self.p3_early_loads()
        fill += [g for g in early if not g.startswith("buffer_")]
        self.early = [g for g in early if g.startswith("buffer_")]
        kf = self.o.get("kvf", 24)
        won = [0]

        def wo_dma():
            if won[0] < 14:
                self.dma(6, SWO, sT5, LB + won[0] * 4096, sWO, won[0] * 32 * 896)
                won[0] += 1

        def kv_flag():
            a.wait(vm=t_kv)
            a("s_barrier")
            a(f"s_cmp_eq_u32 {s(sW)}, 0")
            a("s_cselect_b64 exec, 1, 0")
            a.vm(f"buffer_store_dword v11, v10, {srd(SWS)}, s3 offen sc1")
            a("s_mov_b64 exec, -1")
            self.stamp(16)

        a("v_mov_b32 v6, v30")
        for k in range(28):
            if k == kf:
                kv_flag()
            if k + 4 < 28:
                rdQ(k + 4)
            reg, t = wt[("q", k + 1 if k % 2 == 0 else k)]
            a.wait(lg=t)
            reg, t = wt[("q", k)]
            a(f"v_mfma_f32_32x32x16_bf16 {v(cQ, 16)}, {reg}, {v(vH1 + 4 * k, 4)}, {v(cQ, 16) if k else 0}")
            if (k % 4 == 1 and won[0] < self.o.get("wo0", 5)) or k > kf:
                wo_dma()
            else:
                for _ in range(self.o.get("fillq", 4)):
                    if fill:
                        a(fill.pop(0))
        a(f"s_mov_b32 {s(sT3)}, {f2u(QSCALE):#x}")
        for _ in range(8):
            if fill:
                a(fill.pop(0))
        for r in range(16):
            a(f"v_mul_f32 {v(cQ + r)}, {s(sT3)}, {v(cQ + r)}")
        for b in range(2):
            t_q = a.vm(f"buffer_store_dwordx4 {pack(cQ, b)}, {v(vL16)}, {srd(SWS)}, {s(sT2)} offen offset:{b * 1024}{self.st('q')}")
        if kf >= 28:
            kv_flag()
        self.stamp(5)
        while won[0] < 14:
            wo_dma()
        for g in fill:
            a(g)
        self.ones_prefill()
        self.tr_pattern(2, 8, True, ct_sgpr=sCH)
        a(f"s_mul_i32 {s(sT0)}, {s(sCH)}, {14 * 2048}")
        a(f"s_add_u32 {s(sT0)}, {s(sT0)}, {LB}")
        a(f"v_add_u32 v2, {s(sT0)}, v2")
        self.p2_addresses()
        self.stamp(31)
        self.local_flag(0, 8, ticket=t_q, temps=(sP0, sP0 + 1))
        self.stamp(27)

    def capture(self, fn):
        n = len(self.a.ins)
        fn()
        lines = []
        for i in self.a.ins[n:]:
            assert i.kind in ("valu", "salu", "trans")
            if i.op.startswith("s_cselect"):
                lines[-1] += "\n" + i.text
            else:
                lines.append(i.text)
        del self.a.ins[n:]
        return lines

    def helper_first_loads(self):
        a = self.a
        n0 = a.vm_n
        sJ = sT4
        a("L_helper0:")
        a("v_min_u32 v8, 223, v0")
        a("v_lshlrev_b32 v8, 2, v8")
        a(f"s_lshl_b32 {s(sJ)}, {s(sG)}, 2")
        a(f"s_add_u32 {s(sJ)}, {s(sJ)}, {s(sM)}")
        a(f"s_sub_u32 {s(sJ)}, {s(sJ)}, 28")
        a("v_lshrrev_b32 v10, 2, v3")
        a("v_mul_u32_u24 v10, 5376, v10")
        a(f"v_and_b32 v11, 48, {v(vL16)}")
        a("v_add_u32 v5, v10, v11")
        a(f"s_mul_i32 {s(sT0)}, {s(sW)}, {16 * 5376}")
        a(f"s_lshl_b32 {s(sT1)}, {s(sJ)}, 6")
        a(f"s_add_u32 {s(sT0)}, {s(sT0)}, {s(sT1)}")
        a(f"s_cmp_lt_u32 {s(sJ)}, 28")
        a(f"s_cselect_b32 {s(sT0)}, {s(sT0)}, {OOB}")
        a(f"s_lshl_b32 {s(sT5)}, {s(sW)}, 10")
        a(f"s_mov_b32 {s(sT2)}, {s(sT5)}")
        a(f"s_add_u32 {s(sT3)}, {s(sT2)}, {7 * 4096}")
        a("s_waitcnt lgkmcnt(0)")
        self.first_stamp()
        self.make_srd(SC, SWMOD)
        a(f"buffer_load_dword v9, v8, {srd(SC)}, 0 offen")
        a("L_mdma:")
        a(f"s_mov_b32 m0, {s(sT2)}")
        a(f"s_add_u32 {s(sT2)}, {s(sT2)}, 4096")
        a(f"buffer_load_dwordx4 v5, {srd(SWMOD)}, {s(sT0)} offen lds")
        a(f"s_add_u32 {s(sT0)}, {s(sT0)}, {64 * 5376}")
        a(f"s_cmp_lg_u32 {s(sT2)}, {s(sT3)}")
        a("s_cbranch_scc1 L_mdma")
        a("s_branch L_helper")
        a.vm_n = n0

    def mod_job(self, vaddr, step, half, dst):
        a = self.a
        tk = []
        for k in range(14):
            a.lg(f"ds_read_b64_tr_b16 {v(36 + 8 * k, 2)}, {v(vaddr)} offset:{k * step}")
            tk.append(a.lg(f"ds_read_b64_tr_b16 {v(38 + 8 * k, 2)}, {v(vaddr)} offset:{k * step + half}"))
            if k >= 4:
                a.wait(lg=tk[k - 4])
                kk = k - 4
                a(f"v_mfma_f32_16x16x32_bf16 v[16:19], {v(32 + 8 * kk, 4)}, {v(36 + 8 * kk, 4)}, {'v[16:19]' if kk else 0}")
        for kk in range(10, 14):
            a.wait(lg=tk[kk])
            a(f"v_mfma_f32_16x16x32_bf16 v[16:19], {v(32 + 8 * kk, 4)}, {v(36 + 8 * kk, 4)}, v[16:19]")
        a("v_mov_b32_dpp v17, v16 quad_perm:[1,0,3,2] row_mask:0xf bank_mask:0xf")
        a("v_cvt_pk_bf16_f32 v20, v16, v17")
        a("s_mov_b64 exec, 0x5555")
        a(f"buffer_store_dwordx2 v[20:21], v4, {srd(SWS)}, {s(dst)} offen sc1")
        a("s_mov_b64 exec, -1")

    def uv_job(self, sJ):
        a = self.a
        a("v_min_u32 v8, 223, v0")
        a("v_lshlrev_b32 v9, 3, v8")
        a(f"s_mov_b32 {s(sT0)}, {MODO + 672 * 8}")
        self.poll([f"buffer_load_dwordx2 {v(10 + 2 * i, 2)}, v9, {srd(SWS)}, {s(sT0)} offen offset:{1792 * i} sc1" for i in range(2)], [11, 13])
        a("v_lshlrev_b32 v18, 16, v12")
        a("v_and_b32 v19, 0xffff0000, v12")
        a("v_add_f32 v18, 1.0, v18")
        a("v_add_f32 v19, 1.0, v19")
        a("v_cvt_pk_bf16_f32 v12, v18, v19")
        a("v_lshlrev_b32 v8, 2, v8")
        a(f"v_add_u32 v8, {L_T2}, v8")
        a("ds_write_b32 v8, v10")
        a("ds_write_b32 v8, v12 offset:896")
        self.tr_pattern(14, 8, True)
        a(f"v_bfe_u32 v8, {v(vL16)}, 8, 1")
        a(f"v_mul_u32_u24 v8, {LB - LA}, v8")
        a("v_add_u32 v14, v14, v8")
        a(f"s_lshl_b32 {s(sT0)}, {s(sW)}, 5")
        a(f"v_xor_b32 v14, {s(sT0)}, v14")
        a(f"v_bfe_u32 v8, {v(vL16)}, 4, 5")
        a("v_cmp_eq_u32 vcc, 1, v8")
        a(f"v_mov_b32 v8, {L_T2 + 896}")
        a(f"v_mov_b32 v9, {L_T2}")
        a("v_cndmask_b32 v8, v8, v9, vcc")
        a(f"v_lshrrev_b32 v9, 9, {v(vL16)}")
        a("v_lshl_add_u32 v15, v9, 4, v8")
        a.wait_all()
        a("s_barrier")
        ut, vU = {}, 160

        def rd(k):
            slot = 32 + 8 * (k % 8)
            a.lg(f"ds_read_b128 {v(slot, 4)}, v15 offset:{32 * k}")
            ut[k] = self.tr2(("v", slot + 4), 14, k * 2048)

        for k in range(4):
            rd(k)
        for k in range(28):
            if k + 4 < 28:
                rd(k + 4)
            a.wait(lg=ut[k])
            slot = 32 + 8 * (k % 8)
            a(f"v_mfma_f32_32x32x16_bf16 {v(vU, 16)}, {v(slot, 4)}, {v(slot + 4, 4)}, {v(vU, 16) if k else 0}")
        a(f"s_mov_b32 {s(sT0)}, 0x05040100")
        a(f"s_mov_b32 {s(sT1)}, 0x07060302")
        a(f"s_lshl2_add_u32 {s(sT2)}, {s(sJ)}, {s(sW)}")
        a(f"s_lshl_b32 {s(sT3)}, {s(sT2)}, 10")
        a(f"s_add_u32 {s(sT3)}, {s(sT3)}, {AUGO}")
        a(f"s_lshl_b32 {s(sT2)}, {s(sT2)}, 2")
        a(f"v_cvt_pk_bf16_f32 v16, {v(vU)}, {v(vU + 1)}")
        a("v_lshlrev_b32 v17, 16, v16")
        a("v_and_b32 v18, 0xffff0000, v16")
        a(f"v_sub_f32 v17, {v(vU)}, v17")
        a(f"v_sub_f32 v18, {v(vU + 1)}, v18")
        a("v_cvt_pk_bf16_f32 v17, v17, v18")
        a(f"v_perm_b32 v24, v17, v16, {s(sT0)}")
        a("v_mov_b32 v25, v16")
        a(f"v_perm_b32 v26, v16, v17, {s(sT1)}")
        a("v_mov_b32 v27, 0")
        a("s_mov_b32 exec_lo, 0")
        for r in range(24, 27):
            a(f"v_mov_b32 {v(r)}, 0")
        a("s_mov_b64 exec, -1")
        a(f"buffer_store_dwordx4 v[24:27], {v(vL16)}, {srd(SWS)}, {s(sT3)} offen sc1")
        a(f"v_mov_b32 v8, {AFO}")
        a(f"v_mov_b32 v9, {s(sTAG)}")
        a.wait_all(lg=False)
        a("s_mov_b64 exec, 1")
        a(f"buffer_store_dword v9, v8, {srd(SWS)}, {s(sT2)} offen sc1")
        a("s_mov_b64 exec, -1")

    def wd_first_touch(self):
        a = self.a
        a(f"v_lshlrev_b32 v8, 3, {v(vL16)}")
        a(f"s_sub_u32 {s(sT0)}, s2, 224")
        a(f"s_lshl2_add_u32 {s(sT0)}, {s(sT0)}, {s(sW)}")
        a(f"s_mul_i32 {s(sT0)}, {s(sT0)}, {98 * 128}")
        a("s_mov_b32 exec_hi, 0x1ffff")
        self.touch(8, SWD, sT0)
        a(f"s_add_u32 {s(sT0)}, {s(sT0)}, {49 * 128}")
        self.touch(8, SWD, sT0)
        a("s_mov_b64 exec, -1")

    def group_prefetch(self, srds, lo, iters):
        a = self.a
        if not iters:
            return
        L = a.label("gp")
        a(f"v_lshlrev_b32 v8, 3, {v(vL16)}")
        a(f"s_sub_u32 {s(sT2)}, {s(sM)}, 28")
        a(f"s_lshl_b32 {s(sT2)}, {s(sT2)}, 2")
        a(f"s_add_u32 {s(sT2)}, {s(sT2)}, {s(sW)}")
        a(f"s_lshl_b32 {s(sT2)}, {s(sT2)}, 13")
        a(f"s_add_u32 {s(sT2)}, {s(sT2)}, {lo}")
        a(f"s_mul_i32 {s(sT0)}, {s(sG)}, {iters}")
        a(f"s_lshr_b32 {s(sT0)}, {s(sT0)}, 3")
        a(f"s_mov_b32 {s(sT3)}, {iters}")
        a(f"{L}:")
        a(f"s_lshl_b32 {s(sT1)}, {s(sT0)}, 17")
        a(f"s_add_u32 {s(sT1)}, {s(sT1)}, {s(sT2)}")
        for sr in srds:
            self.touch(8, sr, sT1)
        a(f"s_add_u32 {s(sT0)}, {s(sT0)}, 1")
        a(f"s_cmp_eq_u32 {s(sT0)}, {iters}")
        a(f"s_cselect_b32 {s(sT0)}, 0, {s(sT0)}")
        a(f"s_waitcnt vmcnt({len(srds)})")
        a(f"s_sub_u32 {s(sT3)}, {s(sT3)}, 1")
        a(f"s_cmp_lg_u32 {s(sT3)}, 0")
        a(f"s_cbranch_scc1 {L}")

    def helper(self):
        a = self.a
        a("L_helper:")
        a.vm_done = a.vm_n
        a.lg_done = a.lg_n
        sJ = sT4
        self.common_setup(())
        self.make_tag_and_publish_xcc(20)
        a(f"s_waitcnt vmcnt({15 if self.o.get('tlb', 0) else 8})")
        a("v_lshlrev_b32 v10, 16, v9")
        a("v_and_b32 v11, 0xffff0000, v9")
        for r in (10, 11):
            a(f"v_mul_f32 {v(r + 2)}, {f2u(-1.4426950408889634):#x}, {v(r)}")
        for r in (12, 13):
            a(f"v_exp_f32 {v(r)}, {v(r)}")
        for r in (12, 13):
            a(f"v_add_f32 {v(r)}, 1.0, {v(r)}")
        for r in (12, 13):
            a(f"v_rcp_f32 {v(r)}, {v(r)}")
        for r in (10, 11):
            a(f"v_mul_f32 {v(r)}, {v(r)}, {v(r + 2)}")
        a("v_cvt_pk_bf16_f32 v10, v10, v11")
        a(f"v_add_u32 v8, {LD}, v8")
        a("ds_write_b32 v8, v10")
        a("v_bfe_u32 v11, v3, 2, 2")
        a("v_lshrrev_b32 v12, 4, v3")
        a("v_lshl_add_u32 v13, v12, 3, v11")
        a("v_lshlrev_b32 v2, 7, v13")
        a("v_lshlrev_b32 v5, 6, v13")
        a("v_lshrrev_b32 v11, 1, v11")
        a("v_lshlrev_b32 v11, 6, v11")
        a("v_and_b32 v13, 3, v3")
        a("v_lshlrev_b32 v13, 3, v13")
        a(f"s_lshl_b32 {s(sT0)}, {s(sCH)}, 5")
        a(f"v_add3_u32 v5, v5, v13, {s(sT0)}")
        a("v_xor_b32 v11, v11, v13")
        a(f"s_lshl_b32 {s(sT0)}, {s(sW)}, 5")
        a(f"v_xor_b32 v11, {s(sT0)}, v11")
        a("v_add_u32 v2, v2, v11")
        a("v_lshlrev_b32 v12, 4, v12")
        a(f"v_add_u32 v12, {LD}, v12")
        a("v_lshlrev_b32 v4, 2, v3")
        a(f"s_lshl_b32 {s(sT6)}, {s(sJ)}, 7")
        a(f"s_lshl_b32 {s(sT1)}, {s(sCH)}, 6")
        a(f"s_add_u32 {s(sT6)}, {s(sT6)}, {s(sT1)}")
        a(f"s_add_u32 {s(sT6)}, {s(sT6)}, {MODO}")
        a(f"s_cmp_lt_u32 {s(sJ)}, 28")
        a(f"s_cselect_b32 {s(sT6)}, {s(sT6)}, {OOB}")
        a(f"s_cmp_lt_u32 {s(sW)}, 2")
        a(f"s_cselect_b32 {s(sT6)}, {s(sT6)}, {OOB}")
        a.wait_all(vm=False)
        a("s_barrier")
        for k in range(14):
            a(f"ds_read_b128 {v(32 + 8 * k, 4)}, v12 offset:{k * 64}")
        self.w_dma_pattern(6, 10, 5376)
        a.wait_all()
        a("s_barrier")
        self.stamp(1)
        self.mod_job(5, 2048, 256, sT6)
        self.stamp(2)
        a(f"s_sub_u32 {s(sJ)}, {s(sM)}, 28")
        a(f"s_lshl_b32 {s(sJ)}, {s(sJ)}, 3")
        a(f"s_add_u32 {s(sJ)}, {s(sJ)}, {s(sG)}")
        a(f"s_cmp_ge_u32 {s(sJ)}, 28")
        a("s_cbranch_scc1 L_jobs_done")
        a(f"s_mul_i32 {s(sT0)}, {s(sW)}, {8 * 5376}")
        a(f"s_lshl_b32 {s(sT1)}, {s(sJ)}, 7")
        a(f"s_add_u32 {s(sT0)}, {s(sT0)}, {s(sT1)}")
        a(f"s_add_u32 {s(sT0)}, {s(sT0)}, {14 * 128}")
        a(f"s_add_u32 {s(sT2)}, {s(sT5)}, {LB}")
        a(f"s_add_u32 {s(sT3)}, {s(sT2)}, {14 * 4096}")
        a("L_mdma2:")
        a(f"s_mov_b32 m0, {s(sT2)}")
        a(f"s_add_u32 {s(sT2)}, {s(sT2)}, 4096")
        a(f"buffer_load_dwordx4 v6, {srd(SWMOD)}, {s(sT0)} offen lds")
        a(f"s_add_u32 {s(sT0)}, {s(sT0)}, {32 * 5376}")
        a(f"s_cmp_lg_u32 {s(sT2)}, {s(sT3)}")
        a("s_cbranch_scc1 L_mdma2")
        a(f"v_add_u32 v2, {LB}, v2")
        a(f"s_lshl_b32 {s(sT6)}, {s(sJ)}, 8")
        a(f"s_lshl_b32 {s(sT1)}, {s(sW)}, 6")
        a(f"s_add_u32 {s(sT6)}, {s(sT6)}, {s(sT1)}")
        a(f"s_add_u32 {s(sT6)}, {s(sT6)}, {MODO + 14 * 256}")
        a.wait_all()
        a("s_barrier")
        self.mod_job(2, 4096, 512, sT6)
        self.stamp(3)
        a("L_jobs_done:")
        a(f"s_cmp_lg_u32 {s(sJ)}, 31")
        a("s_cbranch_scc1 L_no_epoch")
        a("v_lshlrev_b32 v8, 3, v0")
        a(f"s_mov_b32 {s(sT0)}, {XCCO}")
        self.poll([f"buffer_load_dwordx2 v[10:11], v8, {srd(SWS)}, {s(sT0)} offen sc1"], [11])
        a("s_barrier")
        a("v_mov_b32 v8, 0")
        a(f"s_cmp_eq_u32 {s(sW)}, 0")
        a("s_cselect_b64 exec, 1, 0")
        a(f"buffer_store_dword v11, v8, {srd(SWS)}, 0 offen sc1")
        a("s_mov_b64 exec, -1")
        a("L_no_epoch:")
        a(f"v_lshlrev_b32 v8, 3, {v(vL16)}")
        a(f"s_sub_u32 {s(sT0)}, {s(sM)}, 28")
        a(f"s_lshl_b32 {s(sT0)}, {s(sT0)}, 2")
        a(f"s_add_u32 {s(sT0)}, {s(sT0)}, {s(sW)}")
        a(f"s_lshl_b32 {s(sT0)}, {s(sT0)}, 11")
        a(f"s_add_u32 {s(sT0)}, {s(sT0)}, {s(sGB)}")
        a(f"s_add_u32 {s(sT0)}, {s(sT0)}, {STO}")
        self.touch(8, SWS, sT0, 16)
        if self.o.get("wdt", 3) == 1:
            self.wd_first_touch()
        self.group_prefetch((SWG, SWU), self.o.get("pf_rows", 0) * 3584, self.o.get("hp1", 1))
        xl = self.xcc_load(10, 4)
        self.poll([xl], [5])
        a.wait_all()
        a("s_barrier")
        self.stamp(4)
        for r in (2, 3, 240, 241, 242):
            a(f"v_mov_b32 {v(r)}, 0")
        self.p2_setup()
        self.ones_prefill()
        self.p2_addresses()
        self.choose_mode(4, "L_p2_slow")
        a("s_branch L_p2_fast")

    def p2_setup(self):
        a = self.a
        vKV, vVP, vRF, vWG, vMK = 12, 13, 14, 15, 16
        a(f"s_and_b32 {s(sHD)}, {s(sM)}, 15")
        a(f"s_lshr_b32 {s(sB)}, {s(sM)}, 4")
        a(f"s_mul_i32 {s(sWS0)}, {s(sHD)}, 7")
        a(f"s_lshr_b32 {s(sWS0)}, {s(sWS0)}, 1")
        a(f"s_bitcmp1_b32 {s(sHD)}, 0")
        a(f"s_cselect_b32 {s(sP1)}, 15, 0xf0000000")
        a(f"s_mov_b32 {s(sP1 + 1)}, {s(sP1)}")
        a(f"s_lshl_b32 {s(sKVL)}, {s(sW)}, 12")
        a(f"s_add_u32 {s(sKVL)}, {s(sKVL)}, {L_KV}")
        a(f"v_add_u32 {v(vKV)}, {s(sKVL)}, {v(vL16)}")
        a(f"v_bfe_u32 v24, {v(vL16)}, 4, 5")
        a(f"v_lshrrev_b32 v25, 9, {v(vL16)}")
        a("v_lshlrev_b32 v26, 2, v25")
        a("v_sub_u32 v26, v24, v26")
        for r in range(16):
            a(f"v_cmp_le_i32 {s(sMASK + 2 * r, 2)}, {8 * (r >> 2) + (r & 3)}, v26")
        a("v_mov_b32 v27, 0")
        a("v_mov_b32 v28, 0xffff")
        a("v_mov_b32 v29, 0xffff0000")
        for i in range(8):
            a(f"v_cndmask_b32 {v(vMK + i)}, v27, v28, {s(sMASK + 4 * i, 2)}")
            a(f"v_cndmask_b32 v30, v27, v29, {s(sMASK + 4 * i + 2, 2)}")
            a(f"v_or_b32 {v(vMK + i)}, {v(vMK + i)}, v30")
        a("v_and_b32 v26, 0x13, v24")
        a("v_and_b32 v27, 4, v24")
        a("v_lshl_or_b32 v26, v27, 1, v26")
        a("v_and_b32 v27, 8, v24")
        a("v_lshrrev_b32 v27, 1, v27")
        a("v_or_b32 v26, v26, v27")
        a("v_lshlrev_b32 v26, 4, v26")
        a(f"v_mul_u32_u24 {v(vVP)}, 7168, v25")
        a(f"v_add_u32 {v(vVP)}, {v(vVP)}, v26")
        a(f"s_lshl_b32 {s(sT0)}, {s(sB)}, 2")
        a(f"s_add_u32 {s(sT0)}, {s(sT0)}, {s(sW)}")
        a(f"s_sub_u32 {s(sMISS)}, 8, {s(sT0)}")
        a(f"s_cmp_eq_u32 {s(sG)}, 0")
        a(f"s_cselect_b32 {s(sMISS)}, {s(sMISS)}, 0")
        a(f"s_mul_i32 {s(sTQ)}, {s(sT0)}, {TILE_B}")
        a(f"s_add_u32 {s(sTQ)}, {s(sTQ)}, {s(sGB)}")
        if self.o.get("fine", 1):
            a(f"s_lshr_b32 {s(sT0)}, {s(sWS0)}, 3")
            a(f"s_add_u32 {s(sT1)}, {s(sWS0)}, 3")
            a(f"s_lshr_b32 {s(sT1)}, {s(sT1)}, 3")
            a(f"s_sub_u32 {s(sT1)}, {s(sT1)}, {s(sT0)}")
            a("v_bfe_u32 v25, v24, 3, 1")
            a(f"v_mul_u32_u24 v25, {s(sT1)}, v25")
            a(f"v_add_u32 v25, {s(sT0)}, v25")
            a("v_and_b32 v26, 7, v24")
            a("v_min_u32 v26, 5, v26")
            a(f"s_lshl3_add_u32 {s(sT0)}, {s(sG)}, 0")
            a(f"s_lshr_b32 {s(sT0)}, {s(sT0)}, 1")
            a(f"s_lshl1_add_u32 {s(sT0)}, {s(sB)}, {s(sT0)}")
            a(f"v_add_u32 v26, {s(sT0)}, v26")
            a("v_subrev_u32 v26, 4, v26")
            a("v_max_i32 v26, 0, v26")
            a("v_lshrrev_b32 v27, 2, v26")
            a("v_and_b32 v26, 3, v26")
            a("v_mul_u32_u24 v26, 7, v26")
            a("v_lshl_add_u32 v26, v27, 5, v26")
            a("v_add_u32 v26, v26, v25")
            a("v_lshlrev_b32 v26, 7, v26")
            a(f"v_add_u32 {v(vRF)}, {RFO}, v26")
            a("v_bfe_u32 v26, v24, 1, 1")
            a(f"s_lshl_b32 {s(sT0)}, {s(sB)}, 1")
            a(f"v_add_u32 v26, {s(sT0)}, v26")
            a("v_mul_u32_u24 v26, 7, v26")
            a("v_add_u32 v26, v26, v25")
            a("v_and_b32 v27, 1, v24")
            a("v_lshlrev_b32 v27, 3, v27")
            a("v_lshl_add_u32 v26, v26, 4, v27")
            a(f"v_add_u32 v243, {LFO}, v26")
        else:
            a(f"s_min_u32 {s(sT0)}, {s(sG)}, 1")
            a(f"s_lshl_b32 {s(sT0)}, {s(sT0)}, 12")
            a(f"v_mul_u32_u24 v25, {s(sT0)}, v25")
            a("v_min_u32 v24, 27, v24")
            a("v_lshlrev_b32 v24, 7, v24")
            a("v_sub_u32 v24, v24, v25")
            a(f"s_lshl_b32 {s(sT0)}, {s(sG)}, 12")
            a(f"s_add_u32 {s(sT0)}, {s(sT0)}, {RFO}")
            a(f"v_add_u32 {v(vRF)}, {s(sT0)}, v24")
            a(f"v_min_u32 v243, 880, {v(vL16)}")
            a("v_lshrrev_b32 v243, 1, v243")
            a(f"v_add_u32 v243, {LFO}, v243")
        self.w_dma_pattern(vWG, 24, 3584)
        a(f"s_sub_u32 {s(sT0)}, {s(sM)}, 28")
        a(f"s_lshl3_add_u32 {s(sT0)}, {s(sT0)}, {s(sG)}")
        a(f"s_cmp_lt_u32 {s(sM)}, 28")
        a(f"s_cselect_b32 {s(sT0)}, {s(sM)}, {s(sT0)}")
        a(f"s_min_u32 {s(sT0)}, {s(sT0)}, 27")
        a(f"s_lshl_b32 {s(sT0)}, {s(sT0)}, 7")
        a(f"s_mul_i32 {s(sT1)}, {s(sW)}, {8 * 3584}")
        a(f"s_add_u32 {s(sWSRC)}, {s(sT0)}, {s(sT1)}")

    def ones_prefill(self):
        a = self.a
        for j in range(4):
            a(f"v_mov_b32 {v(24 + j)}, 0x3f803f80")
        a(f"s_mov_b64 exec, {s(sP1, 2)}")
        for i in range(3):
            for t in range(2):
                a(f"ds_write_b128 v12, v[24:27] offset:{i * 16384 + 2048 + t * 1024}")
        a("s_mov_b64 exec, -1")

    def touch_y(self):
        a = self.a
        a(f"s_mul_i32 {s(sT0)}, {s(sTILE)}, {TILE_B}")
        a(f"s_add_u32 {s(sT0)}, {s(sT0)}, {s(sGB)}")
        a(f"s_lshl_b32 {s(sT1)}, {s(sCB)}, 1")
        a(f"s_add_u32 {s(sT1)}, {s(sT1)}, {s(sCH)}")
        a(f"s_lshl_b32 {s(sT1)}, {s(sT1)}, 11")
        a(f"s_add_u32 {s(sT0)}, {s(sT0)}, {s(sT1)}")
        a(f"s_add_u32 {s(sT0)}, {s(sT0)}, {YO}")
        a(f"v_lshlrev_b32 v5, 3, {v(vL16)}")
        self.touch(5, SWS, sT0, 16)

    def wgu(self, n):
        for _ in range(n):
            if self.pre:
                vr, sr, lo, so = self.pre.pop(0)
                self.t_wgu = self.dma(vr, sr, sT5, lo, sWSRC, so)

    def p2_addresses(self):
        a = self.a
        a("v_xor_b32 v6, 32, v15")
        a(f"s_lshl_b32 {s(sT5)}, {s(sW)}, 10")
        a(f"s_lshl_b32 {s(sT1)}, {s(sWS0)}, 9")
        a(f"s_add_u32 {s(sT2)}, {s(sTQ)}, {s(sT1)}")
        a(f"s_mov_b32 s3, {s(sT2)}")
        a(f"s_lshl_b32 {s(sT0)}, {s(sWS0)}, 7")
        a(f"s_add_u32 {s(sT6)}, {s(sTQ)}, {s(sT0)}")
        a(f"s_add_u32 {s(sT6)}, {s(sT6)}, {VO}")
        a(f"s_add_u32 {s(sT2)}, {s(sT2)}, {KO}")
        a(f"s_cmp_eq_u32 {s(sG)}, 0")
        a(f"s_cselect_b32 {s(sT7)}, {OOB}, 0")
        a(f"s_sub_u32 {s(sT7)}, {s(sT7)}, {0x200000 - 8 * TILE_B}")
        a(f"s_add_u32 {s(sT0)}, {s(sT2)}, {s(sT7)}")
        a(f"s_sub_u32 {s(sT0)}, {s(sT0)}, {8 * TILE_B}")
        a(f"s_add_u32 {s(sT3)}, {s(sT6)}, {s(sT7)}")
        a(f"s_sub_u32 {s(sT3)}, {s(sT3)}, {8 * TILE_B}")
        a(f"s_cmp_eq_u32 {s(sB)}, 0")
        a(f"s_cselect_b32 {s(sT7)}, {s(sT7)}, 0")
        a(f"s_add_u32 {s(sT1)}, {s(sT2)}, {s(sT7)}")
        a(f"s_sub_u32 {s(sT1)}, {s(sT1)}, {4 * TILE_B}")
        a(f"s_add_u32 {s(sT4)}, {s(sT6)}, {s(sT7)}")
        a(f"s_sub_u32 {s(sT4)}, {s(sT4)}, {4 * TILE_B}")

    def p2(self):
        a = self.a
        a("L_p2_slow:" if self.slow else "L_p2_fast:")
        a.vm_done = a.vm_n
        vQ, vMK, vKV, vVP, vRF, vM, vNM = 24, 16, 12, 13, 14, 8, 10
        vS, vP2, vO = 32, 176, 192
        ksrc, vsrc = (sT0, sT1, sT2), (sT3, sT4, sT6)

        def ldK(i):
            for t in range(2):
                tk = self.dma(vL16, SWS, sKVL, i * 16384 + t * 1024, ksrc[i], 0, sc1=True, imm=t * 1024)
            return tk

        def ldV(i):
            for t in range(2):
                tk = self.dma(vVP, SWS, sKVL, i * 16384 + 2048 + t * 1024, vsrc[i], t * 14336, sc1=True)
            return tk

        self.stamp(6)
        self.poll([f"buffer_load_dword v8, {v(vRF)}, {srd(SWS)}, 0 offen sc1",
                   f"buffer_load_dwordx2 v[10:11], v243, {srd(SWS)}, {s(sGB)} offen sc1"], [8, 10, 11])
        self.stamp(7)
        for i in range(3):
            ldK(i)
        for t in range(2):
            t_k = a.vm(f"buffer_load_dwordx4 {v(vQ + 4 * t, 4)}, {v(vL16)}, {srd(SWS)}, s3 offen offset:{t * 1024} sc1")
        a(f"s_andn2_b64 exec, -1, {s(sP1, 2)}")
        for i in range(3):
            t_v = ldV(i)
        a("s_mov_b64 exec, -1")
        self.pre = []
        for i in range(14):
            self.pre.append((15, SWG, LA + i * 4096, i * 32 * 3584))
            self.pre.append((6, SWU, LB + i * 4096, i * 32 * 3584))
        n_att = self.o.get("n_att", 14)
        bg = [lambda: self.wgu(1)] * n_att
        for i, t in enumerate(self.early):
            bg.insert(2 + 2 * i, lambda t=t: a(t))
        if self.o.get("touch_y", 1):
            bg.insert(self.o.get("ty_at", 4), self.touch_y)

        def prefetch(n):
            for _ in range(n):
                if bg:
                    bg.pop(0)()

        a("s_barrier")
        a("v_xor_b32 v5, 64, v2")
        for k in range(14):
            for ct in range(2):
                self.tr2(("a", 128 + 8 * k + 4 * ct), 5 if ct else 2, k * 2048)
        a(f"s_bitcmp1_b32 {s(sHD)}, 0")
        a(f"s_cselect_b32 {s(sP0)}, -1, 0")
        a(f"s_mov_b32 {s(sP0 + 1)}, 0")
        a.wait(vm=t_k)
        a.wait_all(vm=False)
        a("s_barrier")
        a(f"s_mov_b64 exec, {s(sP0, 2)}")
        a(f"v_mov_b32 {v(vQ)}, 0")
        a(f"v_mov_b32 {v(vQ + 1)}, 0")
        a(f"s_not_b32 exec_hi, {s(sP0)}")
        a("s_mov_b32 exec_lo, 0")
        a(f"v_mov_b32 {v(vQ + 6)}, 0")
        a(f"v_mov_b32 {v(vQ + 7)}, 0")
        a("s_mov_b64 exec, -1")
        self.stamp(8)
        order = [0, 8, 1, 2, 3, 4, 5, 6, 7]
        kt = {}

        def rdK(n):
            i = order[n]
            a.lg(f"ds_read_b128 {a_(8 * n, 4)}, {v(vKV)} offset:{i * 4096}")
            kt[n] = a.lg(f"ds_read_b128 {a_(8 * n + 4, 4)}, {v(vKV)} offset:{i * 4096 + 1024}")

        vorder = [1, 2, 3, 4, 5, 6, 7, 8, 0]
        vt = {}

        def rdV(n):
            i = vorder[n]
            base = 72 + 8 * n if n < 7 else 8 * (n - 7)
            a.lg(f"ds_read_b128 {a_(base, 4)}, {v(vKV)} offset:{i * 4096 + 2048}")
            vt[i] = (base, a.lg(f"ds_read_b128 {a_(base + 4, 4)}, {v(vKV)} offset:{i * 4096 + 3072}"))

        def patch(i):
            L = a.label("miss")
            a(f"s_cmp_gt_i32 {s(sMISS)}, {i}")
            a(f"s_cbranch_scc1 {L}")
            a(f"{L}_back:")
            blk = [f"{L}:", "s_nop 15"]
            blk += [f"v_mov_b32 {v(vS + 16 * i + r)}, 0xf149f2ca" for r in range(16)]
            blk += [f"s_branch {L}_back"]
            self.tail.append(blk)

        valu = []
        first = [True]

        def q_max(i):
            b = vS + 16 * i
            ops = []
            if first[0]:
                ops.append(f"v_max3_f32 {v(vM)}, {v(b)}, {v(b + 1)}, {v(b + 2)}")
                ops.append(f"v_max3_f32 {v(vM + 1)}, {v(b + 3)}, {v(b + 4)}, {v(b + 5)}")
                rest = list(range(6, 16, 2))
                first[0] = False
            else:
                rest = list(range(0, 16, 2))
            for n, r in enumerate(rest):
                m = vM + (n & 1)
                ops.append(f"v_max3_f32 {v(m)}, {v(m)}, {v(b + r)}, {v(b + r + 1)}")
            return ops

        for n in range(4):
            rdK(n)
        for n in range(9):
            i = order[n]
            if n + 4 < 9:
                rdK(n + 4)
            a.wait(lg=kt[n])
            d = v(vS + 16 * i, 16)
            a(f"v_mfma_f32_32x32x16_bf16 {d}, {a_(8 * n, 4)}, {v(vQ, 4)}, 0")
            for _ in range(5):
                if valu:
                    a(valu.pop(0))
            a(f"v_mfma_f32_32x32x16_bf16 {d}, {a_(8 * n + 4, 4)}, {v(vQ + 4, 4)}, {d}")
            for _ in range(5):
                if valu:
                    a(valu.pop(0))
            if n == 2:
                patch(0)
                valu += [f"v_cndmask_b32 {v(vS + 128 + r)}, {v(vS + r)}, {v(vS + 128 + r)}, {s(sMASK + 2 * r, 2)}" for r in range(16)]
                valu += q_max(8)
            elif n >= 3:
                patch(order[n - 1])
                valu += q_max(order[n - 1])
            if n >= self.o.get("bg1", 0):
                prefetch(1)
        for op in valu:
            a(op)
        patch(7)
        for op in q_max(7):
            a(op)
        a(f"v_max_f32 {v(vM)}, {v(vM)}, {v(vM + 1)}")
        self.both_halves(vM, vM + 1, "v_max_f32")
        a(f"v_sub_f32 {v(vNM)}, 0, {v(vM)}")
        a.wait(vm=t_v)
        a("s_barrier")
        for n in range(4):
            rdV(n)
        self.stamp(9)
        firstpv = [True]

        def pv(i, t, p):
            base, tk = vt[i]
            a.wait(lg=tk)
            c = 0 if firstpv[0] else v(vO, 16)
            firstpv[0] = False
            a(f"v_mfma_f32_32x32x16_bf16 {v(vO, 16)}, {a_(base + 4 * t, 4)}, {v(p + 4 * t, 4)}, {c}")

        pend = []
        for n, i in enumerate([1, 2, 3, 4, 5, 6, 7, 8]):
            b = vS + 16 * i
            p = vS + 8 * (n & 1)
            if n + 4 < 9:
                rdV(n + 4)
            for r in range(0, 16, 2):
                a(f"v_pk_add_f32 {v(b + r, 2)}, {v(b + r, 2)}, {v(vNM, 2)} op_sel_hi:[1,0]")
            for t in range(2):
                if pend:
                    pv(*pend.pop(0))
                for r in range(8 * t, 8 * t + 8):
                    a(f"v_exp_f32 {v(b + r)}, {v(b + r)}")
                    if r >= 8 * t + 3 and (r & 1):
                        j = (r - 3) >> 1
                        a(f"v_cvt_pk_bf16_f32 {v(p + j)}, {v(b + 2 * j)}, {v(b + 2 * j + 1)}")
                j = 4 * t + 3
                prefetch(1)
                a(f"v_cvt_pk_bf16_f32 {v(p + j)}, {v(b + 2 * j)}, {v(b + 2 * j + 1)}")
            if i != 8:
                pend = [(i, 0, p), (i, 1, p)]
            else:
                for j in range(8):
                    a(f"v_and_b32 {v(vP2 + j)}, {v(p + j)}, {v(vMK + j)}")
                    a(f"v_xor_b32 {v(vP2 + 8 + j)}, {v(p + j)}, {v(vP2 + j)}")
                    if j == 3:
                        pv(8, 0, vP2)
                pv(0, 0, vP2 + 8)
                pv(8, 1, vP2)
                pv(0, 1, vP2 + 8)
        prefetch(99)
        a(f"s_lshl_b32 {s(sT1)}, {s(sWS0)}, 9")
        a(f"s_add_u32 {s(sT1)}, {s(sT1)}, {s(sTQ)}")
        a(f"s_add_u32 {s(sT1)}, {s(sT1)}, {OO}")
        a(f"s_bitcmp1_b32 {s(sHD)}, 0")
        a(f"s_cselect_b64 {s(sP0, 2)}, -1, 0")
        a(f"v_cndmask_b32 v8, {v(vO + 12)}, {v(vO)}, {s(sP0, 2)}")
        a("v_mov_b32 v9, v8")
        a("v_permlane32_swap_b32 v9, v8")
        a(f"v_cndmask_b32 v8, v8, v9, {s(sP0, 2)}")
        a("v_rcp_f32 v8, v8")
        for r in range(16):
            a(f"v_mul_f32 {v(vO + r)}, v8, {v(vO + r)}")
        for j in range(8):
            a(f"v_cvt_pk_bf16_f32 {v(vP2 + j)}, {v(vO + 2 * j)}, {v(vO + 2 * j + 1)}")
        Lodd, Ldone = a.label("odd"), a.label("ost")
        base = f"{v(vL16)}, {srd(SWS)}, {s(sT1)} offen"
        a(f"s_cbranch_scc1 {Lodd}")
        a(f"buffer_store_dwordx4 {v(vP2, 4)}, {base}{self.st('o')}")
        a("s_mov_b32 exec_hi, 0")
        a(f"buffer_store_dwordx4 {v(vP2 + 4, 4)}, {base} offset:1024{self.st('o')}")
        a("s_not_b64 exec, exec")
        a(f"buffer_store_dwordx2 {v(vP2 + 4, 2)}, {base} offset:1024{self.st('o')}")
        a(f"s_branch {Ldone}")
        a(f"{Lodd}:")
        a(f"buffer_store_dwordx4 {v(vP2 + 4, 4)}, {base} offset:1024{self.st('o')}")
        a("s_mov_b32 exec_lo, 0")
        a(f"buffer_store_dwordx4 {v(vP2, 4)}, {base}{self.st('o')}")
        a("s_not_b64 exec, exec")
        a(f"buffer_store_dwordx2 {v(vP2 + 2, 2)}, {base} offset:8{self.st('o')}")
        a(f"{Ldone}:")
        a("s_mov_b64 exec, -1")
        self.stamp(10)
        Lc = a.label("comp")
        a(f"s_cmp_lt_u32 {s(sM)}, 28")
        a(f"s_cbranch_scc1 {Lc}")
        self.local_flag(1, 8)
        a("s_branch L_helper_tail")
        a(f"{Lc}:")

    def exchange(self, acc):
        a = self.a
        for q in range(4):
            a(f"ds_write_b128 v26, {v(acc + 16 + 4 * q, 4)} offset:{q * 1024}")
        a.wait_all(vm=False)
        a("s_barrier")
        tk = [a.lg(f"ds_read_b128 {v(acc + 16 + 4 * q, 4)}, v27 offset:{q * 1024}") for q in range(4)]
        for q in range(4):
            a.wait(lg=tk[q])
            for r in range(4 * q, 4 * q + 4, 2):
                a(f"v_pk_add_f32 {v(acc + r, 2)}, {v(acc + r, 2)}, {v(acc + 16 + r, 2)}")

    def unpack16(self, dst, src):
        a = self.a
        for j in range(8):
            a(f"v_lshlrev_b32 {v(dst + 2 * j)}, 16, {v(src + j)}")
            a(f"v_and_b32 {v(dst + 2 * j + 1)}, 0xffff0000, {v(src + j)}")

    def mod2_loads(self):
        return [f"buffer_load_dwordx2 {v(232 + 2 * i, 2)}, {v(241 + (i >> 1))}, {srd(SWS)}, 0 offen offset:{(i & 1) * 1792} sc1"
                for i in range(4)]

    def p3_early_loads(self):
        g = [f"v_bfe_u32 v3, {v(vL16)}, 4, 5", "v_mul_u32_u24 v3, 896, v3", f"v_lshrrev_b32 v4, 9, {v(vL16)}",
             "v_lshl_add_u32 v3, v4, 4, v3",
             f"s_lshl3_add_u32 {s(sT6)}, {s(sG)}, {s(sTILE)}", f"s_mul_i32 {s(sT6)}, {s(sT6)}, {TILE_B}",
             f"s_lshl1_add_u32 {s(sXCC)}, {s(sCB)}, {s(sCH)}", f"s_lshl_b32 {s(sXCC)}, {s(sXCC)}, 6",
             f"s_add_u32 {s(sXCC)}, {s(sXCC)}, {s(sT6)}"]
        g += [f"buffer_load_dwordx4 {v(224 + 4 * b, 4)}, v3, {srd(SX)}, {s(sXCC)} offen offset:{32 * b}" for b in range(2)]
        g += ["v_min_u32 v240, 223, v0", "v_lshlrev_b32 v240, 3, v240",
              f"v_add_u32 v241, {MODO + 448 * 8}, v240", f"v_add_u32 v242, {MODO + 448 * 8 + 3584}, v240"]
        g += self.mod2_loads()
        return g

    def p3(self):
        a = self.a
        acc, vGA, vG2, vXR, vXF = 32, 64, 80, 224, 104
        a("v_mov_b32 v5, v15")
        self.pre = [(5 if vr == 15 else vr, sr, lo, so) for vr, sr, lo, so in self.pre]
        self.local_flag(1, 8)
        self.check_tags(self.mod2_loads(), [233, 235, 237, 239])
        a("v_lshlrev_b32 v18, 16, v236")
        a("v_and_b32 v19, 0xffff0000, v236")
        a("v_add_f32 v18, 1.0, v18")
        a("v_add_f32 v19, 1.0, v19")
        a("v_cvt_pk_bf16_f32 v236, v18, v19")
        a("v_lshrrev_b32 v10, 1, v240")
        a(f"v_add_u32 v10, {L_T2}, v10")
        a("s_barrier")
        for i in range(4):
            t_t2 = a.lg(f"ds_write_b32 v10, {v(232 + 2 * i)} offset:{896 * i}")
        a(f"s_lshl_b32 {s(sT1)}, {s(sCB)}, 1")
        a(f"s_add_u32 {s(sT1)}, {s(sT1)}, {s(sCH)}")
        a(f"s_lshl_b32 {s(sT1)}, {s(sT1)}, 6")
        a(f"s_mul_i32 {s(sT2)}, {s(sTILE)}, {TILE_B}")
        a(f"s_add_u32 {s(sT2)}, {s(sT2)}, {s(sGB)}")
        a(f"s_mul_i32 {s(sT3)}, {s(sCH)}, {14 * 1024}")
        a(f"s_add_u32 {s(sT3)}, {s(sT3)}, {s(sT2)}")
        a(f"s_add_u32 {s(sT3)}, {s(sT3)}, {OO}")
        self.stamp(11)
        if self.o.get("fine", 1):
            a(f"v_and_b32 v8, 0xf0, {v(vL16)}")
            a(f"s_lshr_b32 {s(sT0)}, {s(sTILE)}, 2")
            a(f"s_lshl_b32 {s(sT0)}, {s(sT0)}, 6")
            a(f"s_and_b32 {s(sT6)}, {s(sTILE)}, 3")
            a(f"s_add_u32 {s(sT0)}, {s(sT0)}, {s(sT6)}")
            a(f"s_lshl2_add_u32 {s(sT0)}, {s(sT0)}, {s(sGB)}")
            a(f"s_add_u32 {s(sT0)}, {s(sT0)}, {LFO + 512}")
            self.poll([f"buffer_load_dword v10, v8, {srd(SWS)}, {s(sT0)} offen sc1"], [10])
        else:
            self.poll_local(1, 32, 8)
        self.stamp(12)
        tk = []

        def ldO(k):
            if k and k % 4 == 0:
                a(f"s_add_u32 {s(sT3)}, {s(sT3)}, 4096")
            tk.append(a.vm(f"buffer_load_dwordx4 {a_(4 * k, 4)}, {v(vL16)}, {srd(SWS)}, {s(sT3)} offen offset:{(k % 4) * 1024} sc1"))

        for k in range(8):
            ldO(k)
        a.wait(lg=t_t2)
        a("s_barrier")
        a(f"v_lshl_add_u32 v8, v4, 4, {s(sT1)}")
        a(f"v_add_u32 v8, {L_T2}, v8")
        for b in range(2):
            a(f"ds_read_b128 {v(12 + 4 * b, 4)}, v8 offset:{32 * b}")
            a(f"ds_read_b128 {v(20 + 4 * b, 4)}, v8 offset:{2 * 896 + 32 * b}")
        a(f"s_lshl_b32 {s(sT0)}, {s(sRT)}, 5")
        a(f"v_add_u32 v8, {s(sT0)}, v8")
        t_c = a.lg(f"ds_read_b128 {v(vGBP, 4)}, v8 offset:{3 * 896}")
        n3 = [self.o.get("n_p3", 0)]
        fill = self.capture(lambda: self.unpack16(vXF, vXR))
        fill += [lambda: a.wait(lg=t_c)] + self.capture(lambda: (self.unpack16(vGA, 12), self.unpack16(vG2, 20)))
        fill += [f"s_lshl_b32 {s(sT0)}, {s(sW)}, 12", f"s_add_u32 {s(sT0)}, {s(sT0)}, {L_XB}",
                 f"v_add_u32 v26, {s(sT0)}, {v(vL16)}", "v_xor_b32 v27, 4096, v26",
                 f"s_lshl_b32 {s(sT0)}, {s(sW)}, 11", f"s_add_u32 {s(sT0)}, {s(sT0)}, {L_X2}",
                 f"v_add_u32 v29, {s(sT0)}, {v(vL16)}",
                 f"s_lshl_b32 {s(sT0)}, {s(sT1)}, 5", f"s_add_u32 {s(sT4)}, {s(sT0)}, {s(sT2)}",
                 f"s_add_u32 {s(sT4)}, {s(sT4)}, {YO}",
                 f"s_lshl_b32 {s(sT6)}, {s(sTILE)}, 8", f"s_add_u32 {s(sT6)}, {s(sT6)}, {s(sT0)}",
                 f"s_add_u32 {s(sT6)}, {s(sT6)}, {s(sGB)}", f"s_add_u32 {s(sT6)}, {s(sT6)}, {STO}",
                 f"v_bfe_u32 v28, {v(vL16)}, 1, 8", "v_lshl_add_u32 v28, v4, 2, v28"]
        for k in range(14):
            a.wait(vm=tk[k])
            for ct in range(2):
                d = v(acc + 16 * ct, 16)
                a(f"v_mfma_f32_32x32x16_bf16 {d}, {a_(128 + 8 * k + 4 * ct, 4)}, {a_(4 * k, 4)}, {d if k else 0}")
                if ct == 0 and k + 8 < 14:
                    ldO(k + 8)
                elif k >= 6 and n3[0]:
                    self.wgu(1)
                    n3[0] -= 1
                for _ in range(3):
                    if fill:
                        f = fill.pop(0)
                        f() if callable(f) else a(f)
        assert not fill
        self.stamp(25)
        self.exchange(acc)
        for r in range(0, 16, 2):
            a(f"v_pk_fma_f32 {v(acc + r, 2)}, {v(acc + r, 2)}, {v(vGA + r, 2)}, {v(vXF + r, 2)}")
        for r in range(0, 16, 2):
            a(f"v_pk_mul_f32 {v(acc + 16 + r, 2)}, {v(acc + r, 2)}, {v(vG2 + r, 2)}")
        for b in range(2):
            for j in range(4 * b, 4 * b + 4):
                a(f"v_cvt_pk_bf16_f32 {v(12 + j)}, {v(acc + 16 + 2 * j)}, {v(acc + 16 + 2 * j + 1)}")
            a(f"buffer_store_dwordx4 {v(12 + 4 * b, 4)}, {v(vL16)}, {srd(SWS)}, {s(sT4)} offen offset:{1024 * b}{self.st('y')}")
        a(f"v_pk_mul_f32 v[22:23], {v(acc, 2)}, {v(acc, 2)}")
        a(f"v_pk_add_f32 v[20:21], {v(acc, 2)}, {v(acc + 2, 2)}")
        a(f"v_pk_fma_f32 v[22:23], {v(acc + 2, 2)}, {v(acc + 2, 2)}, v[22:23]")
        for r in range(4, 16, 2):
            a(f"v_pk_add_f32 v[20:21], v[20:21], {v(acc + r, 2)}")
            a(f"v_pk_fma_f32 v[22:23], {v(acc + r, 2)}, {v(acc + r, 2)}, v[22:23]")
        a("v_add_f32 v20, v20, v21")
        a("v_add_f32 v21, v22, v23")
        a("v_permlane32_swap_b32 v20, v21")
        a("v_add_f32 v20, v20, v21")
        t_y = a.vm(f"buffer_store_dword v20, v28, {srd(SWS)}, {s(sT6)} offen{self.st('y')}")
        for j in range(8):
            a(f"v_cvt_pk_bf16_f32 {v(vX2 + j)}, {v(acc + 2 * j)}, {v(acc + 2 * j + 1)}")
        for b in range(2):
            a(f"ds_write_b128 v29, {v(vX2 + 4 * b, 4)} offset:{1024 * b}")
        self.local_flag(2, 8)
        self.stamp(13)

    def p45(self):
        a, o = self.a, self.o
        acc, vW, vTB, vTQ, vAUG, vR2, vU, vH = 32, 160, 208, 12, 16, 24, 224, 224
        vTBA, vAGA, vWD, vSTA, vPD, vFA, vST = 26, 27, 28, 30, 2, 31, 96
        NSW = 12
        late = len(self.pre)
        self.tr_pattern(vTQ, 8, True)
        a(f"v_bfe_u32 v8, {v(vL16)}, 8, 1")
        a(f"v_mul_u32_u24 v8, {LB - LA}, v8")
        a(f"s_mul_i32 {s(sT0)}, {s(sW)}, 10240")
        a(f"s_add_u32 {s(sB)}, {s(sT0)}, {L_F}")
        a(f"s_lshl_b32 {s(sT0)}, {s(sCH)}, 6")
        a(f"s_lshl_b32 {s(sT1)}, {s(sRT)}, 5")
        a(f"s_add_u32 {s(sT0)}, {s(sT0)}, {s(sT1)}")
        a(f"v_xor_b32 {v(vWD)}, {s(sT0)}, {v(vTQ)}")
        a(f"v_add_u32 {v(vWD)}, {s(sB)}, {v(vWD)}")
        a(f"v_xor_b32 {v(vWD + 1)}, 64, {v(vWD)}")
        a(f"v_add_u32 {v(vTQ)}, {v(vTQ)}, v8")
        for q in range(1, 4):
            a(f"v_xor_b32 {v(vTQ + q)}, {32 * q}, {v(vTQ)}")
        a(f"s_lshl_b32 {s(sT0)}, {s(sCH)}, 11")
        a(f"s_lshl_b32 {s(sT1)}, {s(sRT)}, 10")
        a(f"s_add_u32 {s(sT0)}, {s(sT0)}, {s(sT1)}")
        a(f"s_add_u32 {s(sT0)}, {s(sT0)}, {L_X2}")
        a(f"v_add_u32 v8, {s(sT0)}, {v(vL16)}")
        a.wait_all(vm=False)
        a("s_barrier")
        for rt in range(2):
            a(f"ds_read_b128 {v(vX2 + 4 * rt, 4)}, v8 offset:{4096 * rt}")
        self.p45_setup(vSTA, vPD, vFA)
        a.wait_all(vm=False)
        a("s_barrier")
        self.stamp(14)
        if self.o.get("fine", 1):
            a(f"v_lshrrev_b32 v8, 2, {v(vL16)}")
            a("v_min_u32 v8, 108, v8")
            a(f"s_mul_i32 {s(sT0)}, {s(sW)}, 112")
            a(f"s_add_u32 {s(sT0)}, {s(sT0)}, {s(sGB)}")
            a(f"s_add_u32 {s(sT0)}, {s(sT0)}, {LFO + 1024}")
            self.poll([f"buffer_load_dword v10, v8, {srd(SWS)}, {s(sT0)} offen sc1"], [10])
        else:
            self.poll_local(2, 28, 8)
        self.stamp(15)
        a(f"s_lshl_b32 {s(sT0)}, {s(sM)}, 4")
        a(f"s_lshl_b32 {s(sT1)}, {s(sW)}, 2")
        a(f"s_add_u32 {s(sT0)}, {s(sT0)}, {s(sT1)}")
        a(f"s_add_u32 {s(sT0)}, {s(sT0)}, {LFO + 3 * 512}")
        a(f"v_mov_b32 v10, {s(sT0)}")
        a(f"v_mov_b32 v11, {s(sTAG)}")

        steps = []
        for rt in range(2):
            steps += [("f", rt, k, q) for k in range(28) for q in range(4)]
            steps += [("g", rt, 28, q) for q in range(4)]
        steps += [("d", rt, j, ct) for rt in range(2) for j in range(28) for ct in range(2)]
        at = {st: n for n, st in enumerate(steps)}
        N = len(steps)
        ev = [[] for _ in range(N + 1)]
        R = lambda key: (a_ if key[0] == "a" else v)(key[1], 4)

        LAT, FAR, UNIT, LIM = o.get("lat", 450), o.get("far", 450), o.get("unit", 72), o.get("lim", 10)
        MF, GAP = o.get("mf", 40), o.get("gap", 6)
        sim = dict(T=0, free=0, last=0)
        arr, tick = {}, {}
        memq, fill, wq2 = [], [], []
        need = dict(vm=0, lg=0)
        cur = [0]

        def plan(name, cost, lat, *ops):
            st = max(sim["T"], sim["free"])
            sim["free"] = st + cost
            sim["last"] = max(sim["last"], sim["free"] + lat)
            arr[name] = sim["last"]
            memq.extend(ops[:-1])
            memq.append(lambda: tick.__setitem__(name, a.vm(ops[-1])))

        def emit(chain, n):
            done = 0
            while chain and done < n:
                f = chain.pop(0)
                n0 = len(a.ins)
                f() if callable(f) else a(f)
                done += len(a.ins) - n0
            return done

        def issued(name):
            while name not in tick:
                assert memq, name
                emit(memq, 1)
            return tick[name]

        def inflight():
            return sum(1 for x in arr.values() if x > sim["T"])

        def stall_until(name):
            while arr[name] > sim["T"] + 20 and serve(cur[0]):
                emit(memq, 99)
                sim["T"] += 16
            sim["T"] = max(sim["T"], arr[name])

        free_q = [("a", 4 * i) for i in range(63, -1, -1)]
        wd_next = [0]
        reg = {}

        def take_quad(horizon):
            for key in free_q:
                if key[0] == "v" or key[1] >= 8 * min(28, wd_next[0] + horizon):
                    free_q.remove(key)
                    return key
            return None

        def ldY(n):
            key = take_quad(o.get("hor", 5))
            if key is None:
                return False
            reg[("y", n)] = key
            pre = [f"s_add_u32 {s(sTQ)}, {s(sTQ)}, 4096"] if n and n % 4 == 0 else []
            plan(("y", n), UNIT, o.get("lat_y", LAT), *pre,
                 f"buffer_load_dwordx4 {R(key)}, {v(vL16)}, {srd(SWS)}, {s(sTQ)} offen offset:{(n % 4) * 1024} sc1")
            return True

        def ldH(n):
            key = take_quad(28)
            if key is None:
                return False
            reg[("h", n)] = key
            pre = []
            if n == 28:
                pre = [f"s_add_u32 {s(sT6)}, {s(sT6)}, {HT_B - 24 * 1024}"]
            elif n % 28 and n % 28 % 4 == 0:
                pre = [f"s_add_u32 {s(sT6)}, {s(sT6)}, 4096"]
            plan(("h", n), UNIT, o.get("lat_h", LAT), *pre,
                 f"buffer_load_dwordx4 {R(key)}, {v(vL16)}, {srd(SWS)}, {s(sT6)} offen offset:{(n % 28 % 4) * 1024} sc1")
            return True

        wd_tr_t = {}

        def ldD(j):
            if j >= 5 and (j - 5 not in wd_tr_t or wd_tr_t[j - 5] > a.lg_done):
                return False
            far = o.get("far_d", FAR)
            plan(("d0", j), UNIT, far, f"s_add_u32 m0, {s(sB)}, {(j % 5) * 2048}", f"s_add_u32 {s(sT4)}, {s(sT4)}, {16 * 896}",
                 f"buffer_load_dwordx4 {v(vPD)}, {srd(SWD)}, {s(sT4)} offen lds")
            plan(("d", j), UNIT, far, f"buffer_load_dwordx4 v0, {srd(SWD)}, {s(sT4)} offen offset:1024 lds")
            return True

        wd_pending = [None]

        def wd_read(must=False):
            j = wd_next[0]
            if wd_pending[0] is not None or j >= 28 or ("d", j) not in arr:
                return
            if not must and (arr[("d", j)] > sim["T"] or ("d", j) not in tick):
                return
            if any(("a", 8 * j + 4 * ct) not in free_q for ct in range(2)):
                assert not must
                return
            for ct in range(2):
                free_q.remove(("a", 8 * j + 4 * ct))
            need["vm"] = max(need["vm"], issued(("d", j)))
            wd_pending[0] = j

        def wd_queue():
            j = wd_pending[0]
            if j is None:
                return
            for ct in range(2):
                for u in range(2):
                    t = f"ds_read_b64_tr_b16 {a_(8 * j + 4 * ct + 2 * u, 2)}, {v(vWD + ct)} offset:{(j % 5) * 2048 + 512 * u}"
                    wq2.append((lambda t=t: wd_tr_t.__setitem__(j, a.lg(t))) if ct and u else t)
            wd_pending[0] = None
            wd_next[0] += 1

        def ldL(i):
            (vg, sg_, lg_, so), (vu, su, lu, _) = self.pre.pop(0), self.pre.pop(0)
            far = o.get("far_l", FAR)
            plan(("l0", i), UNIT, far, f"s_add_u32 m0, {s(sT5)}, {lg_}", f"s_add_u32 {s(sT7)}, {s(sWSRC)}, {so}",
                 f"buffer_load_dwordx4 {v(vg)}, {srd(sg_)}, {s(sT7)} offen lds")
            plan(("l", i), UNIT, far, f"s_add_u32 m0, {s(sT5)}, {lu}\ns_nop 0",
                 f"buffer_load_dwordx4 {v(vu)}, {srd(su)}, {s(sT7)} offen lds")
            return True

        def ldS(p):
            for rt in range(2):
                plan(("s", p, rt), UNIT // 2, LAT,
                     f"buffer_load_dwordx2 {v(vST + 14 * rt + 2 * p, 2)}, {v(vSTA)}, {srd(SWS)}, {s(sKVL)} offen offset:{256 * rt + (p & 1) * 2048} sc1")
            if p & 1:
                memq.append(f"s_add_u32 {s(sKVL)}, {s(sKVL)}, 4096")
            return True

        assert late % 2 == 0
        first = (28 - late) // 2
        bar_at = {b: at[("f", 0, 2 * (b - (b - first) % 2) - 2, 0)] for b in range(first, 14)}
        nS = at[("f", 0, o.get("ks", 17), 0)]
        YL, HL, LEAD = o.get("ylook", 6), o.get("hlook", 12), 20
        gate = {0: None, 1: None}
        queues = {
            "y": [(at[("f", max(n - YL, 0) // 28, max(n - YL, 0) % 28, 0)] if n >= YL else -1,
                   at[("f", n // 28, n % 28, 0)] - LEAD, lambda n=n: ldY(n)) for n in range(56)],
            "l": [(0, bar_at[first + i] - o.get("lead_l", 30), lambda i=i: ldL(i)) for i in range(late // 2)],
            "s": [(at[("f", 0, 6, 0)], nS - 20, lambda p=p: ldS(p)) for p in range(7)],
            "d": [(0, at[("d", 0, j, 0)] - LEAD - o.get("lead_d", 6), lambda j=j: ldD(j)) for j in range(28)],
            "h": [(("h", n // 28, at[("d", n // 28, n % 28, 0)] - 2 * HL), at[("d", n // 28, n % 28, 0)] - LEAD,
                   lambda n=n: ldH(n)) for n in range(56)],
        }

        def serve(n):
            if len(memq) > 2 or inflight() >= LIM or sim["free"] >= sim["T"] + o.get("ahead", 300):
                return False
            cand = []
            for name, q in queues.items():
                if q:
                    e = q[0][0]
                    if isinstance(e, tuple):
                        if gate[e[1]] is None:
                            continue
                        e = max(e[2], gate[e[1]])
                    if e <= n:
                        cand.append((q[0][1], name))
            for _, name in sorted(cand):
                if queues[name][0][2]():
                    queues[name].pop(0)
                    return True
            return False

        def force(qname, name):
            while name not in arr:
                if qname == "d" and not queues[qname][0][2]():
                    wd_read(must=True)
                    a.wait(vm=need["vm"])
                    wd_queue()
                    emit(wq2, 99)
                    a.wait(lg=a.lg_n)
                    continue
                if qname != "d":
                    assert queues[qname][0][2](), name
                queues[qname].pop(0)
            return issued(name)

        def hard_wait(qname, name):
            t = force(qname, name) if qname else issued(name)
            stall_until(name)
            a.wait(vm=t)

        for b in sorted(set(bar_at.values())):
            i = max(x for x in bar_at if bar_at[x] == b) - first
            ev[b].append(lambda i=i: (hard_wait("l", ("l", i)), a("s_barrier")))
        ev[nS].append(lambda: (hard_wait("s", ("s", 6, 1)), fill.extend(self.ln2_stats(vST, vAUG, vR2))))

        ev[at[("g", 0, 28, 0)]].append(lambda: emit(fill, 999))

        def spin_block(L, text):
            self.tail.append([f"{L}:", f"s_mov_b32 {s(sSPIN)}, 0", f"{L}_spin:", text,
                              f"s_add_u32 {s(sSPIN)}, {s(sSPIN)}, 1", f"s_cmp_gt_u32 {s(sSPIN)}, {SPIN_MAX}",
                              "s_cbranch_scc1 L_abort", "s_waitcnt vmcnt(0)", f"v_cmp_ne_u32 vcc, {s(sTAG)}, v9",
                              f"s_cbranch_vccnz {L}_spin", f"s_branch {L}_back"])

        def check(name, text):
            L = a.label("hw")
            hard_wait(None, name)
            a(f"v_cmp_ne_u32 vcc, {s(sTAG)}, v9")
            a(f"s_cbranch_vccnz {L}")
            a(f"{L}_back:")
            spin_block(L, text)

        atext = f"buffer_load_dword v9, v8, {srd(SWS)}, {s(sT0)} offen sc1"
        ev[at[("f", 0, o.get("kaf", 21) - 5, 0)]].append(lambda: plan("af", 20, FAR, f"s_lshl4_add_u32 {s(sT0)}, {s(sM)}, {AFO}",
                                                   f"v_bfe_u32 v8, {v(vL16)}, 2, 4", atext))

        def aug_load():
            check("af", atext)
            for q in range(4):
                plan(("ag", q), UNIT, FAR,
                     f"buffer_load_dwordx4 {v(vTB + 4 * q, 4)}, {v(vL16)}, {srd(SWS)}, {s(sHD)} offen offset:{q << 10} sc1")

        ev[at[("f", 0, o.get("kaf", 21), 0)]].append(aug_load)

        def st_h(rt, q):
            plan(("st", rt, q), o.get("st_cost", 2 * UNIT), o.get("lat_st", LAT),
                 f"buffer_store_dwordx4 {v(vH + 4 * q, 4)}, {v(vL16)}, {srd(SWS)}, {s(sT3)} offen offset:{q << 10}{self.st('h')}")
            if q == 3:
                memq.append(f"s_add_u32 {s(sT3)}, {s(sT3)}, {HT_B}")

        def epilogue(rt):
            for q in range(4):
                b, oq = acc + 64 * rt + 16 * q, vH + 4 * q
                for r in range(8):
                    fill.append(f"v_max_f32 {v(b + r)}, 0, {v(b + r)}")
                    fill.append(f"v_mul_f32 {v(b + 8 + r)}, {v(vR2 + rt)}, {v(b + 8 + r)}")
                for r in range(8):
                    fill.append(f"v_mul_f32 {v(b + r)}, {v(b + r)}, {v(b + 8 + r)}")
                for j in range(4):
                    fill.append(f"v_cvt_pk_bf16_f32 {v(oq + j)}, {v(b + 2 * j)}, {v(b + 2 * j + 1)}")
                fill.append(lambda q=q: st_h(rt, q))

        def poll_text(rt):
            return f"buffer_load_dword v9, {v(vFA)}, {srd(SWS)}, {s(sGB)} offen offset:{512 * rt} sc1"

        def handoff(n, rt, must=False):
            hs, fl, pl = ("st", rt, 3), ("fl", rt), ("pl", rt)
            if hs in arr and fl not in arr and (must or (hs in tick and arr[hs] <= sim["T"])):
                hard_wait(None, hs)
                emit(memq, 99)
                a("s_mov_b64 exec, 1")
                plan(fl, 20, LAT, f"buffer_store_dword v11, v10, {srd(SWS)}, {s(sGB)} offen offset:{512 * rt}{self.st('f')}")
                emit(memq, 99)
                a("s_mov_b64 exec, -1")
                if not must:
                    return
            if fl in arr and pl not in arr and (must or arr[fl] + o.get("skew", 100) - LAT <= sim["T"]):
                plan(pl, 20, LAT, poll_text(rt))
                if not must:
                    return
            if pl in arr and gate[rt] is None and (must or (pl in tick and arr[pl] <= sim["T"])):
                check(pl, poll_text(rt))
                gate[rt] = n

        ev[at[("f", 1, 1, 0)]].append(lambda: epilogue(0))
        ev[at[("d", 0, 1, 0)]].append(lambda: epilogue(1))

        def red_write(rt):
            ops = []
            for x in (2, 1, 3):
                r = acc + 32 * rt + 16 * (x & 1) + 8 * (x >> 1)
                ops += [f"ds_write_b128 {v(11 + x)}, {v(r + 4 * i, 4)} offset:{32768 * rt + 2048 * (x - 1) + 1024 * i}" for i in range(2)]
            return ops

        def red_finish(rt):
            t0, own, ops, tk = 96, acc + 32 * rt, [], {}
            for x in range(3):
                for i in range(2):
                    ops.append(lambda x=x, i=i: tk.__setitem__(x, a.lg(
                        f"ds_read_b128 {v(t0 + 8 * x + 4 * i, 4)}, v5 offset:{32768 * rt + 2048 * x + 1024 * i}")))
            add = "v_add_f32" if rt == 0 else None
            ops.append(lambda: a.wait(lg=tk[0]))
            if rt == 0:
                ops += [f"v_add_f32 {v(own + r)}, {v(own + r)}, {v(t0 + r)}" for r in range(8)]
                ops.append(lambda: a.wait(lg=tk[2]))
                ops += [f"v_add_f32 {v(t0 + 8 + r)}, {v(t0 + 8 + r)}, {v(t0 + 16 + r)}" for r in range(8)]
                ops += [f"v_add_f32 {v(own + r)}, {v(own + r)}, {v(t0 + 8 + r)}" for r in range(8)]
                ops += [f"v_fma_f32 {v(own + r)}, {v(own + r)}, {v(128 + r)}, {v(136 + r)}" for r in range(8)]
            else:
                ops += [f"v_pk_add_f32 {v(own + r, 2)}, {v(own + r, 2)}, {v(t0 + r, 2)}" for r in range(0, 8, 2)]
                ops.append(lambda: a.wait(lg=tk[2]))
                ops += [f"v_pk_add_f32 {v(t0 + 8 + r, 2)}, {v(t0 + 8 + r, 2)}, {v(t0 + 16 + r, 2)}" for r in range(0, 8, 2)]
                ops += [f"v_pk_add_f32 {v(own + r, 2)}, {v(own + r, 2)}, {v(t0 + 8 + r, 2)}" for r in range(0, 8, 2)]
                ops += [f"v_pk_fma_f32 {v(own + r, 2)}, {v(own + r, 2)}, {v(128 + r, 2)}, {v(152 + r, 2)}" for r in range(0, 8, 2)]
            if o.get("diag_off"):
                ops += [f"v_add_f32 {v(own + r)}, {f2u(o['diag_off'] / 1000):#x}, {v(own + r)}" for r in range(8 if o.get("diag_all", 1) else 1)]
            ops += [f"v_cvt_pk_bf16_f32 {v(144 + 4 * rt + j)}, {v(own + 2 * j)}, {v(own + 2 * j + 1)}" for j in range(4)]
            ops.append(f"buffer_store_dwordx4 {v(144 + 4 * rt, 4)}, v3, {srd(SOUT)}, {s(sXCC)} offen{' sc1' if o.get('out_sc1') else ''}")
            if rt == 0:
                ops.append(f"s_add_u32 {s(sXCC)}, {s(sXCC)}, {TILE_B}")
            return ops

        def red_setup():
            emit(fill, 999)
            emit(memq, 99)
            fill.extend([f"s_lshl_b32 {s(sT0)}, {s(sW)}, 13", f"v_add_u32 v5, {s(sT0)}, {v(vL16)}"])
            fill.extend(f"v_xor_b32 {v(11 + x)}, {x << 13}, v5" for x in (1, 2, 3))
            for j in range(4):
                fill.extend([f"v_lshlrev_b32 {v(128 + 2 * j)}, 16, {v(vGBP + j)}",
                             f"v_and_b32 {v(129 + 2 * j)}, 0xffff0000, {v(vGBP + j)}"])
            for rt in range(2):
                for j in range(4):
                    fill.extend([f"v_lshlrev_b32 {v(136 + 16 * rt + 2 * j)}, 16, {v(vX2 + 4 * rt + j)}",
                                 f"v_and_b32 {v(137 + 16 * rt + 2 * j)}, 0xffff0000, {v(vX2 + 4 * rt + j)}"])

        ev[at[("d", 1, 0, 0)]].append(red_setup)
        ev[at[("d", 1, 4, 0)]].append(lambda: (emit(fill, 999), a("s_barrier")))
        t_rw = [0]
        for i in range(6):
            ev[at[("d", 1, 4 + i, 1)]].append(lambda i=i: t_rw.__setitem__(0, a.lg(red_write(0)[i])))
        ev[at[("d", 1, 12, 0)]].append(lambda: (a.wait(lg=t_rw[0]), a("s_barrier"), fill.extend(red_finish(0))))

        fsteps = [n for n, st in enumerate(steps) if st[0] == "f"]
        wslot = {n: vW + 4 * (i % NSW) for i, n in enumerate(fsteps)}
        wt, wchain = {}, []
        for i, n in enumerate(fsteps):
            _, rt, k, q = steps[n]
            ok = fsteps[i - NSW + 1] if i >= NSW - 1 else -1
            if rt == 0 and k // 2 in bar_at:
                ok = max(ok, bar_at[k // 2] - 1)
            for u in range(2):
                t = f"ds_read_b64_tr_b16 {v(wslot[n] + 2 * u, 2)}, {v(vTQ + q)} offset:{k * 2048 + 512 * u}"
                wchain.append((ok, n, (lambda t=t, n=n: wt.__setitem__(n, a.lg(t))) if u else t))
        LO, HI = o.get("wlo", 3), o.get("whi", 6)

        def wread(n, horizon, maxn):
            done = 0
            while wchain and done < maxn and wchain[0][0] <= n and wchain[0][1] <= n + horizon:
                f = wchain.pop(0)[2]
                f() if callable(f) else a(f)
                done += 1
            return done

        for n in range(o.get("y0", 5)):
            force("y", ("y", n))
        wread(-1, HI, 99)
        stamps = {at[("f", 0, 8, 0)]: 22, at[("f", 1, 0, 0)]: 21, at[("d", 0, 0, 0)]: 23, at[("d", 1, 0, 0)]: 24}
        self.model, self.gaps = {}, []
        g0 = len(a.ins)
        for n, (kind, rt, k, q) in enumerate(steps):
            cur[0] = n
            if n in stamps:
                self.stamp(stamps[n])
                self.model[stamps[n]] = (sim["T"], wd_next[0], sum(x[0] == "h" for x in reg))
            for f in ev[n]:
                f()
            lg, vm = 0, 0
            if kind == "f":
                wread(n - 1, 1, 99)
                m = 28 * rt + k
                d, A = v(acc + 64 * rt + 16 * q, 16), v(wslot[n], 4)
                vm = force("y", ("y", m))
                stall_until(("y", m))
                B, lg = R(reg[("y", m)]), wt[n]
                if lg > a.lg_done and n + 1 in wt:
                    lg = wt[n + 1]
            elif kind == "g":
                d, A, B = v(acc + 64 * rt + 16 * q, 16), v(vTB + 4 * q, 4), v(vAUG + 4 * rt, 4)
                vm = issued(("ag", q))
            else:
                m = 28 * rt + k
                if gate[rt] is None:
                    emit(fill, 999)
                    handoff(n, rt, must=True)
                vm = force("h", ("h", m))
                while k not in wd_tr_t:
                    if wd_next[0] <= k and wd_pending[0] is None and not wq2:
                        force("d", ("d", wd_next[0]))
                        stall_until(("d", wd_next[0]))
                        wd_read(must=True)
                    a.wait(vm=need["vm"])
                    wd_queue()
                    emit(wq2, 99)
                stall_until(("h", m))
                d, A, B, lg = v(acc + 32 * rt + 16 * q, 16), a_(8 * k + 4 * q, 4), R(reg[("h", m)]), wd_tr_t[k]
            a.wait(vm=max(vm, need["vm"]), lg=lg)
            wd_queue()
            self.gaps.append(len(a.ins) - g0)
            C = d if (k or kind == "g") else 0
            a(f"v_mfma_f32_32x32x16_bf16 {d}, {A}, {B}, {C}")
            g0 = len(a.ins)
            if kind == "f" and q == 3:
                free_q.append(reg[("y", m)])
                free_q.sort(key=lambda x: (x[0] == "v", -x[1]))
            if n == fsteps[-1]:
                free_q.extend(("v", vW + 4 * i) for i in range(NSW))
            if kind == "d" and q == 1:
                free_q.append(reg[("h", m)])
            sim["T"] += o.get("mfd", 36) if kind == "d" else MF
            handoff(n, 0)
            handoff(n, 1)
            wd_read()
            serve(n)
            nw = 1
            if n + 1 < N and need["vm"] <= a.vm_done:
                k2, r2, s2, q2 = steps[n + 1]
                if k2 == "f" and wt.get(n + 1, 1 << 30) <= a.lg_done and tick.get(("y", 28 * r2 + s2), 1 << 30) <= a.vm_done:
                    nw = 0
                if k2 == "d" and wd_tr_t.get(s2, 1 << 30) <= a.lg_done and tick.get(("h", 28 * r2 + s2), 1 << 30) <= a.vm_done:
                    nw = 0
            room = lambda: GAP - nw - (len(a.ins) - g0)
            wread(n, LO, max(room(), 0))
            if room() > 0:
                emit(fill, min(room(), o.get("fpri", 2)))
            if room() > 0:
                emit(memq, min(room(), 2))
            if room() > 0:
                emit(wq2, min(room(), 2))
            if room() > 0:
                emit(fill, room())
            if room() > 0:
                wread(n, HI, room())
            if room() > 0:
                emit(memq, room())
        emit(fill, 999)
        assert not memq and not wq2 and not any(queues.values())
        self.stamp(18)
        self.model[18] = sim["T"]
        for t in red_write(1):
            a(t)
        a.wait_all(vm=False)
        a("s_barrier")
        for f in red_finish(1):
            f() if callable(f) else a(f)
        self.stamp(19)

    def p45_setup(self, vSTA, vPD, vFA):
        a = self.a
        self.w_dma_pattern(vPD, 8, 896)
        a(f"s_lshl_b32 {s(sT0)}, {s(sCB)}, 7")
        a(f"s_mul_i32 {s(sT1)}, {s(sW)}, {448 * 896}")
        a(f"s_add_u32 {s(sT4)}, {s(sT0)}, {s(sT1)}")
        a(f"s_sub_u32 {s(sT4)}, {s(sT4)}, {16 * 896}")
        a(f"v_add_u32 v0, {8 * 896 - 1024}, {v(vPD)}")
        a(f"s_mul_i32 {s(sTQ)}, {s(sW)}, {2 * TILE_B}")
        a(f"s_add_u32 {s(sTQ)}, {s(sTQ)}, {s(sGB)}")
        a(f"s_add_u32 {s(sTQ)}, {s(sTQ)}, {YO}")
        a(f"v_and_b32 {v(vSTA)}, 0x1f0, {v(vL16)}")
        a(f"v_lshrrev_b32 {v(vSTA)}, 1, {v(vSTA)}")
        a("v_mul_u32_u24 v8, 14336, v4")
        a(f"v_add_u32 {v(vSTA)}, {v(vSTA)}, v8")
        a(f"s_lshl_b32 {s(sT1)}, {s(sW)}, 9")
        a(f"s_add_u32 {s(sT1)}, {s(sT1)}, {s(sGB)}")
        a(f"s_add_u32 {s(sKVL)}, {s(sT1)}, {STO}")
        a(f"s_mov_b32 {s(sP1)}, 0x01000100")
        a(f"s_mov_b32 {s(sP1 + 1)}, 0x07060302")
        a(f"s_lshl_b32 {s(sHD)}, {s(sM)}, 12")
        a(f"s_add_u32 {s(sHD)}, {s(sHD)}, {AUGO}")
        a(f"s_mov_b32 {s(sT2)}, 0xffff")
        a(f"s_mul_i32 {s(sT3)}, {s(sW)}, {2 * HT_B}")
        a(f"s_add_u32 {s(sT3)}, {s(sT3)}, {s(sGB)}")
        a(f"s_lshl_b32 {s(sT1)}, {s(sM)}, 12")
        a(f"s_add_u32 {s(sT3)}, {s(sT3)}, {s(sT1)}")
        a(f"s_add_u32 {s(sT3)}, {s(sT3)}, {HO}")
        a(f"s_mul_i32 {s(sT6)}, {s(sRQ)}, {2 * HT_B}")
        a(f"s_mul_i32 {s(sT1)}, {s(sW)}, {28 * 1024}")
        a(f"s_add_u32 {s(sT6)}, {s(sT6)}, {s(sT1)}")
        a(f"s_add_u32 {s(sT6)}, {s(sT6)}, {s(sGB)}")
        a(f"s_add_u32 {s(sT6)}, {s(sT6)}, {HO}")
        a(f"v_min_u32 {v(vFA)}, 96, {v(vL16)}")
        a(f"s_mul_i32 {s(sT0)}, {s(sW)}, 112")
        a(f"s_lshl_b32 {s(sT1)}, {s(sRQ)}, 2")
        a(f"s_add_u32 {s(sT0)}, {s(sT0)}, {s(sT1)}")
        a(f"s_add_u32 {s(sT0)}, {s(sT0)}, {LFO + 3 * 512}")
        a(f"v_add_u32 {v(vFA)}, {s(sT0)}, {v(vFA)}")
        a(f"s_mul_i32 {s(sT0)}, {s(sRT)}, {TILE_B - 32}")
        a(f"s_sub_u32 {s(sXCC)}, {s(sXCC)}, {s(sT0)}")

    def ln2_stats(self, vST, vAUG, vR2):
        ops = []
        for rt in range(2):
            b = vST + 14 * rt
            for p in range(1, 7):
                ops += [f"v_add_f32 {v(b)}, {v(b)}, {v(b + 2 * p)}", f"v_add_f32 {v(b + 1)}, {v(b + 1)}, {v(b + 2 * p + 1)}"]
            ops += [f"v_mov_b32 {v(b + 2)}, {v(b)}", f"v_mov_b32 {v(b + 3)}, {v(b + 1)}",
                    f"v_permlane32_swap_b32 {v(b + 2)}, {v(b)}", f"v_permlane32_swap_b32 {v(b + 3)}, {v(b + 1)}",
                    f"v_add_f32 {v(b)}, {v(b)}, {v(b + 2)}", f"v_add_f32 {v(b + 1)}, {v(b + 1)}, {v(b + 3)}",
                    f"v_mul_f32 {v(b)}, {f2u(-1 / 448):#x}, {v(b)}",
                    f"v_mul_f32 {v(b + 1)}, {f2u(1 / 448):#x}, {v(b + 1)}",
                    f"v_fma_f32 {v(b + 1)}, -{v(b)}, {v(b)}, {v(b + 1)}",
                    f"v_max_f32 {v(b + 1)}, 0, {v(b + 1)}",
                    f"v_add_f32 {v(b + 1)}, {f2u(1e-5):#x}, {v(b + 1)}",
                    f"v_rcp_f32 {v(vR2 + rt)}, {v(b + 1)}",
                    f"v_sqrt_f32 {v(b + 1)}, {v(b + 1)}",
                    f"v_cvt_pk_bf16_f32 {v(b + 2)}, {v(b)}, {v(b + 1)}",
                    f"v_lshlrev_b32 {v(b + 3)}, 16, {v(b + 2)}",
                    f"v_and_b32 {v(b + 4)}, 0xffff0000, {v(b + 2)}",
                    f"v_sub_f32 {v(b + 3)}, {v(b)}, {v(b + 3)}",
                    f"v_sub_f32 {v(b + 4)}, {v(b + 1)}, {v(b + 4)}",
                    f"v_cvt_pk_bf16_f32 {v(b + 3)}, {v(b + 3)}, {v(b + 4)}",
                    f"v_perm_b32 {v(vAUG + 4 * rt)}, {v(b + 2)}, {v(b + 2)}, {s(sP1)}",
                    f"v_bfi_b32 {v(vAUG + 4 * rt + 1)}, {s(sT2)}, {v(b + 3)}, {v(b + 2)}",
                    f"v_perm_b32 {v(vAUG + 4 * rt + 2)}, {v(b + 3)}, {v(b + 2)}, {s(sP1 + 1)}",
                    f"v_mov_b32 {v(vAUG + 4 * rt + 3)}, 0"]
        return ops

    def helper_tail(self):
        a = self.a
        a("L_helper_tail:")
        a.vm_done, a.lg_done = a.vm_n, a.lg_n
        n_att = self.o.get("n_att", 14)
        a("s_barrier")
        for i in range(n_att // 2, 14):
            self.dma(15, SWG, sT5, LA + i * 4096, sWSRC, i * 32 * 3584)
            self.dma(6, SWU, sT5, LB + i * 4096, sWSRC, i * 32 * 3584)
        if self.o.get("wdt", 3) == 2:
            self.wd_first_touch()
        a(f"s_sub_u32 {s(sT4)}, {s(sM)}, 28")
        a(f"s_lshl3_add_u32 {s(sT4)}, {s(sT4)}, {s(sG)}")
        a(f"s_cmp_ge_u32 {s(sT4)}, 28")
        a("s_cbranch_scc1 L_no_uv")
        self.uv_job(sT4)
        self.stamp(11)
        a("L_no_uv:")
        if self.o.get("wdt", 3) == 3:
            self.wd_first_touch()
        if self.o.get("hl2", 0):
            a(f"s_sub_u32 {s(sT2)}, {s(sM)}, 28")
            a(f"s_lshl_b32 {s(sT2)}, {s(sT2)}, 2")
            a(f"s_add_u32 {s(sT2)}, {s(sT2)}, {s(sW)}")
            a(f"v_lshlrev_b32 v8, 3, {v(vL16)}")
            row0 = 16 * self.o.get("n_att", 14)
            nins = -(-(448 - row0) * 28 // (64 * 16))
            a(f"s_lshl_b32 {s(sT0)}, {s(sT2)}, 13")
            a(f"s_add_u32 {s(sT0)}, {s(sT0)}, {row0 * 3584}")
            for i in range(nins if self.o.get("hl2_gu", 1) else 0):
                self.touch(8, SWG, sT0)
                self.touch(8, SWU, sT0)
                a(f"s_add_u32 {s(sT0)}, {s(sT0)}, {16 * 8192}")
                a("s_waitcnt vmcnt(2)")
            a(f"s_and_b32 {s(sT0)}, {s(sT2)}, 3")
            a(f"s_mul_i32 {s(sT0)}, {s(sT0)}, {448 * 896}")
            a(f"s_lshr_b32 {s(sT1)}, {s(sT2)}, 2")
            a(f"s_mul_i32 {s(sT1)}, {s(sT1)}, {8 * 896}")
            a(f"s_add_u32 {s(sT0)}, {s(sT0)}, {s(sT1)}")
            a("s_mov_b32 exec_hi, 0x00ffffff")
            for i in range(14 if self.o.get("hl2_d", 1) else 0):
                self.touch(8, SWD, sT0)
                a(f"s_add_u32 {s(sT0)}, {s(sT0)}, {32 * 896}")
                a("s_waitcnt vmcnt(2)")
            a("s_mov_b64 exec, -1")
        if self.o.get("wb", 0) and self.stop is None:
            a(f"s_cmp_lg_u32 {s(sM)}, 28")
            a("s_cbranch_scc1 L_end")
            a(f"s_cmp_lg_u32 {s(sW)}, 0")
            a("s_cbranch_scc1 L_end")
            for ph in (2, 3, 4):
                if self.o["wb"] >> (ph - 2) & 1:
                    self.poll_local(ph, 28, 8)
                    a("buffer_wbl2 sc1")
                    a.wait_all()
        self.finish()

    def body(self, slow):
        self.slow = slow
        a = self.a
        if slow:
            a("L_p1_slow:")
        a.vm_done, a.lg_done = a.vm_n, a.lg_n
        self.p1_gemm()
        self.p2()
        if self.stop == 2:
            return self.finish()
        self.p3()
        if self.stop == 3:
            return self.finish()
        self.p45()
        self.finish()

    def flush_tail(self):
        for blk in self.tail:
            for t in blk:
                self.a(t)
        self.tail = []

    def build(self):
        a = self.a
        self.entry()
        self.p1_front()
        self.body(False)
        self.in_helper = True
        self.helper()
        self.helper_tail()
        self.in_helper = False
        self.flush_tail()
        a("L_abort:")
        a("s_mov_b64 exec, -1")
        a("L_end:")
        if self.prof:
            a(f"s_lshl_b32 {s(sT0)}, s2, 2")
            a(f"s_add_u32 {s(sT0)}, {s(sT0)}, {s(sW)}")
            a(f"s_lshl_b32 {s(sT0)}, {s(sT0)}, 8")
            a(f"s_add_u32 {s(sT0)}, {s(sT0)}, {PROF}")
            a("s_waitcnt vmcnt(0)")
            self.stamp(20)
            a(f"v_lshrrev_b32 v8, 2, {v(vL16)}")
            a(f"buffer_store_dword {v(vSTAMP)}, v8, {srd(SWS)}, {s(sT0)} offen")
        if self.o.get("diag_cycles"):
            a(f"s_mov_b32 {s(sT0)}, {self.o['diag_cycles'] // 1024}")
            a("L_diag:")
            for i in range(256):
                a(f"v_fma_f32 v{8 + i % 16}, v8, v9, v10")
            a(f"s_sub_u32 {s(sT0)}, {s(sT0)}, 1")
            a(f"s_cmp_lg_u32 {s(sT0)}, 0")
            a("s_cbranch_scc1 L_diag")
        if self.o.get("diag_wall"):
            a("s_waitcnt vmcnt(0)")
            a(f"v_readlane_b32 s101, {v(vSTAMP)}, 0")
            a("L_diag:")
            a(f"s_memrealtime {s(sST, 2)}")
            a("s_waitcnt lgkmcnt(0)")
            a(f"s_sub_u32 {s(sT0)}, {s(sST)}, s101")
            a(f"s_cmp_lt_u32 {s(sT0)}, {self.o['diag_wall']}")
            a("s_cbranch_scc1 L_diag")
        a("L_exit:")
        a("s_endpgm")
        a("L_fast_end:")
        self.body(True)
        self.flush_tail()
        a("s_endpgm")
        return a.text()


HEADER = """; Fused adaLN block: x + ga*Attn(LN(x)*(1+ca)+sa), then + gb*ReGLU-FFN(LN(.)*(1+cb)+sb); one persistent launch.
; per-launch value derived from ws[0]. Each group checks at run time (HW_REG_XCC_ID) that its members share a die;
; @launch grid=(256,1,1) block=(256,1,1) lds={lds}
.amdgcn_target "amdgcn-amd-amdhsa--gfx950"
.text
.globl {k}
.p2align 8
.type {k},@function
{k}:
"""
FOOTER = """
.section .rodata,"a"
.p2align 6
.amdhsa_kernel {k}
  .amdhsa_next_free_vgpr 512
  .amdhsa_next_free_sgpr 102
  .amdhsa_accum_offset 256
  .amdhsa_group_segment_fixed_size 0
  .amdhsa_kernarg_size 96
  .amdhsa_user_sgpr_count 2
  .amdhsa_user_sgpr_kernarg_segment_ptr 1
  .amdhsa_system_sgpr_workgroup_id_x 1
  .amdhsa_float_denorm_mode_32 3
.end_amdhsa_kernel
"""


def generate(prof=False, stop=None, opts=None):
    g = Gen(prof, stop, opts)
    body = g.build()
    return HEADER.format(k=KNAME, lds=LDS_BYTES) + body + FOOTER.format(k=KNAME), g


if __name__ == "__main__":
    out = sys.argv[1] if len(sys.argv) > 1 else f"cdna_kernels/{NAME}.s"
    opts = dict(kv.split("=") for kv in sys.argv[2:])
    opts = {k: int(x) for k, x in opts.items()}
    text, g = generate(prof=bool(opts.pop("prof", 0)), stop=opts.pop("stop", None), opts=opts)
    open(out, "w").write(text)
    print("wrote", out, len(text), "bytes;", len(g.a.ins), "lines;", g.a.nops, "hazard nops; model", getattr(g, "model", None))
    import collections
    print("gap histogram", sorted(collections.Counter(getattr(g, "gaps", [])).items()))
```

```python
import sys
from asmlib import Asm, v, a_, s

NAME = "adaLN_cond__sliding_block__glu_gated_reglu__prompt"
KNAME = NAME + "_kernel"

TILE_B = 28672
HT_B = 114688
QO, KO, VO, OO, YO, HO, STO, LFO = 0, 0x38000, 0x70000, 0, 0xA8000, 0x100000, 0xE0000, 0xE7000
XCCO, MODO, AFO, RFO, AUGO, PROF = 0x400, 0x1000, 0x4000, 0x8000, 0x20000, 0x100000
WS_BYTES = 0x1200000
OOB = 0x7F000000
SPIN_MAX = 1 << 18

LA, LB, LC, LD = 0, 57344, 114688, 159744
LDS_BYTES = 163840
L_KV = LC
L_XB = LC
L_X2 = LC + 16384
L_AUG = LC + 40960
L_T2 = LD
L_F = LC

SX, SWQKV, SWO, SWG, SWU, SWD, SOUT, SWS, SWMOD, SC = 4, 8, 12, 16, 20, 24, 28, 32, 36, 40
sG, sM, sW, sTAG, sGB, sRQ, sCB, sXCC, sSPIN = 44, 45, 46, 47, 48, 49, 50, 51, 52
sT0, sT1, sT2, sT3, sT4, sT5, sT6, sT7 = 53, 54, 55, 56, 57, 58, 59, 60
sRT, sCH, sTILE = 61, 62, 63
sHD, sB, sWS0, sMISS, sTQ, sKVL, sWSRC, sWO = 36, 37, 38, 39, 40, 41, 42, 43
sMASK = 64
sST = 96
sP0, sP1 = 98, 100

vL16, vSTAMP = 1, 7
vZ = 32
vX2, vGBP = 240, 248

QSCALE = 28 ** -0.5 * 1.4426950408889634


def f2u(x):
    import struct
    return struct.unpack("<I", struct.pack("<f", x))[0]


def srd(i):
    return s(i, 4)


class Gen:
    def __init__(self, prof=False, stop=None, opts=None):
        self.a = Asm()
        self.prof = prof
        self.stop = stop
        self.o = opts or {}
        self.tail = []
        self.slow = False

    def stamp(self, i):
        if self.o.get("diag_wall") and self.o.get("diag_at") == i and not getattr(self, "in_helper", False):
            self.a(f"s_memrealtime {s(sST, 2)}")
            self.a.wait_all(vm=False)
            self.a(f"v_writelane_b32 {v(vSTAMP)}, {s(sST)}, 0")
        if not self.prof:
            return
        only = self.o.get("stamps")
        if only is not None and i != 20 and not (only >> i) & 1:
            return
        a = self.a
        if i == 20:
            a(f"s_memrealtime {s(sST, 2)}")
            a.wait_all(vm=False)
            a(f"v_writelane_b32 {v(vSTAMP)}, {s(sST)}, {i}")
        a(f"s_mem{'real' if self.o.get('rt') else ''}time {s(sST, 2)}")
        a.wait_all(vm=False)
        a(f"v_writelane_b32 {v(vSTAMP)}, {s(sST)}, {32 + i}")

    def dma(self, vaddr, sr, lds_base, lds_off, src_base, src_off, sc1=False, imm=0):
        a = self.a
        lo = lds_off - imm
        if lds_base is None:
            a(f"s_mov_b32 m0, {lo}")
        else:
            a(f"s_add_u32 m0, {s(lds_base)}, {lo}" if lo >= 0 else f"s_sub_u32 m0, {s(lds_base)}, {-lo}")
        if src_off:
            a(f"s_add_u32 {s(sT7)}, {s(src_base)}, {src_off}")
            so = sT7
        else:
            so = src_base
        return a.vm(f"buffer_load_dwordx4 {v(vaddr)}, {srd(sr)}, {s(so)} offen"
                    + (f" offset:{imm}" if imm else "") + (" sc1" if sc1 else "") + " lds")

    def st(self, what=None):
        return " sc1" if self.slow or self.o.get("sc_" + str(what), what == "h") else ""

    def poll(self, loads, tagregs, exec_lo=None, exec_hi=None, preloaded=False):
        a = self.a
        L = a.label("poll")
        if exec_lo is not None:
            a(f"s_mov_b32 exec_lo, {exec_lo:#x}")
        if exec_hi is not None:
            a(f"s_mov_b32 exec_hi, {exec_hi:#x}")
        a(f"s_mov_b32 {s(sSPIN)}, 0")
        if not preloaded:
            for t in loads:
                a(t)
        a(f"{L}:")
        a.wait_all(lg=False)
        t0, rest = tagregs[0], list(tagregs[1:])
        if len(tagregs) > 2:
            acc = 255
            a(f"v_xor_b32 {v(acc)}, {s(sTAG)}, {v(t0)}")
            for r in rest:
                a(f"v_bitop3_b32 {v(acc)}, {v(acc)}, {v(r)}, {s(sTAG)} bitop3:0xf6")
            a(f"v_cmp_ne_u32 vcc, 0, {v(acc)}")
        else:
            a(f"v_cmp_ne_u32 vcc, {s(sTAG)}, {v(t0)}")
            for r in rest:
                a(f"v_cmp_ne_u32 {s(sP0, 2)}, {s(sTAG)}, {v(r)}")
                a(f"s_or_b64 vcc, vcc, {s(sP0, 2)}")
        a(f"s_cbranch_vccnz {L}_again")
        if exec_lo is not None or exec_hi is not None:
            a("s_mov_b64 exec, -1")
        self.tail.append([f"{L}_again:"] + list(loads) +
                         [f"s_add_u32 {s(sSPIN)}, {s(sSPIN)}, 1", f"s_cmp_gt_u32 {s(sSPIN)}, {SPIN_MAX}",
                          f"s_cbranch_scc0 {L}", "s_branch L_abort"])

    def check_tags(self, loads, tagregs):
        a = self.a
        L = a.label("chk")
        chk = [f"v_xor_b32 v255, {s(sTAG)}, {v(tagregs[0])}"]
        chk += [f"v_bitop3_b32 v255, v255, {v(r)}, {s(sTAG)} bitop3:0xf6" for r in tagregs[1:]]
        chk += ["v_cmp_ne_u32 vcc, 0, v255"]
        for t in chk:
            a(t)
        a(f"s_cbranch_vccnz {L}")
        a(f"{L}_back:")
        self.tail.append([f"{L}:", f"s_mov_b32 {s(sSPIN)}, 0", f"{L}_spin:"] + list(loads) +
                         [f"s_add_u32 {s(sSPIN)}, {s(sSPIN)}, 1", f"s_cmp_gt_u32 {s(sSPIN)}, {SPIN_MAX}",
                          "s_cbranch_scc1 L_abort", "s_waitcnt vmcnt(0)"] + chk +
                         [f"s_cbranch_vccnz {L}_spin", f"s_branch {L}_back"])

    def local_flag(self, phase, vt, ticket=None, temps=(sT0, sT1)):
        a = self.a
        t0 = temps[0]
        a(f"s_lshl2_add_u32 {s(t0)}, {s(sM)}, {s(sW)}")
        a(f"s_lshl2_add_u32 {s(t0)}, {s(t0)}, {LFO + phase * 512}")
        a(f"v_mov_b32 {v(vt)}, {s(t0)}")
        a(f"v_mov_b32 {v(vt + 1)}, {s(sTAG)}")
        if ticket is None:
            a.wait_all(lg=False)
        else:
            a.wait(vm=ticket)
        a("s_mov_b64 exec, 1")
        a(f"buffer_store_dword {v(vt + 1)}, {v(vt)}, {srd(SWS)}, {s(sGB)} offen{self.st('f')}")
        a("s_mov_b64 exec, -1")

    def poll_local(self, phase, nprod, vt):
        a = self.a
        a(f"v_lshrrev_b32 {v(vt)}, 1, {v(vL16)}")
        a(f"s_add_u32 {s(sT0)}, {s(sGB)}, {LFO + phase * 512}")
        self.poll([f"buffer_load_dwordx2 {v(vt + 2, 2)}, {v(vt)}, {srd(SWS)}, {s(sT0)} offen sc1"], [vt + 2, vt + 3],
                  exec_hi=None if nprod == 32 else 0x00FFFFFF)

    def tr_pattern(self, vd, vt, perm, ct_sgpr=None, ct_imm=0):
        a = self.a
        a(f"v_lshrrev_b32 {v(vt)}, 4, {v(vL16)}")
        a(f"v_bfe_u32 {v(vt + 1)}, {v(vt)}, 2, 2")
        a(f"v_lshrrev_b32 {v(vt + 2)}, 5, {v(vt)}")
        a(f"v_lshl_add_u32 {v(vt + 2)}, {v(vt + 2)}, 3, {v(vt + 1)}")
        a(f"v_lshlrev_b32 {v(vd)}, 7, {v(vt + 2)}")
        a(f"v_lshrrev_b32 {v(vt + 1)}, 1, {v(vt + 1)}")
        a(f"v_lshlrev_b32 {v(vt + 1)}, 6, {v(vt + 1)}")
        if perm:
            a(f"v_and_b32 {v(vt + 2)}, 1, {v(vt)}")
            a(f"v_lshlrev_b32 {v(vt + 2)}, 4, {v(vt + 2)}")
            a(f"v_xor_b32 {v(vt + 1)}, {v(vt + 1)}, {v(vt + 2)}")
            a(f"v_and_b32 {v(vt + 2)}, 2, {v(vt)}")
            a(f"v_lshlrev_b32 {v(vt + 2)}, 2, {v(vt + 2)}")
        else:
            a(f"v_and_b32 {v(vt + 2)}, 3, {v(vt)}")
            a(f"v_lshlrev_b32 {v(vt + 2)}, 3, {v(vt + 2)}")
        a(f"v_xor_b32 {v(vt + 1)}, {v(vt + 1)}, {v(vt + 2)}")
        a(f"v_and_b32 {v(vt + 2)}, 16, {v(vt)}")
        a(f"v_lshlrev_b32 {v(vt + 2)}, 1, {v(vt + 2)}")
        a(f"v_xor_b32 {v(vt + 1)}, {v(vt + 1)}, {v(vt + 2)}")
        if ct_sgpr is not None:
            a(f"s_lshl_b32 {s(sT0)}, {s(ct_sgpr)}, 6")
            a(f"v_xor_b32 {v(vt + 1)}, {s(sT0)}, {v(vt + 1)}")
        elif ct_imm:
            a(f"v_xor_b32 {v(vt + 1)}, {ct_imm * 64}, {v(vt + 1)}")
        a(f"v_add_u32 {v(vd)}, {v(vd)}, {v(vt + 1)}")

    def w_dma_pattern(self, vd, vt, stride, up=False):
        a = self.a
        a(f"v_lshrrev_b32 {v(vt)}, 7, {v(vL16)}")
        a(f"v_mul_u32_u24 {v(vd)}, {stride}, {v(vt)}")
        a(f"v_and_b32 {v(vt)}, 2, {v(vt)}")
        a(f"v_lshlrev_b32 {v(vt)}, 5, {v(vt)}")
        a(f"v_and_b32 {v(vt + 1)}, 0x70, {v(vL16)}")
        a(f"v_xor_b32 {v(vt)}, {v(vt)}, {v(vt + 1)}")
        if up:
            a(f"v_xor_b32 {v(vt)}, 32, {v(vt)}")
        a(f"v_add_u32 {v(vd)}, {v(vd)}, {v(vt)}")

    def tr2(self, dst, vaddr, off):
        f = v if dst[0] == "v" else a_
        self.a.lg(f"ds_read_b64_tr_b16 {f(dst[1], 2)}, {v(vaddr)} offset:{off}")
        return self.a.lg(f"ds_read_b64_tr_b16 {f(dst[1] + 2, 2)}, {v(vaddr)} offset:{off + 512}")

    def both_halves(self, vx, vt, op):
        a = self.a
        a(f"v_mov_b32 {v(vt)}, {v(vx)}")
        a(f"v_permlane32_swap_b32 {v(vt)}, {v(vx)}")
        a(f"{op} {v(vx)}, {v(vx)}, {v(vt)}")

    def finish(self):
        self.a("s_branch L_end")

    def entry(self):
        a = self.a
        KA = 64
        self.ptr = {SX: 0, SWQKV: 1, SWO: 2, SWG: 4, SWU: 5, SWD: 6, SC: 7, SWMOD: 8, SOUT: 9, SWS: 11}
        self.size = {SX: 2048 * 896, SWQKV: 448 * 2688, SWO: 448 * 896, SWG: 448 * 3584, SWU: 448 * 3584,
                     SWD: 1792 * 896, SOUT: 2048 * 896, SWS: WS_BYTES, SWMOD: 448 * 5376, SC: 896}
        a(f"s_load_dwordx16 {s(KA, 16)}, s[0:1], 0")
        a(f"s_load_dwordx8 {s(KA + 16, 8)}, s[0:1], 64")
        a("s_lshr_b32 s3, s2, 8")
        a("s_cbranch_scc1 L_exit")
        if self.prof or self.o.get("diag_wall"):
            a(f"v_mov_b32 {v(vSTAMP)}, 0")
            a(f"s_memrealtime {s(sST, 2)}")
        a("v_lshrrev_b32 v2, 6, v0")
        a("v_and_b32 v3, 63, v0")
        a(f"v_readfirstlane_b32 {s(sW)}, v2")
        a(f"s_getpc_b64 {s(sP0, 2)}")
        a("L_pc:")
        a(f"s_lshr_b32 {s(sM)}, s2, 3")
        a(f"s_lshl2_add_u32 {s(sT0)}, {s(sM)}, {s(sW)}")
        a(f"s_lshl_b32 {s(sT0)}, {s(sT0)}, 9")
        a(f"v_lshl_add_u32 v4, v3, 7, {s(sT0)}")
        a("v_min_u32 v4, L_fast_end-L_pc-4, v4")
        a("s_mov_b64 exec, 15")
        a.vm(f"global_load_dword {a_(255)}, v4, {s(sP0, 2)}")
        a("s_mov_b64 exec, -1")
        a(f"v_lshlrev_b32 {v(vL16)}, 4, v3")
        a(f"s_and_b32 {s(sG)}, s2, 7")
        a(f"s_mul_i32 {s(sRQ)}, {s(sM)}, 37")
        a(f"s_lshr_b32 {s(sRQ)}, {s(sRQ)}, 8")
        a(f"s_cmp_ge_u32 {s(sM)}, 28")
        a("s_cbranch_scc1 L_helper0")

    def make_srd(self, *rs):
        for r in rs:
            self.a(f"s_mov_b64 {s(r, 2)}, {s(64 + 2 * self.ptr[r], 2)}")
            self.a(f"s_mov_b32 {s(r + 2)}, {self.size[r]:#x}")
            self.a(f"s_mov_b32 {s(r + 3)}, 0x20000")

    def first_stamp(self):
        a = self.a
        if self.prof:
            a(f"v_writelane_b32 {v(vSTAMP)}, {s(sST)}, 0")
            a(f"s_mem{'real' if self.o.get('rt') else ''}time {s(sST, 2)}")
            a("s_waitcnt lgkmcnt(0)")
            a(f"v_writelane_b32 {v(vSTAMP)}, {s(sST)}, 32")
        if self.o.get("diag_wall"):
            a(f"v_writelane_b32 {v(vSTAMP)}, {s(sST)}, 0")

    def common_setup(self, done):
        a = self.a
        self.make_srd(*[r for r in (SWS, SX, SWQKV, SWO, SWG, SWU, SWD, SOUT) if r not in done])
        a(f"s_load_dword {s(sTAG)}, {s(SWS, 2)}, 0")
        a(f"s_getreg_b32 {s(sXCC)}, hwreg(HW_REG_XCC_ID, 0, 4)")
        a(f"s_add_u32 {s(sGB)}, {s(sG)}, 1")
        a(f"s_lshl_b32 {s(sGB)}, {s(sGB)}, 21")
        a(f"s_mul_i32 {s(sT0)}, {s(sRQ)}, 7")
        a(f"s_sub_u32 {s(sCB)}, {s(sM)}, {s(sT0)}")
        a(f"s_lshr_b32 {s(sRT)}, {s(sW)}, 1")
        a(f"s_and_b32 {s(sCH)}, {s(sW)}, 1")
        a(f"s_lshl1_add_u32 {s(sTILE)}, {s(sRQ)}, {s(sRT)}")
        if self.o.get("tlb", 0):
            a(f"s_sub_u32 {s(sT0)}, {s(sGB)}, 0x200000")
            a(f"s_cmp_eq_u32 {s(sW)}, 3")
            a("s_cselect_b64 exec, 1, 0")
            for r in (SWO, SWG, SWU, SWD, SOUT):
                a(f"buffer_load_dword {a_(255)}, {v(vL16)}, {srd(r)}, 0 offen")
            a(f"buffer_load_dword {a_(255)}, {v(vL16)}, {srd(SWS)}, {s(sGB)} offen")
            a(f"buffer_load_dword {a_(255)}, {v(vL16)}, {srd(SWS)}, {s(sT0)} offen")
            a("s_mov_b64 exec, -1")

    def warm0(self):
        a = self.a
        a(f"s_lshl2_add_u32 s3, s2, {s(sW)}")
        a("v_lshlrev_b32 v4, 7, v3")
        a(f"s_lshr_b32 {s(sT3)}, s3, 1")
        a(f"s_and_b32 {s(sT1)}, s3, 1")
        a(f"s_mul_i32 {s(sT1)}, {s(sT1)}, 896")
        a(f"s_mul_i32 {s(sT0)}, {s(sT3)}, 5376")
        a(f"s_add_u32 {s(sT0)}, {s(sT0)}, {s(sT1)}")
        a(f"s_mul_i32 {s(sT3)}, {s(sT3)}, 2688")
        a(f"s_add_u32 {s(sT1)}, {s(sT1)}, {s(sT3)}")
        a(f"s_and_b32 {s(sT3)}, s3, 511")
        a(f"s_lshl_b32 {s(sT3)}, {s(sT3)}, 7")
        a("s_mov_b64 exec, 0x7f")
        if self.o.get("warm0", 1) & 1:
            a(f"buffer_load_dword {a_(255)}, v4, {srd(SWMOD)}, {s(sT0)} offen")
        a(f"buffer_load_dword {a_(255)}, v4, {srd(SWQKV)}, {s(sT1)} offen offset:896")
        a("s_mov_b64 exec, 1")
        a(f"buffer_load_dword {a_(255)}, v4, {srd(SWS)}, {s(sT3)} offen")
        a("s_mov_b64 exec, -1")

    def touch(self, vaddr, sr, soff, lanes=64):
        a = self.a
        if lanes < 64:
            a(f"s_mov_b64 exec, {(1 << lanes) - 1:#x}")
        t = a.vm(f"buffer_load_dword {a_(255)}, {v(vaddr)}, {srd(sr)}, {s(soff)} offen")
        if lanes < 64:
            a("s_mov_b64 exec, -1")
        return t

    def make_tag_and_publish_xcc(self, vt):
        a = self.a
        a.wait_all(vm=False)
        a(f"s_mul_i32 {s(sTAG)}, {s(sTAG)}, 1664525")
        a(f"s_add_u32 {s(sTAG)}, {s(sTAG)}, 1013904223")
        a(f"s_lshl_b32 {s(sT0)}, {s(sG)}, 8")
        a(f"s_lshl_b32 {s(sT1)}, {s(sM)}, 3")
        a(f"s_add_u32 {s(sT0)}, {s(sT0)}, {s(sT1)}")
        a(f"v_mov_b32 {v(vt)}, {s(sXCC)}")
        a(f"v_mov_b32 {v(vt + 1)}, {s(sTAG)}")
        a(f"v_mov_b32 {v(vt + 2)}, {XCCO}")
        a(f"s_cmp_eq_u32 {s(sW)}, 0")
        a("s_cselect_b64 exec, 1, 0")
        a.vm(f"buffer_store_dwordx2 {v(vt, 2)}, {v(vt + 2)}, {srd(SWS)}, {s(sT0)} offen sc1")
        a("s_mov_b64 exec, -1")

    def xcc_load(self, vaddr, vd):
        a = self.a
        a(f"v_bfe_u32 {v(vaddr)}, {v(vL16)}, 1, 8")
        a(f"s_lshl_b32 {s(sT7)}, {s(sG)}, 8")
        a(f"v_add_u32 {v(vaddr)}, {s(sT7)}, {v(vaddr)}")
        return f"buffer_load_dwordx2 {v(vd, 2)}, {v(vaddr)}, {srd(SWS)}, 0 offen offset:{XCCO} sc1"

    def choose_mode(self, vd, slow_label):
        a = self.a
        a(f"v_cmp_ne_u32 vcc, {s(sXCC)}, {v(vd)}")
        if self.o.get("force_slow"):
            a(f"s_branch {slow_label}")
        else:
            a(f"s_cbranch_vccnz {slow_label}")

    def p1_front(self):
        a = self.a
        vPW, vRAW, vS, vQ2 = 6, 160, 224, 240
        a(f"v_mov_b32 v5, {OOB}")
        a("v_cmp_gt_u32 vcc, 56, v3")
        a(f"s_lshl2_add_u32 {s(sT2)}, {s(sG)}, {s(sRQ)}")
        a(f"s_lshl2_add_u32 {s(sT2)}, {s(sT2)}, {s(sW)}")
        a(f"s_mul_i32 {s(sT2)}, {s(sT2)}, {16 * 896}")
        a(f"v_cndmask_b32 v5, v5, {v(vL16)}, vcc")
        a(f"s_mul_i32 {s(sT0)}, {s(sRQ)}, 7")
        a(f"s_sub_u32 {s(sCB)}, {s(sM)}, {s(sT0)}")
        a(f"s_lshl_b32 {s(sT0)}, {s(sCB)}, 7")
        a("v_mul_u32_u24 v4, 896, v3")
        a(f"s_add_u32 {s(sT0)}, {s(sT0)}, {s(sT2)}")
        a("s_waitcnt lgkmcnt(0)")
        self.first_stamp()
        self.make_srd(SX)
        if self.o.get("xt", 1):
            a("s_mov_b64 exec, 0xffff")
            a(f"buffer_load_dword {a_(255)}, v4, {srd(SX)}, {s(sT0)} offen")
            a("s_mov_b64 exec, -1")
        tx = []

        def ldx():
            r = len(tx)
            if r < 16:
                if r and r % 4 == 0:
                    a(f"s_add_u32 {s(sT2)}, {s(sT2)}, {4 * 896}")
                tx.append(a.vm(f"buffer_load_dwordx4 {v(vRAW + 4 * r, 4)}, v5, {srd(SX)}, {s(sT2)} offen offset:{(r % 4) * 896}"))

        xf = self.o.get("x_first", 8)
        for r in range(self.o.get("x_pre", 4)):
            ldx()
        self.make_srd(SWMOD, SWQKV, SWS)
        if self.o.get("warm0", 1):
            self.warm0()
        while len(tx) < xf:
            ldx()
        self.stamp(28)
        a("s_branch L_front")
        self.helper_first_loads()
        a("L_front:")
        self.common_setup((SX, SWQKV, SWS))
        self.w_dma_pattern(vPW, 8, 2688)
        a(f"s_mul_i32 {s(sT0)}, {s(sW)}, {8 * 2688}")
        a(f"s_lshl_b32 {s(sT1)}, {s(sCB)}, 7")
        a(f"s_add_u32 {s(sT4)}, {s(sT0)}, {s(sT1)}")
        a(f"s_lshl_b32 {s(sT5)}, {s(sW)}, 10")
        self.tr_pattern(2, 8, True, ct_sgpr=sCH)
        self.tr_pattern(4, 8, False, ct_sgpr=sCH)
        a(f"v_add_u32 v3, {LC}, v4")
        a(f"v_add_u32 v2, {LB}, v2")
        self.w1_prepare()
        a(f"s_mul_i32 {s(sT0)}, {s(sRT)}, {TILE_B}")
        a(f"s_lshl_b32 {s(sT1)}, {s(sCH)}, 8")
        a(f"s_add_u32 {s(sT1)}, {s(sT1)}, {s(sT0)}")
        a(f"v_lshlrev_b32 v16, 5, {v(vL16)}")
        a(f"v_and_b32 v12, 0x70, {v(vL16)}")
        a(f"v_add3_u32 v16, v16, v12, {s(sT1)}")
        a(f"v_cmp_gt_u32 vcc, 896, {v(vL16)}")
        a("v_mov_b32 v12, 0x100000")
        a("v_cndmask_b32 v16, v12, v16, vcc")
        for r in range(1, 8):
            a(f"v_xor_b32 {v(16 + r)}, {16 * r}, v16")
        a(f"v_lshrrev_b32 v12, 9, {v(vL16)}")
        a("v_lshlrev_b32 v12, 4, v12")
        a(f"v_xor_b32 v12, v12, {v(vL16)}")
        a(f"v_add_u32 v8, {s(sT0)}, v12")
        for q in range(1, 4):
            a(f"v_xor_b32 {v(8 + q)}, {32 * q}, v8")
        a(f"v_min_u32 v30, 880, {v(vL16)}")
        a("v_lshlrev_b32 v30, 1, v30")
        self.xl = self.xcc_load(15, 12)
        wq = [(sT5, LA + i * 4096, sT4, 1792 + (12 + i) * 32 * 2688) for i in range(2)]
        for i in range(14):
            wq.append((sT5, LB + i * 4096, sT4, 896 + i * 32 * 2688))
            if i < 12:
                wq.append((sT5, LC + i * 4096, sT4, 1792 + i * 32 * 2688))
        n_early = self.o.get("n_early", 28)
        wt = []

        def wdma(n=1):
            for _ in range(n):
                if len(tx) < 16:
                    ldx()
                elif wq and (len(wt) < n_early or n == 99):
                    lb, lo, sb, so = wq.pop(0)
                    wt.append(self.dma(vPW, SWQKV, lb, lo, sb, so))

        a("s_mov_b32 s36, 0xffff0000")
        a("s_mov_b32 s37, 0x3f803f80")
        self.stamp(29)
        for r in range(16):
            a.wait(vm=tx[r])
            if r == 0:
                self.stamp(1)
            if r == self.o.get("tag_r", 6):
                self.make_tag_and_publish_xcc(12)
            if r == self.o.get("mq_r", 9) and self.o.get("mq", 1):
                a("s_mov_b64 exec, 15")
                a(f"buffer_load_dword {a_(255)}, v29, {srd(SWQKV)}, 0 offen")
                a(f"buffer_load_dword {a_(255)}, v28, {srd(SWO)}, 0 offen")
                R = self.o.get("pf_rows", 0)
                if R and self.o.get("pf_mall", 1):
                    a(f"s_mov_b64 exec, {(1 << (R // 32)) - 1}")
                    a(f"buffer_load_dword {a_(255)}, v253, {srd(SWG)}, 0 offen")
                    a(f"buffer_load_dword {a_(255)}, v253, {srd(SWU)}, 0 offen")
                a("s_mov_b64 exec, -1")
            raw, z = vRAW + 4 * r, vZ + 8 * r
            for j in range(4):
                a(f"v_dot2_f32_bf16 {v(vS + r)}, {v(raw + j)}, s37, {v(vS + r) if j else 0}")
                a(f"v_dot2_f32_bf16 {v(vQ2 + r)}, {v(raw + j)}, {v(raw + j)}, {v(vQ2 + r) if j else 0}")
                a(f"v_lshlrev_b32 {v(z + 2 * j)}, 16, {v(raw + j)}")
                a(f"v_and_b32 {v(z + 2 * j + 1)}, s36, {v(raw + j)}")
                if j == 0 or (j == 2 and r < self.o.get("x_fast", 6)):
                    wdma(1)
        self.stamp(30)
        for i in range(16):
            a(f"v_permlane32_swap_b32 {v(vS + i)}, {v(vQ2 + i)}")
        wdma(1)
        for i in range(16):
            a(f"v_add_f32 {v(vS + i)}, {v(vS + i)}, {v(vQ2 + i)}")
        wdma(1)
        for i in range(8):
            a(f"v_permlane16_swap_b32 {v(vS + i)}, {v(vS + 8 + i)}")
        for i in range(8):
            a(f"v_add_f32 {v(vS + i)}, {v(vS + i)}, {v(vS + 8 + i)}")
        wdma(1)
        for sh in (8, 4, 2, 1):
            for i in range(8):
                a(f"v_add_f32_dpp {v(vS + i)}, {v(vS + i)}, {v(vS + i)} row_ror:{sh} row_mask:0xf bank_mask:0xf")
            if sh in (4, 1):
                wdma(1)
        a(f"s_mov_b32 {s(sP0)}, 0x02020202")
        a(f"s_mov_b32 {s(sP0 + 1)}, {s(sP0)}")
        for j in range(1, 8):
            a(f"v_cndmask_b32 {v(vS)}, {v(vS)}, {v(vS + j)}, {s(sP0, 2)}")
            a(f"s_lshl_b64 {s(sP0, 2)}, {s(sP0, 2)}, 1")
        wdma(1)
        a(f"v_mov_b32 v12, {v(vS)}")
        a(f"v_permlane32_swap_b32 v12, {v(vS)}")
        a(f"v_mul_f32 v12, {f2u(1 / 448):#x}, v12")
        a(f"v_mul_f32 v13, {f2u(1 / 448):#x}, {v(vS)}")
        a("v_fma_f32 v13, -v12, v12, v13")
        a("v_max_f32 v13, 0, v13")
        a(f"v_add_f32 v13, {f2u(1e-5):#x}, v13")
        a("v_rsq_f32 v13, v13")
        a("v_mul_f32 v12, v12, v13")
        a("v_sub_f32 v12, 0, v12")
        wdma(1)
        for r in range(16):
            ln = 16 * (r >> 3) + (r & 7)
            a(f"v_readlane_b32 {s(sMASK + 2 * r)}, v13, {ln}")
            a(f"v_readlane_b32 {s(sMASK + 2 * r + 1)}, v12, {ln}")
            if r % 8 == 7:
                wdma(1)
        g0 = vRAW
        a(f"s_mov_b32 {s(sT0)}, {MODO}")
        loads = [f"buffer_load_dwordx4 {v(g0 + 4 * i, 4)}, v30, {srd(SWS)}, {s(sT0)} offen offset:{(i >> 1) * 1792 + (i & 1) * 16} sc1"
                 for i in range(4)]
        tags = [g0 + 2 * i + 1 for i in range(8)]
        wdma(28)
        pr = self.o.get("poll_r", 0)
        a.wait(vm=wt[1])
        a("s_barrier")
        for k in range(4):
            self.tr2(("a", 4 * k), 4, k * 2048)
        for r in range(17):
            if r == pr:
                for t in loads:
                    t_poll = a.vm(t)
            if r == 16:
                break
            p = s(sMASK + 2 * r, 2)
            for j in range(4):
                z = v(vZ + 8 * r + 2 * j, 2)
                a(f"v_pk_fma_f32 {z}, {z}, {p}, {p} op_sel:[0,0,1] op_sel_hi:[1,0,1]")
        self.w_late = list(wq)
        a.wait_all(vm=False)
        a("s_barrier")
        self.stamp(2)
        a.wait(vm=t_poll)
        self.check_tags(loads, tags)
        self.stamp(3)
        self.w1_touch()
        vG, vB = g0 + 16, g0 + 24
        for j in range(4):
            a(f"v_lshlrev_b32 {v(vG + 2 * j)}, 16, {v(g0 + 8 + 2 * j)}")
            a(f"v_and_b32 {v(vG + 2 * j + 1)}, 0xffff0000, {v(g0 + 8 + 2 * j)}")
            a(f"v_lshlrev_b32 {v(vB + 2 * j)}, 16, {v(g0 + 2 * j)}")
            a(f"v_and_b32 {v(vB + 2 * j + 1)}, 0xffff0000, {v(g0 + 2 * j)}")
        for j in range(8):
            a(f"v_add_f32 {v(vG + j)}, 1.0, {v(vG + j)}")
        for j in range(4):
            a(f"v_cvt_pk_bf16_f32 {v(g0 + j)}, {v(vG + 2 * j)}, {v(vG + 2 * j + 1)}")
        for j in range(4):
            a(f"v_lshlrev_b32 {v(vG + 2 * j)}, 16, {v(g0 + j)}")
            a(f"v_and_b32 {v(vG + 2 * j + 1)}, 0xffff0000, {v(g0 + j)}")
        for r in range(16):
            z = vZ + 8 * r
            for j in range(4):
                a(f"v_pk_fma_f32 {v(z + 2 * j, 2)}, {v(z + 2 * j, 2)}, {v(vG + 2 * j, 2)}, {v(vB + 2 * j, 2)}")
            for j in range(4):
                a(f"v_cvt_pk_bf16_f32 {v(z + j)}, {v(z + 2 * j)}, {v(z + 2 * j + 1)}")
            a(f"ds_write_b128 {v(16 + (r & 7))}, {v(z, 4)} offset:{(r >> 3) * 128}")
        a.wait_all(vm=False)
        a("s_barrier")
        self.stamp(26)

    def w1_prepare(self):
        a = self.a
        a(f"v_lshrrev_b32 v24, 4, {v(vL16)}")
        a(f"s_lshl_b32 {s(sT0)}, {s(sRQ)}, 2")
        a(f"s_add_u32 {s(sT0)}, {s(sT0)}, {s(sW)}")
        a(f"s_mul_i32 {s(sT0)}, {s(sT0)}, 28")
        a(f"v_add_u32 v25, {s(sT0)}, v24")
        a("v_mul_u32_u24 v26, 2688, v25")
        a("v_mul_u32_u24 v25, 896, v25")
        a(f"s_lshl_b32 s3, {s(sCB)}, 7")
        a(f"s_mul_i32 {s(sT0)}, {s(sTILE)}, {TILE_B}")
        a(f"s_add_u32 {s(sT0)}, {s(sT0)}, {s(sGB)}")
        a(f"s_lshl_b32 {s(sT1)}, {s(sCB)}, 1")
        a(f"s_add_u32 {s(sT1)}, {s(sT1)}, {s(sCH)}")
        a(f"s_lshl_b32 {s(sT1)}, {s(sT1)}, 11")
        a(f"s_add_u32 {s(sT0)}, {s(sT0)}, {s(sT1)}")
        a(f"v_lshl_add_u32 v27, v24, 7, {s(sT0)}")
        a(f"s_lshl2_add_u32 {s(sT1)}, s2, {s(sW)}")
        a(f"s_lshr_b32 {s(sT0)}, {s(sT1)}, 1")
        a(f"s_and_b32 {s(sT1)}, {s(sT1)}, 1")
        a(f"s_mul_i32 {s(sT1)}, {s(sT1)}, 384")
        a(f"v_lshl_add_u32 v28, v24, 7, {s(sT1)}")
        a(f"s_mul_i32 {s(sT1)}, {s(sT0)}, 2688")
        a(f"v_add_u32 v29, {s(sT1)}, v28")
        a(f"s_mul_i32 {s(sT1)}, {s(sT0)}, 896")
        a(f"v_add_u32 v28, {s(sT1)}, v28")
        R = self.o.get("pf_rows", 0)
        if R:
            a(f"s_lshl2_add_u32 {s(sT1)}, s2, {s(sW)}")
            a(f"s_mul_i32 {s(sT1)}, {s(sT1)}, {R // 32 * 128}")
            a(f"v_lshl_add_u32 v253, v24, 7, {s(sT1)}")
            a(f"s_mul_i32 {s(sT0)}, {s(sW)}, {R // 4 * 3584}")
            a(f"s_lshl_b32 {s(sT1)}, {s(sM)}, 7")
            a(f"s_add_u32 s38, {s(sT0)}, {s(sT1)}")
            a("v_mul_u32_u24 v24, 3584, v24")

    def w1_touch(self):
        a = self.a
        if self.o.get("pf_qo", 1):
            a("s_mov_b64 exec, 0x0fffffff")
            a(f"buffer_load_dword {a_(255)}, v26, {srd(SWQKV)}, s3 offen")
            a(f"buffer_load_dword {a_(255)}, v25, {srd(SWO)}, s3 offen")
            a("s_mov_b64 exec, -1")
        if self.o.get("touch_q", 1):
            a("s_mov_b64 exec, 0xffff")
            a(f"buffer_load_dword {a_(255)}, v27, {srd(SWS)}, 0 offen")
            a("s_mov_b64 exec, -1")
        R = self.o.get("pf_rows", 0)
        if R:
            m = (1 << (R // 4)) - 1
            a(f"s_mov_b32 exec_lo, {m & 0xffffffff:#x}")
            a(f"s_mov_b32 exec_hi, {m >> 32:#x}")
            a(f"buffer_load_dword {a_(255)}, v24, {srd(SWG)}, s38 offen")
            a(f"buffer_load_dword {a_(255)}, v24, {srd(SWU)}, s38 offen")
            a("s_mov_b64 exec, -1")

    def p1_gemm(self):
        a = self.a
        vTK, vTV, vPW = 2, 3, 6
        vH1, cK, cV, cQ, vW = 32, 144, 160, 176, 192
        ht, wt = {}, {}

        def rdH(k):
            ht[k] = a.lg(f"ds_read_b128 {v(vH1 + 4 * k, 4)}, {v(8 + (k & 3))} offset:{k * 1024}")

        def store_addresses():
            a(f"s_mul_i32 {s(sT0)}, {s(sTILE)}, {TILE_B}")
            a(f"s_lshl_b32 {s(sT1)}, {s(sCB)}, 1")
            a(f"s_add_u32 {s(sT1)}, {s(sT1)}, {s(sCH)}")
            a(f"s_lshl_b32 {s(sT2)}, {s(sT1)}, 11")
            a(f"s_add_u32 {s(sT2)}, {s(sT2)}, {s(sT0)}")
            a(f"s_lshl_b32 {s(sT1)}, {s(sT1)}, 9")
            a(f"s_add_u32 {s(sT1)}, {s(sT1)}, {s(sT0)}")
            a(f"s_add_u32 {s(sT2)}, {s(sT2)}, {s(sGB)}")
            a(f"s_add_u32 {s(sT3)}, {s(sT2)}, {KO}")
            a(f"s_add_u32 {s(sT1)}, {s(sT1)}, {s(sGB)}")
            a(f"s_add_u32 {s(sT0)}, {s(sT1)}, {VO}")
            a(f"v_lshrrev_b32 v4, 9, {v(vL16)}")
            a("v_mul_u32_u24 v4, 7168, v4")
            a(f"v_and_b32 v5, 0x1f0, {v(vL16)}")
            a("v_add_u32 v4, v4, v5")
            a("v_add_u32 v5, 14336, v4")
            a(f"v_subrev_u32 v31, {LB - LA}, {v(vTK)}")
            self.w_dma_pattern(30, 24, 896)
            a(f"s_mul_i32 {s(sWO)}, {s(sW)}, {8 * 896}")
            a(f"s_lshl_b32 {s(sT6)}, {s(sCB)}, 7")
            a(f"s_add_u32 {s(sWO)}, {s(sWO)}, {s(sT6)}")

        fill = self.capture(store_addresses)
        side = []
        for k in range(28):
            for hk in ((k,) if k < 2 else (2 * k - 2, 2 * k - 1)):
                if hk < 28:
                    side.append((2 * min(hk, k + 1), lambda hk=hk: rdH(hk)))
            for kind in "kv":
                if kind == "v" and k >= 24:
                    wt[(kind, k)] = (a_(4 * (k - 24), 4), 0)
                    continue
                slot = vW + 4 * ((2 * k + (kind == "v")) % 16)
                for u in range(2):
                    t = f"ds_read_b64_tr_b16 {v(slot + 2 * u, 2)}, {v(vTK if kind == 'k' else vTV)} offset:{k * 2048 + 512 * u}"
                    side.append((2 * k + (kind == "v"), (lambda t=t, kind=kind, k=k, slot=slot: wt.__setitem__(
                        (kind, k), (v(slot, 4), a.lg(t)))) if u else t))
        wqd = [self.xl]
        for i in range(14):
            wqd += [f"s_add_u32 m0, {s(sT5)}, {LA + i * 4096}", f"s_add_u32 {s(sT7)}, {s(sT4)}, {i * 32 * 2688}",
                    lambda: setattr(self, "t_wq", a.vm(f"buffer_load_dwordx4 {v(vPW)}, {srd(SWQKV)}, {s(sT7)} offen lds"))]
        wld = []
        for lb, lo, sb, so in self.w_late:
            wld += [f"s_add_u32 m0, {s(lb)}, {lo}", f"s_add_u32 {s(sT7)}, {s(sb)}, {so}",
                    f"buffer_load_dwordx4 {v(vPW)}, {srd(SWQKV)}, {s(sT7)} offen lds"]
        AH, KB = self.o.get("kv_ah", 6), 15

        def pump(n, room):
            while side and room > 0 and side[0][0] <= n + AH and (n >= 2 * KB or side[0][0] < 2 * KB + 2):
                f = side.pop(0)[1]
                f() if callable(f) else a(f)
                room -= 1
            return room

        pump(-1, 99)
        for n in range(56):
            k, kind = n >> 1, "kv"[n & 1]
            if n == 2 * KB:
                a.wait(lg=ht[27])
                if self.w_late:
                    assert not wld
                    a("s_waitcnt vmcnt(0)")
                a("s_barrier")
            while (kind, k) not in wt or k not in ht:
                f = side.pop(0)[1]
                f() if callable(f) else a(f)
            t = max(wt[(kind, k)][1], ht[k])
            if t > a.lg_done and kind == "k" and ("v", k) in wt:
                t = max(t, wt[("v", k)][1])
            a.wait(lg=t)
            h, reg = v(vH1 + 4 * k, 4), wt[(kind, k)][0]
            c = v(cK if kind == "k" else cV, 16)
            A, B = (reg, h) if kind == "k" else (h, reg)
            a(f"v_mfma_f32_32x32x16_bf16 {c}, {A}, {B}, {c if k else 0}")
            room = pump(n, 3) + (1 if n & 1 else 2)
            chain = wld if wld else (wqd if n >= 2 * KB and wqd else fill)
            while chain and room > 0:
                f = chain.pop(0)
                f() if callable(f) else a(f)
                room -= 1
        for f in wqd + fill:
            f() if callable(f) else a(f)

        def pack(acc, b):
            for j in range(4):
                a(f"v_cvt_pk_bf16_f32 {v(acc + 8 * b + j)}, {v(acc + 8 * b + 2 * j)}, {v(acc + 8 * b + 2 * j + 1)}")
            return v(acc + 8 * b, 4)

        for b in range(2):
            a.vm(f"buffer_store_dwordx4 {pack(cK, b)}, {v(vL16)}, {srd(SWS)}, {s(sT3)} offen offset:{b * 1024} sc1")
        for b in range(2):
            t_kv = a.vm(f"buffer_store_dwordx4 {pack(cV, b)}, {v(4 + b)}, {srd(SWS)}, {s(sT0)} offen sc1")
        self.stamp(17)
        a.wait(vm=self.t_wq)
        a("s_barrier")
        self.check_tags([self.xl], [13])
        self.stamp(4)
        self.n_kv = a.vm_n - t_kv
        self.choose_mode(12, "L_p1_slow")

    def p1_q(self):
        a = self.a
        vH1, cQ, vW = 32, 176, 192
        wt = {}
        t_kv = a.vm_n - self.n_kv
        a.vm_done = t_kv - 4

        def pack(acc, b):
            for j in range(4):
                a(f"v_cvt_pk_bf16_f32 {v(acc + 8 * b + j)}, {v(acc + 8 * b + 2 * j)}, {v(acc + 8 * b + 2 * j + 1)}")
            return v(acc + 8 * b, 4)

        def rdQ(k):
            slot = vW + 4 * (k % 8)
            wt[("q", k)] = (v(slot, 4), self.tr2(("v", slot), 31, k * 2048))

        for k in range(4):
            rdQ(k)
        fill = [f"s_lshl_b32 s3, {s(sG)}, 5", f"s_add_u32 s3, s3, {s(sM)}", "s_lshl_b32 s3, s3, 7",
                f"v_mov_b32 v10, {RFO}", f"v_mov_b32 v11, {s(sTAG)}"]
        fill += self.capture(self.p2_setup)
        self.early = [g for g in self.p3_early_loads() if g.startswith("buffer_")]
        kf = self.o.get("kvf", 24)
        won = [0]

        def wo_dma():
            if won[0] < 14:
                self.dma(6, SWO, sT5, LB + won[0] * 4096, sWO, won[0] * 32 * 896)
                won[0] += 1

        def kv_flag():
            a.wait(vm=t_kv)
            a("s_barrier")
            a(f"s_cmp_eq_u32 {s(sW)}, 0")
            a("s_cselect_b64 exec, 1, 0")
            a.vm(f"buffer_store_dword v11, v10, {srd(SWS)}, s3 offen sc1")
            a("s_mov_b64 exec, -1")
            self.stamp(16)

        a("v_mov_b32 v6, v30")
        for k in range(28):
            if k == kf:
                kv_flag()
            if k + 4 < 28:
                rdQ(k + 4)
            reg, t = wt[("q", k + 1 if k % 2 == 0 else k)]
            a.wait(lg=t)
            reg, t = wt[("q", k)]
            a(f"v_mfma_f32_32x32x16_bf16 {v(cQ, 16)}, {reg}, {v(vH1 + 4 * k, 4)}, {v(cQ, 16) if k else 0}")
            if (k % 4 == 1 and won[0] < self.o.get("wo0", 5)) or k > kf:
                wo_dma()
            else:
                for _ in range(self.o.get("fillq", 4)):
                    if fill:
                        a(fill.pop(0))
        a(f"s_mov_b32 {s(sT3)}, {f2u(QSCALE):#x}")
        for _ in range(8):
            if fill:
                a(fill.pop(0))
        for r in range(16):
            a(f"v_mul_f32 {v(cQ + r)}, {s(sT3)}, {v(cQ + r)}")
        for b in range(2):
            t_q = a.vm(f"buffer_store_dwordx4 {pack(cQ, b)}, {v(vL16)}, {srd(SWS)}, {s(sT2)} offen offset:{b * 1024}{self.st('q')}")
        if kf >= 28:
            kv_flag()
        self.stamp(5)
        while won[0] < 14:
            wo_dma()
        for g in fill:
            a(g)
        self.stamp(31)
        self.local_flag(0, 8, ticket=t_q, temps=(sP0, sP0 + 1))
        self.stamp(27)

    def capture(self, fn):
        n = len(self.a.ins)
        fn()
        lines = []
        for i in self.a.ins[n:]:
            assert i.kind in ("valu", "salu", "trans")
            if i.op.startswith("s_cselect"):
                lines[-1] += "\n" + i.text
            else:
                lines.append(i.text)
        del self.a.ins[n:]
        return lines

    def helper_first_loads(self):
        a = self.a
        n0 = a.vm_n
        sJ = sT4
        a("L_helper0:")
        a("v_min_u32 v8, 223, v0")
        a("v_lshlrev_b32 v8, 2, v8")
        a(f"s_lshl_b32 {s(sJ)}, {s(sG)}, 2")
        a(f"s_add_u32 {s(sJ)}, {s(sJ)}, {s(sM)}")
        a(f"s_sub_u32 {s(sJ)}, {s(sJ)}, 28")
        a("v_lshrrev_b32 v10, 2, v3")
        a("v_mul_u32_u24 v10, 5376, v10")
        a(f"v_and_b32 v11, 48, {v(vL16)}")
        a("v_add_u32 v5, v10, v11")
        a(f"s_mul_i32 {s(sT0)}, {s(sW)}, {16 * 5376}")
        a(f"s_lshl_b32 {s(sT1)}, {s(sJ)}, 6")
        a(f"s_add_u32 {s(sT0)}, {s(sT0)}, {s(sT1)}")
        a(f"s_cmp_lt_u32 {s(sJ)}, 28")
        a(f"s_cselect_b32 {s(sT0)}, {s(sT0)}, {OOB}")
        a(f"s_lshl_b32 {s(sT5)}, {s(sW)}, 10")
        a(f"s_mov_b32 {s(sT2)}, {s(sT5)}")
        a(f"s_add_u32 {s(sT3)}, {s(sT2)}, {7 * 4096}")
        a("s_waitcnt lgkmcnt(0)")
        self.first_stamp()
        self.make_srd(SC, SWMOD)
        a(f"buffer_load_dword v9, v8, {srd(SC)}, 0 offen")
        a("L_mdma:")
        a(f"s_mov_b32 m0, {s(sT2)}")
        a(f"s_add_u32 {s(sT2)}, {s(sT2)}, 4096")
        a(f"buffer_load_dwordx4 v5, {srd(SWMOD)}, {s(sT0)} offen lds")
        a(f"s_add_u32 {s(sT0)}, {s(sT0)}, {64 * 5376}")
        a(f"s_cmp_lg_u32 {s(sT2)}, {s(sT3)}")
        a("s_cbranch_scc1 L_mdma")
        a("s_branch L_helper")
        a.vm_n = n0

    def mod_job(self, vaddr, step, half, dst):
        a = self.a
        tk = []
        for k in range(14):
            a.lg(f"ds_read_b64_tr_b16 {v(36 + 8 * k, 2)}, {v(vaddr)} offset:{k * step}")
            tk.append(a.lg(f"ds_read_b64_tr_b16 {v(38 + 8 * k, 2)}, {v(vaddr)} offset:{k * step + half}"))
            if k >= 4:
                a.wait(lg=tk[k - 4])
                kk = k - 4
                a(f"v_mfma_f32_16x16x32_bf16 v[16:19], {v(32 + 8 * kk, 4)}, {v(36 + 8 * kk, 4)}, {'v[16:19]' if kk else 0}")
        for kk in range(10, 14):
            a.wait(lg=tk[kk])
            a(f"v_mfma_f32_16x16x32_bf16 v[16:19], {v(32 + 8 * kk, 4)}, {v(36 + 8 * kk, 4)}, v[16:19]")
        a("v_mov_b32_dpp v17, v16 quad_perm:[1,0,3,2] row_mask:0xf bank_mask:0xf")
        a("v_cvt_pk_bf16_f32 v20, v16, v17")
        a("s_mov_b64 exec, 0x5555")
        a(f"buffer_store_dwordx2 v[20:21], v4, {srd(SWS)}, {s(dst)} offen sc1")
        a("s_mov_b64 exec, -1")

    def uv_job(self, sJ):
        a = self.a
        a("v_min_u32 v8, 223, v0")
        a("v_lshlrev_b32 v9, 3, v8")
        a(f"s_mov_b32 {s(sT0)}, {MODO + 672 * 8}")
        self.poll([f"buffer_load_dwordx2 {v(10 + 2 * i, 2)}, v9, {srd(SWS)}, {s(sT0)} offen offset:{1792 * i} sc1" for i in range(2)], [11, 13])
        a("v_lshlrev_b32 v18, 16, v12")
        a("v_and_b32 v19, 0xffff0000, v12")
        a("v_add_f32 v18, 1.0, v18")
        a("v_add_f32 v19, 1.0, v19")
        a("v_cvt_pk_bf16_f32 v12, v18, v19")
        a("v_lshlrev_b32 v8, 2, v8")
        a(f"v_add_u32 v8, {L_T2}, v8")
        a("ds_write_b32 v8, v10")
        a("ds_write_b32 v8, v12 offset:896")
        self.tr_pattern(14, 8, True)
        a(f"v_bfe_u32 v8, {v(vL16)}, 8, 1")
        a(f"v_mul_u32_u24 v8, {LB - LA}, v8")
        a("v_add_u32 v14, v14, v8")
        a(f"s_lshl_b32 {s(sT0)}, {s(sW)}, 5")
        a(f"v_xor_b32 v14, {s(sT0)}, v14")
        a(f"v_bfe_u32 v8, {v(vL16)}, 4, 5")
        a("v_cmp_eq_u32 vcc, 1, v8")
        a(f"v_mov_b32 v8, {L_T2 + 896}")
        a(f"v_mov_b32 v9, {L_T2}")
        a("v_cndmask_b32 v8, v8, v9, vcc")
        a(f"v_lshrrev_b32 v9, 9, {v(vL16)}")
        a("v_lshl_add_u32 v15, v9, 4, v8")
        a.wait_all()
        a("s_barrier")
        ut, vU = {}, 160

        def rd(k):
            slot = 32 + 8 * (k % 8)
            a.lg(f"ds_read_b128 {v(slot, 4)}, v15 offset:{32 * k}")
            ut[k] = self.tr2(("v", slot + 4), 14, k * 2048)

        for k in range(4):
            rd(k)
        for k in range(28):
            if k + 4 < 28:
                rd(k + 4)
            a.wait(lg=ut[k])
            slot = 32 + 8 * (k % 8)
            a(f"v_mfma_f32_32x32x16_bf16 {v(vU, 16)}, {v(slot, 4)}, {v(slot + 4, 4)}, {v(vU, 16) if k else 0}")
        a(f"s_mov_b32 {s(sT0)}, 0x05040100")
        a(f"s_mov_b32 {s(sT1)}, 0x07060302")
        a(f"s_lshl2_add_u32 {s(sT2)}, {s(sJ)}, {s(sW)}")
        a(f"s_lshl_b32 {s(sT3)}, {s(sT2)}, 10")
        a(f"s_add_u32 {s(sT3)}, {s(sT3)}, {AUGO}")
        a(f"s_lshl_b32 {s(sT2)}, {s(sT2)}, 2")
        a(f"v_cvt_pk_bf16_f32 v16, {v(vU)}, {v(vU + 1)}")
        a("v_lshlrev_b32 v17, 16, v16")
        a("v_and_b32 v18, 0xffff0000, v16")
        a(f"v_sub_f32 v17, {v(vU)}, v17")
        a(f"v_sub_f32 v18, {v(vU + 1)}, v18")
        a("v_cvt_pk_bf16_f32 v17, v17, v18")
        a(f"v_perm_b32 v24, v17, v16, {s(sT0)}")
        a("v_mov_b32 v25, v16")
        a(f"v_perm_b32 v26, v16, v17, {s(sT1)}")
        a("v_mov_b32 v27, 0")
        a("s_mov_b32 exec_lo, 0")
        for r in range(24, 27):
            a(f"v_mov_b32 {v(r)}, 0")
        a("s_mov_b64 exec, -1")
        a(f"buffer_store_dwordx4 v[24:27], {v(vL16)}, {srd(SWS)}, {s(sT3)} offen sc1")
        a(f"v_mov_b32 v8, {AFO}")
        a(f"v_mov_b32 v9, {s(sTAG)}")
        a.wait_all(lg=False)
        a("s_mov_b64 exec, 1")
        a(f"buffer_store_dword v9, v8, {srd(SWS)}, {s(sT2)} offen sc1")
        a("s_mov_b64 exec, -1")

    def wd_first_touch(self):
        a = self.a
        a(f"v_lshlrev_b32 v8, 3, {v(vL16)}")
        a(f"s_sub_u32 {s(sT0)}, s2, 224")
        a(f"s_lshl2_add_u32 {s(sT0)}, {s(sT0)}, {s(sW)}")
        a(f"s_mul_i32 {s(sT0)}, {s(sT0)}, {98 * 128}")
        a("s_mov_b32 exec_hi, 0x1ffff")
        self.touch(8, SWD, sT0)
        a(f"s_add_u32 {s(sT0)}, {s(sT0)}, {49 * 128}")
        self.touch(8, SWD, sT0)
        a("s_mov_b64 exec, -1")

    def group_prefetch(self, srds, lo, iters):
        a = self.a
        if not iters:
            return
        L = a.label("gp")
        a(f"v_lshlrev_b32 v8, 3, {v(vL16)}")
        a(f"s_sub_u32 {s(sT2)}, {s(sM)}, 28")
        a(f"s_lshl_b32 {s(sT2)}, {s(sT2)}, 2")
        a(f"s_add_u32 {s(sT2)}, {s(sT2)}, {s(sW)}")
        a(f"s_lshl_b32 {s(sT2)}, {s(sT2)}, 13")
        a(f"s_add_u32 {s(sT2)}, {s(sT2)}, {lo}")
        a(f"s_mul_i32 {s(sT0)}, {s(sG)}, {iters}")
        a(f"s_lshr_b32 {s(sT0)}, {s(sT0)}, 3")
        a(f"s_mov_b32 {s(sT3)}, {iters}")
        a(f"{L}:")
        a(f"s_lshl_b32 {s(sT1)}, {s(sT0)}, 17")
        a(f"s_add_u32 {s(sT1)}, {s(sT1)}, {s(sT2)}")
        for sr in srds:
            self.touch(8, sr, sT1)
        a(f"s_add_u32 {s(sT0)}, {s(sT0)}, 1")
        a(f"s_cmp_eq_u32 {s(sT0)}, {iters}")
        a(f"s_cselect_b32 {s(sT0)}, 0, {s(sT0)}")
        a(f"s_waitcnt vmcnt({len(srds)})")
        a(f"s_sub_u32 {s(sT3)}, {s(sT3)}, 1")
        a(f"s_cmp_lg_u32 {s(sT3)}, 0")
        a(f"s_cbranch_scc1 {L}")

    def helper(self):
        a = self.a
        a("L_helper:")
        a.vm_done = a.vm_n
        a.lg_done = a.lg_n
        sJ = sT4
        self.common_setup(())
        self.make_tag_and_publish_xcc(20)
        a(f"s_waitcnt vmcnt({15 if self.o.get('tlb', 0) else 8})")
        a("v_lshlrev_b32 v10, 16, v9")
        a("v_and_b32 v11, 0xffff0000, v9")
        for r in (10, 11):
            a(f"v_mul_f32 {v(r + 2)}, {f2u(-1.4426950408889634):#x}, {v(r)}")
        for r in (12, 13):
            a(f"v_exp_f32 {v(r)}, {v(r)}")
        for r in (12, 13):
            a(f"v_add_f32 {v(r)}, 1.0, {v(r)}")
        for r in (12, 13):
            a(f"v_rcp_f32 {v(r)}, {v(r)}")
        for r in (10, 11):
            a(f"v_mul_f32 {v(r)}, {v(r)}, {v(r + 2)}")
        a("v_cvt_pk_bf16_f32 v10, v10, v11")
        a(f"v_add_u32 v8, {LD}, v8")
        a("ds_write_b32 v8, v10")
        a("v_bfe_u32 v11, v3, 2, 2")
        a("v_lshrrev_b32 v12, 4, v3")
        a("v_lshl_add_u32 v13, v12, 3, v11")
        a("v_lshlrev_b32 v2, 7, v13")
        a("v_lshlrev_b32 v5, 6, v13")
        a("v_lshrrev_b32 v11, 1, v11")
        a("v_lshlrev_b32 v11, 6, v11")
        a("v_and_b32 v13, 3, v3")
        a("v_lshlrev_b32 v13, 3, v13")
        a(f"s_lshl_b32 {s(sT0)}, {s(sCH)}, 5")
        a(f"v_add3_u32 v5, v5, v13, {s(sT0)}")
        a("v_xor_b32 v11, v11, v13")
        a(f"s_lshl_b32 {s(sT0)}, {s(sW)}, 5")
        a(f"v_xor_b32 v11, {s(sT0)}, v11")
        a("v_add_u32 v2, v2, v11")
        a("v_lshlrev_b32 v12, 4, v12")
        a(f"v_add_u32 v12, {LD}, v12")
        a("v_lshlrev_b32 v4, 2, v3")
        a(f"s_lshl_b32 {s(sT6)}, {s(sJ)}, 7")
        a(f"s_lshl_b32 {s(sT1)}, {s(sCH)}, 6")
        a(f"s_add_u32 {s(sT6)}, {s(sT6)}, {s(sT1)}")
        a(f"s_add_u32 {s(sT6)}, {s(sT6)}, {MODO}")
        a(f"s_cmp_lt_u32 {s(sJ)}, 28")
        a(f"s_cselect_b32 {s(sT6)}, {s(sT6)}, {OOB}")
        a(f"s_cmp_lt_u32 {s(sW)}, 2")
        a(f"s_cselect_b32 {s(sT6)}, {s(sT6)}, {OOB}")
        a.wait_all(vm=False)
        a("s_barrier")
        for k in range(14):
            a(f"ds_read_b128 {v(32 + 8 * k, 4)}, v12 offset:{k * 64}")
        self.w_dma_pattern(6, 10, 5376)
        a.wait_all()
        a("s_barrier")
        self.stamp(1)
        self.mod_job(5, 2048, 256, sT6)
        self.stamp(2)
        a(f"s_sub_u32 {s(sJ)}, {s(sM)}, 28")
        a(f"s_lshl_b32 {s(sJ)}, {s(sJ)}, 3")
        a(f"s_add_u32 {s(sJ)}, {s(sJ)}, {s(sG)}")
        a(f"s_cmp_ge_u32 {s(sJ)}, 28")
        a("s_cbranch_scc1 L_jobs_done")
        a(f"s_mul_i32 {s(sT0)}, {s(sW)}, {8 * 5376}")
        a(f"s_lshl_b32 {s(sT1)}, {s(sJ)}, 7")
        a(f"s_add_u32 {s(sT0)}, {s(sT0)}, {s(sT1)}")
        a(f"s_add_u32 {s(sT0)}, {s(sT0)}, {14 * 128}")
        a(f"s_add_u32 {s(sT2)}, {s(sT5)}, {LB}")
        a(f"s_add_u32 {s(sT3)}, {s(sT2)}, {14 * 4096}")
        a("L_mdma2:")
        a(f"s_mov_b32 m0, {s(sT2)}")
        a(f"s_add_u32 {s(sT2)}, {s(sT2)}, 4096")
        a(f"buffer_load_dwordx4 v6, {srd(SWMOD)}, {s(sT0)} offen lds")
        a(f"s_add_u32 {s(sT0)}, {s(sT0)}, {32 * 5376}")
        a(f"s_cmp_lg_u32 {s(sT2)}, {s(sT3)}")
        a("s_cbranch_scc1 L_mdma2")
        a(f"v_add_u32 v2, {LB}, v2")
        a(f"s_lshl_b32 {s(sT6)}, {s(sJ)}, 8")
        a(f"s_lshl_b32 {s(sT1)}, {s(sW)}, 6")
        a(f"s_add_u32 {s(sT6)}, {s(sT6)}, {s(sT1)}")
        a(f"s_add_u32 {s(sT6)}, {s(sT6)}, {MODO + 14 * 256}")
        a.wait_all()
        a("s_barrier")
        self.mod_job(2, 4096, 512, sT6)
        self.stamp(3)
        a("L_jobs_done:")
        a(f"s_cmp_lg_u32 {s(sJ)}, 31")
        a("s_cbranch_scc1 L_no_epoch")
        a("v_lshlrev_b32 v8, 3, v0")
        a(f"s_mov_b32 {s(sT0)}, {XCCO}")
        self.poll([f"buffer_load_dwordx2 v[10:11], v8, {srd(SWS)}, {s(sT0)} offen sc1"], [11])
        a("s_barrier")
        a("v_mov_b32 v8, 0")
        a(f"s_cmp_eq_u32 {s(sW)}, 0")
        a("s_cselect_b64 exec, 1, 0")
        a(f"buffer_store_dword v11, v8, {srd(SWS)}, 0 offen sc1")
        a("s_mov_b64 exec, -1")
        a("L_no_epoch:")
        a(f"v_lshlrev_b32 v8, 3, {v(vL16)}")
        a(f"s_sub_u32 {s(sT0)}, {s(sM)}, 28")
        a(f"s_lshl_b32 {s(sT0)}, {s(sT0)}, 2")
        a(f"s_add_u32 {s(sT0)}, {s(sT0)}, {s(sW)}")
        a(f"s_lshl_b32 {s(sT0)}, {s(sT0)}, 11")
        a(f"s_add_u32 {s(sT0)}, {s(sT0)}, {s(sGB)}")
        a(f"s_add_u32 {s(sT0)}, {s(sT0)}, {STO}")
        self.touch(8, SWS, sT0, 16)
        if self.o.get("wdt", 3) == 1:
            self.wd_first_touch()
        self.group_prefetch((SWG, SWU), self.o.get("pf_rows", 0) * 3584, self.o.get("hp1", 1))
        xl = self.xcc_load(10, 4)
        self.poll([xl], [5])
        a.wait_all()
        a("s_barrier")
        self.stamp(4)
        self.p2_setup()
        self.choose_mode(4, "L_p2_slow")
        a("s_branch L_p2_fast")

    def p2_setup(self):
        a = self.a
        vKV, vVP, vRF, vWG, vMK = 12, 13, 14, 15, 16
        a(f"s_and_b32 {s(sHD)}, {s(sM)}, 15")
        a(f"s_lshr_b32 {s(sB)}, {s(sM)}, 4")
        a(f"s_mul_i32 {s(sWS0)}, {s(sHD)}, 7")
        a(f"s_lshr_b32 {s(sWS0)}, {s(sWS0)}, 1")
        a(f"s_bitcmp1_b32 {s(sHD)}, 0")
        a(f"s_cselect_b32 {s(sP1)}, 15, 0xf0000000")
        a(f"s_mov_b32 {s(sP1 + 1)}, {s(sP1)}")
        a(f"s_lshl_b32 {s(sKVL)}, {s(sW)}, 12")
        a(f"s_add_u32 {s(sKVL)}, {s(sKVL)}, {L_KV}")
        a(f"v_add_u32 {v(vKV)}, {s(sKVL)}, {v(vL16)}")
        a(f"v_bfe_u32 v24, {v(vL16)}, 4, 5")
        a(f"v_lshrrev_b32 v25, 9, {v(vL16)}")
        a("v_and_b32 v26, 0x13, v24")
        a("v_and_b32 v27, 4, v24")
        a("v_lshl_or_b32 v26, v27, 1, v26")
        a("v_and_b32 v27, 8, v24")
        a("v_lshrrev_b32 v27, 1, v27")
        a("v_or_b32 v26, v26, v27")
        a("v_lshlrev_b32 v26, 4, v26")
        a(f"v_mul_u32_u24 {v(vVP)}, 7168, v25")
        a(f"v_add_u32 {v(vVP)}, {v(vVP)}, v26")
        a(f"s_lshl_b32 {s(sT0)}, {s(sB)}, 2")
        a(f"s_add_u32 {s(sT0)}, {s(sT0)}, {s(sW)}")
        a(f"s_sub_u32 {s(sMISS)}, 8, {s(sT0)}")
        a(f"s_cmp_eq_u32 {s(sG)}, 0")
        a(f"s_cselect_b32 {s(sMISS)}, {s(sMISS)}, 0")
        a(f"s_mul_i32 {s(sTQ)}, {s(sT0)}, {TILE_B}")
        a(f"s_add_u32 {s(sTQ)}, {s(sTQ)}, {s(sGB)}")
        if self.o.get("fine", 1):
            a(f"s_lshr_b32 {s(sT0)}, {s(sWS0)}, 3")
            a(f"s_add_u32 {s(sT1)}, {s(sWS0)}, 3")
            a(f"s_lshr_b32 {s(sT1)}, {s(sT1)}, 3")
            a(f"s_sub_u32 {s(sT1)}, {s(sT1)}, {s(sT0)}")
            a("v_bfe_u32 v25, v24, 3, 1")
            a(f"v_mul_u32_u24 v25, {s(sT1)}, v25")
            a(f"v_add_u32 v25, {s(sT0)}, v25")
            a("v_and_b32 v26, 7, v24")
            a("v_min_u32 v26, 5, v26")
            a(f"s_lshl3_add_u32 {s(sT0)}, {s(sG)}, 0")
            a(f"s_lshr_b32 {s(sT0)}, {s(sT0)}, 1")
            a(f"s_lshl1_add_u32 {s(sT0)}, {s(sB)}, {s(sT0)}")
            a(f"v_add_u32 v26, {s(sT0)}, v26")
            a("v_subrev_u32 v26, 4, v26")
            a("v_max_i32 v26, 0, v26")
            a("v_lshrrev_b32 v27, 2, v26")
            a("v_and_b32 v26, 3, v26")
            a("v_mul_u32_u24 v26, 7, v26")
            a("v_lshl_add_u32 v26, v27, 5, v26")
            a("v_add_u32 v26, v26, v25")
            a("v_lshlrev_b32 v26, 7, v26")
            a(f"v_add_u32 {v(vRF)}, {RFO}, v26")
            a("v_bfe_u32 v26, v24, 1, 1")
            a(f"s_lshl_b32 {s(sT0)}, {s(sB)}, 1")
            a(f"v_add_u32 v26, {s(sT0)}, v26")
            a("v_mul_u32_u24 v26, 7, v26")
            a("v_add_u32 v26, v26, v25")
            a("v_and_b32 v27, 1, v24")
            a("v_lshlrev_b32 v27, 3, v27")
            a("v_lshl_add_u32 v26, v26, 4, v27")
            a(f"v_add_u32 v243, {LFO}, v26")
        else:
            a(f"s_min_u32 {s(sT0)}, {s(sG)}, 1")
            a(f"s_lshl_b32 {s(sT0)}, {s(sT0)}, 12")
            a(f"v_mul_u32_u24 v25, {s(sT0)}, v25")
            a("v_min_u32 v24, 27, v24")
            a("v_lshlrev_b32 v24, 7, v24")
            a("v_sub_u32 v24, v24, v25")
            a(f"s_lshl_b32 {s(sT0)}, {s(sG)}, 12")
            a(f"s_add_u32 {s(sT0)}, {s(sT0)}, {RFO}")
            a(f"v_add_u32 {v(vRF)}, {s(sT0)}, v24")
            a(f"v_min_u32 v243, 880, {v(vL16)}")
            a("v_lshrrev_b32 v243, 1, v243")
            a(f"v_add_u32 v243, {LFO}, v243")
        self.p2_addresses()

    def p2_late(self):
        a = self.a
        vWG, vMK = 15, 16
        self.tr_pattern(2, 32, True, ct_sgpr=sCH)
        a(f"s_mul_i32 {s(sT0)}, {s(sCH)}, {14 * 2048}")
        a(f"s_add_u32 {s(sT0)}, {s(sT0)}, {LB}")
        a(f"v_add_u32 v2, {s(sT0)}, v2")
        a("v_xor_b32 v5, 64, v2")
        a("s_barrier")
        ops = self.capture(self.p2_late_alu)
        for k in range(14):
            for ct in range(2):
                self.tr2(("a", 128 + 8 * k + 4 * ct), 5 if ct else 2, k * 2048)
                for _ in range(3):
                    if ops:
                        a(ops.pop(0))
        for g in ops:
            a(g)
        self.ones_prefill()

    def p2_late_alu(self):
        a = self.a
        vWG, vMK = 15, 16
        a(f"v_bfe_u32 v32, {v(vL16)}, 4, 5")
        a(f"v_lshrrev_b32 v33, 9, {v(vL16)}")
        a("v_lshlrev_b32 v33, 2, v33")
        a("v_sub_u32 v33, v32, v33")
        for r in range(16):
            a(f"v_cmp_le_i32 {s(sMASK + 2 * r, 2)}, {8 * (r >> 2) + (r & 3)}, v33")
        a("v_mov_b32 v34, 0xffff")
        a("v_mov_b32 v35, 0xffff0000")
        for i in range(8):
            a(f"v_cndmask_b32 {v(vMK + i)}, 0, v34, {s(sMASK + 4 * i, 2)}")
            a(f"v_cndmask_b32 v36, 0, v35, {s(sMASK + 4 * i + 2, 2)}")
            a(f"v_or_b32 {v(vMK + i)}, {v(vMK + i)}, v36")
        self.w_dma_pattern(vWG, 32, 3584)
        a("v_xor_b32 v6, 32, v15")
        a(f"s_sub_u32 {s(sT0)}, {s(sM)}, 28")
        a(f"s_lshl3_add_u32 {s(sT0)}, {s(sT0)}, {s(sG)}")
        a(f"s_cmp_lt_u32 {s(sM)}, 28")
        a(f"s_cselect_b32 {s(sT0)}, {s(sM)}, {s(sT0)}")
        a(f"s_min_u32 {s(sT0)}, {s(sT0)}, 27")
        a(f"s_lshl_b32 {s(sT0)}, {s(sT0)}, 7")
        a(f"s_mul_i32 {s(sT1)}, {s(sW)}, {8 * 3584}")
        a(f"s_add_u32 {s(sWSRC)}, {s(sT0)}, {s(sT1)}")
        for g in self.p3_early_loads():
            if not g.startswith("buffer_"):
                a(g)

    def ones_prefill(self):
        a = self.a
        for j in range(4):
            a(f"v_mov_b32 {v(36 + j)}, 0x3f803f80")
        a(f"s_mov_b64 exec, {s(sP1, 2)}")
        for i in range(3):
            for t in range(2):
                a(f"ds_write_b128 v12, v[36:39] offset:{i * 16384 + 2048 + t * 1024}")
        a("s_mov_b64 exec, -1")

    def touch_y(self):
        a = self.a
        a(f"s_mul_i32 {s(sT0)}, {s(sTILE)}, {TILE_B}")
        a(f"s_add_u32 {s(sT0)}, {s(sT0)}, {s(sGB)}")
        a(f"s_lshl_b32 {s(sT1)}, {s(sCB)}, 1")
        a(f"s_add_u32 {s(sT1)}, {s(sT1)}, {s(sCH)}")
        a(f"s_lshl_b32 {s(sT1)}, {s(sT1)}, 11")
        a(f"s_add_u32 {s(sT0)}, {s(sT0)}, {s(sT1)}")
        a(f"s_add_u32 {s(sT0)}, {s(sT0)}, {YO}")
        a(f"v_lshlrev_b32 v5, 3, {v(vL16)}")
        self.touch(5, SWS, sT0, 16)

    def wgu(self, n):
        for _ in range(n):
            if self.pre:
                vr, sr, lo, so = self.pre.pop(0)
                self.t_wgu = self.dma(vr, sr, sT5, lo, sWSRC, so)

    def p2_addresses(self):
        a = self.a
        a(f"s_lshl_b32 {s(sT5)}, {s(sW)}, 10")
        a(f"s_lshl_b32 {s(65)}, {s(sWS0)}, 9")
        a(f"s_add_u32 {s(66)}, {s(sTQ)}, {s(65)}")
        a(f"s_mov_b32 s70, {s(66)}")
        a(f"s_lshl_b32 {s(64)}, {s(sWS0)}, 7")
        a(f"s_add_u32 {s(69)}, {s(sTQ)}, {s(64)}")
        a(f"s_add_u32 {s(69)}, {s(69)}, {VO}")
        a(f"s_add_u32 {s(66)}, {s(66)}, {KO}")
        a(f"s_cmp_eq_u32 {s(sG)}, 0")
        a(f"s_cselect_b32 {s(71)}, {OOB}, 0")
        a(f"s_sub_u32 {s(71)}, {s(71)}, {0x200000 - 8 * TILE_B}")
        a(f"s_add_u32 {s(64)}, {s(66)}, {s(71)}")
        a(f"s_sub_u32 {s(64)}, {s(64)}, {8 * TILE_B}")
        a(f"s_add_u32 {s(67)}, {s(69)}, {s(71)}")
        a(f"s_sub_u32 {s(67)}, {s(67)}, {8 * TILE_B}")
        a(f"s_cmp_eq_u32 {s(sB)}, 0")
        a(f"s_cselect_b32 {s(71)}, {s(71)}, 0")
        a(f"s_add_u32 {s(65)}, {s(66)}, {s(71)}")
        a(f"s_sub_u32 {s(65)}, {s(65)}, {4 * TILE_B}")
        a(f"s_add_u32 {s(68)}, {s(69)}, {s(71)}")
        a(f"s_sub_u32 {s(68)}, {s(68)}, {4 * TILE_B}")

    def p2(self):
        a = self.a
        a("L_p2_slow:" if self.slow else "L_p2_fast:")
        a.vm_done = a.vm_n
        vQ, vMK, vKV, vVP, vRF, vM, vNM = 24, 16, 12, 13, 14, 8, 10
        vS, vP2, vO = 32, 176, 192
        ksrc, vsrc = (64, 65, 66), (67, 68, 69)

        def ldK(i):
            for t in range(2):
                tk = self.dma(vL16, SWS, sKVL, i * 16384 + t * 1024, ksrc[i], 0, sc1=True, imm=t * 1024)
            return tk

        def ldV(i):
            for t in range(2):
                tk = self.dma(vVP, SWS, sKVL, i * 16384 + 2048 + t * 1024, vsrc[i], t * 14336, sc1=True)
            return tk

        self.stamp(6)
        self.poll([f"buffer_load_dword v8, {v(vRF)}, {srd(SWS)}, 0 offen sc1",
                   f"buffer_load_dwordx2 v[10:11], v243, {srd(SWS)}, {s(sGB)} offen sc1"], [8, 10, 11])
        self.stamp(7)
        for i in range(3):
            ldK(i)
        for t in range(2):
            t_k = a.vm(f"buffer_load_dwordx4 {v(vQ + 4 * t, 4)}, {v(vL16)}, {srd(SWS)}, s70 offen offset:{t * 1024} sc1")
        a(f"s_andn2_b64 exec, -1, {s(sP1, 2)}")
        for i in range(3):
            t_v = ldV(i)
        a("s_mov_b64 exec, -1")
        self.pre = []
        for i in range(14):
            self.pre.append((15, SWG, LA + i * 4096, i * 32 * 3584))
            self.pre.append((6, SWU, LB + i * 4096, i * 32 * 3584))
        n_att = self.o.get("n_att", 14)
        bg = [lambda: self.wgu(1)] * n_att
        for i, t in enumerate(self.early):
            bg.insert(2 + 2 * i, lambda t=t: a(t))
        if self.o.get("touch_y", 1):
            bg.insert(self.o.get("ty_at", 4), self.touch_y)

        def prefetch(n):
            for _ in range(n):
                if bg:
                    bg.pop(0)()

        self.p2_late()
        a(f"s_bitcmp1_b32 {s(sHD)}, 0")
        a(f"s_cselect_b32 {s(sP0)}, -1, 0")
        a(f"s_mov_b32 {s(sP0 + 1)}, 0")
        a.wait(vm=t_k)
        a.wait_all(vm=False)
        a("s_barrier")
        a(f"s_mov_b64 exec, {s(sP0, 2)}")
        a(f"v_mov_b32 {v(vQ)}, 0")
        a(f"v_mov_b32 {v(vQ + 1)}, 0")
        a(f"s_not_b32 exec_hi, {s(sP0)}")
        a("s_mov_b32 exec_lo, 0")
        a(f"v_mov_b32 {v(vQ + 6)}, 0")
        a(f"v_mov_b32 {v(vQ + 7)}, 0")
        a("s_mov_b64 exec, -1")
        self.stamp(8)
        order = [0, 8, 1, 2, 3, 4, 5, 6, 7]
        kt = {}

        def rdK(n):
            i = order[n]
            a.lg(f"ds_read_b128 {a_(8 * n, 4)}, {v(vKV)} offset:{i * 4096}")
            kt[n] = a.lg(f"ds_read_b128 {a_(8 * n + 4, 4)}, {v(vKV)} offset:{i * 4096 + 1024}")

        vorder = [1, 2, 3, 4, 5, 6, 7, 8, 0]
        vt = {}

        def rdV(n):
            i = vorder[n]
            base = 72 + 8 * n if n < 7 else 8 * (n - 7)
            a.lg(f"ds_read_b128 {a_(base, 4)}, {v(vKV)} offset:{i * 4096 + 2048}")
            vt[i] = (base, a.lg(f"ds_read_b128 {a_(base + 4, 4)}, {v(vKV)} offset:{i * 4096 + 3072}"))

        def patch(i):
            L = a.label("miss")
            a(f"s_cmp_gt_i32 {s(sMISS)}, {i}")
            a(f"s_cbranch_scc1 {L}")
            a(f"{L}_back:")
            blk = [f"{L}:", "s_nop 15"]
            blk += [f"v_mov_b32 {v(vS + 16 * i + r)}, 0xf149f2ca" for r in range(16)]
            blk += [f"s_branch {L}_back"]
            self.tail.append(blk)

        valu = []
        first = [True]

        def q_max(i):
            b = vS + 16 * i
            ops = []
            if first[0]:
                ops.append(f"v_max3_f32 {v(vM)}, {v(b)}, {v(b + 1)}, {v(b + 2)}")
                ops.append(f"v_max3_f32 {v(vM + 1)}, {v(b + 3)}, {v(b + 4)}, {v(b + 5)}")
                rest = list(range(6, 16, 2))
                first[0] = False
            else:
                rest = list(range(0, 16, 2))
            for n, r in enumerate(rest):
                m = vM + (n & 1)
                ops.append(f"v_max3_f32 {v(m)}, {v(m)}, {v(b + r)}, {v(b + r + 1)}")
            return ops

        for n in range(4):
            rdK(n)
        for n in range(9):
            i = order[n]
            if n + 4 < 9:
                rdK(n + 4)
            a.wait(lg=kt[n])
            d = v(vS + 16 * i, 16)
            a(f"v_mfma_f32_32x32x16_bf16 {d}, {a_(8 * n, 4)}, {v(vQ, 4)}, 0")
            for _ in range(5):
                if valu:
                    a(valu.pop(0))
            a(f"v_mfma_f32_32x32x16_bf16 {d}, {a_(8 * n + 4, 4)}, {v(vQ + 4, 4)}, {d}")
            for _ in range(5):
                if valu:
                    a(valu.pop(0))
            if n == 2:
                patch(0)
                valu += [f"v_cndmask_b32 {v(vS + 128 + r)}, {v(vS + r)}, {v(vS + 128 + r)}, {s(sMASK + 2 * r, 2)}" for r in range(16)]
                valu += q_max(8)
            elif n >= 3:
                patch(order[n - 1])
                valu += q_max(order[n - 1])
            if n >= self.o.get("bg1", 0):
                prefetch(1)
        for op in valu:
            a(op)
        patch(7)
        for op in q_max(7):
            a(op)
        a(f"v_max_f32 {v(vM)}, {v(vM)}, {v(vM + 1)}")
        self.both_halves(vM, vM + 1, "v_max_f32")
        a(f"v_sub_f32 {v(vNM)}, 0, {v(vM)}")
        prefetch(self.o.get("bgv", 4))
        a.wait(vm=t_v)
        a("s_barrier")
        for n in range(4):
            rdV(n)
        self.stamp(9)
        firstpv = [True]

        def pv(i, t, p):
            base, tk = vt[i]
            a.wait(lg=tk)
            c = 0 if firstpv[0] else v(vO, 16)
            firstpv[0] = False
            a(f"v_mfma_f32_32x32x16_bf16 {v(vO, 16)}, {a_(base + 4 * t, 4)}, {v(p + 4 * t, 4)}, {c}")

        pend = []
        for n, i in enumerate([1, 2, 3, 4, 5, 6, 7, 8]):
            b = vS + 16 * i
            p = vS + 8 * (n & 1)
            if n + 4 < 9:
                rdV(n + 4)
            for r in range(0, 16, 2):
                a(f"v_pk_add_f32 {v(b + r, 2)}, {v(b + r, 2)}, {v(vNM, 2)} op_sel_hi:[1,0]")
            for t in range(2):
                if pend:
                    pv(*pend.pop(0))
                for r in range(8 * t, 8 * t + 8):
                    a(f"v_exp_f32 {v(b + r)}, {v(b + r)}")
                    if r >= 8 * t + 3 and (r & 1):
                        j = (r - 3) >> 1
                        a(f"v_cvt_pk_bf16_f32 {v(p + j)}, {v(b + 2 * j)}, {v(b + 2 * j + 1)}")
                j = 4 * t + 3
                prefetch(1)
                a(f"v_cvt_pk_bf16_f32 {v(p + j)}, {v(b + 2 * j)}, {v(b + 2 * j + 1)}")
            if i != 8:
                pend = [(i, 0, p), (i, 1, p)]
            else:
                for j in range(8):
                    a(f"v_and_b32 {v(vP2 + j)}, {v(p + j)}, {v(vMK + j)}")
                    a(f"v_xor_b32 {v(vP2 + 8 + j)}, {v(p + j)}, {v(vP2 + j)}")
                    if j == 3:
                        pv(8, 0, vP2)
                pv(0, 0, vP2 + 8)
                pv(8, 1, vP2)
                pv(0, 1, vP2 + 8)
        prefetch(99)
        a(f"s_lshl_b32 {s(sT1)}, {s(sWS0)}, 9")
        a(f"s_add_u32 {s(sT1)}, {s(sT1)}, {s(sTQ)}")
        a(f"s_add_u32 {s(sT1)}, {s(sT1)}, {OO}")
        a(f"s_bitcmp1_b32 {s(sHD)}, 0")
        a(f"s_cselect_b64 {s(sP0, 2)}, -1, 0")
        a(f"v_cndmask_b32 v8, {v(vO + 12)}, {v(vO)}, {s(sP0, 2)}")
        a("v_mov_b32 v9, v8")
        a("v_permlane32_swap_b32 v9, v8")
        a(f"v_cndmask_b32 v8, v8, v9, {s(sP0, 2)}")
        a("v_rcp_f32 v8, v8")
        for r in range(16):
            a(f"v_mul_f32 {v(vO + r)}, v8, {v(vO + r)}")
        for j in range(8):
            a(f"v_cvt_pk_bf16_f32 {v(vP2 + j)}, {v(vO + 2 * j)}, {v(vO + 2 * j + 1)}")
        Lodd, Ldone = a.label("odd"), a.label("ost")
        base = f"{v(vL16)}, {srd(SWS)}, {s(sT1)} offen"
        a(f"s_cbranch_scc1 {Lodd}")
        a(f"buffer_store_dwordx4 {v(vP2, 4)}, {base}{self.st('o')}")
        a("s_mov_b32 exec_hi, 0")
        a(f"buffer_store_dwordx4 {v(vP2 + 4, 4)}, {base} offset:1024{self.st('o')}")
        a("s_not_b64 exec, exec")
        a(f"buffer_store_dwordx2 {v(vP2 + 4, 2)}, {base} offset:1024{self.st('o')}")
        a(f"s_branch {Ldone}")
        a(f"{Lodd}:")
        a(f"buffer_store_dwordx4 {v(vP2 + 4, 4)}, {base} offset:1024{self.st('o')}")
        a("s_mov_b32 exec_lo, 0")
        a(f"buffer_store_dwordx4 {v(vP2, 4)}, {base}{self.st('o')}")
        a("s_not_b64 exec, exec")
        a(f"buffer_store_dwordx2 {v(vP2 + 2, 2)}, {base} offset:8{self.st('o')}")
        a(f"{Ldone}:")
        a("s_mov_b64 exec, -1")
        self.stamp(10)
        Lc = a.label("comp")
        a(f"s_cmp_lt_u32 {s(sM)}, 28")
        a(f"s_cbranch_scc1 {Lc}")
        self.local_flag(1, 8)
        a("s_branch L_helper_tail")
        a(f"{Lc}:")

    def exchange(self, acc):
        a = self.a
        for q in range(4):
            a(f"ds_write_b128 v26, {v(acc + 16 + 4 * q, 4)} offset:{q * 1024}")
        a.wait_all(vm=False)
        a("s_barrier")
        tk = [a.lg(f"ds_read_b128 {v(acc + 16 + 4 * q, 4)}, v27 offset:{q * 1024}") for q in range(4)]
        for q in range(4):
            a.wait(lg=tk[q])
            for r in range(4 * q, 4 * q + 4, 2):
                a(f"v_pk_add_f32 {v(acc + r, 2)}, {v(acc + r, 2)}, {v(acc + 16 + r, 2)}")

    def unpack16(self, dst, src):
        a = self.a
        for j in range(8):
            a(f"v_lshlrev_b32 {v(dst + 2 * j)}, 16, {v(src + j)}")
            a(f"v_and_b32 {v(dst + 2 * j + 1)}, 0xffff0000, {v(src + j)}")

    def mod2_loads(self):
        return [f"buffer_load_dwordx2 {v(232 + 2 * i, 2)}, {v(241 + (i >> 1))}, {srd(SWS)}, 0 offen offset:{(i & 1) * 1792} sc1"
                for i in range(4)]

    def p3_early_loads(self):
        g = [f"v_bfe_u32 v3, {v(vL16)}, 4, 5", "v_mul_u32_u24 v3, 896, v3", f"v_lshrrev_b32 v4, 9, {v(vL16)}",
             "v_lshl_add_u32 v3, v4, 4, v3",
             f"s_lshl3_add_u32 {s(sT6)}, {s(sG)}, {s(sTILE)}", f"s_mul_i32 {s(sT6)}, {s(sT6)}, {TILE_B}",
             f"s_lshl1_add_u32 {s(sXCC)}, {s(sCB)}, {s(sCH)}", f"s_lshl_b32 {s(sXCC)}, {s(sXCC)}, 6",
             f"s_add_u32 {s(sXCC)}, {s(sXCC)}, {s(sT6)}"]
        g += [f"buffer_load_dwordx4 {v(224 + 4 * b, 4)}, v3, {srd(SX)}, {s(sXCC)} offen offset:{32 * b}" for b in range(2)]
        g += ["v_min_u32 v240, 223, v0", "v_lshlrev_b32 v240, 3, v240",
              f"v_add_u32 v241, {MODO + 448 * 8}, v240", f"v_add_u32 v242, {MODO + 448 * 8 + 3584}, v240"]
        g += self.mod2_loads()
        return g

    def p3(self):
        a = self.a
        acc, vGA, vG2, vXR, vXF = 32, 64, 80, 224, 104
        a("v_mov_b32 v5, v15")
        self.pre = [(5 if vr == 15 else vr, sr, lo, so) for vr, sr, lo, so in self.pre]
        self.local_flag(1, 8)
        self.check_tags(self.mod2_loads(), [233, 235, 237, 239])
        a("v_lshlrev_b32 v18, 16, v236")
        a("v_and_b32 v19, 0xffff0000, v236")
        a("v_add_f32 v18, 1.0, v18")
        a("v_add_f32 v19, 1.0, v19")
        a("v_cvt_pk_bf16_f32 v236, v18, v19")
        a("v_lshrrev_b32 v10, 1, v240")
        a(f"v_add_u32 v10, {L_T2}, v10")
        a("s_barrier")
        for i in range(4):
            t_t2 = a.lg(f"ds_write_b32 v10, {v(232 + 2 * i)} offset:{896 * i}")
        a(f"s_lshl_b32 {s(sT1)}, {s(sCB)}, 1")
        a(f"s_add_u32 {s(sT1)}, {s(sT1)}, {s(sCH)}")
        a(f"s_lshl_b32 {s(sT1)}, {s(sT1)}, 6")
        a(f"s_mul_i32 {s(sT2)}, {s(sTILE)}, {TILE_B}")
        a(f"s_add_u32 {s(sT2)}, {s(sT2)}, {s(sGB)}")
        a(f"s_mul_i32 {s(sT3)}, {s(sCH)}, {14 * 1024}")
        a(f"s_add_u32 {s(sT3)}, {s(sT3)}, {s(sT2)}")
        a(f"s_add_u32 {s(sT3)}, {s(sT3)}, {OO}")
        self.stamp(11)
        if self.o.get("fine", 1):
            a(f"v_and_b32 v8, 0xf0, {v(vL16)}")
            a(f"s_lshr_b32 {s(sT0)}, {s(sTILE)}, 2")
            a(f"s_lshl_b32 {s(sT0)}, {s(sT0)}, 6")
            a(f"s_and_b32 {s(sT6)}, {s(sTILE)}, 3")
            a(f"s_add_u32 {s(sT0)}, {s(sT0)}, {s(sT6)}")
            a(f"s_lshl2_add_u32 {s(sT0)}, {s(sT0)}, {s(sGB)}")
            a(f"s_add_u32 {s(sT0)}, {s(sT0)}, {LFO + 512}")
            self.poll([f"buffer_load_dword v10, v8, {srd(SWS)}, {s(sT0)} offen sc1"], [10])
        else:
            self.poll_local(1, 32, 8)
        self.stamp(12)
        tk = []

        def ldO(k):
            if k and k % 4 == 0:
                a(f"s_add_u32 {s(sT3)}, {s(sT3)}, 4096")
            tk.append(a.vm(f"buffer_load_dwordx4 {a_(4 * k, 4)}, {v(vL16)}, {srd(SWS)}, {s(sT3)} offen offset:{(k % 4) * 1024} sc1"))

        for k in range(8):
            ldO(k)
        a.wait(lg=t_t2)
        a("s_barrier")
        a(f"v_lshl_add_u32 v8, v4, 4, {s(sT1)}")
        a(f"v_add_u32 v8, {L_T2}, v8")
        for b in range(2):
            a(f"ds_read_b128 {v(12 + 4 * b, 4)}, v8 offset:{32 * b}")
            a(f"ds_read_b128 {v(20 + 4 * b, 4)}, v8 offset:{2 * 896 + 32 * b}")
        a(f"s_lshl_b32 {s(sT0)}, {s(sRT)}, 5")
        a(f"v_add_u32 v8, {s(sT0)}, v8")
        t_c = a.lg(f"ds_read_b128 {v(vGBP, 4)}, v8 offset:{3 * 896}")
        n3 = [self.o.get("n_p3", 4)]
        fill = self.capture(lambda: self.unpack16(vXF, vXR))
        fill += [lambda: a.wait(lg=t_c)] + self.capture(lambda: (self.unpack16(vGA, 12), self.unpack16(vG2, 20)))
        fill += [f"s_lshl_b32 {s(sT0)}, {s(sW)}, 12", f"s_add_u32 {s(sT0)}, {s(sT0)}, {L_XB}",
                 f"v_add_u32 v26, {s(sT0)}, {v(vL16)}", "v_xor_b32 v27, 4096, v26",
                 f"s_lshl_b32 {s(sT0)}, {s(sW)}, 11", f"s_add_u32 {s(sT0)}, {s(sT0)}, {L_X2}",
                 f"v_add_u32 v29, {s(sT0)}, {v(vL16)}",
                 f"s_lshl_b32 {s(sT0)}, {s(sT1)}, 5", f"s_add_u32 {s(sT4)}, {s(sT0)}, {s(sT2)}",
                 f"s_add_u32 {s(sT4)}, {s(sT4)}, {YO}",
                 f"s_lshl_b32 {s(sT6)}, {s(sTILE)}, 8", f"s_add_u32 {s(sT6)}, {s(sT6)}, {s(sT0)}",
                 f"s_add_u32 {s(sT6)}, {s(sT6)}, {s(sGB)}", f"s_add_u32 {s(sT6)}, {s(sT6)}, {STO}",
                 f"v_bfe_u32 v28, {v(vL16)}, 1, 8", "v_lshl_add_u32 v28, v4, 2, v28"]
        for k in range(14):
            a.wait(vm=tk[k])
            for ct in range(2):
                d = v(acc + 16 * ct, 16)
                a(f"v_mfma_f32_32x32x16_bf16 {d}, {a_(128 + 8 * k + 4 * ct, 4)}, {a_(4 * k, 4)}, {d if k else 0}")
                if ct == 0 and k + 8 < 14:
                    ldO(k + 8)
                elif k >= 6 and n3[0]:
                    self.wgu(1)
                    n3[0] -= 1
                for _ in range(3):
                    if fill:
                        f = fill.pop(0)
                        f() if callable(f) else a(f)
        assert not fill
        self.stamp(25)
        self.exchange(acc)
        for r in range(0, 16, 2):
            a(f"v_pk_fma_f32 {v(acc + r, 2)}, {v(acc + r, 2)}, {v(vGA + r, 2)}, {v(vXF + r, 2)}")
        for r in range(0, 16, 2):
            a(f"v_pk_mul_f32 {v(acc + 16 + r, 2)}, {v(acc + r, 2)}, {v(vG2 + r, 2)}")
        for b in range(2):
            for j in range(4 * b, 4 * b + 4):
                a(f"v_cvt_pk_bf16_f32 {v(12 + j)}, {v(acc + 16 + 2 * j)}, {v(acc + 16 + 2 * j + 1)}")
            a(f"buffer_store_dwordx4 {v(12 + 4 * b, 4)}, {v(vL16)}, {srd(SWS)}, {s(sT4)} offen offset:{1024 * b}{self.st('y')}")
        a(f"v_pk_mul_f32 v[22:23], {v(acc, 2)}, {v(acc, 2)}")
        a(f"v_pk_add_f32 v[20:21], {v(acc, 2)}, {v(acc + 2, 2)}")
        a(f"v_pk_fma_f32 v[22:23], {v(acc + 2, 2)}, {v(acc + 2, 2)}, v[22:23]")
        for r in range(4, 16, 2):
            a(f"v_pk_add_f32 v[20:21], v[20:21], {v(acc + r, 2)}")
            a(f"v_pk_fma_f32 v[22:23], {v(acc + r, 2)}, {v(acc + r, 2)}, v[22:23]")
        a("v_add_f32 v20, v20, v21")
        a("v_add_f32 v21, v22, v23")
        a("v_permlane32_swap_b32 v20, v21")
        a("v_add_f32 v20, v20, v21")
        t_y = a.vm(f"buffer_store_dword v20, v28, {srd(SWS)}, {s(sT6)} offen{self.st('y')}")
        for j in range(8):
            a(f"v_cvt_pk_bf16_f32 {v(vX2 + j)}, {v(acc + 2 * j)}, {v(acc + 2 * j + 1)}")
        for b in range(2):
            a(f"ds_write_b128 v29, {v(vX2 + 4 * b, 4)} offset:{1024 * b}")
        self.local_flag(2, 8)
        self.stamp(13)

    def p45(self):
        a, o = self.a, self.o
        acc, vW, vTB, vTQ, vAUG, vR2, vU, vH = 32, 160, 208, 12, 16, 24, 224, 224
        vTBA, vAGA, vWD, vSTA, vPD, vFA, vST = 26, 27, 28, 30, 2, 31, 96
        NSW = 12
        late = len(self.pre)
        self.tr_pattern(vTQ, 8, True)
        a(f"v_bfe_u32 v8, {v(vL16)}, 8, 1")
        a(f"v_mul_u32_u24 v8, {LB - LA}, v8")
        a(f"s_mul_i32 {s(sT0)}, {s(sW)}, 10240")
        a(f"s_add_u32 {s(sB)}, {s(sT0)}, {L_F}")
        a(f"s_lshl_b32 {s(sT0)}, {s(sCH)}, 6")
        a(f"s_lshl_b32 {s(sT1)}, {s(sRT)}, 5")
        a(f"s_add_u32 {s(sT0)}, {s(sT0)}, {s(sT1)}")
        a(f"v_xor_b32 {v(vWD)}, {s(sT0)}, {v(vTQ)}")
        a(f"v_add_u32 {v(vWD)}, {s(sB)}, {v(vWD)}")
        a(f"v_xor_b32 {v(vWD + 1)}, 64, {v(vWD)}")
        a(f"v_add_u32 {v(vTQ)}, {v(vTQ)}, v8")
        for q in range(1, 4):
            a(f"v_xor_b32 {v(vTQ + q)}, {32 * q}, {v(vTQ)}")
        a(f"s_lshl_b32 {s(sT0)}, {s(sCH)}, 11")
        a(f"s_lshl_b32 {s(sT1)}, {s(sRT)}, 10")
        a(f"s_add_u32 {s(sT0)}, {s(sT0)}, {s(sT1)}")
        a(f"s_add_u32 {s(sT0)}, {s(sT0)}, {L_X2}")
        a(f"v_add_u32 v8, {s(sT0)}, {v(vL16)}")
        a.wait_all(vm=False)
        a("s_barrier")
        for rt in range(2):
            a(f"ds_read_b128 {v(vX2 + 4 * rt, 4)}, v8 offset:{4096 * rt}")
        self.p45_setup(vSTA, vPD, vFA)
        a.wait_all(vm=False)
        a("s_barrier")
        self.stamp(14)
        if self.o.get("fine", 1):
            a(f"v_lshrrev_b32 v8, 2, {v(vL16)}")
            a("v_min_u32 v8, 108, v8")
            a(f"s_mul_i32 {s(sT0)}, {s(sW)}, 112")
            a(f"s_add_u32 {s(sT0)}, {s(sT0)}, {s(sGB)}")
            a(f"s_add_u32 {s(sT0)}, {s(sT0)}, {LFO + 1024}")
            self.poll([f"buffer_load_dword v10, v8, {srd(SWS)}, {s(sT0)} offen sc1"], [10])
        else:
            self.poll_local(2, 28, 8)
        self.stamp(15)
        a(f"s_lshl_b32 {s(sT0)}, {s(sM)}, 4")
        a(f"s_lshl_b32 {s(sT1)}, {s(sW)}, 2")
        a(f"s_add_u32 {s(sT0)}, {s(sT0)}, {s(sT1)}")
        a(f"s_add_u32 {s(sT0)}, {s(sT0)}, {LFO + 3 * 512}")
        a(f"v_mov_b32 v10, {s(sT0)}")
        a(f"v_mov_b32 v11, {s(sTAG)}")

        steps = []
        for rt in range(2):
            steps += [("f", rt, k, q) for k in range(28) for q in range(4)]
            steps += [("g", rt, 28, q) for q in range(4)]
        steps += [("d", rt, j, ct) for rt in range(2) for j in range(28) for ct in range(2)]
        at = {st: n for n, st in enumerate(steps)}
        N = len(steps)
        ev = [[] for _ in range(N + 1)]
        R = lambda key: (a_ if key[0] == "a" else v)(key[1], 4)

        LAT, FAR, UNIT, LIM = o.get("lat", 450), o.get("far", 450), o.get("unit", 72), o.get("lim", 10)
        MF, GAP = o.get("mf", 40), o.get("gap", 6)
        sim = dict(T=0, free=0, last=0)
        arr, tick = {}, {}
        memq, fill, wq2 = [], [], []
        need = dict(vm=0, lg=0)
        cur = [0]

        def plan(name, cost, lat, *ops):
            st = max(sim["T"], sim["free"])
            sim["free"] = st + cost
            sim["last"] = max(sim["last"], sim["free"] + lat)
            arr[name] = sim["last"]
            memq.extend(ops[:-1])
            memq.append(lambda: tick.__setitem__(name, a.vm(ops[-1])))

        def emit(chain, n):
            done = 0
            while chain and done < n:
                f = chain.pop(0)
                n0 = len(a.ins)
                f() if callable(f) else a(f)
                done += len(a.ins) - n0
            return done

        def issued(name):
            while name not in tick:
                assert memq, name
                emit(memq, 1)
            return tick[name]

        def inflight():
            return sum(1 for x in arr.values() if x > sim["T"])

        def stall_until(name):
            while arr[name] > sim["T"] + 20 and serve(cur[0]):
                emit(memq, 99)
                sim["T"] += 16
            sim["T"] = max(sim["T"], arr[name])

        free_q = [("a", 4 * i) for i in range(63, -1, -1)]
        wd_next = [0]
        reg = {}

        def take_quad(horizon):
            for key in free_q:
                if key[0] == "v" or key[1] >= 8 * min(28, wd_next[0] + horizon):
                    free_q.remove(key)
                    return key
            return None

        def ldY(n):
            key = take_quad(o.get("hor", 5))
            if key is None:
                return False
            reg[("y", n)] = key
            pre = [f"s_add_u32 {s(sTQ)}, {s(sTQ)}, 4096"] if n and n % 4 == 0 else []
            plan(("y", n), UNIT, o.get("lat_y", LAT), *pre,
                 f"buffer_load_dwordx4 {R(key)}, {v(vL16)}, {srd(SWS)}, {s(sTQ)} offen offset:{(n % 4) * 1024} sc1")
            return True

        def ldH(n):
            key = take_quad(28)
            if key is None:
                return False
            reg[("h", n)] = key
            pre = []
            if n == 28:
                pre = [f"s_add_u32 {s(sT6)}, {s(sT6)}, {HT_B - 24 * 1024}"]
            elif n % 28 and n % 28 % 4 == 0:
                pre = [f"s_add_u32 {s(sT6)}, {s(sT6)}, 4096"]
            plan(("h", n), UNIT, o.get("lat_h", LAT), *pre,
                 f"buffer_load_dwordx4 {R(key)}, {v(vL16)}, {srd(SWS)}, {s(sT6)} offen offset:{(n % 28 % 4) * 1024} sc1")
            return True

        wd_tr_t = {}

        def ldD(j):
            if j >= 5 and (j - 5 not in wd_tr_t or wd_tr_t[j - 5] > a.lg_done):
                return False
            far = o.get("far_d", FAR)
            plan(("d0", j), UNIT, far, f"s_add_u32 m0, {s(sB)}, {(j % 5) * 2048}", f"s_add_u32 {s(sT4)}, {s(sT4)}, {16 * 896}",
                 f"buffer_load_dwordx4 {v(vPD)}, {srd(SWD)}, {s(sT4)} offen lds")
            plan(("d", j), UNIT, far, f"buffer_load_dwordx4 v0, {srd(SWD)}, {s(sT4)} offen offset:1024 lds")
            return True

        wd_pending = [None]

        def wd_read(must=False):
            j = wd_next[0]
            if wd_pending[0] is not None or j >= 28 or ("d", j) not in arr:
                return
            if not must and (arr[("d", j)] > sim["T"] or ("d", j) not in tick):
                return
            if any(("a", 8 * j + 4 * ct) not in free_q for ct in range(2)):
                assert not must
                return
            for ct in range(2):
                free_q.remove(("a", 8 * j + 4 * ct))
            need["vm"] = max(need["vm"], issued(("d", j)))
            wd_pending[0] = j

        def wd_queue():
            j = wd_pending[0]
            if j is None:
                return
            for ct in range(2):
                for u in range(2):
                    t = f"ds_read_b64_tr_b16 {a_(8 * j + 4 * ct + 2 * u, 2)}, {v(vWD + ct)} offset:{(j % 5) * 2048 + 512 * u}"
                    wq2.append((lambda t=t: wd_tr_t.__setitem__(j, a.lg(t))) if ct and u else t)
            wd_pending[0] = None
            wd_next[0] += 1

        def ldL(i):
            (vg, sg_, lg_, so), (vu, su, lu, _) = self.pre.pop(0), self.pre.pop(0)
            far = o.get("far_l", FAR)
            plan(("l0", i), UNIT, far, f"s_add_u32 m0, {s(sT5)}, {lg_}", f"s_add_u32 {s(sT7)}, {s(sWSRC)}, {so}",
                 f"buffer_load_dwordx4 {v(vg)}, {srd(sg_)}, {s(sT7)} offen lds")
            plan(("l", i), UNIT, far, f"s_add_u32 m0, {s(sT5)}, {lu}\ns_nop 0",
                 f"buffer_load_dwordx4 {v(vu)}, {srd(su)}, {s(sT7)} offen lds")
            return True

        def ldS(p):
            for rt in range(2):
                plan(("s", p, rt), UNIT // 2, LAT,
                     f"buffer_load_dwordx2 {v(vST + 14 * rt + 2 * p, 2)}, {v(vSTA)}, {srd(SWS)}, {s(sKVL)} offen offset:{256 * rt + (p & 1) * 2048} sc1")
            if p & 1:
                memq.append(f"s_add_u32 {s(sKVL)}, {s(sKVL)}, 4096")
            return True

        assert late % 2 == 0
        first = (28 - late) // 2
        bar_at = {b: at[("f", 0, 2 * (b - (b - first) % 2) - 2, 0)] for b in range(first, 14)}
        nS = at[("f", 0, o.get("ks", 17), 0)]
        YL, HL, LEAD = o.get("ylook", 6), o.get("hlook", 12), 20
        gate = {0: None, 1: None}
        queues = {
            "y": [(at[("f", max(n - YL, 0) // 28, max(n - YL, 0) % 28, 0)] if n >= YL else -1,
                   at[("f", n // 28, n % 28, 0)] - LEAD, lambda n=n: ldY(n)) for n in range(56)],
            "l": [(0, bar_at[first + i] - o.get("lead_l", 30), lambda i=i: ldL(i)) for i in range(late // 2)],
            "s": [(at[("f", 0, 6, 0)], nS - 20, lambda p=p: ldS(p)) for p in range(7)],
            "d": [(0, at[("d", 0, j, 0)] - LEAD - o.get("lead_d", 6), lambda j=j: ldD(j)) for j in range(28)],
            "h": [(("h", n // 28, at[("d", n // 28, n % 28, 0)] - 2 * HL), at[("d", n // 28, n % 28, 0)] - LEAD,
                   lambda n=n: ldH(n)) for n in range(56)],
        }

        def serve(n):
            if len(memq) > 2 or inflight() >= LIM or sim["free"] >= sim["T"] + o.get("ahead", 300):
                return False
            cand = []
            for name, q in queues.items():
                if q:
                    e = q[0][0]
                    if isinstance(e, tuple):
                        if gate[e[1]] is None:
                            continue
                        e = max(e[2], gate[e[1]])
                    if e <= n:
                        cand.append((q[0][1], name))
            for _, name in sorted(cand):
                if queues[name][0][2]():
                    queues[name].pop(0)
                    return True
            return False

        def force(qname, name):
            while name not in arr:
                if qname == "d" and not queues[qname][0][2]():
                    wd_read(must=True)
                    a.wait(vm=need["vm"])
                    wd_queue()
                    emit(wq2, 99)
                    a.wait(lg=a.lg_n)
                    continue
                if qname != "d":
                    assert queues[qname][0][2](), name
                queues[qname].pop(0)
            return issued(name)

        def hard_wait(qname, name):
            t = force(qname, name) if qname else issued(name)
            stall_until(name)
            a.wait(vm=t)

        for b in sorted(set(bar_at.values())):
            i = max(x for x in bar_at if bar_at[x] == b) - first
            ev[b].append(lambda i=i: (hard_wait("l", ("l", i)), a("s_barrier")))
        ev[nS].append(lambda: (hard_wait("s", ("s", 6, 1)), fill.extend(self.ln2_stats(vST, vAUG, vR2))))

        ev[at[("g", 0, 28, 0)]].append(lambda: emit(fill, 999))

        def spin_block(L, text):
            self.tail.append([f"{L}:", f"s_mov_b32 {s(sSPIN)}, 0", f"{L}_spin:", text,
                              f"s_add_u32 {s(sSPIN)}, {s(sSPIN)}, 1", f"s_cmp_gt_u32 {s(sSPIN)}, {SPIN_MAX}",
                              "s_cbranch_scc1 L_abort", "s_waitcnt vmcnt(0)", f"v_cmp_ne_u32 vcc, {s(sTAG)}, v9",
                              f"s_cbranch_vccnz {L}_spin", f"s_branch {L}_back"])

        def check(name, text):
            L = a.label("hw")
            hard_wait(None, name)
            a(f"v_cmp_ne_u32 vcc, {s(sTAG)}, v9")
            a(f"s_cbranch_vccnz {L}")
            a(f"{L}_back:")
            spin_block(L, text)

        atext = f"buffer_load_dword v9, v8, {srd(SWS)}, {s(sT0)} offen sc1"
        ev[at[("f", 0, o.get("kaf", 21) - 5, 0)]].append(lambda: plan("af", 20, FAR, f"s_lshl4_add_u32 {s(sT0)}, {s(sM)}, {AFO}",
                                                   f"v_bfe_u32 v8, {v(vL16)}, 2, 4", atext))

        def aug_load():
            check("af", atext)
            for q in range(4):
                plan(("ag", q), UNIT, FAR,
                     f"buffer_load_dwordx4 {v(vTB + 4 * q, 4)}, {v(vL16)}, {srd(SWS)}, {s(sHD)} offen offset:{q << 10} sc1")

        ev[at[("f", 0, o.get("kaf", 21), 0)]].append(aug_load)

        def st_h(rt, q):
            plan(("st", rt, q), o.get("st_cost", 2 * UNIT), o.get("lat_st", LAT),
                 f"buffer_store_dwordx4 {v(vH + 4 * q, 4)}, {v(vL16)}, {srd(SWS)}, {s(sT3)} offen offset:{q << 10}{self.st('h')}")
            if q == 3:
                memq.append(f"s_add_u32 {s(sT3)}, {s(sT3)}, {HT_B}")

        def epilogue(rt):
            for q in range(4):
                b, oq = acc + 64 * rt + 16 * q, vH + 4 * q
                for r in range(8):
                    fill.append(f"v_max_f32 {v(b + r)}, 0, {v(b + r)}")
                    fill.append(f"v_mul_f32 {v(b + 8 + r)}, {v(vR2 + rt)}, {v(b + 8 + r)}")
                for r in range(8):
                    fill.append(f"v_mul_f32 {v(b + r)}, {v(b + r)}, {v(b + 8 + r)}")
                for j in range(4):
                    fill.append(f"v_cvt_pk_bf16_f32 {v(oq + j)}, {v(b + 2 * j)}, {v(b + 2 * j + 1)}")
                fill.append(lambda q=q: st_h(rt, q))

        def poll_text(rt):
            return f"buffer_load_dword v9, {v(vFA)}, {srd(SWS)}, {s(sGB)} offen offset:{512 * rt} sc1"

        def handoff(n, rt, must=False):
            hs, fl, pl = ("st", rt, 3), ("fl", rt), ("pl", rt)
            if hs in arr and fl not in arr and (must or (hs in tick and arr[hs] <= sim["T"])):
                hard_wait(None, hs)
                emit(memq, 99)
                a("s_mov_b64 exec, 1")
                plan(fl, 20, LAT, f"buffer_store_dword v11, v10, {srd(SWS)}, {s(sGB)} offen offset:{512 * rt}{self.st('f')}")
                emit(memq, 99)
                a("s_mov_b64 exec, -1")
                if not must:
                    return
            if fl in arr and pl not in arr and (must or arr[fl] + o.get("skew", 100) - LAT <= sim["T"]):
                plan(pl, 20, LAT, poll_text(rt))
                if not must:
                    return
            if pl in arr and gate[rt] is None and (must or (pl in tick and arr[pl] <= sim["T"])):
                check(pl, poll_text(rt))
                gate[rt] = n

        ev[at[("f", 1, 1, 0)]].append(lambda: epilogue(0))
        ev[at[("d", 0, 1, 0)]].append(lambda: epilogue(1))

        def red_write(rt):
            ops = []
            for x in (2, 1, 3):
                r = acc + 32 * rt + 16 * (x & 1) + 8 * (x >> 1)
                ops += [f"ds_write_b128 {v(11 + x)}, {v(r + 4 * i, 4)} offset:{32768 * rt + 2048 * (x - 1) + 1024 * i}" for i in range(2)]
            return ops

        def red_finish(rt):
            t0, own, ops, tk = 96, acc + 32 * rt, [], {}
            for x in range(3):
                for i in range(2):
                    ops.append(lambda x=x, i=i: tk.__setitem__(x, a.lg(
                        f"ds_read_b128 {v(t0 + 8 * x + 4 * i, 4)}, v5 offset:{32768 * rt + 2048 * x + 1024 * i}")))
            add = "v_add_f32" if rt == 0 else None
            ops.append(lambda: a.wait(lg=tk[0]))
            if rt == 0:
                ops += [f"v_add_f32 {v(own + r)}, {v(own + r)}, {v(t0 + r)}" for r in range(8)]
                ops.append(lambda: a.wait(lg=tk[2]))
                ops += [f"v_add_f32 {v(t0 + 8 + r)}, {v(t0 + 8 + r)}, {v(t0 + 16 + r)}" for r in range(8)]
                ops += [f"v_add_f32 {v(own + r)}, {v(own + r)}, {v(t0 + 8 + r)}" for r in range(8)]
                ops += [f"v_fma_f32 {v(own + r)}, {v(own + r)}, {v(128 + r)}, {v(136 + r)}" for r in range(8)]
            else:
                ops += [f"v_pk_add_f32 {v(own + r, 2)}, {v(own + r, 2)}, {v(t0 + r, 2)}" for r in range(0, 8, 2)]
                ops.append(lambda: a.wait(lg=tk[2]))
                ops += [f"v_pk_add_f32 {v(t0 + 8 + r, 2)}, {v(t0 + 8 + r, 2)}, {v(t0 + 16 + r, 2)}" for r in range(0, 8, 2)]
                ops += [f"v_pk_add_f32 {v(own + r, 2)}, {v(own + r, 2)}, {v(t0 + 8 + r, 2)}" for r in range(0, 8, 2)]
                ops += [f"v_pk_fma_f32 {v(own + r, 2)}, {v(own + r, 2)}, {v(128 + r, 2)}, {v(152 + r, 2)}" for r in range(0, 8, 2)]
            if o.get("diag_off"):
                ops += [f"v_add_f32 {v(own + r)}, {f2u(o['diag_off'] / 1000):#x}, {v(own + r)}" for r in range(8 if o.get("diag_all", 1) else 1)]
            ops += [f"v_cvt_pk_bf16_f32 {v(144 + 4 * rt + j)}, {v(own + 2 * j)}, {v(own + 2 * j + 1)}" for j in range(4)]
            ops.append(f"buffer_store_dwordx4 {v(144 + 4 * rt, 4)}, v3, {srd(SOUT)}, {s(sXCC)} offen{' sc1' if o.get('out_sc1') else ''}")
            if rt == 0:
                ops.append(f"s_add_u32 {s(sXCC)}, {s(sXCC)}, {TILE_B}")
            return ops

        def red_setup():
            emit(fill, 999)
            emit(memq, 99)
            fill.extend([f"s_lshl_b32 {s(sT0)}, {s(sW)}, 13", f"v_add_u32 v5, {s(sT0)}, {v(vL16)}"])
            fill.extend(f"v_xor_b32 {v(11 + x)}, {x << 13}, v5" for x in (1, 2, 3))
            for j in range(4):
                fill.extend([f"v_lshlrev_b32 {v(128 + 2 * j)}, 16, {v(vGBP + j)}",
                             f"v_and_b32 {v(129 + 2 * j)}, 0xffff0000, {v(vGBP + j)}"])
            for rt in range(2):
                for j in range(4):
                    fill.extend([f"v_lshlrev_b32 {v(136 + 16 * rt + 2 * j)}, 16, {v(vX2 + 4 * rt + j)}",
                                 f"v_and_b32 {v(137 + 16 * rt + 2 * j)}, 0xffff0000, {v(vX2 + 4 * rt + j)}"])

        ev[at[("d", 1, 0, 0)]].append(red_setup)
        ev[at[("d", 1, 4, 0)]].append(lambda: (emit(fill, 999), a("s_barrier")))
        t_rw = [0]
        for i in range(6):
            ev[at[("d", 1, 4 + i, 1)]].append(lambda i=i: t_rw.__setitem__(0, a.lg(red_write(0)[i])))
        ev[at[("d", 1, 12, 0)]].append(lambda: (a.wait(lg=t_rw[0]), a("s_barrier"), fill.extend(red_finish(0))))

        fsteps = [n for n, st in enumerate(steps) if st[0] == "f"]
        wslot = {n: vW + 4 * (i % NSW) for i, n in enumerate(fsteps)}
        wt, wchain = {}, []
        for i, n in enumerate(fsteps):
            _, rt, k, q = steps[n]
            ok = fsteps[i - NSW + 1] if i >= NSW - 1 else -1
            if rt == 0 and k // 2 in bar_at:
                ok = max(ok, bar_at[k // 2] - 1)
            for u in range(2):
                t = f"ds_read_b64_tr_b16 {v(wslot[n] + 2 * u, 2)}, {v(vTQ + q)} offset:{k * 2048 + 512 * u}"
                wchain.append((ok, n, (lambda t=t, n=n: wt.__setitem__(n, a.lg(t))) if u else t))
        LO, HI = o.get("wlo", 3), o.get("whi", 6)

        def wread(n, horizon, maxn):
            done = 0
            while wchain and done < maxn and wchain[0][0] <= n and wchain[0][1] <= n + horizon:
                f = wchain.pop(0)[2]
                f() if callable(f) else a(f)
                done += 1
            return done

        for n in range(o.get("y0", 5)):
            force("y", ("y", n))
        wread(-1, HI, 99)
        stamps = {at[("f", 0, 8, 0)]: 22, at[("f", 1, 0, 0)]: 21, at[("d", 0, 0, 0)]: 23, at[("d", 1, 0, 0)]: 24}
        self.model, self.gaps = {}, []
        g0 = len(a.ins)
        for n, (kind, rt, k, q) in enumerate(steps):
            cur[0] = n
            if n in stamps:
                self.stamp(stamps[n])
                self.model[stamps[n]] = (sim["T"], wd_next[0], sum(x[0] == "h" for x in reg))
            for f in ev[n]:
                f()
            lg, vm = 0, 0
            if kind == "f":
                wread(n - 1, 1, 99)
                m = 28 * rt + k
                d, A = v(acc + 64 * rt + 16 * q, 16), v(wslot[n], 4)
                vm = force("y", ("y", m))
                stall_until(("y", m))
                B, lg = R(reg[("y", m)]), wt[n]
                if lg > a.lg_done and n + 1 in wt:
                    lg = wt[n + 1]
            elif kind == "g":
                d, A, B = v(acc + 64 * rt + 16 * q, 16), v(vTB + 4 * q, 4), v(vAUG + 4 * rt, 4)
                vm = issued(("ag", q))
            else:
                m = 28 * rt + k
                if gate[rt] is None:
                    emit(fill, 999)
                    handoff(n, rt, must=True)
                vm = force("h", ("h", m))
                while k not in wd_tr_t:
                    if wd_next[0] <= k and wd_pending[0] is None and not wq2:
                        force("d", ("d", wd_next[0]))
                        stall_until(("d", wd_next[0]))
                        wd_read(must=True)
                    a.wait(vm=need["vm"])
                    wd_queue()
                    emit(wq2, 99)
                stall_until(("h", m))
                d, A, B, lg = v(acc + 32 * rt + 16 * q, 16), a_(8 * k + 4 * q, 4), R(reg[("h", m)]), wd_tr_t[k]
            a.wait(vm=max(vm, need["vm"]), lg=lg)
            wd_queue()
            self.gaps.append(len(a.ins) - g0)
            C = d if (k or kind == "g") else 0
            a(f"v_mfma_f32_32x32x16_bf16 {d}, {A}, {B}, {C}")
            g0 = len(a.ins)
            if kind == "f" and q == 3:
                free_q.append(reg[("y", m)])
                free_q.sort(key=lambda x: (x[0] == "v", -x[1]))
            if n == fsteps[-1]:
                free_q.extend(("v", vW + 4 * i) for i in range(NSW))
            if kind == "d" and q == 1:
                free_q.append(reg[("h", m)])
            sim["T"] += o.get("mfd", 36) if kind == "d" else MF
            handoff(n, 0)
            handoff(n, 1)
            wd_read()
            serve(n)
            nw = 1
            if n + 1 < N and need["vm"] <= a.vm_done:
                k2, r2, s2, q2 = steps[n + 1]
                if k2 == "f" and wt.get(n + 1, 1 << 30) <= a.lg_done and tick.get(("y", 28 * r2 + s2), 1 << 30) <= a.vm_done:
                    nw = 0
                if k2 == "d" and wd_tr_t.get(s2, 1 << 30) <= a.lg_done and tick.get(("h", 28 * r2 + s2), 1 << 30) <= a.vm_done:
                    nw = 0
            room = lambda: GAP - nw - (len(a.ins) - g0)
            wread(n, LO, max(room(), 0))
            if room() > 0:
                emit(fill, min(room(), o.get("fpri", 2)))
            if room() > 0:
                emit(memq, min(room(), 2))
            if room() > 0:
                emit(wq2, min(room(), 2))
            if room() > 0:
                emit(fill, room())
            if room() > 0:
                wread(n, HI, room())
            if room() > 0:
                emit(memq, room())
        emit(fill, 999)
        assert not memq and not wq2 and not any(queues.values())
        self.stamp(18)
        self.model[18] = sim["T"]
        for t in red_write(1):
            a(t)
        a.wait_all(vm=False)
        a("s_barrier")
        for f in red_finish(1):
            f() if callable(f) else a(f)
        self.stamp(19)

    def p45_setup(self, vSTA, vPD, vFA):
        a = self.a
        self.w_dma_pattern(vPD, 8, 896)
        a(f"s_lshl_b32 {s(sT0)}, {s(sCB)}, 7")
        a(f"s_mul_i32 {s(sT1)}, {s(sW)}, {448 * 896}")
        a(f"s_add_u32 {s(sT4)}, {s(sT0)}, {s(sT1)}")
        a(f"s_sub_u32 {s(sT4)}, {s(sT4)}, {16 * 896}")
        a(f"v_add_u32 v0, {8 * 896 - 1024}, {v(vPD)}")
        a(f"s_mul_i32 {s(sTQ)}, {s(sW)}, {2 * TILE_B}")
        a(f"s_add_u32 {s(sTQ)}, {s(sTQ)}, {s(sGB)}")
        a(f"s_add_u32 {s(sTQ)}, {s(sTQ)}, {YO}")
        a(f"v_and_b32 {v(vSTA)}, 0x1f0, {v(vL16)}")
        a(f"v_lshrrev_b32 {v(vSTA)}, 1, {v(vSTA)}")
        a("v_mul_u32_u24 v8, 14336, v4")
        a(f"v_add_u32 {v(vSTA)}, {v(vSTA)}, v8")
        a(f"s_lshl_b32 {s(sT1)}, {s(sW)}, 9")
        a(f"s_add_u32 {s(sT1)}, {s(sT1)}, {s(sGB)}")
        a(f"s_add_u32 {s(sKVL)}, {s(sT1)}, {STO}")
        a(f"s_mov_b32 {s(sP1)}, 0x01000100")
        a(f"s_mov_b32 {s(sP1 + 1)}, 0x07060302")
        a(f"s_lshl_b32 {s(sHD)}, {s(sM)}, 12")
        a(f"s_add_u32 {s(sHD)}, {s(sHD)}, {AUGO}")
        a(f"s_mov_b32 {s(sT2)}, 0xffff")
        a(f"s_mul_i32 {s(sT3)}, {s(sW)}, {2 * HT_B}")
        a(f"s_add_u32 {s(sT3)}, {s(sT3)}, {s(sGB)}")
        a(f"s_lshl_b32 {s(sT1)}, {s(sM)}, 12")
        a(f"s_add_u32 {s(sT3)}, {s(sT3)}, {s(sT1)}")
        a(f"s_add_u32 {s(sT3)}, {s(sT3)}, {HO}")
        a(f"s_mul_i32 {s(sT6)}, {s(sRQ)}, {2 * HT_B}")
        a(f"s_mul_i32 {s(sT1)}, {s(sW)}, {28 * 1024}")
        a(f"s_add_u32 {s(sT6)}, {s(sT6)}, {s(sT1)}")
        a(f"s_add_u32 {s(sT6)}, {s(sT6)}, {s(sGB)}")
        a(f"s_add_u32 {s(sT6)}, {s(sT6)}, {HO}")
        a(f"v_min_u32 {v(vFA)}, 96, {v(vL16)}")
        a(f"s_mul_i32 {s(sT0)}, {s(sW)}, 112")
        a(f"s_lshl_b32 {s(sT1)}, {s(sRQ)}, 2")
        a(f"s_add_u32 {s(sT0)}, {s(sT0)}, {s(sT1)}")
        a(f"s_add_u32 {s(sT0)}, {s(sT0)}, {LFO + 3 * 512}")
        a(f"v_add_u32 {v(vFA)}, {s(sT0)}, {v(vFA)}")
        a(f"s_mul_i32 {s(sT0)}, {s(sRT)}, {TILE_B - 32}")
        a(f"s_sub_u32 {s(sXCC)}, {s(sXCC)}, {s(sT0)}")

    def ln2_stats(self, vST, vAUG, vR2):
        ops = []
        for rt in range(2):
            b = vST + 14 * rt
            for p in range(1, 7):
                ops += [f"v_add_f32 {v(b)}, {v(b)}, {v(b + 2 * p)}", f"v_add_f32 {v(b + 1)}, {v(b + 1)}, {v(b + 2 * p + 1)}"]
            ops += [f"v_mov_b32 {v(b + 2)}, {v(b)}", f"v_mov_b32 {v(b + 3)}, {v(b + 1)}",
                    f"v_permlane32_swap_b32 {v(b + 2)}, {v(b)}", f"v_permlane32_swap_b32 {v(b + 3)}, {v(b + 1)}",
                    f"v_add_f32 {v(b)}, {v(b)}, {v(b + 2)}", f"v_add_f32 {v(b + 1)}, {v(b + 1)}, {v(b + 3)}",
                    f"v_mul_f32 {v(b)}, {f2u(-1 / 448):#x}, {v(b)}",
                    f"v_mul_f32 {v(b + 1)}, {f2u(1 / 448):#x}, {v(b + 1)}",
                    f"v_fma_f32 {v(b + 1)}, -{v(b)}, {v(b)}, {v(b + 1)}",
                    f"v_max_f32 {v(b + 1)}, 0, {v(b + 1)}",
                    f"v_add_f32 {v(b + 1)}, {f2u(1e-5):#x}, {v(b + 1)}",
                    f"v_rcp_f32 {v(vR2 + rt)}, {v(b + 1)}",
                    f"v_sqrt_f32 {v(b + 1)}, {v(b + 1)}",
                    f"v_cvt_pk_bf16_f32 {v(b + 2)}, {v(b)}, {v(b + 1)}",
                    f"v_lshlrev_b32 {v(b + 3)}, 16, {v(b + 2)}",
                    f"v_and_b32 {v(b + 4)}, 0xffff0000, {v(b + 2)}",
                    f"v_sub_f32 {v(b + 3)}, {v(b)}, {v(b + 3)}",
                    f"v_sub_f32 {v(b + 4)}, {v(b + 1)}, {v(b + 4)}",
                    f"v_cvt_pk_bf16_f32 {v(b + 3)}, {v(b + 3)}, {v(b + 4)}",
                    f"v_perm_b32 {v(vAUG + 4 * rt)}, {v(b + 2)}, {v(b + 2)}, {s(sP1)}",
                    f"v_bfi_b32 {v(vAUG + 4 * rt + 1)}, {s(sT2)}, {v(b + 3)}, {v(b + 2)}",
                    f"v_perm_b32 {v(vAUG + 4 * rt + 2)}, {v(b + 3)}, {v(b + 2)}, {s(sP1 + 1)}",
                    f"v_mov_b32 {v(vAUG + 4 * rt + 3)}, 0"]
        return ops

    def helper_tail(self):
        a = self.a
        a("L_helper_tail:")
        a.vm_done, a.lg_done = a.vm_n, a.lg_n
        n_att = self.o.get("n_att", 14)
        a("s_barrier")
        for i in range(n_att // 2, 14):
            self.dma(15, SWG, sT5, LA + i * 4096, sWSRC, i * 32 * 3584)
            self.dma(6, SWU, sT5, LB + i * 4096, sWSRC, i * 32 * 3584)
        if self.o.get("wdt", 3) == 2:
            self.wd_first_touch()
        a(f"s_sub_u32 {s(sT4)}, {s(sM)}, 28")
        a(f"s_lshl3_add_u32 {s(sT4)}, {s(sT4)}, {s(sG)}")
        a(f"s_cmp_ge_u32 {s(sT4)}, 28")
        a("s_cbranch_scc1 L_no_uv")
        self.uv_job(sT4)
        self.stamp(11)
        a("L_no_uv:")
        if self.o.get("wdt", 3) == 3:
            self.wd_first_touch()
        if self.o.get("hl2", 0):
            a(f"s_sub_u32 {s(sT2)}, {s(sM)}, 28")
            a(f"s_lshl_b32 {s(sT2)}, {s(sT2)}, 2")
            a(f"s_add_u32 {s(sT2)}, {s(sT2)}, {s(sW)}")
            a(f"v_lshlrev_b32 v8, 3, {v(vL16)}")
            row0 = 16 * self.o.get("n_att", 14)
            nins = -(-(448 - row0) * 28 // (64 * 16))
            a(f"s_lshl_b32 {s(sT0)}, {s(sT2)}, 13")
            a(f"s_add_u32 {s(sT0)}, {s(sT0)}, {row0 * 3584}")
            for i in range(nins if self.o.get("hl2_gu", 1) else 0):
                self.touch(8, SWG, sT0)
                self.touch(8, SWU, sT0)
                a(f"s_add_u32 {s(sT0)}, {s(sT0)}, {16 * 8192}")
                a("s_waitcnt vmcnt(2)")
            a(f"s_and_b32 {s(sT0)}, {s(sT2)}, 3")
            a(f"s_mul_i32 {s(sT0)}, {s(sT0)}, {448 * 896}")
            a(f"s_lshr_b32 {s(sT1)}, {s(sT2)}, 2")
            a(f"s_mul_i32 {s(sT1)}, {s(sT1)}, {8 * 896}")
            a(f"s_add_u32 {s(sT0)}, {s(sT0)}, {s(sT1)}")
            a("s_mov_b32 exec_hi, 0x00ffffff")
            for i in range(14 if self.o.get("hl2_d", 1) else 0):
                self.touch(8, SWD, sT0)
                a(f"s_add_u32 {s(sT0)}, {s(sT0)}, {32 * 896}")
                a("s_waitcnt vmcnt(2)")
            a("s_mov_b64 exec, -1")
        if self.o.get("wb", 0) and self.stop is None:
            a(f"s_cmp_lg_u32 {s(sM)}, 28")
            a("s_cbranch_scc1 L_end")
            a(f"s_cmp_lg_u32 {s(sW)}, 0")
            a("s_cbranch_scc1 L_end")
            for ph in (2, 3, 4):
                if self.o["wb"] >> (ph - 2) & 1:
                    self.poll_local(ph, 28, 8)
                    a("buffer_wbl2 sc1")
                    a.wait_all()
        self.finish()

    def body(self, slow):
        self.slow = slow
        a = self.a
        if slow:
            a("L_p1_slow:")
        a.lg_done = a.lg_n
        self.p1_q()
        self.p2()
        if self.stop == 2:
            return self.finish()
        self.p3()
        if self.stop == 3:
            return self.finish()
        self.p45()
        self.finish()

    def flush_tail(self):
        for blk in self.tail:
            for t in blk:
                self.a(t)
        self.tail = []

    def build(self):
        a = self.a
        self.entry()
        self.p1_front()
        self.p1_gemm()
        self.body(False)
        self.in_helper = True
        self.helper()
        self.helper_tail()
        self.in_helper = False
        self.flush_tail()
        a("L_abort:")
        a("s_mov_b64 exec, -1")
        a("L_end:")
        if self.prof:
            a(f"s_lshl_b32 {s(sT0)}, s2, 2")
            a(f"s_add_u32 {s(sT0)}, {s(sT0)}, {s(sW)}")
            a(f"s_lshl_b32 {s(sT0)}, {s(sT0)}, 8")
            a(f"s_add_u32 {s(sT0)}, {s(sT0)}, {PROF}")
            a("s_waitcnt vmcnt(0)")
            self.stamp(20)
            a(f"v_lshrrev_b32 v8, 2, {v(vL16)}")
            a(f"buffer_store_dword {v(vSTAMP)}, v8, {srd(SWS)}, {s(sT0)} offen")
        if self.o.get("diag_cycles"):
            a(f"s_mov_b32 {s(sT0)}, {self.o['diag_cycles'] // 1024}")
            a("L_diag:")
            for i in range(256):
                a(f"v_fma_f32 v{8 + i % 16}, v8, v9, v10")
            a(f"s_sub_u32 {s(sT0)}, {s(sT0)}, 1")
            a(f"s_cmp_lg_u32 {s(sT0)}, 0")
            a("s_cbranch_scc1 L_diag")
        if self.o.get("diag_wall"):
            a("s_waitcnt vmcnt(0)")
            a(f"v_readlane_b32 s101, {v(vSTAMP)}, 0")
            a("L_diag:")
            a(f"s_memrealtime {s(sST, 2)}")
            a("s_waitcnt lgkmcnt(0)")
            a(f"s_sub_u32 {s(sT0)}, {s(sST)}, s101")
            a(f"s_cmp_lt_u32 {s(sT0)}, {self.o['diag_wall']}")
            a("s_cbranch_scc1 L_diag")
        a("L_exit:")
        a("s_endpgm")
        a("L_fast_end:")
        self.body(True)
        self.flush_tail()
        a("s_endpgm")
        return a.text()


HEADER = """; Fused adaLN block: x + ga*Attn(LN(x)*(1+ca)+sa), then + gb*ReGLU-FFN(LN(.)*(1+cb)+sb); one persistent launch.
; per-launch value derived from ws[0]. Each group checks at run time (HW_REG_XCC_ID) that its members share a die;
; @launch grid=(256,1,1) block=(256,1,1) lds={lds}
.amdgcn_target "amdgcn-amd-amdhsa--gfx950"
.text
.globl {k}
.p2align 8
.type {k},@function
{k}:
"""
FOOTER = """
.section .rodata,"a"
.p2align 6
.amdhsa_kernel {k}
  .amdhsa_next_free_vgpr 512
  .amdhsa_next_free_sgpr 102
  .amdhsa_accum_offset 256
  .amdhsa_group_segment_fixed_size 0
  .amdhsa_kernarg_size 96
  .amdhsa_user_sgpr_count 2
  .amdhsa_user_sgpr_kernarg_segment_ptr 1
  .amdhsa_system_sgpr_workgroup_id_x 1
  .amdhsa_float_denorm_mode_32 3
.end_amdhsa_kernel
"""


def generate(prof=False, stop=None, opts=None):
    g = Gen(prof, stop, opts)
    body = g.build()
    return HEADER.format(k=KNAME, lds=LDS_BYTES) + body + FOOTER.format(k=KNAME), g


if __name__ == "__main__":
    out = sys.argv[1] if len(sys.argv) > 1 else f"cdna_kernels/{NAME}.s"
    opts = dict(kv.split("=") for kv in sys.argv[2:])
    opts = {k: int(x) for k, x in opts.items()}
    text, g = generate(prof=bool(opts.pop("prof", 0)), stop=opts.pop("stop", None), opts=opts)
    open(out, "w").write(text)
    print("wrote", out, len(text), "bytes;", len(g.a.ins), "lines;", g.a.nops, "hazard nops; model", getattr(g, "model", None))
    import collections
    print("gap histogram", sorted(collections.Counter(getattr(g, "gaps", [])).items()))
```

```python
import sys
from asmlib import Asm, v, a_, s

NAME = "adaLN_cond__sliding_block__glu_gated_reglu__prompt"
KNAME = NAME + "_kernel"

TILE_B = 28672
HT_B = 114688
QO, KO, VO, OO, YO, HO, STO, LFO = 0, 0x38000, 0x70000, 0, 0xA8000, 0x100000, 0xE0000, 0xE7000
XCCO, MODO, AFO, RFO, AUGO, PROF = 0x400, 0x1000, 0x4000, 0x8000, 0x20000, 0x100000
WS_BYTES = 0x1200000
OOB = 0x7F000000
SPIN_MAX = 1 << 18

LA, LB, LC, LD = 0, 57344, 114688, 159744
LDS_BYTES = 163840
L_KV = LC
L_XB = LC
L_X2 = LC + 16384
L_AUG = LC + 40960
L_T2 = LD
L_F = LC

SX, SWQKV, SWO, SWG, SWU, SWD, SOUT, SWS, SWMOD, SC = 4, 8, 12, 16, 20, 24, 28, 32, 36, 40
sG, sM, sW, sTAG, sGB, sRQ, sCB, sXCC, sSPIN = 44, 45, 46, 47, 48, 49, 50, 51, 52
sT0, sT1, sT2, sT3, sT4, sT5, sT6, sT7 = 53, 54, 55, 56, 57, 58, 59, 60
sRT, sCH, sTILE = 61, 62, 63
sHD, sB, sWS0, sMISS, sTQ, sKVL, sWSRC, sWO = 36, 37, 38, 39, 40, 41, 42, 43
sMASK = 64
sST = 96
sP0, sP1 = 98, 100

vL16, vSTAMP = 1, 7
vZ = 32
vX2, vGBP = 240, 248

QSCALE = 28 ** -0.5 * 1.4426950408889634


def f2u(x):
    import struct
    return struct.unpack("<I", struct.pack("<f", x))[0]


def srd(i):
    return s(i, 4)


class Gen:
    def __init__(self, prof=False, stop=None, opts=None):
        self.a = Asm()
        self.prof = prof
        self.stop = stop
        self.o = opts or {}
        self.tail = []
        self.slow = False

    def stamp(self, i):
        if self.o.get("diag_wall") and self.o.get("diag_at") == i and not getattr(self, "in_helper", False):
            self.a(f"s_memrealtime {s(sST, 2)}")
            self.a.wait_all(vm=False)
            self.a(f"v_writelane_b32 {v(vSTAMP)}, {s(sST)}, 0")
        if not self.prof:
            return
        only = self.o.get("stamps")
        if only is not None and i != 20 and not (only >> i) & 1:
            return
        a = self.a
        if i == 20:
            a(f"s_memrealtime {s(sST, 2)}")
            a.wait_all(vm=False)
            a(f"v_writelane_b32 {v(vSTAMP)}, {s(sST)}, {i}")
        a(f"s_mem{'real' if self.o.get('rt') else ''}time {s(sST, 2)}")
        a.wait_all(vm=False)
        a(f"v_writelane_b32 {v(vSTAMP)}, {s(sST)}, {32 + i}")

    def dma(self, vaddr, sr, lds_base, lds_off, src_base, src_off, sc1=False, imm=0):
        a = self.a
        lo = lds_off - imm
        if lds_base is None:
            a(f"s_mov_b32 m0, {lo}")
        else:
            a(f"s_add_u32 m0, {s(lds_base)}, {lo}" if lo >= 0 else f"s_sub_u32 m0, {s(lds_base)}, {-lo}")
        if src_off:
            a(f"s_add_u32 {s(sT7)}, {s(src_base)}, {src_off}")
            so = sT7
        else:
            so = src_base
        return a.vm(f"buffer_load_dwordx4 {v(vaddr)}, {srd(sr)}, {s(so)} offen"
                    + (f" offset:{imm}" if imm else "") + (" sc1" if sc1 else "") + " lds")

    def st(self, what=None):
        return " sc1" if self.slow or self.o.get("sc_" + str(what), what == "h") else ""

    def poll(self, loads, tagregs, exec_lo=None, exec_hi=None, preloaded=False):
        a = self.a
        L = a.label("poll")
        if exec_lo is not None:
            a(f"s_mov_b32 exec_lo, {exec_lo:#x}")
        if exec_hi is not None:
            a(f"s_mov_b32 exec_hi, {exec_hi:#x}")
        a(f"s_mov_b32 {s(sSPIN)}, 0")
        if not preloaded:
            for t in loads:
                a(t)
        a(f"{L}:")
        a.wait_all(lg=False)
        t0, rest = tagregs[0], list(tagregs[1:])
        if len(tagregs) > 2:
            acc = 255
            a(f"v_xor_b32 {v(acc)}, {s(sTAG)}, {v(t0)}")
            for r in rest:
                a(f"v_bitop3_b32 {v(acc)}, {v(acc)}, {v(r)}, {s(sTAG)} bitop3:0xf6")
            a(f"v_cmp_ne_u32 vcc, 0, {v(acc)}")
        else:
            a(f"v_cmp_ne_u32 vcc, {s(sTAG)}, {v(t0)}")
            for r in rest:
                a(f"v_cmp_ne_u32 {s(sP0, 2)}, {s(sTAG)}, {v(r)}")
                a(f"s_or_b64 vcc, vcc, {s(sP0, 2)}")
        a(f"s_cbranch_vccnz {L}_again")
        if exec_lo is not None or exec_hi is not None:
            a("s_mov_b64 exec, -1")
        self.tail.append([f"{L}_again:"] + list(loads) +
                         [f"s_add_u32 {s(sSPIN)}, {s(sSPIN)}, 1", f"s_cmp_gt_u32 {s(sSPIN)}, {SPIN_MAX}",
                          f"s_cbranch_scc0 {L}", "s_branch L_abort"])

    def check_tags(self, loads, tagregs):
        a = self.a
        L = a.label("chk")
        chk = [f"v_xor_b32 v255, {s(sTAG)}, {v(tagregs[0])}"]
        chk += [f"v_bitop3_b32 v255, v255, {v(r)}, {s(sTAG)} bitop3:0xf6" for r in tagregs[1:]]
        chk += ["v_cmp_ne_u32 vcc, 0, v255"]
        for t in chk:
            a(t)
        a(f"s_cbranch_vccnz {L}")
        a(f"{L}_back:")
        self.tail.append([f"{L}:", f"s_mov_b32 {s(sSPIN)}, 0", f"{L}_spin:"] + list(loads) +
                         [f"s_add_u32 {s(sSPIN)}, {s(sSPIN)}, 1", f"s_cmp_gt_u32 {s(sSPIN)}, {SPIN_MAX}",
                          "s_cbranch_scc1 L_abort", "s_waitcnt vmcnt(0)"] + chk +
                         [f"s_cbranch_vccnz {L}_spin", f"s_branch {L}_back"])

    def local_flag(self, phase, vt, ticket=None, temps=(sT0, sT1)):
        a = self.a
        t0 = temps[0]
        a(f"s_lshl2_add_u32 {s(t0)}, {s(sM)}, {s(sW)}")
        a(f"s_lshl2_add_u32 {s(t0)}, {s(t0)}, {LFO + phase * 512}")
        a(f"v_mov_b32 {v(vt)}, {s(t0)}")
        a(f"v_mov_b32 {v(vt + 1)}, {s(sTAG)}")
        if ticket is None:
            a.wait_all(lg=False)
        else:
            a.wait(vm=ticket)
        a("s_mov_b64 exec, 1")
        a(f"buffer_store_dword {v(vt + 1)}, {v(vt)}, {srd(SWS)}, {s(sGB)} offen{self.st('f')}")
        a("s_mov_b64 exec, -1")

    def poll_local(self, phase, nprod, vt):
        a = self.a
        a(f"v_lshrrev_b32 {v(vt)}, 1, {v(vL16)}")
        a(f"s_add_u32 {s(sT0)}, {s(sGB)}, {LFO + phase * 512}")
        self.poll([f"buffer_load_dwordx2 {v(vt + 2, 2)}, {v(vt)}, {srd(SWS)}, {s(sT0)} offen sc1"], [vt + 2, vt + 3],
                  exec_hi=None if nprod == 32 else 0x00FFFFFF)

    def tr_pattern(self, vd, vt, perm, ct_sgpr=None, ct_imm=0):
        a = self.a
        a(f"v_lshrrev_b32 {v(vt)}, 4, {v(vL16)}")
        a(f"v_bfe_u32 {v(vt + 1)}, {v(vt)}, 2, 2")
        a(f"v_lshrrev_b32 {v(vt + 2)}, 5, {v(vt)}")
        a(f"v_lshl_add_u32 {v(vt + 2)}, {v(vt + 2)}, 3, {v(vt + 1)}")
        a(f"v_lshlrev_b32 {v(vd)}, 7, {v(vt + 2)}")
        a(f"v_lshrrev_b32 {v(vt + 1)}, 1, {v(vt + 1)}")
        a(f"v_lshlrev_b32 {v(vt + 1)}, 6, {v(vt + 1)}")
        if perm:
            a(f"v_and_b32 {v(vt + 2)}, 1, {v(vt)}")
            a(f"v_lshlrev_b32 {v(vt + 2)}, 4, {v(vt + 2)}")
            a(f"v_xor_b32 {v(vt + 1)}, {v(vt + 1)}, {v(vt + 2)}")
            a(f"v_and_b32 {v(vt + 2)}, 2, {v(vt)}")
            a(f"v_lshlrev_b32 {v(vt + 2)}, 2, {v(vt + 2)}")
        else:
            a(f"v_and_b32 {v(vt + 2)}, 3, {v(vt)}")
            a(f"v_lshlrev_b32 {v(vt + 2)}, 3, {v(vt + 2)}")
        a(f"v_xor_b32 {v(vt + 1)}, {v(vt + 1)}, {v(vt + 2)}")
        a(f"v_and_b32 {v(vt + 2)}, 16, {v(vt)}")
        a(f"v_lshlrev_b32 {v(vt + 2)}, 1, {v(vt + 2)}")
        a(f"v_xor_b32 {v(vt + 1)}, {v(vt + 1)}, {v(vt + 2)}")
        if ct_sgpr is not None:
            a(f"s_lshl_b32 {s(sT0)}, {s(ct_sgpr)}, 6")
            a(f"v_xor_b32 {v(vt + 1)}, {s(sT0)}, {v(vt + 1)}")
        elif ct_imm:
            a(f"v_xor_b32 {v(vt + 1)}, {ct_imm * 64}, {v(vt + 1)}")
        a(f"v_add_u32 {v(vd)}, {v(vd)}, {v(vt + 1)}")

    def w_dma_pattern(self, vd, vt, stride, up=False):
        a = self.a
        a(f"v_lshrrev_b32 {v(vt)}, 7, {v(vL16)}")
        a(f"v_mul_u32_u24 {v(vd)}, {stride}, {v(vt)}")
        a(f"v_and_b32 {v(vt)}, 2, {v(vt)}")
        a(f"v_lshlrev_b32 {v(vt)}, 5, {v(vt)}")
        a(f"v_and_b32 {v(vt + 1)}, 0x70, {v(vL16)}")
        a(f"v_xor_b32 {v(vt)}, {v(vt)}, {v(vt + 1)}")
        if up:
            a(f"v_xor_b32 {v(vt)}, 32, {v(vt)}")
        a(f"v_add_u32 {v(vd)}, {v(vd)}, {v(vt)}")

    def tr2(self, dst, vaddr, off):
        f = v if dst[0] == "v" else a_
        self.a.lg(f"ds_read_b64_tr_b16 {f(dst[1], 2)}, {v(vaddr)} offset:{off}")
        return self.a.lg(f"ds_read_b64_tr_b16 {f(dst[1] + 2, 2)}, {v(vaddr)} offset:{off + 512}")

    def both_halves(self, vx, vt, op):
        a = self.a
        a(f"v_mov_b32 {v(vt)}, {v(vx)}")
        a(f"v_permlane32_swap_b32 {v(vt)}, {v(vx)}")
        a(f"{op} {v(vx)}, {v(vx)}, {v(vt)}")

    def finish(self):
        self.a("s_branch L_end")

    def entry(self):
        a = self.a
        KA = 64
        self.ptr = {SX: 0, SWQKV: 1, SWO: 2, SWG: 4, SWU: 5, SWD: 6, SC: 7, SWMOD: 8, SOUT: 9, SWS: 11}
        self.size = {SX: 2048 * 896, SWQKV: 448 * 2688, SWO: 448 * 896, SWG: 448 * 3584, SWU: 448 * 3584,
                     SWD: 1792 * 896, SOUT: 2048 * 896, SWS: WS_BYTES, SWMOD: 448 * 5376, SC: 896}
        a(f"s_load_dwordx16 {s(KA, 16)}, s[0:1], 0")
        a(f"s_load_dwordx8 {s(KA + 16, 8)}, s[0:1], 64")
        a("s_lshr_b32 s3, s2, 8")
        a("s_cbranch_scc1 L_exit")
        if self.o.get("hfirst", 1):
            a("s_add_u32 s2, s2, 224")
            a("s_and_b32 s2, s2, 255")
        if self.prof or self.o.get("diag_wall"):
            a(f"v_mov_b32 {v(vSTAMP)}, 0")
            a(f"s_memrealtime {s(sST, 2)}")
        a("v_lshrrev_b32 v2, 6, v0")
        a("v_and_b32 v3, 63, v0")
        a(f"v_readfirstlane_b32 {s(sW)}, v2")
        a(f"s_getpc_b64 {s(sP0, 2)}")
        a("L_pc:")
        a(f"s_lshr_b32 {s(sM)}, s2, 3")
        a(f"s_lshl2_add_u32 {s(sT0)}, {s(sM)}, {s(sW)}")
        a(f"s_lshl_b32 {s(sT0)}, {s(sT0)}, 9")
        a(f"v_lshl_add_u32 v4, v3, 7, {s(sT0)}")
        a("v_min_u32 v4, L_fast_end-L_pc-4, v4")
        a("s_mov_b64 exec, 15")
        a.vm(f"global_load_dword {a_(255)}, v4, {s(sP0, 2)}")
        a("s_mov_b64 exec, -1")
        a(f"v_lshlrev_b32 {v(vL16)}, 4, v3")
        a(f"s_and_b32 {s(sG)}, s2, 7")
        a(f"s_mul_i32 {s(sRQ)}, {s(sM)}, 37")
        a(f"s_lshr_b32 {s(sRQ)}, {s(sRQ)}, 8")
        a(f"s_cmp_ge_u32 {s(sM)}, 28")
        a("s_cbranch_scc1 L_helper0")

    def make_srd(self, *rs):
        for r in rs:
            self.a(f"s_mov_b64 {s(r, 2)}, {s(64 + 2 * self.ptr[r], 2)}")
            self.a(f"s_mov_b32 {s(r + 2)}, {self.size[r]:#x}")
            self.a(f"s_mov_b32 {s(r + 3)}, 0x20000")

    def first_stamp(self):
        a = self.a
        if self.prof:
            a(f"v_writelane_b32 {v(vSTAMP)}, {s(sST)}, 0")
            a(f"s_mem{'real' if self.o.get('rt') else ''}time {s(sST, 2)}")
            a("s_waitcnt lgkmcnt(0)")
            a(f"v_writelane_b32 {v(vSTAMP)}, {s(sST)}, 32")
        if self.o.get("diag_wall"):
            a(f"v_writelane_b32 {v(vSTAMP)}, {s(sST)}, 0")

    def common_setup(self, done):
        a = self.a
        self.make_srd(*[r for r in (SWS, SX, SWQKV, SWO, SWG, SWU, SWD, SOUT) if r not in done])
        a(f"s_load_dword {s(sTAG)}, {s(SWS, 2)}, 0")
        a(f"s_getreg_b32 {s(sXCC)}, hwreg(HW_REG_XCC_ID, 0, 4)")
        a(f"s_add_u32 {s(sGB)}, {s(sG)}, 1")
        a(f"s_lshl_b32 {s(sGB)}, {s(sGB)}, 21")
        a(f"s_mul_i32 {s(sT0)}, {s(sRQ)}, 7")
        a(f"s_sub_u32 {s(sCB)}, {s(sM)}, {s(sT0)}")
        a(f"s_lshr_b32 {s(sRT)}, {s(sW)}, 1")
        a(f"s_and_b32 {s(sCH)}, {s(sW)}, 1")
        a(f"s_lshl1_add_u32 {s(sTILE)}, {s(sRQ)}, {s(sRT)}")
        if self.o.get("tlb", 0):
            a(f"s_sub_u32 {s(sT0)}, {s(sGB)}, 0x200000")
            a(f"s_cmp_eq_u32 {s(sW)}, 3")
            a("s_cselect_b64 exec, 1, 0")
            for r in (SWO, SWG, SWU, SWD, SOUT):
                a(f"buffer_load_dword {a_(255)}, {v(vL16)}, {srd(r)}, 0 offen")
            a(f"buffer_load_dword {a_(255)}, {v(vL16)}, {srd(SWS)}, {s(sGB)} offen")
            a(f"buffer_load_dword {a_(255)}, {v(vL16)}, {srd(SWS)}, {s(sT0)} offen")
            a("s_mov_b64 exec, -1")

    def warm0(self):
        a = self.a
        a(f"s_lshl2_add_u32 s3, s2, {s(sW)}")
        a("v_lshlrev_b32 v4, 7, v3")
        a(f"s_lshr_b32 {s(sT3)}, s3, 1")
        a(f"s_and_b32 {s(sT1)}, s3, 1")
        a(f"s_mul_i32 {s(sT1)}, {s(sT1)}, 896")
        a(f"s_mul_i32 {s(sT0)}, {s(sT3)}, 5376")
        a(f"s_add_u32 {s(sT0)}, {s(sT0)}, {s(sT1)}")
        a(f"s_mul_i32 {s(sT3)}, {s(sT3)}, 2688")
        a(f"s_add_u32 {s(sT1)}, {s(sT1)}, {s(sT3)}")
        a(f"s_and_b32 {s(sT3)}, s3, 511")
        a(f"s_lshl_b32 {s(sT3)}, {s(sT3)}, 7")
        a("s_mov_b64 exec, 0x7f")
        if self.o.get("warm0", 1) & 1:
            a(f"buffer_load_dword {a_(255)}, v4, {srd(SWMOD)}, {s(sT0)} offen")
        a(f"buffer_load_dword {a_(255)}, v4, {srd(SWQKV)}, {s(sT1)} offen offset:896")
        a("s_mov_b64 exec, 1")
        a(f"buffer_load_dword {a_(255)}, v4, {srd(SWS)}, {s(sT3)} offen")
        a("s_mov_b64 exec, -1")

    def touch(self, vaddr, sr, soff, lanes=64):
        a = self.a
        if lanes < 64:
            a(f"s_mov_b64 exec, {(1 << lanes) - 1:#x}")
        t = a.vm(f"buffer_load_dword {a_(255)}, {v(vaddr)}, {srd(sr)}, {s(soff)} offen")
        if lanes < 64:
            a("s_mov_b64 exec, -1")
        return t

    def make_tag_and_publish_xcc(self, vt):
        a = self.a
        a.wait_all(vm=False)
        a(f"s_mul_i32 {s(sTAG)}, {s(sTAG)}, 1664525")
        a(f"s_add_u32 {s(sTAG)}, {s(sTAG)}, 1013904223")
        a(f"s_lshl_b32 {s(sT0)}, {s(sG)}, 8")
        a(f"s_lshl_b32 {s(sT1)}, {s(sM)}, 3")
        a(f"s_add_u32 {s(sT0)}, {s(sT0)}, {s(sT1)}")
        a(f"v_mov_b32 {v(vt)}, {s(sXCC)}")
        a(f"v_mov_b32 {v(vt + 1)}, {s(sTAG)}")
        a(f"v_mov_b32 {v(vt + 2)}, {XCCO}")
        a(f"s_cmp_eq_u32 {s(sW)}, 0")
        a("s_cselect_b64 exec, 1, 0")
        a.vm(f"buffer_store_dwordx2 {v(vt, 2)}, {v(vt + 2)}, {srd(SWS)}, {s(sT0)} offen sc1")
        a("s_mov_b64 exec, -1")

    def xcc_load(self, vaddr, vd):
        a = self.a
        a(f"v_bfe_u32 {v(vaddr)}, {v(vL16)}, 1, 8")
        a(f"s_lshl_b32 {s(sT7)}, {s(sG)}, 8")
        a(f"v_add_u32 {v(vaddr)}, {s(sT7)}, {v(vaddr)}")
        return f"buffer_load_dwordx2 {v(vd, 2)}, {v(vaddr)}, {srd(SWS)}, 0 offen offset:{XCCO} sc1"

    def choose_mode(self, vd, slow_label):
        a = self.a
        a(f"v_cmp_ne_u32 vcc, {s(sXCC)}, {v(vd)}")
        if self.o.get("force_slow"):
            a(f"s_branch {slow_label}")
        else:
            a(f"s_cbranch_vccnz {slow_label}")

    def p1_front(self):
        a = self.a
        vPW, vRAW, vS, vQ2 = 6, 160, 224, 240
        a(f"v_mov_b32 v5, {OOB}")
        a("v_cmp_gt_u32 vcc, 56, v3")
        a(f"s_lshl2_add_u32 {s(sT2)}, {s(sG)}, {s(sRQ)}")
        a(f"s_lshl2_add_u32 {s(sT2)}, {s(sT2)}, {s(sW)}")
        a(f"s_mul_i32 {s(sT2)}, {s(sT2)}, {16 * 896}")
        a(f"v_cndmask_b32 v5, v5, {v(vL16)}, vcc")
        a(f"s_mul_i32 {s(sT0)}, {s(sRQ)}, 7")
        a(f"s_sub_u32 {s(sCB)}, {s(sM)}, {s(sT0)}")
        a(f"s_lshl_b32 {s(sT0)}, {s(sCB)}, 7")
        a("v_mul_u32_u24 v4, 896, v3")
        a(f"s_add_u32 {s(sT0)}, {s(sT0)}, {s(sT2)}")
        a("s_waitcnt lgkmcnt(0)")
        self.first_stamp()
        self.make_srd(SX)
        if self.o.get("xt", 1):
            a("s_mov_b64 exec, 0xffff")
            a(f"buffer_load_dword {a_(255)}, v4, {srd(SX)}, {s(sT0)} offen")
            a("s_mov_b64 exec, -1")
        tx = []

        def ldx():
            r = len(tx)
            if r < 16:
                if r and r % 4 == 0:
                    a(f"s_add_u32 {s(sT2)}, {s(sT2)}, {4 * 896}")
                tx.append(a.vm(f"buffer_load_dwordx4 {v(vRAW + 4 * r, 4)}, v5, {srd(SX)}, {s(sT2)} offen offset:{(r % 4) * 896}"))

        xf = self.o.get("x_first", 8)
        for r in range(self.o.get("x_pre", 4)):
            ldx()
        self.make_srd(SWMOD, SWQKV, SWS)
        if self.o.get("warm0", 1):
            self.warm0()
        while len(tx) < xf:
            ldx()
        self.stamp(28)
        a("s_branch L_front")
        self.helper_first_loads()
        a("L_front:")
        self.common_setup((SX, SWQKV, SWS))
        self.w_dma_pattern(vPW, 8, 2688)
        a(f"s_mul_i32 {s(sT0)}, {s(sW)}, {8 * 2688}")
        a(f"s_lshl_b32 {s(sT1)}, {s(sCB)}, 7")
        a(f"s_add_u32 {s(sT4)}, {s(sT0)}, {s(sT1)}")
        a(f"s_lshl_b32 {s(sT5)}, {s(sW)}, 10")
        self.tr_pattern(2, 8, True, ct_sgpr=sCH)
        self.tr_pattern(4, 8, False, ct_sgpr=sCH)
        a(f"v_add_u32 v3, {LC}, v4")
        a(f"v_add_u32 v2, {LB}, v2")
        self.w1_prepare()
        a(f"s_mul_i32 {s(sT0)}, {s(sRT)}, {TILE_B}")
        a(f"s_lshl_b32 {s(sT1)}, {s(sCH)}, 8")
        a(f"s_add_u32 {s(sT1)}, {s(sT1)}, {s(sT0)}")
        a(f"v_lshlrev_b32 v16, 5, {v(vL16)}")
        a(f"v_and_b32 v12, 0x70, {v(vL16)}")
        a(f"v_add3_u32 v16, v16, v12, {s(sT1)}")
        a(f"v_cmp_gt_u32 vcc, 896, {v(vL16)}")
        a("v_mov_b32 v12, 0x100000")
        a("v_cndmask_b32 v16, v12, v16, vcc")
        for r in range(1, 8):
            a(f"v_xor_b32 {v(16 + r)}, {16 * r}, v16")
        a(f"v_lshrrev_b32 v12, 9, {v(vL16)}")
        a("v_lshlrev_b32 v12, 4, v12")
        a(f"v_xor_b32 v12, v12, {v(vL16)}")
        a(f"v_add_u32 v8, {s(sT0)}, v12")
        for q in range(1, 4):
            a(f"v_xor_b32 {v(8 + q)}, {32 * q}, v8")
        a(f"v_min_u32 v30, 880, {v(vL16)}")
        a("v_lshlrev_b32 v30, 1, v30")
        self.xl = self.xcc_load(15, 12)
        wq = [(sT5, LA + i * 4096, sT4, 1792 + (12 + i) * 32 * 2688) for i in range(2)]
        for i in range(14):
            wq.append((sT5, LB + i * 4096, sT4, 896 + i * 32 * 2688))
            if i < 12:
                wq.append((sT5, LC + i * 4096, sT4, 1792 + i * 32 * 2688))
        n_early = self.o.get("n_early", 28)
        wt = []

        def wdma(n=1):
            for _ in range(n):
                if len(tx) < 16:
                    ldx()
                elif wq and (len(wt) < n_early or n == 99):
                    lb, lo, sb, so = wq.pop(0)
                    wt.append(self.dma(vPW, SWQKV, lb, lo, sb, so))

        a("s_mov_b32 s36, 0xffff0000")
        a("s_mov_b32 s37, 0x3f803f80")
        self.stamp(29)
        for r in range(16):
            a.wait(vm=tx[r])
            if r == 0:
                self.stamp(1)
            if r == self.o.get("tag_r", 6):
                self.make_tag_and_publish_xcc(12)
            if r == self.o.get("mq_r", 9) and self.o.get("mq", 1):
                a("s_mov_b64 exec, 15")
                a(f"buffer_load_dword {a_(255)}, v29, {srd(SWQKV)}, 0 offen")
                a(f"buffer_load_dword {a_(255)}, v28, {srd(SWO)}, 0 offen")
                R = self.o.get("pf_rows", 0)
                if R and self.o.get("pf_mall", 1):
                    a(f"s_mov_b64 exec, {(1 << (R // 32)) - 1}")
                    a(f"buffer_load_dword {a_(255)}, v253, {srd(SWG)}, 0 offen")
                    a(f"buffer_load_dword {a_(255)}, v253, {srd(SWU)}, 0 offen")
                a("s_mov_b64 exec, -1")
            raw, z = vRAW + 4 * r, vZ + 8 * r
            for j in range(4):
                a(f"v_dot2_f32_bf16 {v(vS + r)}, {v(raw + j)}, s37, {v(vS + r) if j else 0}")
                a(f"v_dot2_f32_bf16 {v(vQ2 + r)}, {v(raw + j)}, {v(raw + j)}, {v(vQ2 + r) if j else 0}")
                a(f"v_lshlrev_b32 {v(z + 2 * j)}, 16, {v(raw + j)}")
                a(f"v_and_b32 {v(z + 2 * j + 1)}, s36, {v(raw + j)}")
                if j == 0 or (j == 2 and r < self.o.get("x_fast", 6)):
                    wdma(1)
        self.stamp(30)
        for i in range(16):
            a(f"v_permlane32_swap_b32 {v(vS + i)}, {v(vQ2 + i)}")
        wdma(1)
        for i in range(16):
            a(f"v_add_f32 {v(vS + i)}, {v(vS + i)}, {v(vQ2 + i)}")
        wdma(1)
        for i in range(8):
            a(f"v_permlane16_swap_b32 {v(vS + i)}, {v(vS + 8 + i)}")
        for i in range(8):
            a(f"v_add_f32 {v(vS + i)}, {v(vS + i)}, {v(vS + 8 + i)}")
        wdma(1)
        for sh in (8, 4, 2, 1):
            for i in range(8):
                a(f"v_add_f32_dpp {v(vS + i)}, {v(vS + i)}, {v(vS + i)} row_ror:{sh} row_mask:0xf bank_mask:0xf")
            if sh in (4, 1):
                wdma(1)
        a(f"s_mov_b32 {s(sP0)}, 0x02020202")
        a(f"s_mov_b32 {s(sP0 + 1)}, {s(sP0)}")
        for j in range(1, 8):
            a(f"v_cndmask_b32 {v(vS)}, {v(vS)}, {v(vS + j)}, {s(sP0, 2)}")
            a(f"s_lshl_b64 {s(sP0, 2)}, {s(sP0, 2)}, 1")
        wdma(1)
        a(f"v_mov_b32 v12, {v(vS)}")
        a(f"v_permlane32_swap_b32 v12, {v(vS)}")
        a(f"v_mul_f32 v12, {f2u(1 / 448):#x}, v12")
        a(f"v_mul_f32 v13, {f2u(1 / 448):#x}, {v(vS)}")
        a("v_fma_f32 v13, -v12, v12, v13")
        a("v_max_f32 v13, 0, v13")
        a(f"v_add_f32 v13, {f2u(1e-5):#x}, v13")
        a("v_rsq_f32 v13, v13")
        a("v_mul_f32 v12, v12, v13")
        a("v_sub_f32 v12, 0, v12")
        wdma(1)
        for r in range(16):
            ln = 16 * (r >> 3) + (r & 7)
            a(f"v_readlane_b32 {s(sMASK + 2 * r)}, v13, {ln}")
            a(f"v_readlane_b32 {s(sMASK + 2 * r + 1)}, v12, {ln}")
            if r % 8 == 7:
                wdma(1)
        g0 = vRAW
        a(f"s_mov_b32 {s(sT0)}, {MODO}")
        loads = [f"buffer_load_dwordx4 {v(g0 + 4 * i, 4)}, v30, {srd(SWS)}, {s(sT0)} offen offset:{(i >> 1) * 1792 + (i & 1) * 16} sc1"
                 for i in range(4)]
        tags = [g0 + 2 * i + 1 for i in range(8)]
        wdma(28)
        pr = self.o.get("poll_r", 0)
        a.wait(vm=wt[1])
        a("s_barrier")
        for k in range(4):
            self.tr2(("a", 4 * k), 4, k * 2048)
        for r in range(17):
            if r == pr:
                for t in loads:
                    t_poll = a.vm(t)
            if r == 16:
                break
            p = s(sMASK + 2 * r, 2)
            for j in range(4):
                z = v(vZ + 8 * r + 2 * j, 2)
                a(f"v_pk_fma_f32 {z}, {z}, {p}, {p} op_sel:[0,0,1] op_sel_hi:[1,0,1]")
        self.w_late = list(wq)
        a.wait_all(vm=False)
        a("s_barrier")
        self.stamp(2)
        a.wait(vm=t_poll)
        self.check_tags(loads, tags)
        self.stamp(3)
        self.w1_touch()
        vG, vB = g0 + 16, g0 + 24
        for j in range(4):
            a(f"v_lshlrev_b32 {v(vG + 2 * j)}, 16, {v(g0 + 8 + 2 * j)}")
            a(f"v_and_b32 {v(vG + 2 * j + 1)}, 0xffff0000, {v(g0 + 8 + 2 * j)}")
            a(f"v_lshlrev_b32 {v(vB + 2 * j)}, 16, {v(g0 + 2 * j)}")
            a(f"v_and_b32 {v(vB + 2 * j + 1)}, 0xffff0000, {v(g0 + 2 * j)}")
        for j in range(8):
            a(f"v_add_f32 {v(vG + j)}, 1.0, {v(vG + j)}")
        for j in range(4):
            a(f"v_cvt_pk_bf16_f32 {v(g0 + j)}, {v(vG + 2 * j)}, {v(vG + 2 * j + 1)}")
        for j in range(4):
            a(f"v_lshlrev_b32 {v(vG + 2 * j)}, 16, {v(g0 + j)}")
            a(f"v_and_b32 {v(vG + 2 * j + 1)}, 0xffff0000, {v(g0 + j)}")
        for r in range(16):
            z = vZ + 8 * r
            for j in range(4):
                a(f"v_pk_fma_f32 {v(z + 2 * j, 2)}, {v(z + 2 * j, 2)}, {v(vG + 2 * j, 2)}, {v(vB + 2 * j, 2)}")
            for j in range(4):
                a(f"v_cvt_pk_bf16_f32 {v(z + j)}, {v(z + 2 * j)}, {v(z + 2 * j + 1)}")
            a(f"ds_write_b128 {v(16 + (r & 7))}, {v(z, 4)} offset:{(r >> 3) * 128}")
        a.wait_all(vm=False)
        a("s_barrier")
        self.stamp(26)

    def w1_prepare(self):
        a = self.a
        a(f"v_lshrrev_b32 v24, 4, {v(vL16)}")
        a(f"s_lshl_b32 {s(sT0)}, {s(sRQ)}, 2")
        a(f"s_add_u32 {s(sT0)}, {s(sT0)}, {s(sW)}")
        a(f"s_mul_i32 {s(sT0)}, {s(sT0)}, 28")
        a(f"v_add_u32 v25, {s(sT0)}, v24")
        a("v_mul_u32_u24 v26, 2688, v25")
        a("v_mul_u32_u24 v25, 896, v25")
        a(f"s_lshl_b32 s3, {s(sCB)}, 7")
        a(f"s_mul_i32 {s(sT0)}, {s(sTILE)}, {TILE_B}")
        a(f"s_add_u32 {s(sT0)}, {s(sT0)}, {s(sGB)}")
        a(f"s_lshl_b32 {s(sT1)}, {s(sCB)}, 1")
        a(f"s_add_u32 {s(sT1)}, {s(sT1)}, {s(sCH)}")
        a(f"s_lshl_b32 {s(sT1)}, {s(sT1)}, 11")
        a(f"s_add_u32 {s(sT0)}, {s(sT0)}, {s(sT1)}")
        a(f"v_lshl_add_u32 v27, v24, 7, {s(sT0)}")
        a(f"s_lshl2_add_u32 {s(sT1)}, s2, {s(sW)}")
        a(f"s_lshr_b32 {s(sT0)}, {s(sT1)}, 1")
        a(f"s_and_b32 {s(sT1)}, {s(sT1)}, 1")
        a(f"s_mul_i32 {s(sT1)}, {s(sT1)}, 384")
        a(f"v_lshl_add_u32 v28, v24, 7, {s(sT1)}")
        a(f"s_mul_i32 {s(sT1)}, {s(sT0)}, 2688")
        a(f"v_add_u32 v29, {s(sT1)}, v28")
        a(f"s_mul_i32 {s(sT1)}, {s(sT0)}, 896")
        a(f"v_add_u32 v28, {s(sT1)}, v28")
        R = self.o.get("pf_rows", 0)
        if R:
            a(f"s_lshl2_add_u32 {s(sT1)}, s2, {s(sW)}")
            a(f"s_mul_i32 {s(sT1)}, {s(sT1)}, {R // 32 * 128}")
            a(f"v_lshl_add_u32 v253, v24, 7, {s(sT1)}")
            a(f"s_mul_i32 {s(sT0)}, {s(sW)}, {R // 4 * 3584}")
            a(f"s_lshl_b32 {s(sT1)}, {s(sM)}, 7")
            a(f"s_add_u32 s38, {s(sT0)}, {s(sT1)}")
            a("v_mul_u32_u24 v24, 3584, v24")

    def w1_touch(self):
        a = self.a
        if self.o.get("pf_qo", 1):
            a("s_mov_b64 exec, 0x0fffffff")
            a(f"buffer_load_dword {a_(255)}, v26, {srd(SWQKV)}, s3 offen")
            a(f"buffer_load_dword {a_(255)}, v25, {srd(SWO)}, s3 offen")
            a("s_mov_b64 exec, -1")
        if self.o.get("touch_q", 1):
            a("s_mov_b64 exec, 0xffff")
            a(f"buffer_load_dword {a_(255)}, v27, {srd(SWS)}, 0 offen")
            a("s_mov_b64 exec, -1")
        R = self.o.get("pf_rows", 0)
        if R:
            m = (1 << (R // 4)) - 1
            a(f"s_mov_b32 exec_lo, {m & 0xffffffff:#x}")
            a(f"s_mov_b32 exec_hi, {m >> 32:#x}")
            a(f"buffer_load_dword {a_(255)}, v24, {srd(SWG)}, s38 offen")
            a(f"buffer_load_dword {a_(255)}, v24, {srd(SWU)}, s38 offen")
            a("s_mov_b64 exec, -1")

    def p1_gemm(self):
        a = self.a
        vTK, vTV, vPW = 2, 3, 6
        vH1, cK, cV, cQ, vW = 32, 144, 160, 176, 192
        ht, wt = {}, {}

        def rdH(k):
            ht[k] = a.lg(f"ds_read_b128 {v(vH1 + 4 * k, 4)}, {v(8 + (k & 3))} offset:{k * 1024}")

        def store_addresses():
            a(f"s_mul_i32 {s(sT0)}, {s(sTILE)}, {TILE_B}")
            a(f"s_lshl_b32 {s(sT1)}, {s(sCB)}, 1")
            a(f"s_add_u32 {s(sT1)}, {s(sT1)}, {s(sCH)}")
            a(f"s_lshl_b32 {s(sT2)}, {s(sT1)}, 11")
            a(f"s_add_u32 {s(sT2)}, {s(sT2)}, {s(sT0)}")
            a(f"s_lshl_b32 {s(sT1)}, {s(sT1)}, 9")
            a(f"s_add_u32 {s(sT1)}, {s(sT1)}, {s(sT0)}")
            a(f"s_add_u32 {s(sT2)}, {s(sT2)}, {s(sGB)}")
            a(f"s_add_u32 {s(sT3)}, {s(sT2)}, {KO}")
            a(f"s_add_u32 {s(sT1)}, {s(sT1)}, {s(sGB)}")
            a(f"s_add_u32 {s(sT0)}, {s(sT1)}, {VO}")
            a(f"v_lshrrev_b32 v4, 9, {v(vL16)}")
            a("v_mul_u32_u24 v4, 7168, v4")
            a(f"v_and_b32 v5, 0x1f0, {v(vL16)}")
            a("v_add_u32 v4, v4, v5")
            a("v_add_u32 v5, 14336, v4")
            a(f"v_subrev_u32 v31, {LB - LA}, {v(vTK)}")
            self.w_dma_pattern(30, 24, 896)
            a(f"s_mul_i32 {s(sWO)}, {s(sW)}, {8 * 896}")
            a(f"s_lshl_b32 {s(sT6)}, {s(sCB)}, 7")
            a(f"s_add_u32 {s(sWO)}, {s(sWO)}, {s(sT6)}")

        fill = self.capture(store_addresses)
        side = []
        for k in range(28):
            for hk in ((k,) if k < 2 else (2 * k - 2, 2 * k - 1)):
                if hk < 28:
                    side.append((2 * min(hk, k + 1), lambda hk=hk: rdH(hk)))
            for kind in "kv":
                if kind == "v" and k >= 24:
                    wt[(kind, k)] = (a_(4 * (k - 24), 4), 0)
                    continue
                slot = vW + 4 * ((2 * k + (kind == "v")) % 16)
                for u in range(2):
                    t = f"ds_read_b64_tr_b16 {v(slot + 2 * u, 2)}, {v(vTK if kind == 'k' else vTV)} offset:{k * 2048 + 512 * u}"
                    side.append((2 * k + (kind == "v"), (lambda t=t, kind=kind, k=k, slot=slot: wt.__setitem__(
                        (kind, k), (v(slot, 4), a.lg(t)))) if u else t))
        wqd = [self.xl]
        for i in range(14):
            wqd += [f"s_add_u32 m0, {s(sT5)}, {LA + i * 4096}", f"s_add_u32 {s(sT7)}, {s(sT4)}, {i * 32 * 2688}",
                    lambda: setattr(self, "t_wq", a.vm(f"buffer_load_dwordx4 {v(vPW)}, {srd(SWQKV)}, {s(sT7)} offen lds"))]
        wld = []
        for lb, lo, sb, so in self.w_late:
            wld += [f"s_add_u32 m0, {s(lb)}, {lo}", f"s_add_u32 {s(sT7)}, {s(sb)}, {so}",
                    f"buffer_load_dwordx4 {v(vPW)}, {srd(SWQKV)}, {s(sT7)} offen lds"]
        AH, KB = self.o.get("kv_ah", 6), 15

        def pump(n, room):
            while side and room > 0 and side[0][0] <= n + AH and (n >= 2 * KB or side[0][0] < 2 * KB + 2):
                f = side.pop(0)[1]
                f() if callable(f) else a(f)
                room -= 1
            return room

        pump(-1, 99)
        for n in range(56):
            k, kind = n >> 1, "kv"[n & 1]
            if n == 2 * KB:
                a.wait(lg=ht[27])
                if self.w_late:
                    assert not wld
                    a("s_waitcnt vmcnt(0)")
                a("s_barrier")
            while (kind, k) not in wt or k not in ht:
                f = side.pop(0)[1]
                f() if callable(f) else a(f)
            t = max(wt[(kind, k)][1], ht[k])
            if t > a.lg_done and kind == "k" and ("v", k) in wt:
                t = max(t, wt[("v", k)][1])
            a.wait(lg=t)
            h, reg = v(vH1 + 4 * k, 4), wt[(kind, k)][0]
            c = v(cK if kind == "k" else cV, 16)
            A, B = (reg, h) if kind == "k" else (h, reg)
            a(f"v_mfma_f32_32x32x16_bf16 {c}, {A}, {B}, {c if k else 0}")
            room = pump(n, 3) + (1 if n & 1 else 2)
            chain = wld if wld else (wqd if n >= 2 * KB and wqd else fill)
            while chain and room > 0:
                f = chain.pop(0)
                f() if callable(f) else a(f)
                room -= 1
        for f in wqd + fill:
            f() if callable(f) else a(f)

        def pack(acc, b):
            for j in range(4):
                a(f"v_cvt_pk_bf16_f32 {v(acc + 8 * b + j)}, {v(acc + 8 * b + 2 * j)}, {v(acc + 8 * b + 2 * j + 1)}")
            return v(acc + 8 * b, 4)

        for b in range(2):
            a.vm(f"buffer_store_dwordx4 {pack(cK, b)}, {v(vL16)}, {srd(SWS)}, {s(sT3)} offen offset:{b * 1024} sc1")
        for b in range(2):
            t_kv = a.vm(f"buffer_store_dwordx4 {pack(cV, b)}, {v(4 + b)}, {srd(SWS)}, {s(sT0)} offen sc1")
        self.stamp(17)
        a.wait(vm=self.t_wq)
        a("s_barrier")
        self.check_tags([self.xl], [13])
        self.stamp(4)
        self.n_kv = a.vm_n - t_kv
        self.choose_mode(12, "L_p1_slow")

    def p1_q(self):
        a = self.a
        vH1, cQ, vW = 32, 176, 192
        wt = {}
        t_kv = a.vm_n - self.n_kv
        a.vm_done = t_kv - 4

        def pack(acc, b):
            for j in range(4):
                a(f"v_cvt_pk_bf16_f32 {v(acc + 8 * b + j)}, {v(acc + 8 * b + 2 * j)}, {v(acc + 8 * b + 2 * j + 1)}")
            return v(acc + 8 * b, 4)

        def rdQ(k):
            slot = vW + 4 * (k % 8)
            wt[("q", k)] = (v(slot, 4), self.tr2(("v", slot), 31, k * 2048))

        for k in range(4):
            rdQ(k)
        fill = [f"s_lshl_b32 s3, {s(sG)}, 5", f"s_add_u32 s3, s3, {s(sM)}", "s_lshl_b32 s3, s3, 7",
                f"v_mov_b32 v10, {RFO}", f"v_mov_b32 v11, {s(sTAG)}"]
        fill += self.capture(self.p2_setup)
        self.early = [g for g in self.p3_early_loads() if g.startswith("buffer_")]
        kf = self.o.get("kvf", 24)
        won = [0]

        def wo_dma():
            if won[0] < 14:
                self.dma(6, SWO, sT5, LB + won[0] * 4096, sWO, won[0] * 32 * 896)
                won[0] += 1

        def kv_flag():
            a.wait(vm=t_kv)
            a("s_barrier")
            a(f"s_cmp_eq_u32 {s(sW)}, 0")
            a("s_cselect_b64 exec, 1, 0")
            a.vm(f"buffer_store_dword v11, v10, {srd(SWS)}, s3 offen sc1")
            a("s_mov_b64 exec, -1")
            self.stamp(16)

        a("v_mov_b32 v6, v30")
        for k in range(28):
            if k == kf:
                kv_flag()
            if k + 4 < 28:
                rdQ(k + 4)
            reg, t = wt[("q", k + 1 if k % 2 == 0 else k)]
            a.wait(lg=t)
            reg, t = wt[("q", k)]
            a(f"v_mfma_f32_32x32x16_bf16 {v(cQ, 16)}, {reg}, {v(vH1 + 4 * k, 4)}, {v(cQ, 16) if k else 0}")
            if (k % 4 == 1 and won[0] < self.o.get("wo0", 5)) or k > kf:
                wo_dma()
            else:
                for _ in range(self.o.get("fillq", 4)):
                    if fill:
                        a(fill.pop(0))
        a(f"s_mov_b32 {s(sT3)}, {f2u(QSCALE):#x}")
        for _ in range(8):
            if fill:
                a(fill.pop(0))
        for r in range(16):
            a(f"v_mul_f32 {v(cQ + r)}, {s(sT3)}, {v(cQ + r)}")
        for b in range(2):
            t_q = a.vm(f"buffer_store_dwordx4 {pack(cQ, b)}, {v(vL16)}, {srd(SWS)}, {s(sT2)} offen offset:{b * 1024}{self.st('q')}")
        if kf >= 28:
            kv_flag()
        self.stamp(5)
        while won[0] < 14:
            wo_dma()
        for g in fill:
            a(g)
        self.stamp(31)
        self.local_flag(0, 8, ticket=t_q, temps=(sP0, sP0 + 1))
        self.stamp(27)

    def capture(self, fn):
        n = len(self.a.ins)
        fn()
        lines = []
        for i in self.a.ins[n:]:
            assert i.kind in ("valu", "salu", "trans")
            if i.op.startswith("s_cselect"):
                lines[-1] += "\n" + i.text
            else:
                lines.append(i.text)
        del self.a.ins[n:]
        return lines

    def helper_first_loads(self):
        a = self.a
        n0 = a.vm_n
        sJ = sT4
        a("L_helper0:")
        a("v_min_u32 v8, 223, v0")
        a("v_lshlrev_b32 v8, 2, v8")
        a(f"s_lshl_b32 {s(sJ)}, {s(sG)}, 2")
        a(f"s_add_u32 {s(sJ)}, {s(sJ)}, {s(sM)}")
        a(f"s_sub_u32 {s(sJ)}, {s(sJ)}, 28")
        a("v_lshrrev_b32 v10, 2, v3")
        a("v_mul_u32_u24 v10, 5376, v10")
        a(f"v_and_b32 v11, 48, {v(vL16)}")
        a("v_add_u32 v5, v10, v11")
        a(f"s_mul_i32 {s(sT0)}, {s(sW)}, {16 * 5376}")
        a(f"s_lshl_b32 {s(sT1)}, {s(sJ)}, 6")
        a(f"s_add_u32 {s(sT0)}, {s(sT0)}, {s(sT1)}")
        a(f"s_cmp_lt_u32 {s(sJ)}, 28")
        a(f"s_cselect_b32 {s(sT0)}, {s(sT0)}, {OOB}")
        a(f"s_lshl_b32 {s(sT5)}, {s(sW)}, 10")
        a(f"s_mov_b32 {s(sT2)}, {s(sT5)}")
        a(f"s_add_u32 {s(sT3)}, {s(sT2)}, {7 * 4096}")
        a("s_waitcnt lgkmcnt(0)")
        self.first_stamp()
        self.make_srd(SC, SWMOD)
        a(f"buffer_load_dword v9, v8, {srd(SC)}, 0 offen")
        a("L_mdma:")
        a(f"s_mov_b32 m0, {s(sT2)}")
        a(f"s_add_u32 {s(sT2)}, {s(sT2)}, 4096")
        a(f"buffer_load_dwordx4 v5, {srd(SWMOD)}, {s(sT0)} offen lds")
        a(f"s_add_u32 {s(sT0)}, {s(sT0)}, {64 * 5376}")
        a(f"s_cmp_lg_u32 {s(sT2)}, {s(sT3)}")
        a("s_cbranch_scc1 L_mdma")
        a("s_branch L_helper")
        a.vm_n = n0

    def mod_job(self, vaddr, step, half, dst):
        a = self.a
        tk = []
        for k in range(14):
            a.lg(f"ds_read_b64_tr_b16 {v(36 + 8 * k, 2)}, {v(vaddr)} offset:{k * step}")
            tk.append(a.lg(f"ds_read_b64_tr_b16 {v(38 + 8 * k, 2)}, {v(vaddr)} offset:{k * step + half}"))
            if k >= 4:
                a.wait(lg=tk[k - 4])
                kk = k - 4
                a(f"v_mfma_f32_16x16x32_bf16 v[16:19], {v(32 + 8 * kk, 4)}, {v(36 + 8 * kk, 4)}, {'v[16:19]' if kk else 0}")
        for kk in range(10, 14):
            a.wait(lg=tk[kk])
            a(f"v_mfma_f32_16x16x32_bf16 v[16:19], {v(32 + 8 * kk, 4)}, {v(36 + 8 * kk, 4)}, v[16:19]")
        a("v_mov_b32_dpp v17, v16 quad_perm:[1,0,3,2] row_mask:0xf bank_mask:0xf")
        a("v_cvt_pk_bf16_f32 v20, v16, v17")
        a("s_mov_b64 exec, 0x5555")
        a(f"buffer_store_dwordx2 v[20:21], v4, {srd(SWS)}, {s(dst)} offen sc1")
        a("s_mov_b64 exec, -1")

    def uv_job(self, sJ):
        a = self.a
        a("v_min_u32 v8, 223, v0")
        a("v_lshlrev_b32 v9, 3, v8")
        a(f"s_mov_b32 {s(sT0)}, {MODO + 672 * 8}")
        self.poll([f"buffer_load_dwordx2 {v(10 + 2 * i, 2)}, v9, {srd(SWS)}, {s(sT0)} offen offset:{1792 * i} sc1" for i in range(2)], [11, 13])
        a("v_lshlrev_b32 v18, 16, v12")
        a("v_and_b32 v19, 0xffff0000, v12")
        a("v_add_f32 v18, 1.0, v18")
        a("v_add_f32 v19, 1.0, v19")
        a("v_cvt_pk_bf16_f32 v12, v18, v19")
        a("v_lshlrev_b32 v8, 2, v8")
        a(f"v_add_u32 v8, {L_T2}, v8")
        a("ds_write_b32 v8, v10")
        a("ds_write_b32 v8, v12 offset:896")
        self.tr_pattern(14, 8, True)
        a(f"v_bfe_u32 v8, {v(vL16)}, 8, 1")
        a(f"v_mul_u32_u24 v8, {LB - LA}, v8")
        a("v_add_u32 v14, v14, v8")
        a(f"s_lshl_b32 {s(sT0)}, {s(sW)}, 5")
        a(f"v_xor_b32 v14, {s(sT0)}, v14")
        a(f"v_bfe_u32 v8, {v(vL16)}, 4, 5")
        a("v_cmp_eq_u32 vcc, 1, v8")
        a(f"v_mov_b32 v8, {L_T2 + 896}")
        a(f"v_mov_b32 v9, {L_T2}")
        a("v_cndmask_b32 v8, v8, v9, vcc")
        a(f"v_lshrrev_b32 v9, 9, {v(vL16)}")
        a("v_lshl_add_u32 v15, v9, 4, v8")
        a.wait_all()
        a("s_barrier")
        ut, vU = {}, 160

        def rd(k):
            slot = 32 + 8 * (k % 8)
            a.lg(f"ds_read_b128 {v(slot, 4)}, v15 offset:{32 * k}")
            ut[k] = self.tr2(("v", slot + 4), 14, k * 2048)

        for k in range(4):
            rd(k)
        for k in range(28):
            if k + 4 < 28:
                rd(k + 4)
            a.wait(lg=ut[k])
            slot = 32 + 8 * (k % 8)
            a(f"v_mfma_f32_32x32x16_bf16 {v(vU, 16)}, {v(slot, 4)}, {v(slot + 4, 4)}, {v(vU, 16) if k else 0}")
        a(f"s_mov_b32 {s(sT0)}, 0x05040100")
        a(f"s_mov_b32 {s(sT1)}, 0x07060302")
        a(f"s_lshl2_add_u32 {s(sT2)}, {s(sJ)}, {s(sW)}")
        a(f"s_lshl_b32 {s(sT3)}, {s(sT2)}, 10")
        a(f"s_add_u32 {s(sT3)}, {s(sT3)}, {AUGO}")
        a(f"s_lshl_b32 {s(sT2)}, {s(sT2)}, 2")
        a(f"v_cvt_pk_bf16_f32 v16, {v(vU)}, {v(vU + 1)}")
        a("v_lshlrev_b32 v17, 16, v16")
        a("v_and_b32 v18, 0xffff0000, v16")
        a(f"v_sub_f32 v17, {v(vU)}, v17")
        a(f"v_sub_f32 v18, {v(vU + 1)}, v18")
        a("v_cvt_pk_bf16_f32 v17, v17, v18")
        a(f"v_perm_b32 v24, v17, v16, {s(sT0)}")
        a("v_mov_b32 v25, v16")
        a(f"v_perm_b32 v26, v16, v17, {s(sT1)}")
        a("v_mov_b32 v27, 0")
        a("s_mov_b32 exec_lo, 0")
        for r in range(24, 27):
            a(f"v_mov_b32 {v(r)}, 0")
        a("s_mov_b64 exec, -1")
        a(f"buffer_store_dwordx4 v[24:27], {v(vL16)}, {srd(SWS)}, {s(sT3)} offen sc1")
        a(f"v_mov_b32 v8, {AFO}")
        a(f"v_mov_b32 v9, {s(sTAG)}")
        a.wait_all(lg=False)
        a("s_mov_b64 exec, 1")
        a(f"buffer_store_dword v9, v8, {srd(SWS)}, {s(sT2)} offen sc1")
        a("s_mov_b64 exec, -1")

    def wd_first_touch(self):
        a = self.a
        a(f"v_lshlrev_b32 v8, 3, {v(vL16)}")
        a(f"s_sub_u32 {s(sT0)}, s2, 224")
        a(f"s_lshl2_add_u32 {s(sT0)}, {s(sT0)}, {s(sW)}")
        a(f"s_mul_i32 {s(sT0)}, {s(sT0)}, {98 * 128}")
        a("s_mov_b32 exec_hi, 0x1ffff")
        self.touch(8, SWD, sT0)
        a(f"s_add_u32 {s(sT0)}, {s(sT0)}, {49 * 128}")
        self.touch(8, SWD, sT0)
        a("s_mov_b64 exec, -1")

    def group_prefetch(self, srds, lo, iters):
        a = self.a
        if not iters:
            return
        L = a.label("gp")
        a(f"v_lshlrev_b32 v8, 3, {v(vL16)}")
        a(f"s_sub_u32 {s(sT2)}, {s(sM)}, 28")
        a(f"s_lshl_b32 {s(sT2)}, {s(sT2)}, 2")
        a(f"s_add_u32 {s(sT2)}, {s(sT2)}, {s(sW)}")
        a(f"s_lshl_b32 {s(sT2)}, {s(sT2)}, 13")
        a(f"s_add_u32 {s(sT2)}, {s(sT2)}, {lo}")
        a(f"s_mul_i32 {s(sT0)}, {s(sG)}, {iters}")
        a(f"s_lshr_b32 {s(sT0)}, {s(sT0)}, 3")
        a(f"s_mov_b32 {s(sT3)}, {iters}")
        a(f"{L}:")
        a(f"s_lshl_b32 {s(sT1)}, {s(sT0)}, 17")
        a(f"s_add_u32 {s(sT1)}, {s(sT1)}, {s(sT2)}")
        for sr in srds:
            self.touch(8, sr, sT1)
        a(f"s_add_u32 {s(sT0)}, {s(sT0)}, 1")
        a(f"s_cmp_eq_u32 {s(sT0)}, {iters}")
        a(f"s_cselect_b32 {s(sT0)}, 0, {s(sT0)}")
        a(f"s_waitcnt vmcnt({len(srds)})")
        a(f"s_sub_u32 {s(sT3)}, {s(sT3)}, 1")
        a(f"s_cmp_lg_u32 {s(sT3)}, 0")
        a(f"s_cbranch_scc1 {L}")

    def helper(self):
        a = self.a
        a("L_helper:")
        a.vm_done = a.vm_n
        a.lg_done = a.lg_n
        sJ = sT4
        self.common_setup(())
        self.make_tag_and_publish_xcc(20)
        a(f"s_waitcnt vmcnt({15 if self.o.get('tlb', 0) else 8})")
        a("v_lshlrev_b32 v10, 16, v9")
        a("v_and_b32 v11, 0xffff0000, v9")
        for r in (10, 11):
            a(f"v_mul_f32 {v(r + 2)}, {f2u(-1.4426950408889634):#x}, {v(r)}")
        for r in (12, 13):
            a(f"v_exp_f32 {v(r)}, {v(r)}")
        for r in (12, 13):
            a(f"v_add_f32 {v(r)}, 1.0, {v(r)}")
        for r in (12, 13):
            a(f"v_rcp_f32 {v(r)}, {v(r)}")
        for r in (10, 11):
            a(f"v_mul_f32 {v(r)}, {v(r)}, {v(r + 2)}")
        a("v_cvt_pk_bf16_f32 v10, v10, v11")
        a(f"v_add_u32 v8, {LD}, v8")
        a("ds_write_b32 v8, v10")
        a("v_bfe_u32 v11, v3, 2, 2")
        a("v_lshrrev_b32 v12, 4, v3")
        a("v_lshl_add_u32 v13, v12, 3, v11")
        a("v_lshlrev_b32 v2, 7, v13")
        a("v_lshlrev_b32 v5, 6, v13")
        a("v_lshrrev_b32 v11, 1, v11")
        a("v_lshlrev_b32 v11, 6, v11")
        a("v_and_b32 v13, 3, v3")
        a("v_lshlrev_b32 v13, 3, v13")
        a(f"s_lshl_b32 {s(sT0)}, {s(sCH)}, 5")
        a(f"v_add3_u32 v5, v5, v13, {s(sT0)}")
        a("v_xor_b32 v11, v11, v13")
        a(f"s_lshl_b32 {s(sT0)}, {s(sW)}, 5")
        a(f"v_xor_b32 v11, {s(sT0)}, v11")
        a("v_add_u32 v2, v2, v11")
        a("v_lshlrev_b32 v12, 4, v12")
        a(f"v_add_u32 v12, {LD}, v12")
        a("v_lshlrev_b32 v4, 2, v3")
        a(f"s_lshl_b32 {s(sT6)}, {s(sJ)}, 7")
        a(f"s_lshl_b32 {s(sT1)}, {s(sCH)}, 6")
        a(f"s_add_u32 {s(sT6)}, {s(sT6)}, {s(sT1)}")
        a(f"s_add_u32 {s(sT6)}, {s(sT6)}, {MODO}")
        a(f"s_cmp_lt_u32 {s(sJ)}, 28")
        a(f"s_cselect_b32 {s(sT6)}, {s(sT6)}, {OOB}")
        a(f"s_cmp_lt_u32 {s(sW)}, 2")
        a(f"s_cselect_b32 {s(sT6)}, {s(sT6)}, {OOB}")
        a.wait_all(vm=False)
        a("s_barrier")
        for k in range(14):
            a(f"ds_read_b128 {v(32 + 8 * k, 4)}, v12 offset:{k * 64}")
        self.w_dma_pattern(6, 10, 5376)
        a.wait_all()
        a("s_barrier")
        self.stamp(1)
        self.mod_job(5, 2048, 256, sT6)
        self.stamp(2)
        a(f"s_sub_u32 {s(sJ)}, {s(sM)}, 28")
        a(f"s_lshl_b32 {s(sJ)}, {s(sJ)}, 3")
        a(f"s_add_u32 {s(sJ)}, {s(sJ)}, {s(sG)}")
        a(f"s_cmp_ge_u32 {s(sJ)}, 28")
        a("s_cbranch_scc1 L_jobs_done")
        a(f"s_mul_i32 {s(sT0)}, {s(sW)}, {8 * 5376}")
        a(f"s_lshl_b32 {s(sT1)}, {s(sJ)}, 7")
        a(f"s_add_u32 {s(sT0)}, {s(sT0)}, {s(sT1)}")
        a(f"s_add_u32 {s(sT0)}, {s(sT0)}, {14 * 128}")
        a(f"s_add_u32 {s(sT2)}, {s(sT5)}, {LB}")
        a(f"s_add_u32 {s(sT3)}, {s(sT2)}, {14 * 4096}")
        a("L_mdma2:")
        a(f"s_mov_b32 m0, {s(sT2)}")
        a(f"s_add_u32 {s(sT2)}, {s(sT2)}, 4096")
        a(f"buffer_load_dwordx4 v6, {srd(SWMOD)}, {s(sT0)} offen lds")
        a(f"s_add_u32 {s(sT0)}, {s(sT0)}, {32 * 5376}")
        a(f"s_cmp_lg_u32 {s(sT2)}, {s(sT3)}")
        a("s_cbranch_scc1 L_mdma2")
        a(f"v_add_u32 v2, {LB}, v2")
        a(f"s_lshl_b32 {s(sT6)}, {s(sJ)}, 8")
        a(f"s_lshl_b32 {s(sT1)}, {s(sW)}, 6")
        a(f"s_add_u32 {s(sT6)}, {s(sT6)}, {s(sT1)}")
        a(f"s_add_u32 {s(sT6)}, {s(sT6)}, {MODO + 14 * 256}")
        a.wait_all()
        a("s_barrier")
        self.mod_job(2, 4096, 512, sT6)
        self.stamp(3)
        a("L_jobs_done:")
        a(f"s_cmp_lg_u32 {s(sJ)}, 31")
        a("s_cbranch_scc1 L_no_epoch")
        a("v_lshlrev_b32 v8, 3, v0")
        a(f"s_mov_b32 {s(sT0)}, {XCCO}")
        self.poll([f"buffer_load_dwordx2 v[10:11], v8, {srd(SWS)}, {s(sT0)} offen sc1"], [11])
        a("s_barrier")
        a("v_mov_b32 v8, 0")
        a(f"s_cmp_eq_u32 {s(sW)}, 0")
        a("s_cselect_b64 exec, 1, 0")
        a(f"buffer_store_dword v11, v8, {srd(SWS)}, 0 offen sc1")
        a("s_mov_b64 exec, -1")
        a("L_no_epoch:")
        a(f"v_lshlrev_b32 v8, 3, {v(vL16)}")
        a(f"s_sub_u32 {s(sT0)}, {s(sM)}, 28")
        a(f"s_lshl_b32 {s(sT0)}, {s(sT0)}, 2")
        a(f"s_add_u32 {s(sT0)}, {s(sT0)}, {s(sW)}")
        a(f"s_lshl_b32 {s(sT0)}, {s(sT0)}, 11")
        a(f"s_add_u32 {s(sT0)}, {s(sT0)}, {s(sGB)}")
        a(f"s_add_u32 {s(sT0)}, {s(sT0)}, {STO}")
        self.touch(8, SWS, sT0, 16)
        if self.o.get("wdt", 3) == 1:
            self.wd_first_touch()
        self.group_prefetch((SWG, SWU), self.o.get("pf_rows", 0) * 3584, self.o.get("hp1", 1))
        xl = self.xcc_load(10, 4)
        self.poll([xl], [5])
        a.wait_all()
        a("s_barrier")
        self.stamp(4)
        self.p2_setup()
        self.choose_mode(4, "L_p2_slow")
        a("s_branch L_p2_fast")

    def p2_setup(self):
        a = self.a
        vKV, vVP, vRF, vWG, vMK = 12, 13, 14, 15, 16
        a(f"s_and_b32 {s(sHD)}, {s(sM)}, 15")
        a(f"s_lshr_b32 {s(sB)}, {s(sM)}, 4")
        a(f"s_mul_i32 {s(sWS0)}, {s(sHD)}, 7")
        a(f"s_lshr_b32 {s(sWS0)}, {s(sWS0)}, 1")
        a(f"s_bitcmp1_b32 {s(sHD)}, 0")
        a(f"s_cselect_b32 {s(sP1)}, 15, 0xf0000000")
        a(f"s_mov_b32 {s(sP1 + 1)}, {s(sP1)}")
        a(f"s_lshl_b32 {s(sKVL)}, {s(sW)}, 12")
        a(f"s_add_u32 {s(sKVL)}, {s(sKVL)}, {L_KV}")
        a(f"v_add_u32 {v(vKV)}, {s(sKVL)}, {v(vL16)}")
        a(f"v_bfe_u32 v24, {v(vL16)}, 4, 5")
        a(f"v_lshrrev_b32 v25, 9, {v(vL16)}")
        a("v_and_b32 v26, 0x13, v24")
        a("v_and_b32 v27, 4, v24")
        a("v_lshl_or_b32 v26, v27, 1, v26")
        a("v_and_b32 v27, 8, v24")
        a("v_lshrrev_b32 v27, 1, v27")
        a("v_or_b32 v26, v26, v27")
        a("v_lshlrev_b32 v26, 4, v26")
        a(f"v_mul_u32_u24 {v(vVP)}, 7168, v25")
        a(f"v_add_u32 {v(vVP)}, {v(vVP)}, v26")
        a(f"s_lshl_b32 {s(sT0)}, {s(sB)}, 2")
        a(f"s_add_u32 {s(sT0)}, {s(sT0)}, {s(sW)}")
        a(f"s_sub_u32 {s(sMISS)}, 8, {s(sT0)}")
        a(f"s_cmp_eq_u32 {s(sG)}, 0")
        a(f"s_cselect_b32 {s(sMISS)}, {s(sMISS)}, 0")
        a(f"s_mul_i32 {s(sTQ)}, {s(sT0)}, {TILE_B}")
        a(f"s_add_u32 {s(sTQ)}, {s(sTQ)}, {s(sGB)}")
        if self.o.get("fine", 1):
            a(f"s_lshr_b32 {s(sT0)}, {s(sWS0)}, 3")
            a(f"s_add_u32 {s(sT1)}, {s(sWS0)}, 3")
            a(f"s_lshr_b32 {s(sT1)}, {s(sT1)}, 3")
            a(f"s_sub_u32 {s(sT1)}, {s(sT1)}, {s(sT0)}")
            a("v_bfe_u32 v25, v24, 3, 1")
            a(f"v_mul_u32_u24 v25, {s(sT1)}, v25")
            a(f"v_add_u32 v25, {s(sT0)}, v25")
            a("v_and_b32 v26, 7, v24")
            a("v_min_u32 v26, 5, v26")
            a(f"s_lshl3_add_u32 {s(sT0)}, {s(sG)}, 0")
            a(f"s_lshr_b32 {s(sT0)}, {s(sT0)}, 1")
            a(f"s_lshl1_add_u32 {s(sT0)}, {s(sB)}, {s(sT0)}")
            a(f"v_add_u32 v26, {s(sT0)}, v26")
            a("v_subrev_u32 v26, 4, v26")
            a("v_max_i32 v26, 0, v26")
            a("v_lshrrev_b32 v27, 2, v26")
            a("v_and_b32 v26, 3, v26")
            a("v_mul_u32_u24 v26, 7, v26")
            a("v_lshl_add_u32 v26, v27, 5, v26")
            a("v_add_u32 v26, v26, v25")
            a("v_lshlrev_b32 v26, 7, v26")
            a(f"v_add_u32 {v(vRF)}, {RFO}, v26")
            a("v_bfe_u32 v26, v24, 1, 1")
            a(f"s_lshl_b32 {s(sT0)}, {s(sB)}, 1")
            a(f"v_add_u32 v26, {s(sT0)}, v26")
            a("v_mul_u32_u24 v26, 7, v26")
            a("v_add_u32 v26, v26, v25")
            a("v_and_b32 v27, 1, v24")
            a("v_lshlrev_b32 v27, 3, v27")
            a("v_lshl_add_u32 v26, v26, 4, v27")
            a(f"v_add_u32 v243, {LFO}, v26")
        else:
            a(f"s_min_u32 {s(sT0)}, {s(sG)}, 1")
            a(f"s_lshl_b32 {s(sT0)}, {s(sT0)}, 12")
            a(f"v_mul_u32_u24 v25, {s(sT0)}, v25")
            a("v_min_u32 v24, 27, v24")
            a("v_lshlrev_b32 v24, 7, v24")
            a("v_sub_u32 v24, v24, v25")
            a(f"s_lshl_b32 {s(sT0)}, {s(sG)}, 12")
            a(f"s_add_u32 {s(sT0)}, {s(sT0)}, {RFO}")
            a(f"v_add_u32 {v(vRF)}, {s(sT0)}, v24")
            a(f"v_min_u32 v243, 880, {v(vL16)}")
            a("v_lshrrev_b32 v243, 1, v243")
            a(f"v_add_u32 v243, {LFO}, v243")
        self.p2_addresses()

    def p2_late(self):
        a = self.a
        vWG, vMK = 15, 16
        self.tr_pattern(2, 32, True, ct_sgpr=sCH)
        a(f"s_mul_i32 {s(sT0)}, {s(sCH)}, {14 * 2048}")
        a(f"s_add_u32 {s(sT0)}, {s(sT0)}, {LB}")
        a(f"v_add_u32 v2, {s(sT0)}, v2")
        a("v_xor_b32 v5, 64, v2")
        a("s_barrier")
        ops = self.capture(self.p2_late_alu)
        for k in range(14):
            for ct in range(2):
                self.tr2(("a", 128 + 8 * k + 4 * ct), 5 if ct else 2, k * 2048)
                for _ in range(3):
                    if ops:
                        a(ops.pop(0))
        for g in ops:
            a(g)
        self.ones_prefill()

    def p2_late_alu(self):
        a = self.a
        vWG, vMK = 15, 16
        a(f"v_bfe_u32 v32, {v(vL16)}, 4, 5")
        a(f"v_lshrrev_b32 v33, 9, {v(vL16)}")
        a("v_lshlrev_b32 v33, 2, v33")
        a("v_sub_u32 v33, v32, v33")
        for r in range(16):
            a(f"v_cmp_le_i32 {s(sMASK + 2 * r, 2)}, {8 * (r >> 2) + (r & 3)}, v33")
        a("v_mov_b32 v34, 0xffff")
        a("v_mov_b32 v35, 0xffff0000")
        for i in range(8):
            a(f"v_cndmask_b32 {v(vMK + i)}, 0, v34, {s(sMASK + 4 * i, 2)}")
            a(f"v_cndmask_b32 v36, 0, v35, {s(sMASK + 4 * i + 2, 2)}")
            a(f"v_or_b32 {v(vMK + i)}, {v(vMK + i)}, v36")
        self.w_dma_pattern(vWG, 32, 3584)
        a("v_xor_b32 v6, 32, v15")
        a(f"s_sub_u32 {s(sT0)}, {s(sM)}, 28")
        a(f"s_lshl3_add_u32 {s(sT0)}, {s(sT0)}, {s(sG)}")
        a(f"s_cmp_lt_u32 {s(sM)}, 28")
        a(f"s_cselect_b32 {s(sT0)}, {s(sM)}, {s(sT0)}")
        a(f"s_min_u32 {s(sT0)}, {s(sT0)}, 27")
        a(f"s_lshl_b32 {s(sT0)}, {s(sT0)}, 7")
        a(f"s_mul_i32 {s(sT1)}, {s(sW)}, {8 * 3584}")
        a(f"s_add_u32 {s(sWSRC)}, {s(sT0)}, {s(sT1)}")
        for g in self.p3_early_loads():
            if not g.startswith("buffer_"):
                a(g)

    def ones_prefill(self):
        a = self.a
        for j in range(4):
            a(f"v_mov_b32 {v(36 + j)}, 0x3f803f80")
        a(f"s_mov_b64 exec, {s(sP1, 2)}")
        for i in range(3):
            for t in range(2):
                a(f"ds_write_b128 v12, v[36:39] offset:{i * 16384 + 2048 + t * 1024}")
        a("s_mov_b64 exec, -1")

    def touch_y(self):
        a = self.a
        a(f"s_mul_i32 {s(sT0)}, {s(sTILE)}, {TILE_B}")
        a(f"s_add_u32 {s(sT0)}, {s(sT0)}, {s(sGB)}")
        a(f"s_lshl_b32 {s(sT1)}, {s(sCB)}, 1")
        a(f"s_add_u32 {s(sT1)}, {s(sT1)}, {s(sCH)}")
        a(f"s_lshl_b32 {s(sT1)}, {s(sT1)}, 11")
        a(f"s_add_u32 {s(sT0)}, {s(sT0)}, {s(sT1)}")
        a(f"s_add_u32 {s(sT0)}, {s(sT0)}, {YO}")
        a(f"v_lshlrev_b32 v5, 3, {v(vL16)}")
        self.touch(5, SWS, sT0, 16)

    def wgu(self, n):
        for _ in range(n):
            if self.pre:
                vr, sr, lo, so = self.pre.pop(0)
                self.t_wgu = self.dma(vr, sr, sT5, lo, sWSRC, so)

    def p2_addresses(self):
        a = self.a
        a(f"s_lshl_b32 {s(sT5)}, {s(sW)}, 10")
        a(f"s_lshl_b32 {s(65)}, {s(sWS0)}, 9")
        a(f"s_add_u32 {s(66)}, {s(sTQ)}, {s(65)}")
        a(f"s_mov_b32 s70, {s(66)}")
        a(f"s_lshl_b32 {s(64)}, {s(sWS0)}, 7")
        a(f"s_add_u32 {s(69)}, {s(sTQ)}, {s(64)}")
        a(f"s_add_u32 {s(69)}, {s(69)}, {VO}")
        a(f"s_add_u32 {s(66)}, {s(66)}, {KO}")
        a(f"s_cmp_eq_u32 {s(sG)}, 0")
        a(f"s_cselect_b32 {s(71)}, {OOB}, 0")
        a(f"s_sub_u32 {s(71)}, {s(71)}, {0x200000 - 8 * TILE_B}")
        a(f"s_add_u32 {s(64)}, {s(66)}, {s(71)}")
        a(f"s_sub_u32 {s(64)}, {s(64)}, {8 * TILE_B}")
        a(f"s_add_u32 {s(67)}, {s(69)}, {s(71)}")
        a(f"s_sub_u32 {s(67)}, {s(67)}, {8 * TILE_B}")
        a(f"s_cmp_eq_u32 {s(sB)}, 0")
        a(f"s_cselect_b32 {s(71)}, {s(71)}, 0")
        a(f"s_add_u32 {s(65)}, {s(66)}, {s(71)}")
        a(f"s_sub_u32 {s(65)}, {s(65)}, {4 * TILE_B}")
        a(f"s_add_u32 {s(68)}, {s(69)}, {s(71)}")
        a(f"s_sub_u32 {s(68)}, {s(68)}, {4 * TILE_B}")

    def p2(self):
        a = self.a
        a("L_p2_slow:" if self.slow else "L_p2_fast:")
        a.vm_done = a.vm_n
        vQ, vMK, vKV, vVP, vRF, vM, vNM = 24, 16, 12, 13, 14, 8, 10
        vS, vP2, vO = 32, 176, 192
        ksrc, vsrc = (64, 65, 66), (67, 68, 69)

        def ldK(i):
            for t in range(2):
                tk = self.dma(vL16, SWS, sKVL, i * 16384 + t * 1024, ksrc[i], 0, sc1=True, imm=t * 1024)
            return tk

        def ldV(i):
            for t in range(2):
                tk = self.dma(vVP, SWS, sKVL, i * 16384 + 2048 + t * 1024, vsrc[i], t * 14336, sc1=True)
            return tk

        self.stamp(6)
        self.poll([f"buffer_load_dword v8, {v(vRF)}, {srd(SWS)}, 0 offen sc1",
                   f"buffer_load_dwordx2 v[10:11], v243, {srd(SWS)}, {s(sGB)} offen sc1"], [8, 10, 11])
        self.stamp(7)
        for i in range(3):
            ldK(i)
        for t in range(2):
            t_k = a.vm(f"buffer_load_dwordx4 {v(vQ + 4 * t, 4)}, {v(vL16)}, {srd(SWS)}, s70 offen offset:{t * 1024} sc1")
        a(f"s_andn2_b64 exec, -1, {s(sP1, 2)}")
        for i in range(3):
            t_v = ldV(i)
        a("s_mov_b64 exec, -1")
        self.pre = []
        for i in range(14):
            self.pre.append((15, SWG, LA + i * 4096, i * 32 * 3584))
            self.pre.append((6, SWU, LB + i * 4096, i * 32 * 3584))
        n_att = self.o.get("n_att", 14)
        bg = [lambda: self.wgu(1)] * n_att
        for i, t in enumerate(self.early):
            bg.insert(2 + 2 * i, lambda t=t: a(t))
        if self.o.get("touch_y", 1):
            bg.insert(self.o.get("ty_at", 4), self.touch_y)

        def prefetch(n):
            for _ in range(n):
                if bg:
                    bg.pop(0)()

        self.p2_late()
        a(f"s_bitcmp1_b32 {s(sHD)}, 0")
        a(f"s_cselect_b32 {s(sP0)}, -1, 0")
        a(f"s_mov_b32 {s(sP0 + 1)}, 0")
        a.wait(vm=t_k)
        a.wait_all(vm=False)
        a("s_barrier")
        a(f"s_mov_b64 exec, {s(sP0, 2)}")
        a(f"v_mov_b32 {v(vQ)}, 0")
        a(f"v_mov_b32 {v(vQ + 1)}, 0")
        a(f"s_not_b32 exec_hi, {s(sP0)}")
        a("s_mov_b32 exec_lo, 0")
        a(f"v_mov_b32 {v(vQ + 6)}, 0")
        a(f"v_mov_b32 {v(vQ + 7)}, 0")
        a("s_mov_b64 exec, -1")
        self.stamp(8)
        order = [0, 8, 1, 2, 3, 4, 5, 6, 7]
        kt = {}

        def rdK(n):
            i = order[n]
            a.lg(f"ds_read_b128 {a_(8 * n, 4)}, {v(vKV)} offset:{i * 4096}")
            kt[n] = a.lg(f"ds_read_b128 {a_(8 * n + 4, 4)}, {v(vKV)} offset:{i * 4096 + 1024}")

        vorder = [1, 2, 3, 4, 5, 6, 7, 8, 0]
        vt = {}

        def rdV(n):
            i = vorder[n]
            base = 72 + 8 * n if n < 7 else 8 * (n - 7)
            a.lg(f"ds_read_b128 {a_(base, 4)}, {v(vKV)} offset:{i * 4096 + 2048}")
            vt[i] = (base, a.lg(f"ds_read_b128 {a_(base + 4, 4)}, {v(vKV)} offset:{i * 4096 + 3072}"))

        def patch(i):
            L = a.label("miss")
            a(f"s_cmp_gt_i32 {s(sMISS)}, {i}")
            a(f"s_cbranch_scc1 {L}")
            a(f"{L}_back:")
            blk = [f"{L}:", "s_nop 15"]
            blk += [f"v_mov_b32 {v(vS + 16 * i + r)}, 0xf149f2ca" for r in range(16)]
            blk += [f"s_branch {L}_back"]
            self.tail.append(blk)

        valu = []
        first = [True]

        def q_max(i):
            b = vS + 16 * i
            ops = []
            if first[0]:
                ops.append(f"v_max3_f32 {v(vM)}, {v(b)}, {v(b + 1)}, {v(b + 2)}")
                ops.append(f"v_max3_f32 {v(vM + 1)}, {v(b + 3)}, {v(b + 4)}, {v(b + 5)}")
                rest = list(range(6, 16, 2))
                first[0] = False
            else:
                rest = list(range(0, 16, 2))
            for n, r in enumerate(rest):
                m = vM + (n & 1)
                ops.append(f"v_max3_f32 {v(m)}, {v(m)}, {v(b + r)}, {v(b + r + 1)}")
            return ops

        for n in range(4):
            rdK(n)
        for n in range(9):
            i = order[n]
            if n + 4 < 9:
                rdK(n + 4)
            a.wait(lg=kt[n])
            d = v(vS + 16 * i, 16)
            a(f"v_mfma_f32_32x32x16_bf16 {d}, {a_(8 * n, 4)}, {v(vQ, 4)}, 0")
            for _ in range(5):
                if valu:
                    a(valu.pop(0))
            a(f"v_mfma_f32_32x32x16_bf16 {d}, {a_(8 * n + 4, 4)}, {v(vQ + 4, 4)}, {d}")
            for _ in range(5):
                if valu:
                    a(valu.pop(0))
            if n == 2:
                patch(0)
                valu += [f"v_cndmask_b32 {v(vS + 128 + r)}, {v(vS + r)}, {v(vS + 128 + r)}, {s(sMASK + 2 * r, 2)}" for r in range(16)]
                valu += q_max(8)
            elif n >= 3:
                patch(order[n - 1])
                valu += q_max(order[n - 1])
            if n >= self.o.get("bg1", 0):
                prefetch(1)
        for op in valu:
            a(op)
        patch(7)
        for op in q_max(7):
            a(op)
        a(f"v_max_f32 {v(vM)}, {v(vM)}, {v(vM + 1)}")
        self.both_halves(vM, vM + 1, "v_max_f32")
        a(f"v_sub_f32 {v(vNM)}, 0, {v(vM)}")
        prefetch(self.o.get("bgv", 0))
        a.wait(vm=t_v)
        a("s_barrier")
        for n in range(4):
            rdV(n)
        self.stamp(9)
        firstpv = [True]

        def pv(i, t, p):
            base, tk = vt[i]
            a.wait(lg=tk)
            c = 0 if firstpv[0] else v(vO, 16)
            firstpv[0] = False
            a(f"v_mfma_f32_32x32x16_bf16 {v(vO, 16)}, {a_(base + 4 * t, 4)}, {v(p + 4 * t, 4)}, {c}")

        pend = []
        for n, i in enumerate([1, 2, 3, 4, 5, 6, 7, 8]):
            b = vS + 16 * i
            p = vS + 8 * (n & 1)
            if n + 4 < 9:
                rdV(n + 4)
            for r in range(0, 16, 2):
                a(f"v_pk_add_f32 {v(b + r, 2)}, {v(b + r, 2)}, {v(vNM, 2)} op_sel_hi:[1,0]")
            for t in range(2):
                if pend:
                    pv(*pend.pop(0))
                for r in range(8 * t, 8 * t + 8):
                    a(f"v_exp_f32 {v(b + r)}, {v(b + r)}")
                    if r >= 8 * t + 3 and (r & 1):
                        j = (r - 3) >> 1
                        a(f"v_cvt_pk_bf16_f32 {v(p + j)}, {v(b + 2 * j)}, {v(b + 2 * j + 1)}")
                j = 4 * t + 3
                prefetch(1)
                a(f"v_cvt_pk_bf16_f32 {v(p + j)}, {v(b + 2 * j)}, {v(b + 2 * j + 1)}")
            if i != 8:
                pend = [(i, 0, p), (i, 1, p)]
            else:
                for j in range(8):
                    a(f"v_and_b32 {v(vP2 + j)}, {v(p + j)}, {v(vMK + j)}")
                    a(f"v_xor_b32 {v(vP2 + 8 + j)}, {v(p + j)}, {v(vP2 + j)}")
                    if j == 3:
                        pv(8, 0, vP2)
                pv(0, 0, vP2 + 8)
                pv(8, 1, vP2)
                pv(0, 1, vP2 + 8)
        prefetch(99)
        a(f"s_lshl_b32 {s(sT1)}, {s(sWS0)}, 9")
        a(f"s_add_u32 {s(sT1)}, {s(sT1)}, {s(sTQ)}")
        a(f"s_add_u32 {s(sT1)}, {s(sT1)}, {OO}")
        a(f"s_bitcmp1_b32 {s(sHD)}, 0")
        a(f"s_cselect_b64 {s(sP0, 2)}, -1, 0")
        a(f"v_cndmask_b32 v8, {v(vO + 12)}, {v(vO)}, {s(sP0, 2)}")
        a("v_mov_b32 v9, v8")
        a("v_permlane32_swap_b32 v9, v8")
        a(f"v_cndmask_b32 v8, v8, v9, {s(sP0, 2)}")
        a("v_rcp_f32 v8, v8")
        for r in range(16):
            a(f"v_mul_f32 {v(vO + r)}, v8, {v(vO + r)}")
        for j in range(8):
            a(f"v_cvt_pk_bf16_f32 {v(vP2 + j)}, {v(vO + 2 * j)}, {v(vO + 2 * j + 1)}")
        Lodd, Ldone = a.label("odd"), a.label("ost")
        base = f"{v(vL16)}, {srd(SWS)}, {s(sT1)} offen"
        a(f"s_cbranch_scc1 {Lodd}")
        a(f"buffer_store_dwordx4 {v(vP2, 4)}, {base}{self.st('o')}")
        a("s_mov_b32 exec_hi, 0")
        a(f"buffer_store_dwordx4 {v(vP2 + 4, 4)}, {base} offset:1024{self.st('o')}")
        a("s_not_b64 exec, exec")
        a(f"buffer_store_dwordx2 {v(vP2 + 4, 2)}, {base} offset:1024{self.st('o')}")
        a(f"s_branch {Ldone}")
        a(f"{Lodd}:")
        a(f"buffer_store_dwordx4 {v(vP2 + 4, 4)}, {base} offset:1024{self.st('o')}")
        a("s_mov_b32 exec_lo, 0")
        a(f"buffer_store_dwordx4 {v(vP2, 4)}, {base}{self.st('o')}")
        a("s_not_b64 exec, exec")
        a(f"buffer_store_dwordx2 {v(vP2 + 2, 2)}, {base} offset:8{self.st('o')}")
        a(f"{Ldone}:")
        a("s_mov_b64 exec, -1")
        self.stamp(10)
        Lc = a.label("comp")
        a(f"s_cmp_lt_u32 {s(sM)}, 28")
        a(f"s_cbranch_scc1 {Lc}")
        self.local_flag(1, 8)
        a("s_branch L_helper_tail")
        a(f"{Lc}:")

    def exchange(self, acc):
        a = self.a
        for q in range(4):
            a(f"ds_write_b128 v26, {v(acc + 16 + 4 * q, 4)} offset:{q * 1024}")
        a.wait_all(vm=False)
        a("s_barrier")
        tk = [a.lg(f"ds_read_b128 {v(acc + 16 + 4 * q, 4)}, v27 offset:{q * 1024}") for q in range(4)]
        for q in range(4):
            a.wait(lg=tk[q])
            for r in range(4 * q, 4 * q + 4, 2):
                a(f"v_pk_add_f32 {v(acc + r, 2)}, {v(acc + r, 2)}, {v(acc + 16 + r, 2)}")

    def unpack16(self, dst, src):
        a = self.a
        for j in range(8):
            a(f"v_lshlrev_b32 {v(dst + 2 * j)}, 16, {v(src + j)}")
            a(f"v_and_b32 {v(dst + 2 * j + 1)}, 0xffff0000, {v(src + j)}")

    def mod2_loads(self):
        return [f"buffer_load_dwordx2 {v(232 + 2 * i, 2)}, {v(241 + (i >> 1))}, {srd(SWS)}, 0 offen offset:{(i & 1) * 1792} sc1"
                for i in range(4)]

    def p3_early_loads(self):
        g = [f"v_bfe_u32 v3, {v(vL16)}, 4, 5", "v_mul_u32_u24 v3, 896, v3", f"v_lshrrev_b32 v4, 9, {v(vL16)}",
             "v_lshl_add_u32 v3, v4, 4, v3",
             f"s_lshl3_add_u32 {s(sT6)}, {s(sG)}, {s(sTILE)}", f"s_mul_i32 {s(sT6)}, {s(sT6)}, {TILE_B}",
             f"s_lshl1_add_u32 {s(sXCC)}, {s(sCB)}, {s(sCH)}", f"s_lshl_b32 {s(sXCC)}, {s(sXCC)}, 6",
             f"s_add_u32 {s(sXCC)}, {s(sXCC)}, {s(sT6)}"]
        g += [f"buffer_load_dwordx4 {v(224 + 4 * b, 4)}, v3, {srd(SX)}, {s(sXCC)} offen offset:{32 * b}" for b in range(2)]
        g += ["v_min_u32 v240, 223, v0", "v_lshlrev_b32 v240, 3, v240",
              f"v_add_u32 v241, {MODO + 448 * 8}, v240", f"v_add_u32 v242, {MODO + 448 * 8 + 3584}, v240"]
        g += self.mod2_loads()
        return g

    def p3(self):
        a = self.a
        acc, vGA, vG2, vXR, vXF = 32, 64, 80, 224, 104
        a("v_mov_b32 v5, v15")
        self.pre = [(5 if vr == 15 else vr, sr, lo, so) for vr, sr, lo, so in self.pre]
        self.local_flag(1, 8)
        self.check_tags(self.mod2_loads(), [233, 235, 237, 239])
        a("v_lshlrev_b32 v18, 16, v236")
        a("v_and_b32 v19, 0xffff0000, v236")
        a("v_add_f32 v18, 1.0, v18")
        a("v_add_f32 v19, 1.0, v19")
        a("v_cvt_pk_bf16_f32 v236, v18, v19")
        a("v_lshrrev_b32 v10, 1, v240")
        a(f"v_add_u32 v10, {L_T2}, v10")
        a("s_barrier")
        for i in range(4):
            t_t2 = a.lg(f"ds_write_b32 v10, {v(232 + 2 * i)} offset:{896 * i}")
        a(f"s_lshl_b32 {s(sT1)}, {s(sCB)}, 1")
        a(f"s_add_u32 {s(sT1)}, {s(sT1)}, {s(sCH)}")
        a(f"s_lshl_b32 {s(sT1)}, {s(sT1)}, 6")
        a(f"s_mul_i32 {s(sT2)}, {s(sTILE)}, {TILE_B}")
        a(f"s_add_u32 {s(sT2)}, {s(sT2)}, {s(sGB)}")
        a(f"s_mul_i32 {s(sT3)}, {s(sCH)}, {14 * 1024}")
        a(f"s_add_u32 {s(sT3)}, {s(sT3)}, {s(sT2)}")
        a(f"s_add_u32 {s(sT3)}, {s(sT3)}, {OO}")
        self.stamp(11)
        if self.o.get("fine", 1):
            a(f"v_and_b32 v8, 0xf0, {v(vL16)}")
            a(f"s_lshr_b32 {s(sT0)}, {s(sTILE)}, 2")
            a(f"s_lshl_b32 {s(sT0)}, {s(sT0)}, 6")
            a(f"s_and_b32 {s(sT6)}, {s(sTILE)}, 3")
            a(f"s_add_u32 {s(sT0)}, {s(sT0)}, {s(sT6)}")
            a(f"s_lshl2_add_u32 {s(sT0)}, {s(sT0)}, {s(sGB)}")
            a(f"s_add_u32 {s(sT0)}, {s(sT0)}, {LFO + 512}")
            self.poll([f"buffer_load_dword v10, v8, {srd(SWS)}, {s(sT0)} offen sc1"], [10])
        else:
            self.poll_local(1, 32, 8)
        self.stamp(12)
        tk = []

        def ldO(k):
            if k and k % 4 == 0:
                a(f"s_add_u32 {s(sT3)}, {s(sT3)}, 4096")
            tk.append(a.vm(f"buffer_load_dwordx4 {a_(4 * k, 4)}, {v(vL16)}, {srd(SWS)}, {s(sT3)} offen offset:{(k % 4) * 1024} sc1"))

        for k in range(8):
            ldO(k)
        a.wait(lg=t_t2)
        a("s_barrier")
        a(f"v_lshl_add_u32 v8, v4, 4, {s(sT1)}")
        a(f"v_add_u32 v8, {L_T2}, v8")
        for b in range(2):
            a(f"ds_read_b128 {v(12 + 4 * b, 4)}, v8 offset:{32 * b}")
            a(f"ds_read_b128 {v(20 + 4 * b, 4)}, v8 offset:{2 * 896 + 32 * b}")
        a(f"s_lshl_b32 {s(sT0)}, {s(sRT)}, 5")
        a(f"v_add_u32 v8, {s(sT0)}, v8")
        t_c = a.lg(f"ds_read_b128 {v(vGBP, 4)}, v8 offset:{3 * 896}")
        n3 = [self.o.get("n_p3", 4)]
        fill = self.capture(lambda: self.unpack16(vXF, vXR))
        fill += [lambda: a.wait(lg=t_c)] + self.capture(lambda: (self.unpack16(vGA, 12), self.unpack16(vG2, 20)))
        fill += [f"s_lshl_b32 {s(sT0)}, {s(sW)}, 12", f"s_add_u32 {s(sT0)}, {s(sT0)}, {L_XB}",
                 f"v_add_u32 v26, {s(sT0)}, {v(vL16)}", "v_xor_b32 v27, 4096, v26",
                 f"s_lshl_b32 {s(sT0)}, {s(sW)}, 11", f"s_add_u32 {s(sT0)}, {s(sT0)}, {L_X2}",
                 f"v_add_u32 v29, {s(sT0)}, {v(vL16)}",
                 f"s_lshl_b32 {s(sT0)}, {s(sT1)}, 5", f"s_add_u32 {s(sT4)}, {s(sT0)}, {s(sT2)}",
                 f"s_add_u32 {s(sT4)}, {s(sT4)}, {YO}",
                 f"s_lshl_b32 {s(sT6)}, {s(sTILE)}, 8", f"s_add_u32 {s(sT6)}, {s(sT6)}, {s(sT0)}",
                 f"s_add_u32 {s(sT6)}, {s(sT6)}, {s(sGB)}", f"s_add_u32 {s(sT6)}, {s(sT6)}, {STO}",
                 f"v_bfe_u32 v28, {v(vL16)}, 1, 8", "v_lshl_add_u32 v28, v4, 2, v28"]
        for k in range(14):
            a.wait(vm=tk[k])
            for ct in range(2):
                d = v(acc + 16 * ct, 16)
                a(f"v_mfma_f32_32x32x16_bf16 {d}, {a_(128 + 8 * k + 4 * ct, 4)}, {a_(4 * k, 4)}, {d if k else 0}")
                if ct == 0 and k + 8 < 14:
                    ldO(k + 8)
                elif k >= 6 and n3[0]:
                    self.wgu(1)
                    n3[0] -= 1
                for _ in range(3):
                    if fill:
                        f = fill.pop(0)
                        f() if callable(f) else a(f)
        assert not fill
        self.stamp(25)
        self.exchange(acc)
        for r in range(0, 16, 2):
            a(f"v_pk_fma_f32 {v(acc + r, 2)}, {v(acc + r, 2)}, {v(vGA + r, 2)}, {v(vXF + r, 2)}")
        for r in range(0, 16, 2):
            a(f"v_pk_mul_f32 {v(acc + 16 + r, 2)}, {v(acc + r, 2)}, {v(vG2 + r, 2)}")
        for b in range(2):
            for j in range(4 * b, 4 * b + 4):
                a(f"v_cvt_pk_bf16_f32 {v(12 + j)}, {v(acc + 16 + 2 * j)}, {v(acc + 16 + 2 * j + 1)}")
            a(f"buffer_store_dwordx4 {v(12 + 4 * b, 4)}, {v(vL16)}, {srd(SWS)}, {s(sT4)} offen offset:{1024 * b}{self.st('y')}")
        a(f"v_pk_mul_f32 v[22:23], {v(acc, 2)}, {v(acc, 2)}")
        a(f"v_pk_add_f32 v[20:21], {v(acc, 2)}, {v(acc + 2, 2)}")
        a(f"v_pk_fma_f32 v[22:23], {v(acc + 2, 2)}, {v(acc + 2, 2)}, v[22:23]")
        for r in range(4, 16, 2):
            a(f"v_pk_add_f32 v[20:21], v[20:21], {v(acc + r, 2)}")
            a(f"v_pk_fma_f32 v[22:23], {v(acc + r, 2)}, {v(acc + r, 2)}, v[22:23]")
        a("v_add_f32 v20, v20, v21")
        a("v_add_f32 v21, v22, v23")
        a("v_permlane32_swap_b32 v20, v21")
        a("v_add_f32 v20, v20, v21")
        t_y = a.vm(f"buffer_store_dword v20, v28, {srd(SWS)}, {s(sT6)} offen{self.st('y')}")
        for j in range(8):
            a(f"v_cvt_pk_bf16_f32 {v(vX2 + j)}, {v(acc + 2 * j)}, {v(acc + 2 * j + 1)}")
        for b in range(2):
            a(f"ds_write_b128 v29, {v(vX2 + 4 * b, 4)} offset:{1024 * b}")
        self.local_flag(2, 8)
        self.stamp(13)

    def p45(self):
        a, o = self.a, self.o
        acc, vW, vTB, vTQ, vAUG, vR2, vU, vH = 32, 160, 208, 12, 16, 24, 224, 224
        vTBA, vAGA, vWD, vSTA, vPD, vFA, vST = 26, 27, 28, 30, 2, 31, 96
        NSW = 12
        late = len(self.pre)
        self.tr_pattern(vTQ, 8, True)
        a(f"v_bfe_u32 v8, {v(vL16)}, 8, 1")
        a(f"v_mul_u32_u24 v8, {LB - LA}, v8")
        a(f"s_mul_i32 {s(sT0)}, {s(sW)}, 10240")
        a(f"s_add_u32 {s(sB)}, {s(sT0)}, {L_F}")
        a(f"s_lshl_b32 {s(sT0)}, {s(sCH)}, 6")
        a(f"s_lshl_b32 {s(sT1)}, {s(sRT)}, 5")
        a(f"s_add_u32 {s(sT0)}, {s(sT0)}, {s(sT1)}")
        a(f"v_xor_b32 {v(vWD)}, {s(sT0)}, {v(vTQ)}")
        a(f"v_add_u32 {v(vWD)}, {s(sB)}, {v(vWD)}")
        a(f"v_xor_b32 {v(vWD + 1)}, 64, {v(vWD)}")
        a(f"v_add_u32 {v(vTQ)}, {v(vTQ)}, v8")
        for q in range(1, 4):
            a(f"v_xor_b32 {v(vTQ + q)}, {32 * q}, {v(vTQ)}")
        a(f"s_lshl_b32 {s(sT0)}, {s(sCH)}, 11")
        a(f"s_lshl_b32 {s(sT1)}, {s(sRT)}, 10")
        a(f"s_add_u32 {s(sT0)}, {s(sT0)}, {s(sT1)}")
        a(f"s_add_u32 {s(sT0)}, {s(sT0)}, {L_X2}")
        a(f"v_add_u32 v8, {s(sT0)}, {v(vL16)}")
        a.wait_all(vm=False)
        a("s_barrier")
        for rt in range(2):
            a(f"ds_read_b128 {v(vX2 + 4 * rt, 4)}, v8 offset:{4096 * rt}")
        self.p45_setup(vSTA, vPD, vFA)
        a.wait_all(vm=False)
        a("s_barrier")
        self.stamp(14)
        if self.o.get("fine", 1):
            a(f"v_lshrrev_b32 v8, 2, {v(vL16)}")
            a("v_min_u32 v8, 108, v8")
            a(f"s_mul_i32 {s(sT0)}, {s(sW)}, 112")
            a(f"s_add_u32 {s(sT0)}, {s(sT0)}, {s(sGB)}")
            a(f"s_add_u32 {s(sT0)}, {s(sT0)}, {LFO + 1024}")
            self.poll([f"buffer_load_dword v10, v8, {srd(SWS)}, {s(sT0)} offen sc1"], [10])
        else:
            self.poll_local(2, 28, 8)
        self.stamp(15)
        a(f"s_lshl_b32 {s(sT0)}, {s(sM)}, 4")
        a(f"s_lshl_b32 {s(sT1)}, {s(sW)}, 2")
        a(f"s_add_u32 {s(sT0)}, {s(sT0)}, {s(sT1)}")
        a(f"s_add_u32 {s(sT0)}, {s(sT0)}, {LFO + 3 * 512}")
        a(f"v_mov_b32 v10, {s(sT0)}")
        a(f"v_mov_b32 v11, {s(sTAG)}")

        steps = []
        for rt in range(2):
            steps += [("f", rt, k, q) for k in range(28) for q in range(4)]
            steps += [("g", rt, 28, q) for q in range(4)]
        steps += [("d", rt, j, ct) for rt in range(2) for j in range(28) for ct in range(2)]
        at = {st: n for n, st in enumerate(steps)}
        N = len(steps)
        ev = [[] for _ in range(N + 1)]
        R = lambda key: (a_ if key[0] == "a" else v)(key[1], 4)

        LAT, FAR, UNIT, LIM = o.get("lat", 450), o.get("far", 450), o.get("unit", 72), o.get("lim", 10)
        MF, GAP = o.get("mf", 40), o.get("gap", 6)
        sim = dict(T=0, free=0, last=0)
        arr, tick = {}, {}
        memq, fill, wq2 = [], [], []
        need = dict(vm=0, lg=0)
        cur = [0]

        def plan(name, cost, lat, *ops):
            st = max(sim["T"], sim["free"])
            sim["free"] = st + cost
            sim["last"] = max(sim["last"], sim["free"] + lat)
            arr[name] = sim["last"]
            memq.extend(ops[:-1])
            memq.append(lambda: tick.__setitem__(name, a.vm(ops[-1])))

        def emit(chain, n):
            done = 0
            while chain and done < n:
                f = chain.pop(0)
                n0 = len(a.ins)
                f() if callable(f) else a(f)
                done += len(a.ins) - n0
            return done

        def issued(name):
            while name not in tick:
                assert memq, name
                emit(memq, 1)
            return tick[name]

        def inflight():
            return sum(1 for x in arr.values() if x > sim["T"])

        def stall_until(name):
            while arr[name] > sim["T"] + 20 and serve(cur[0]):
                emit(memq, 99)
                sim["T"] += 16
            sim["T"] = max(sim["T"], arr[name])

        free_q = [("a", 4 * i) for i in range(63, -1, -1)]
        wd_next = [0]
        reg = {}

        def take_quad(horizon):
            for key in free_q:
                if key[0] == "v" or key[1] >= 8 * min(28, wd_next[0] + horizon):
                    free_q.remove(key)
                    return key
            return None

        def ldY(n):
            key = take_quad(o.get("hor", 5))
            if key is None:
                return False
            reg[("y", n)] = key
            pre = [f"s_add_u32 {s(sTQ)}, {s(sTQ)}, 4096"] if n and n % 4 == 0 else []
            plan(("y", n), UNIT, o.get("lat_y", LAT), *pre,
                 f"buffer_load_dwordx4 {R(key)}, {v(vL16)}, {srd(SWS)}, {s(sTQ)} offen offset:{(n % 4) * 1024} sc1")
            return True

        def ldH(n):
            key = take_quad(28)
            if key is None:
                return False
            reg[("h", n)] = key
            pre = []
            if n == 28:
                pre = [f"s_add_u32 {s(sT6)}, {s(sT6)}, {HT_B - 24 * 1024}"]
            elif n % 28 and n % 28 % 4 == 0:
                pre = [f"s_add_u32 {s(sT6)}, {s(sT6)}, 4096"]
            plan(("h", n), UNIT, o.get("lat_h", LAT), *pre,
                 f"buffer_load_dwordx4 {R(key)}, {v(vL16)}, {srd(SWS)}, {s(sT6)} offen offset:{(n % 28 % 4) * 1024} sc1")
            return True

        wd_tr_t = {}

        def ldD(j):
            if j >= 5 and (j - 5 not in wd_tr_t or wd_tr_t[j - 5] > a.lg_done):
                return False
            far = o.get("far_d", FAR)
            plan(("d0", j), UNIT, far, f"s_add_u32 m0, {s(sB)}, {(j % 5) * 2048}", f"s_add_u32 {s(sT4)}, {s(sT4)}, {16 * 896}",
                 f"buffer_load_dwordx4 {v(vPD)}, {srd(SWD)}, {s(sT4)} offen lds")
            plan(("d", j), UNIT, far, f"buffer_load_dwordx4 v0, {srd(SWD)}, {s(sT4)} offen offset:1024 lds")
            return True

        wd_pending = [None]

        def wd_read(must=False):
            j = wd_next[0]
            if wd_pending[0] is not None or j >= 28 or ("d", j) not in arr:
                return
            if not must and (arr[("d", j)] > sim["T"] or ("d", j) not in tick):
                return
            if any(("a", 8 * j + 4 * ct) not in free_q for ct in range(2)):
                assert not must
                return
            for ct in range(2):
                free_q.remove(("a", 8 * j + 4 * ct))
            need["vm"] = max(need["vm"], issued(("d", j)))
            wd_pending[0] = j

        def wd_queue():
            j = wd_pending[0]
            if j is None:
                return
            for ct in range(2):
                for u in range(2):
                    t = f"ds_read_b64_tr_b16 {a_(8 * j + 4 * ct + 2 * u, 2)}, {v(vWD + ct)} offset:{(j % 5) * 2048 + 512 * u}"
                    wq2.append((lambda t=t: wd_tr_t.__setitem__(j, a.lg(t))) if ct and u else t)
            wd_pending[0] = None
            wd_next[0] += 1

        def ldL(i):
            (vg, sg_, lg_, so), (vu, su, lu, _) = self.pre.pop(0), self.pre.pop(0)
            far = o.get("far_l", FAR)
            plan(("l0", i), UNIT, far, f"s_add_u32 m0, {s(sT5)}, {lg_}", f"s_add_u32 {s(sT7)}, {s(sWSRC)}, {so}",
                 f"buffer_load_dwordx4 {v(vg)}, {srd(sg_)}, {s(sT7)} offen lds")
            plan(("l", i), UNIT, far, f"s_add_u32 m0, {s(sT5)}, {lu}\ns_nop 0",
                 f"buffer_load_dwordx4 {v(vu)}, {srd(su)}, {s(sT7)} offen lds")
            return True

        def ldS(p):
            for rt in range(2):
                plan(("s", p, rt), UNIT // 2, LAT,
                     f"buffer_load_dwordx2 {v(vST + 14 * rt + 2 * p, 2)}, {v(vSTA)}, {srd(SWS)}, {s(sKVL)} offen offset:{256 * rt + (p & 1) * 2048} sc1")
            if p & 1:
                memq.append(f"s_add_u32 {s(sKVL)}, {s(sKVL)}, 4096")
            return True

        assert late % 2 == 0
        first = (28 - late) // 2
        bar_at = {b: at[("f", 0, 2 * (b - (b - first) % 2) - 2, 0)] for b in range(first, 14)}
        nS = at[("f", 0, o.get("ks", 17), 0)]
        YL, HL, LEAD = o.get("ylook", 6), o.get("hlook", 12), 20
        gate = {0: None, 1: None}
        queues = {
            "y": [(at[("f", max(n - YL, 0) // 28, max(n - YL, 0) % 28, 0)] if n >= YL else -1,
                   at[("f", n // 28, n % 28, 0)] - LEAD, lambda n=n: ldY(n)) for n in range(56)],
            "l": [(0, bar_at[first + i] - o.get("lead_l", 30), lambda i=i: ldL(i)) for i in range(late // 2)],
            "s": [(at[("f", 0, 6, 0)], nS - 20, lambda p=p: ldS(p)) for p in range(7)],
            "d": [(0, at[("d", 0, j, 0)] - LEAD - o.get("lead_d", 6), lambda j=j: ldD(j)) for j in range(28)],
            "h": [(("h", n // 28, at[("d", n // 28, n % 28, 0)] - 2 * HL), at[("d", n // 28, n % 28, 0)] - LEAD,
                   lambda n=n: ldH(n)) for n in range(56)],
        }

        def serve(n):
            if len(memq) > 2 or inflight() >= LIM or sim["free"] >= sim["T"] + o.get("ahead", 300):
                return False
            cand = []
            for name, q in queues.items():
                if q:
                    e = q[0][0]
                    if isinstance(e, tuple):
                        if gate[e[1]] is None:
                            continue
                        e = max(e[2], gate[e[1]])
                    if e <= n:
                        cand.append((q[0][1], name))
            for _, name in sorted(cand):
                if queues[name][0][2]():
                    queues[name].pop(0)
                    return True
            return False

        def force(qname, name):
            while name not in arr:
                if qname == "d" and not queues[qname][0][2]():
                    wd_read(must=True)
                    a.wait(vm=need["vm"])
                    wd_queue()
                    emit(wq2, 99)
                    a.wait(lg=a.lg_n)
                    continue
                if qname != "d":
                    assert queues[qname][0][2](), name
                queues[qname].pop(0)
            return issued(name)

        def hard_wait(qname, name):
            t = force(qname, name) if qname else issued(name)
            stall_until(name)
            a.wait(vm=t)

        for b in sorted(set(bar_at.values())):
            i = max(x for x in bar_at if bar_at[x] == b) - first
            ev[b].append(lambda i=i: (hard_wait("l", ("l", i)), a("s_barrier")))
        ev[nS].append(lambda: (hard_wait("s", ("s", 6, 1)), fill.extend(self.ln2_stats(vST, vAUG, vR2))))

        ev[at[("g", 0, 28, 0)]].append(lambda: emit(fill, 999))

        def spin_block(L, text):
            self.tail.append([f"{L}:", f"s_mov_b32 {s(sSPIN)}, 0", f"{L}_spin:", text,
                              f"s_add_u32 {s(sSPIN)}, {s(sSPIN)}, 1", f"s_cmp_gt_u32 {s(sSPIN)}, {SPIN_MAX}",
                              "s_cbranch_scc1 L_abort", "s_waitcnt vmcnt(0)", f"v_cmp_ne_u32 vcc, {s(sTAG)}, v9",
                              f"s_cbranch_vccnz {L}_spin", f"s_branch {L}_back"])

        def check(name, text):
            L = a.label("hw")
            hard_wait(None, name)
            a(f"v_cmp_ne_u32 vcc, {s(sTAG)}, v9")
            a(f"s_cbranch_vccnz {L}")
            a(f"{L}_back:")
            spin_block(L, text)

        atext = f"buffer_load_dword v9, v8, {srd(SWS)}, {s(sT0)} offen sc1"
        ev[at[("f", 0, o.get("kaf", 21) - 5, 0)]].append(lambda: plan("af", 20, FAR, f"s_lshl4_add_u32 {s(sT0)}, {s(sM)}, {AFO}",
                                                   f"v_bfe_u32 v8, {v(vL16)}, 2, 4", atext))

        def aug_load():
            check("af", atext)
            for q in range(4):
                plan(("ag", q), UNIT, FAR,
                     f"buffer_load_dwordx4 {v(vTB + 4 * q, 4)}, {v(vL16)}, {srd(SWS)}, {s(sHD)} offen offset:{q << 10} sc1")

        ev[at[("f", 0, o.get("kaf", 21), 0)]].append(aug_load)

        def st_h(rt, q):
            plan(("st", rt, q), o.get("st_cost", 2 * UNIT), o.get("lat_st", LAT),
                 f"buffer_store_dwordx4 {v(vH + 4 * q, 4)}, {v(vL16)}, {srd(SWS)}, {s(sT3)} offen offset:{q << 10}{self.st('h')}")
            if q == 3:
                memq.append(f"s_add_u32 {s(sT3)}, {s(sT3)}, {HT_B}")

        def epilogue(rt):
            for q in range(4):
                b, oq = acc + 64 * rt + 16 * q, vH + 4 * q
                for r in range(8):
                    fill.append(f"v_max_f32 {v(b + r)}, 0, {v(b + r)}")
                    fill.append(f"v_mul_f32 {v(b + 8 + r)}, {v(vR2 + rt)}, {v(b + 8 + r)}")
                for r in range(8):
                    fill.append(f"v_mul_f32 {v(b + r)}, {v(b + r)}, {v(b + 8 + r)}")
                for j in range(4):
                    fill.append(f"v_cvt_pk_bf16_f32 {v(oq + j)}, {v(b + 2 * j)}, {v(b + 2 * j + 1)}")
                fill.append(lambda q=q: st_h(rt, q))

        def poll_text(rt):
            return f"buffer_load_dword v9, {v(vFA)}, {srd(SWS)}, {s(sGB)} offen offset:{512 * rt} sc1"

        def handoff(n, rt, must=False):
            hs, fl, pl = ("st", rt, 3), ("fl", rt), ("pl", rt)
            if hs in arr and fl not in arr and (must or (hs in tick and arr[hs] <= sim["T"])):
                hard_wait(None, hs)
                emit(memq, 99)
                a("s_mov_b64 exec, 1")
                plan(fl, 20, LAT, f"buffer_store_dword v11, v10, {srd(SWS)}, {s(sGB)} offen offset:{512 * rt}{self.st('f')}")
                emit(memq, 99)
                a("s_mov_b64 exec, -1")
                if not must:
                    return
            if fl in arr and pl not in arr and (must or arr[fl] + o.get("skew", 100) - LAT <= sim["T"]):
                plan(pl, 20, LAT, poll_text(rt))
                if not must:
                    return
            if pl in arr and gate[rt] is None and (must or (pl in tick and arr[pl] <= sim["T"])):
                check(pl, poll_text(rt))
                gate[rt] = n

        ev[at[("f", 1, 1, 0)]].append(lambda: epilogue(0))
        ev[at[("d", 0, 1, 0)]].append(lambda: epilogue(1))

        def red_write(rt):
            ops = []
            for x in (2, 1, 3):
                r = acc + 32 * rt + 16 * (x & 1) + 8 * (x >> 1)
                ops += [f"ds_write_b128 {v(11 + x)}, {v(r + 4 * i, 4)} offset:{32768 * rt + 2048 * (x - 1) + 1024 * i}" for i in range(2)]
            return ops

        def red_finish(rt):
            t0, own, ops, tk = 96, acc + 32 * rt, [], {}
            for x in range(3):
                for i in range(2):
                    ops.append(lambda x=x, i=i: tk.__setitem__(x, a.lg(
                        f"ds_read_b128 {v(t0 + 8 * x + 4 * i, 4)}, v5 offset:{32768 * rt + 2048 * x + 1024 * i}")))
            add = "v_add_f32" if rt == 0 else None
            ops.append(lambda: a.wait(lg=tk[0]))
            if rt == 0:
                ops += [f"v_add_f32 {v(own + r)}, {v(own + r)}, {v(t0 + r)}" for r in range(8)]
                ops.append(lambda: a.wait(lg=tk[2]))
                ops += [f"v_add_f32 {v(t0 + 8 + r)}, {v(t0 + 8 + r)}, {v(t0 + 16 + r)}" for r in range(8)]
                ops += [f"v_add_f32 {v(own + r)}, {v(own + r)}, {v(t0 + 8 + r)}" for r in range(8)]
                ops += [f"v_fma_f32 {v(own + r)}, {v(own + r)}, {v(128 + r)}, {v(136 + r)}" for r in range(8)]
            else:
                ops += [f"v_pk_add_f32 {v(own + r, 2)}, {v(own + r, 2)}, {v(t0 + r, 2)}" for r in range(0, 8, 2)]
                ops.append(lambda: a.wait(lg=tk[2]))
                ops += [f"v_pk_add_f32 {v(t0 + 8 + r, 2)}, {v(t0 + 8 + r, 2)}, {v(t0 + 16 + r, 2)}" for r in range(0, 8, 2)]
                ops += [f"v_pk_add_f32 {v(own + r, 2)}, {v(own + r, 2)}, {v(t0 + 8 + r, 2)}" for r in range(0, 8, 2)]
                ops += [f"v_pk_fma_f32 {v(own + r, 2)}, {v(own + r, 2)}, {v(128 + r, 2)}, {v(152 + r, 2)}" for r in range(0, 8, 2)]
            if o.get("diag_off"):
                ops += [f"v_add_f32 {v(own + r)}, {f2u(o['diag_off'] / 1000):#x}, {v(own + r)}" for r in range(8 if o.get("diag_all", 1) else 1)]
            ops += [f"v_cvt_pk_bf16_f32 {v(144 + 4 * rt + j)}, {v(own + 2 * j)}, {v(own + 2 * j + 1)}" for j in range(4)]
            ops.append(f"buffer_store_dwordx4 {v(144 + 4 * rt, 4)}, v3, {srd(SOUT)}, {s(sXCC)} offen{' sc1' if o.get('out_sc1') else ''}")
            if rt == 0:
                ops.append(f"s_add_u32 {s(sXCC)}, {s(sXCC)}, {TILE_B}")
            return ops

        def red_setup():
            emit(fill, 999)
            emit(memq, 99)
            fill.extend([f"s_lshl_b32 {s(sT0)}, {s(sW)}, 13", f"v_add_u32 v5, {s(sT0)}, {v(vL16)}"])
            fill.extend(f"v_xor_b32 {v(11 + x)}, {x << 13}, v5" for x in (1, 2, 3))
            for j in range(4):
                fill.extend([f"v_lshlrev_b32 {v(128 + 2 * j)}, 16, {v(vGBP + j)}",
                             f"v_and_b32 {v(129 + 2 * j)}, 0xffff0000, {v(vGBP + j)}"])
            for rt in range(2):
                for j in range(4):
                    fill.extend([f"v_lshlrev_b32 {v(136 + 16 * rt + 2 * j)}, 16, {v(vX2 + 4 * rt + j)}",
                                 f"v_and_b32 {v(137 + 16 * rt + 2 * j)}, 0xffff0000, {v(vX2 + 4 * rt + j)}"])

        ev[at[("d", 1, 0, 0)]].append(red_setup)
        ev[at[("d", 1, 4, 0)]].append(lambda: (emit(fill, 999), a("s_barrier")))
        t_rw = [0]
        for i in range(6):
            ev[at[("d", 1, 4 + i, 1)]].append(lambda i=i: t_rw.__setitem__(0, a.lg(red_write(0)[i])))
        ev[at[("d", 1, 12, 0)]].append(lambda: (a.wait(lg=t_rw[0]), a("s_barrier"), fill.extend(red_finish(0))))

        fsteps = [n for n, st in enumerate(steps) if st[0] == "f"]
        wslot = {n: vW + 4 * (i % NSW) for i, n in enumerate(fsteps)}
        wt, wchain = {}, []
        for i, n in enumerate(fsteps):
            _, rt, k, q = steps[n]
            ok = fsteps[i - NSW + 1] if i >= NSW - 1 else -1
            if rt == 0 and k // 2 in bar_at:
                ok = max(ok, bar_at[k // 2] - 1)
            for u in range(2):
                t = f"ds_read_b64_tr_b16 {v(wslot[n] + 2 * u, 2)}, {v(vTQ + q)} offset:{k * 2048 + 512 * u}"
                wchain.append((ok, n, (lambda t=t, n=n: wt.__setitem__(n, a.lg(t))) if u else t))
        LO, HI = o.get("wlo", 3), o.get("whi", 6)

        def wread(n, horizon, maxn):
            done = 0
            while wchain and done < maxn and wchain[0][0] <= n and wchain[0][1] <= n + horizon:
                f = wchain.pop(0)[2]
                f() if callable(f) else a(f)
                done += 1
            return done

        for n in range(o.get("y0", 5)):
            force("y", ("y", n))
        wread(-1, HI, 99)
        stamps = {at[("f", 0, 8, 0)]: 22, at[("f", 1, 0, 0)]: 21, at[("d", 0, 0, 0)]: 23, at[("d", 1, 0, 0)]: 24}
        self.model, self.gaps = {}, []
        g0 = len(a.ins)
        for n, (kind, rt, k, q) in enumerate(steps):
            cur[0] = n
            if n in stamps:
                self.stamp(stamps[n])
                self.model[stamps[n]] = (sim["T"], wd_next[0], sum(x[0] == "h" for x in reg))
            for f in ev[n]:
                f()
            lg, vm = 0, 0
            if kind == "f":
                wread(n - 1, 1, 99)
                m = 28 * rt + k
                d, A = v(acc + 64 * rt + 16 * q, 16), v(wslot[n], 4)
                vm = force("y", ("y", m))
                stall_until(("y", m))
                B, lg = R(reg[("y", m)]), wt[n]
                if lg > a.lg_done and n + 1 in wt:
                    lg = wt[n + 1]
            elif kind == "g":
                d, A, B = v(acc + 64 * rt + 16 * q, 16), v(vTB + 4 * q, 4), v(vAUG + 4 * rt, 4)
                vm = issued(("ag", q))
            else:
                m = 28 * rt + k
                if gate[rt] is None:
                    emit(fill, 999)
                    handoff(n, rt, must=True)
                vm = force("h", ("h", m))
                while k not in wd_tr_t:
                    if wd_next[0] <= k and wd_pending[0] is None and not wq2:
                        force("d", ("d", wd_next[0]))
                        stall_until(("d", wd_next[0]))
                        wd_read(must=True)
                    a.wait(vm=need["vm"])
                    wd_queue()
                    emit(wq2, 99)
                stall_until(("h", m))
                d, A, B, lg = v(acc + 32 * rt + 16 * q, 16), a_(8 * k + 4 * q, 4), R(reg[("h", m)]), wd_tr_t[k]
            a.wait(vm=max(vm, need["vm"]), lg=lg)
            wd_queue()
            self.gaps.append(len(a.ins) - g0)
            C = d if (k or kind == "g") else 0
            a(f"v_mfma_f32_32x32x16_bf16 {d}, {A}, {B}, {C}")
            g0 = len(a.ins)
            if kind == "f" and q == 3:
                free_q.append(reg[("y", m)])
                free_q.sort(key=lambda x: (x[0] == "v", -x[1]))
            if n == fsteps[-1]:
                free_q.extend(("v", vW + 4 * i) for i in range(NSW))
            if kind == "d" and q == 1:
                free_q.append(reg[("h", m)])
            sim["T"] += o.get("mfd", 36) if kind == "d" else MF
            handoff(n, 0)
            handoff(n, 1)
            wd_read()
            serve(n)
            nw = 1
            if n + 1 < N and need["vm"] <= a.vm_done:
                k2, r2, s2, q2 = steps[n + 1]
                if k2 == "f" and wt.get(n + 1, 1 << 30) <= a.lg_done and tick.get(("y", 28 * r2 + s2), 1 << 30) <= a.vm_done:
                    nw = 0
                if k2 == "d" and wd_tr_t.get(s2, 1 << 30) <= a.lg_done and tick.get(("h", 28 * r2 + s2), 1 << 30) <= a.vm_done:
                    nw = 0
            room = lambda: GAP - nw - (len(a.ins) - g0)
            wread(n, LO, max(room(), 0))
            if room() > 0:
                emit(fill, min(room(), o.get("fpri", 2)))
            if room() > 0:
                emit(memq, min(room(), 2))
            if room() > 0:
                emit(wq2, min(room(), 2))
            if room() > 0:
                emit(fill, room())
            if room() > 0:
                wread(n, HI, room())
            if room() > 0:
                emit(memq, room())
        emit(fill, 999)
        assert not memq and not wq2 and not any(queues.values())
        self.stamp(18)
        self.model[18] = sim["T"]
        for t in red_write(1):
            a(t)
        a.wait_all(vm=False)
        a("s_barrier")
        for f in red_finish(1):
            f() if callable(f) else a(f)
        self.stamp(19)

    def p45_setup(self, vSTA, vPD, vFA):
        a = self.a
        self.w_dma_pattern(vPD, 8, 896)
        a(f"s_lshl_b32 {s(sT0)}, {s(sCB)}, 7")
        a(f"s_mul_i32 {s(sT1)}, {s(sW)}, {448 * 896}")
        a(f"s_add_u32 {s(sT4)}, {s(sT0)}, {s(sT1)}")
        a(f"s_sub_u32 {s(sT4)}, {s(sT4)}, {16 * 896}")
        a(f"v_add_u32 v0, {8 * 896 - 1024}, {v(vPD)}")
        a(f"s_mul_i32 {s(sTQ)}, {s(sW)}, {2 * TILE_B}")
        a(f"s_add_u32 {s(sTQ)}, {s(sTQ)}, {s(sGB)}")
        a(f"s_add_u32 {s(sTQ)}, {s(sTQ)}, {YO}")
        a(f"v_and_b32 {v(vSTA)}, 0x1f0, {v(vL16)}")
        a(f"v_lshrrev_b32 {v(vSTA)}, 1, {v(vSTA)}")
        a("v_mul_u32_u24 v8, 14336, v4")
        a(f"v_add_u32 {v(vSTA)}, {v(vSTA)}, v8")
        a(f"s_lshl_b32 {s(sT1)}, {s(sW)}, 9")
        a(f"s_add_u32 {s(sT1)}, {s(sT1)}, {s(sGB)}")
        a(f"s_add_u32 {s(sKVL)}, {s(sT1)}, {STO}")
        a(f"s_mov_b32 {s(sP1)}, 0x01000100")
        a(f"s_mov_b32 {s(sP1 + 1)}, 0x07060302")
        a(f"s_lshl_b32 {s(sHD)}, {s(sM)}, 12")
        a(f"s_add_u32 {s(sHD)}, {s(sHD)}, {AUGO}")
        a(f"s_mov_b32 {s(sT2)}, 0xffff")
        a(f"s_mul_i32 {s(sT3)}, {s(sW)}, {2 * HT_B}")
        a(f"s_add_u32 {s(sT3)}, {s(sT3)}, {s(sGB)}")
        a(f"s_lshl_b32 {s(sT1)}, {s(sM)}, 12")
        a(f"s_add_u32 {s(sT3)}, {s(sT3)}, {s(sT1)}")
        a(f"s_add_u32 {s(sT3)}, {s(sT3)}, {HO}")
        a(f"s_mul_i32 {s(sT6)}, {s(sRQ)}, {2 * HT_B}")
        a(f"s_mul_i32 {s(sT1)}, {s(sW)}, {28 * 1024}")
        a(f"s_add_u32 {s(sT6)}, {s(sT6)}, {s(sT1)}")
        a(f"s_add_u32 {s(sT6)}, {s(sT6)}, {s(sGB)}")
        a(f"s_add_u32 {s(sT6)}, {s(sT6)}, {HO}")
        a(f"v_min_u32 {v(vFA)}, 96, {v(vL16)}")
        a(f"s_mul_i32 {s(sT0)}, {s(sW)}, 112")
        a(f"s_lshl_b32 {s(sT1)}, {s(sRQ)}, 2")
        a(f"s_add_u32 {s(sT0)}, {s(sT0)}, {s(sT1)}")
        a(f"s_add_u32 {s(sT0)}, {s(sT0)}, {LFO + 3 * 512}")
        a(f"v_add_u32 {v(vFA)}, {s(sT0)}, {v(vFA)}")
        a(f"s_mul_i32 {s(sT0)}, {s(sRT)}, {TILE_B - 32}")
        a(f"s_sub_u32 {s(sXCC)}, {s(sXCC)}, {s(sT0)}")

    def ln2_stats(self, vST, vAUG, vR2):
        ops = []
        for rt in range(2):
            b = vST + 14 * rt
            for p in range(1, 7):
                ops += [f"v_add_f32 {v(b)}, {v(b)}, {v(b + 2 * p)}", f"v_add_f32 {v(b + 1)}, {v(b + 1)}, {v(b + 2 * p + 1)}"]
            ops += [f"v_mov_b32 {v(b + 2)}, {v(b)}", f"v_mov_b32 {v(b + 3)}, {v(b + 1)}",
                    f"v_permlane32_swap_b32 {v(b + 2)}, {v(b)}", f"v_permlane32_swap_b32 {v(b + 3)}, {v(b + 1)}",
                    f"v_add_f32 {v(b)}, {v(b)}, {v(b + 2)}", f"v_add_f32 {v(b + 1)}, {v(b + 1)}, {v(b + 3)}",
                    f"v_mul_f32 {v(b)}, {f2u(-1 / 448):#x}, {v(b)}",
                    f"v_mul_f32 {v(b + 1)}, {f2u(1 / 448):#x}, {v(b + 1)}",
                    f"v_fma_f32 {v(b + 1)}, -{v(b)}, {v(b)}, {v(b + 1)}",
                    f"v_max_f32 {v(b + 1)}, 0, {v(b + 1)}",
                    f"v_add_f32 {v(b + 1)}, {f2u(1e-5):#x}, {v(b + 1)}",
                    f"v_rcp_f32 {v(vR2 + rt)}, {v(b + 1)}",
                    f"v_sqrt_f32 {v(b + 1)}, {v(b + 1)}",
                    f"v_cvt_pk_bf16_f32 {v(b + 2)}, {v(b)}, {v(b + 1)}",
                    f"v_lshlrev_b32 {v(b + 3)}, 16, {v(b + 2)}",
                    f"v_and_b32 {v(b + 4)}, 0xffff0000, {v(b + 2)}",
                    f"v_sub_f32 {v(b + 3)}, {v(b)}, {v(b + 3)}",
                    f"v_sub_f32 {v(b + 4)}, {v(b + 1)}, {v(b + 4)}",
                    f"v_cvt_pk_bf16_f32 {v(b + 3)}, {v(b + 3)}, {v(b + 4)}",
                    f"v_perm_b32 {v(vAUG + 4 * rt)}, {v(b + 2)}, {v(b + 2)}, {s(sP1)}",
                    f"v_bfi_b32 {v(vAUG + 4 * rt + 1)}, {s(sT2)}, {v(b + 3)}, {v(b + 2)}",
                    f"v_perm_b32 {v(vAUG + 4 * rt + 2)}, {v(b + 3)}, {v(b + 2)}, {s(sP1 + 1)}",
                    f"v_mov_b32 {v(vAUG + 4 * rt + 3)}, 0"]
        return ops

    def helper_tail(self):
        a = self.a
        a("L_helper_tail:")
        a.vm_done, a.lg_done = a.vm_n, a.lg_n
        n_att = self.o.get("n_att", 14)
        a("s_barrier")
        for i in range(n_att // 2, 14):
            self.dma(15, SWG, sT5, LA + i * 4096, sWSRC, i * 32 * 3584)
            self.dma(6, SWU, sT5, LB + i * 4096, sWSRC, i * 32 * 3584)
        if self.o.get("wdt", 3) == 2:
            self.wd_first_touch()
        a(f"s_sub_u32 {s(sT4)}, {s(sM)}, 28")
        a(f"s_lshl3_add_u32 {s(sT4)}, {s(sT4)}, {s(sG)}")
        a(f"s_cmp_ge_u32 {s(sT4)}, 28")
        a("s_cbranch_scc1 L_no_uv")
        self.uv_job(sT4)
        self.stamp(11)
        a("L_no_uv:")
        if self.o.get("wdt", 3) == 3:
            self.wd_first_touch()
        if self.o.get("hl2", 0):
            a(f"s_sub_u32 {s(sT2)}, {s(sM)}, 28")
            a(f"s_lshl_b32 {s(sT2)}, {s(sT2)}, 2")
            a(f"s_add_u32 {s(sT2)}, {s(sT2)}, {s(sW)}")
            a(f"v_lshlrev_b32 v8, 3, {v(vL16)}")
            row0 = 16 * self.o.get("n_att", 14)
            nins = -(-(448 - row0) * 28 // (64 * 16))
            a(f"s_lshl_b32 {s(sT0)}, {s(sT2)}, 13")
            a(f"s_add_u32 {s(sT0)}, {s(sT0)}, {row0 * 3584}")
            for i in range(nins if self.o.get("hl2_gu", 1) else 0):
                self.touch(8, SWG, sT0)
                self.touch(8, SWU, sT0)
                a(f"s_add_u32 {s(sT0)}, {s(sT0)}, {16 * 8192}")
                a("s_waitcnt vmcnt(2)")
            a(f"s_and_b32 {s(sT0)}, {s(sT2)}, 3")
            a(f"s_mul_i32 {s(sT0)}, {s(sT0)}, {448 * 896}")
            a(f"s_lshr_b32 {s(sT1)}, {s(sT2)}, 2")
            a(f"s_mul_i32 {s(sT1)}, {s(sT1)}, {8 * 896}")
            a(f"s_add_u32 {s(sT0)}, {s(sT0)}, {s(sT1)}")
            a("s_mov_b32 exec_hi, 0x00ffffff")
            for i in range(14 if self.o.get("hl2_d", 1) else 0):
                self.touch(8, SWD, sT0)
                a(f"s_add_u32 {s(sT0)}, {s(sT0)}, {32 * 896}")
                a("s_waitcnt vmcnt(2)")
            a("s_mov_b64 exec, -1")
        if self.o.get("wb", 0) and self.stop is None:
            a(f"s_cmp_lg_u32 {s(sM)}, 28")
            a("s_cbranch_scc1 L_end")
            a(f"s_cmp_lg_u32 {s(sW)}, 0")
            a("s_cbranch_scc1 L_end")
            for ph in (2, 3, 4):
                if self.o["wb"] >> (ph - 2) & 1:
                    self.poll_local(ph, 28, 8)
                    a("buffer_wbl2 sc1")
                    a.wait_all()
        self.finish()

    def body(self, slow):
        self.slow = slow
        a = self.a
        if slow:
            a("L_p1_slow:")
        a.lg_done = a.lg_n
        self.p1_q()
        self.p2()
        if self.stop == 2:
            return self.finish()
        self.p3()
        if self.stop == 3:
            return self.finish()
        self.p45()
        self.finish()

    def flush_tail(self):
        for blk in self.tail:
            for t in blk:
                self.a(t)
        self.tail = []

    def build(self):
        a = self.a
        self.entry()
        self.p1_front()
        self.p1_gemm()
        self.body(False)
        self.in_helper = True
        self.helper()
        self.helper_tail()
        self.in_helper = False
        self.flush_tail()
        a("L_abort:")
        a("s_mov_b64 exec, -1")
        a("L_end:")
        if self.prof:
            a(f"s_lshl_b32 {s(sT0)}, s2, 2")
            a(f"s_add_u32 {s(sT0)}, {s(sT0)}, {s(sW)}")
            a(f"s_lshl_b32 {s(sT0)}, {s(sT0)}, 8")
            a(f"s_add_u32 {s(sT0)}, {s(sT0)}, {PROF}")
            a("s_waitcnt vmcnt(0)")
            self.stamp(20)
            a(f"v_lshrrev_b32 v8, 2, {v(vL16)}")
            a(f"buffer_store_dword {v(vSTAMP)}, v8, {srd(SWS)}, {s(sT0)} offen")
        if self.o.get("diag_cycles"):
            a(f"s_mov_b32 {s(sT0)}, {self.o['diag_cycles'] // 1024}")
            a("L_diag:")
            for i in range(256):
                a(f"v_fma_f32 v{8 + i % 16}, v8, v9, v10")
            a(f"s_sub_u32 {s(sT0)}, {s(sT0)}, 1")
            a(f"s_cmp_lg_u32 {s(sT0)}, 0")
            a("s_cbranch_scc1 L_diag")
        if self.o.get("diag_wall"):
            a("s_waitcnt vmcnt(0)")
            a(f"v_readlane_b32 s101, {v(vSTAMP)}, 0")
            a("L_diag:")
            a(f"s_memrealtime {s(sST, 2)}")
            a("s_waitcnt lgkmcnt(0)")
            a(f"s_sub_u32 {s(sT0)}, {s(sST)}, s101")
            a(f"s_cmp_lt_u32 {s(sT0)}, {self.o['diag_wall']}")
            a("s_cbranch_scc1 L_diag")
        a("L_exit:")
        a("s_endpgm")
        a("L_fast_end:")
        self.body(True)
        self.flush_tail()
        a("s_endpgm")
        return a.text()


HEADER = """; Fused adaLN block: x + ga*Attn(LN(x)*(1+ca)+sa), then + gb*ReGLU-FFN(LN(.)*(1+cb)+sb); one persistent launch.
; per-launch value derived from ws[0]. Each group checks at run time (HW_REG_XCC_ID) that its members share a die;
; @launch grid=(256,1,1) block=(256,1,1) lds={lds}
.amdgcn_target "amdgcn-amd-amdhsa--gfx950"
.text
.globl {k}
.p2align 8
.type {k},@function
{k}:
"""
FOOTER = """
.section .rodata,"a"
.p2align 6
.amdhsa_kernel {k}
  .amdhsa_next_free_vgpr 512
  .amdhsa_next_free_sgpr 102
  .amdhsa_accum_offset 256
  .amdhsa_group_segment_fixed_size 0
  .amdhsa_kernarg_size 96
  .amdhsa_user_sgpr_count 2
  .amdhsa_user_sgpr_kernarg_segment_ptr 1
  .amdhsa_system_sgpr_workgroup_id_x 1
  .amdhsa_float_denorm_mode_32 3
.end_amdhsa_kernel
"""


def generate(prof=False, stop=None, opts=None):
    g = Gen(prof, stop, opts)
    body = g.build()
    return HEADER.format(k=KNAME, lds=LDS_BYTES) + body + FOOTER.format(k=KNAME), g


if __name__ == "__main__":
    out = sys.argv[1] if len(sys.argv) > 1 else f"cdna_kernels/{NAME}.s"
    opts = dict(kv.split("=") for kv in sys.argv[2:])
    opts = {k: int(x) for k, x in opts.items()}
    text, g = generate(prof=bool(opts.pop("prof", 0)), stop=opts.pop("stop", None), opts=opts)
    open(out, "w").write(text)
    print("wrote", out, len(text), "bytes;", len(g.a.ins), "lines;", g.a.nops, "hazard nops; model", getattr(g, "model", None))
    import collections
    print("gap histogram", sorted(collections.Counter(getattr(g, "gaps", [])).items()))
```

```python
import sys, re, collections
import gen
from asmlib import Ins
opts = {k: int(x, 0) for k, x in (kv.split("=") for kv in sys.argv[1:])}
text, g = gen.generate(prof=True, opts=opts)
lines = text.split("\n")
cur = collections.Counter(); last = "entry"
for l in lines:
    t = l.strip()
    if t.startswith("L_helper:"): break
    if not t or t.startswith((";", ".")) or t.endswith(":"): continue
    m = re.match(r"v_writelane_b32 v7, s96, (\d+)", t)
    if m:
        i = int(m.group(1))
        if i >= 32:
            n = sum(v for k, v in cur.items() if k != "cyc")
            print(f"->{i-32:2d}: n={n:4d} issue~{cur['cyc']:5d} mfma32={cur['mfma']*32:5d} | " + " ".join(f"{k}={v}" for k, v in sorted(cur.items()) if k != "cyc"))
            cur = collections.Counter()
        continue
    if t.startswith(("s_memtime", "s_memrealtime")): continue
    i = Ins(t)
    k = i.kind
    c = 4
    if k == "trans" or "permlane" in i.op: c = 8
    if k == "mfma": c = 8
    if k == "vmem": c = 16
    if i.op == "s_nop": c = 4 * i.states; k = "nop"
    if i.op == "s_waitcnt": k = "wait"
    if i.op == "s_barrier": k = "bar"
    if i.op.startswith("ds_write_b128"): c = 30
    cur[k] += 1; cur["cyc"] += c
```
